```python
import torch

def _softmax(x, axis=-1):
    return torch.softmax(x, dim=axis)
def _gelu(x):
    return torch.nn.functional.gelu(x, approximate="tanh")
def _silu(x):
    return torch.nn.functional.silu(x)
def _sigmoid(x):
    return torch.sigmoid(x)
def _layernorm(x, axis=-1, eps=1e-5):
    m = x.mean(dim=axis, keepdim=True)
    v = x.var(dim=axis, keepdim=True, unbiased=False)
    return (x - m) / torch.sqrt(v + eps)
def _scatter_add(tgt, idx, src, axis=0):
    return tgt.clone().index_add_(axis, idx, src)
def _segment_sum(src, seg, n):
    out = torch.zeros((n,) + src.shape[1:], dtype=src.dtype)
    return out.index_add_(0, seg, src)
def _pad(x, pw):
    flat = tuple(v for pair in reversed(pw) for v in pair)
    return torch.nn.functional.pad(x, flat)

kernel_name = 'gated_mix__compressed_kv_cla__gqa_block_cached__decode'

def setup_inputs():

    _w = (lambda a: (lambda t: t.to(torch.bfloat16) if t.is_floating_point() else t)(torch.as_tensor(a)))
    def _A_setup():
        B, H, Sq, Sk, D, M = 1, 32, 1, 16384, 128, 576
        Dc = 4 * D
        return {
            "x": _w((lambda *s: torch.randn(*s, dtype=torch.bfloat16) * 0.05)(B, Sq, M)),
            "c_kv": _w((lambda *s: torch.randn(*s, dtype=torch.bfloat16) * 0.2)(B, Sk, Dc)),
            "w_q": _w((lambda *s: torch.randn(*s, dtype=torch.bfloat16) * 3.2)(M, H, D) * (M ** -0.5)),
            "w_uk": _w((lambda *s: torch.randn(*s, dtype=torch.bfloat16) * 3.2)(Dc, H, D) * (Dc ** -0.5)),
            "w_uv": _w((lambda *s: torch.randn(*s, dtype=torch.bfloat16) * 0.2)(Dc, H, D) * (Dc ** -0.5)),
            "w_o": _w((lambda *s: torch.randn(*s, dtype=torch.bfloat16) * 0.2)(H, D, M) * ((H * D) ** -0.5)),
        }
    _A_in = _A_setup()

    def _B_setup():
        B, Sq, D = 1, 1, 576
        Hq, Hkv, Sk, Dh = 32, 16, 16384, 128
        assert Hq % Hkv == 0, (Hq, Hkv)
        return {
            "x": _w((lambda *s: torch.randn(*s, dtype=torch.bfloat16) * 0.05)(B, Sq, D)),
            "k_cache": _w((lambda *s: torch.randn(*s, dtype=torch.bfloat16) * 3.2)(B, Hkv, Sk, Dh)),
            "v_cache": _w((lambda *s: torch.randn(*s, dtype=torch.bfloat16) * 0.1)(B, Hkv, Sk, Dh)),
            "wq": _w((lambda *s: torch.randn(*s, dtype=torch.bfloat16) * 3.2)(D, Hq * Dh) * (D ** -0.5)),
            "wo": _w((lambda *s: torch.randn(*s, dtype=torch.bfloat16) * 0.1)(Hq * Dh, D) * ((Hq * Dh) ** -0.5)),
        }
    _B_in = _B_setup()

    return {
        "A_x": _A_in["x"],
        "A_c_kv": _A_in["c_kv"],
        "A_w_q": _A_in["w_q"],
        "A_w_uk": _A_in["w_uk"],
        "A_w_uv": _A_in["w_uv"],
        "A_w_o": _A_in["w_o"],
        "B_x": _B_in["x"],
        "B_k_cache": _B_in["k_cache"],
        "B_v_cache": _B_in["v_cache"],
        "B_wq": _B_in["wq"],
        "B_wo": _B_in["wo"],
        "gate_w": _w((lambda *s: torch.randn(*s, dtype=torch.bfloat16) * 0.05)(576) * 16.0),
    }

def reference(A_x, A_c_kv, A_w_q, A_w_uk, A_w_uv, A_w_o, B_x, B_k_cache, B_v_cache, B_wq, B_wo, gate_w):
    def _A_ref(x, c_kv, w_q, w_uk, w_uv, w_o):
        B, Sq, M = x.shape[0], x.shape[1], x.shape[2]
        Sk = c_kv.shape[1]
        H, D = w_q.shape[1], w_q.shape[2]
        q = torch.einsum("bqm,mhd->bhqd", x, w_q)
        k = torch.einsum("bkc,chd->bhkd", c_kv, w_uk)
        v = torch.einsum("bkc,chd->bhkd", c_kv, w_uv)
        scores = torch.einsum("bhqd,bhkd->bhqk", q, k) * (D ** -0.5)
        off = Sk - Sq
        qi = torch.arange(Sq)[:, None]
        kj = torch.arange(Sk)[None, :]
        cmask = kj <= (qi + off)
        scores = torch.where(cmask[None, None], scores, -1e9)
        p = _softmax(scores, axis=-1)
        ctx = torch.einsum("bhqk,bhkd->bhqd", p, v)
        return torch.einsum("bhqd,hdm->bqm", ctx, w_o)

    def _B_ref(x, k_cache, v_cache, wq, wo):
        B, Sq, D = x.shape
        Hq, Dh = 32, 128
        Hkv = k_cache.shape[1]
        rep = Hq // Hkv
        q = (lambda x, *d: x.permute(*d))((x @ wq).reshape(B, Sq, Hq, Dh), 0, 2, 1, 3)
        k = (lambda x, n, axis: torch.repeat_interleave(x, n, dim=axis))(k_cache, rep, axis=1)
        v = (lambda x, n, axis: torch.repeat_interleave(x, n, dim=axis))(v_cache, rep, axis=1)
        scores = torch.einsum("bhqd,bhkd->bhqk", q, k) * (Dh ** -0.5)
        p = _softmax(scores, axis=-1)
        o = torch.einsum("bhqk,bhkd->bhqd", p, v)
        return (lambda x, *d: x.permute(*d))(o, 0, 2, 1, 3).reshape(B, Sq, Hq * Dh) @ wo

    x = A_x
    g = _sigmoid((x * gate_w).sum(-1, keepdims=True))
    a = _A_ref(x, A_c_kv, A_w_q, A_w_uk, A_w_uv, A_w_o)
    b = _B_ref(x, B_k_cache, B_v_cache, B_wq, B_wo)
    return g * a + (1 - g) * b
```

```python
import re

TRANS = ("v_exp_f32", "v_log_f32", "v_rcp_f32", "v_rsq_f32", "v_sqrt_f32")
NO_DST_S = ("s_cmp", "s_cbranch", "s_branch", "s_waitcnt", "s_barrier", "s_nop", "s_endpgm",
            "s_setprio", "s_bitcmp", "s_sleep")


def regs_of(tok):
    tok = tok.strip()
    m = re.fullmatch(r"([vas])(\d+)", tok)
    if m:
        return [(m.group(1), int(m.group(2)))]
    m = re.fullmatch(r"([vas])\[(\d+):(\d+)\]", tok)
    if m:
        return [(m.group(1), i) for i in range(int(m.group(2)), int(m.group(3)) + 1)]
    if tok == "vcc":
        return [("s", "vcc_lo"), ("s", "vcc_hi")]
    if tok in ("vcc_lo", "vcc_hi"):
        return [("s", tok)]
    if tok == "exec":
        return [("s", "exec")]
    if tok == "m0":
        return [("s", "m0")]
    return []


class Ins:
    def __init__(self, text):
        self.text = text
        self.label = None
        t = text.strip()
        if t.endswith(":"):
            self.label = t[:-1]
            self.op = ""
            self.kind = "label"
            self.w, self.r = set(), set()
            return
        if t.startswith(".") or t.startswith(";") or not t:
            self.op = ""
            self.kind = "dir"
            self.w, self.r = set(), set()
            return
        parts = t.split(None, 1)
        self.op = parts[0]
        rest = parts[1] if len(parts) > 1 else ""
        toks, mods, cur, depth = [], "", "", 0
        i = 0
        while i < len(rest):
            ch = rest[i]
            if ch == "[":
                depth += 1
            elif ch == "]":
                depth -= 1
            if ch == "," and depth == 0:
                toks.append(cur.strip())
                cur = ""
            else:
                cur += ch
            i += 1
        if cur.strip():
            last = cur.strip().split(None, 1)
            toks.append(last[0])
            mods = last[1] if len(last) > 1 else ""
        self.toks, self.mods = toks, mods
        op = self.op
        self.dpp = any(k in mods for k in ("quad_perm", "row_ror", "row_shr", "row_shl", "row_mirror",
                                          "row_half_mirror", "row_bcast", "row_newbcast"))
        R = [regs_of(x) for x in toks]
        flat = lambda L: set(x for y in L for x in y)
        w, r = set(), set()
        if op.startswith("v_mfma"):
            self.kind = "mfma"
            w = flat(R[:1]); r = flat(R[1:])
            self.srcc = set(R[3]) if len(R) > 3 else set()
            self.srcab = flat(R[1:3])
        elif op.startswith("v_"):
            self.kind = "valu"
            w = flat(R[:1]); r = flat(R[1:])
            if op.startswith("v_permlane"):
                w = flat(R[:2]); r = flat(R[:2])
            if op.startswith(("v_fmac", "v_dot2c", "v_writelane")) or self.dpp:
                r |= flat(R[:1])
            if op.endswith(("_co_u32",)) or op.startswith(("v_add_co", "v_addc_co", "v_sub_co")):
                w = flat(R[:2]); r = flat(R[2:])
        elif op.startswith(("buffer_load", "global_load")):
            self.kind = "vmem"
            if " lds" in " " + mods or "_lds_" in op:
                self.dma = True
                r = flat(R) | {("s", "m0")}
            else:
                w = flat(R[:1]); r = flat(R[1:])
        elif op.startswith(("buffer_store", "global_store", "buffer_atomic", "global_atomic")):
            self.kind = "vmem"
            r = flat(R)
            self.store_data = set(R[0]) if op.startswith("buffer") else set(R[1])
            self.wide = op.endswith(("x3", "x4"))
        elif op.startswith("ds_read"):
            self.kind = "ds"
            w = flat(R[:1]); r = flat(R[1:])
        elif op.startswith("ds_"):
            self.kind = "ds"
            r = flat(R)
        elif op.startswith("s_"):
            self.kind = "salu"
            if op.startswith(NO_DST_S):
                r = flat(R)
            else:
                w = flat(R[:1]); r = flat(R[1:])
            if op.startswith("s_cbranch_vcc"):
                r |= {("s", "vcc_lo"), ("s", "vcc_hi")}
        else:
            raise ValueError("unknown op: " + text)
        self.w, self.r = w, r

    def states(self):
        if self.kind in ("label", "dir"):
            return 0
        if self.op == "s_nop":
            return int(self.toks[0], 0) + 1
        return 1


def vg(s):
    return set(x for x in s if x[0] in "va")


def sg(s):
    return set(x for x in s if x[0] == "s")


def need(p, c):
    if p.kind in ("label", "dir") or c.kind in ("label", "dir"):
        return 0
    n = 0
    pw, cr, cw = p.w, c.r, c.w
    if p.kind == "valu":
        dl = p.op.startswith("v_dot2")
        vw = vg(pw)
        raw = vw & cr
        if dl:
            if c.op == p.op:
                srcab = set()
                for t in c.toks[1:3]:
                    srcab |= set(regs_of(t))
                if vw & srcab:
                    n = max(n, 3)
            elif vw & (cr | cw):
                n = max(n, 3)
        if raw:
            if c.kind == "valu" and c.dpp:
                n = max(n, 2)
            if c.kind == "valu" and c.op.startswith("v_permlane"):
                n = max(n, 2)
            if c.kind == "valu" and c.op.startswith(("v_readlane", "v_readfirstlane")):
                n = max(n, 1)
            if c.kind == "mfma":
                n = max(n, 2)
            if p.op.startswith(TRANS) and c.kind in ("valu", "mfma"):
                n = max(n, 1)
        sw = sg(pw)
        if sw & cr:
            if c.kind == "vmem":
                n = max(n, 5)
            elif c.kind in ("valu", "mfma"):
                n = max(n, 2)
                if c.op.startswith(("v_readlane", "v_writelane")) and len(c.toks) > 2 and \
                        sw & set(regs_of(c.toks[2])):
                    n = max(n, 4)
    if p.kind == "mfma":
        if c.kind == "mfma":
            if pw & c.srcab:
                n = max(n, 8)
            if pw & c.srcc and c.srcc != pw:
                n = max(n, 6)
            if pw & c.w and c.srcc != pw:
                n = max(n, 8)
        elif pw & (cr | cw):
            n = max(n, 8)
        if c.kind == "valu" and p.srcc & cw:
            n = max(n, 3)
    if p.kind == "vmem" and getattr(p, "wide", False):
        if p.store_data & cw:
            n = max(n, 2 if c.kind == "valu" else 1)
    if p.kind == "salu" and ("s", "m0") in pw and getattr(c, "dma", False):
        n = max(n, 1)
    return n


class Asm:
    def __init__(self):
        self.ins = []

    def __call__(self, text):
        for line in text.split("\n"):
            line = line.strip()
            if line:
                self.ins.append(Ins(line))

    def label(self, name):
        self.ins.append(Ins(name + ":"))

    def _required(self, hist, c):
        dist, req = 0, 0
        for p in reversed(hist):
            if dist >= 12:
                break
            req = max(req, need(p, c) - dist)
            dist += p.states()
        return req

    def finalize(self):
        out = []
        for c in self.ins:
            if c.kind not in ("label", "dir"):
                k = self._required([x for x in out if x.kind not in ("label", "dir")][-14:], c)
                if k > 0:
                    out.append(Ins("s_nop %d" % (k - 1)))
            out.append(c)
        changed = True
        while changed:
            changed = False
            pos = {x.label: i for i, x in enumerate(out) if x.label}
            for i, b in enumerate(out):
                if b.kind == "salu" and b.op.startswith(("s_cbranch", "s_branch")):
                    tgt = pos[b.toks[0]]
                    hist = [x for x in out[:i + 1] if x.kind not in ("label", "dir")][-14:]
                    j = tgt + 1
                    seen = 0
                    while j < len(out) and seen < 12:
                        c = out[j]
                        if c.kind not in ("label", "dir"):
                            k = self._required(hist, c)
                            if k > 0:
                                out.insert(j, Ins("s_nop %d" % (k - 1)))
                                changed = True
                                break
                            hist = hist + [c]
                            seen += c.states()
                            if c.op.startswith(("s_branch", "s_endpgm")):
                                break
                        j += 1
                    if changed:
                        break
        self.out = out
        lines = []
        for x in out:
            lines.append(x.text if x.kind == "label" else "    " + x.text)
        return "\n".join(lines) + "\n"
```

```python
import argparse
import math
import struct
import sys
import os

sys.path.insert(0, os.path.dirname(os.path.abspath(__file__)))
from asmlib import Asm

NAME = "gated_mix__compressed_kv_cla__gqa_block_cached__decode"


def f32(x):
    return "0x%08x" % struct.unpack("<I", struct.pack("<f", x))[0]


LOG2E = math.log2(math.e)
C_SCALE = LOG2E / math.sqrt(128.0)

WS_EPOCH = 0
WS_X1 = 0x10000
WS_X2 = 0x30000
WS_ML = 0x40000
WS_X4A = 0x48000
WS_X4B = 0x60000
WS_X4L = 0xD0000
WS_X5 = 0xE0000
WS_X3 = 0x100000
WS_DBG = 0x300000
WS_SIZE = 0x600000
EPOCH_STEP = 0x9E3779B1

LU = 131072
LQ = LU
LQA = LU
LMX = LU
LP = LU + 1024
LL = LU + 8192
LT = LU + 9216
LR = LU + 12288
LO = LU + 16384
LML = LU + 20480
LDS_BYTES = 163840

sID, sT, sW, sTAG, sT1, sT2 = 2, 3, 4, 5, 6, 7
P_X, P_C, P_WQA, P_UK, P_UV, P_WOA = 8, 10, 12, 14, 16, 18
P_K, P_V, P_WQB, P_WOB, P_G, P_OUT, P_WS = 22, 24, 26, 28, 30, 32, 36
R_CODE, R_X, R_QW, R_WS = 40, 44, 48, 52
R_K, R_V, R_K2, R_V2, R_TW, R_G, R_OUT = 56, 60, 64, 68, 72, 76, 80
R_UK, R_C, R_UV = 56, 60, 64
sG, sJM, sB, sHH = 84, 85, 86, 84
sOFF, sCNT, sIT, sBIAS = 87, 88, 89, 90
sX1, sT3 = 91, 92
sMSK = 94
sMS2 = 96
sT4, sT5 = 98, 99
sST = 100

vL, vO16 = 1, 6
vM = [2, 3, 4, 5]
vA0, vA1, vA2 = 7, 8, 9
vSTAMP, vDUMMY = 254, 255


def v(a, n=1):
    return "v%d" % a if n == 1 else "v[%d:%d]" % (a, a + n - 1)


def ar(a, n=1):
    return "a%d" % a if n == 1 else "a[%d:%d]" % (a, a + n - 1)


def s(a, n=1):
    return "s%d" % a if n == 1 else "s[%d:%d]" % (a, a + n - 1)


class Gen:
    def __init__(self, cfg):
        self.c = cfg
        self.a = Asm()
        self.uid = 0
        self.nstamp = 0

    def lab(self, base):
        self.uid += 1
        return "L_%s_%d" % (base, self.uid)

    def srd(self, r, ptr, size, off=None):
        a = self.a
        if off is None:
            a("s_mov_b32 %s, %s" % (s(r), s(ptr)))
            a("s_mov_b32 %s, %s" % (s(r + 1), s(ptr + 1)))
        else:
            a("s_add_u32 %s, %s, %s" % (s(r), s(ptr), off))
            a("s_addc_u32 %s, %s, 0" % (s(r + 1), s(ptr + 1)))
        a("s_mov_b32 %s, %s" % (s(r + 2), size))
        a("s_mov_b32 %s, 0x20000" % s(r + 3))

    def stamp(self, idx):
        if not self.c.debug:
            return
        a = self.a
        a("s_memrealtime %s" % s(sST, 2))
        a("s_waitcnt lgkmcnt(0)")
        a("v_writelane_b32 %s, %s, %d" % (v(vSTAMP), s(sST), idx))

    def dump_stamps(self):
        if not self.c.debug:
            return
        a = self.a
        a("s_lshl_b32 %s, %s, 2" % (s(sT1), s(sID)))
        a("s_add_u32 %s, %s, %s" % (s(sT1), s(sT1), s(sW)))
        a("s_lshl_b32 %s, %s, 8" % (s(sT1), s(sT1)))
        a("s_add_u32 %s, %s, 0x%x" % (s(sT1), s(sT1), WS_DBG))
        a("v_lshlrev_b32 %s, 2, %s" % (v(vA0), v(vL)))
        a("buffer_store_dword %s, %s, %s, %s offen" % (v(vSTAMP), v(vA0), s(R_WS, 4), s(sT1)))

    def dump(self, slot, reg):
        if not self.c.debug:
            return
        a = self.a
        a("s_lshl_b32 %s, %s, 2" % (s(sST), s(sID)))
        a("s_add_u32 %s, %s, %s" % (s(sST), s(sST), s(sW)))
        a("s_lshl_b32 %s, %s, 11" % (s(sST), s(sST)))
        a("s_add_u32 %s, %s, 0x%x" % (s(sST), s(sST), WS_DBG + 0x40000 + slot * 256))
        a("v_lshlrev_b32 v253, 2, %s" % v(vL))
        a("buffer_store_dword %s, v253, %s, %s offen" % (v(reg), s(R_WS, 4), s(sST)))

    def end(self):
        self.dump_stamps()
        self.a("s_endpgm")

    def mask64(self, reg, lo, hi=None):
        hi = lo if hi is None else hi
        self.a("s_mov_b32 %s, 0x%x" % (s(reg), lo))
        self.a("s_mov_b32 %s, 0x%x" % (s(reg + 1), hi))

    def tagcheck(self, acc, tags, first=True):
        a = self.a
        for i, t in enumerate(tags):
            if i == 0 and first:
                a("v_xor_b32 %s, %s, %s" % (v(acc), s(sTAG), v(t)))
            else:
                a("v_bitop3_b32 %s, %s, %s, %s bitop3:0xf6" % (v(acc), v(acc), v(t), s(sTAG)))

    def poll(self, name, issue, check, nwait="0", between=None, first_wait=None):
        a = self.a
        retry, ok = self.lab(name + "_retry"), self.lab(name + "_ok")
        a("s_movk_i32 %s, 0x%x" % (s(sCNT), self.c.spin))
        if between is not None:
            issue()
            between()
            a("s_waitcnt vmcnt(%d)" % first_wait)
            check()
            a("s_cbranch_vccz %s" % ok)
        a.label(retry)
        issue()
        a("s_waitcnt vmcnt(0)")
        check()
        a("s_cbranch_vccz %s" % ok)
        a("s_sub_u32 %s, %s, 1" % (s(sCNT), s(sCNT)))
        a("s_cbranch_scc0 %s" % retry)
        a.label(ok)

    def allsum_g(self, x, t, op="v_add_f32"):
        a = self.a
        a("v_mov_b32 %s, %s" % (v(t), v(x)))
        a("v_permlane16_swap_b32 %s, %s" % (v(x), v(t)))
        a("%s %s, %s, %s" % (op, v(x), v(x), v(t)))
        a("v_mov_b32 %s, %s" % (v(t), v(x)))
        a("v_permlane32_swap_b32 %s, %s" % (v(x), v(t)))
        a("%s %s, %s, %s" % (op, v(x), v(x), v(t)))

    def allsum_row(self, x, op="v_add_f32"):
        a = self.a
        o = op + "_dpp"
        for m in ("row_ror:8", "quad_perm:[1,0,3,2]", "quad_perm:[2,3,0,1]", "row_half_mirror"):
            a("%s %s, %s, %s %s row_mask:0xf bank_mask:0xf" % (o, v(x), v(x), v(x), m))

    def delta_mfma(self, acc, adata, dup, btmp, first):
        a = self.a
        for i in range(4):
            a("v_and_b32 %s, %s, %s" % (v(btmp + i), v(vM[i]), v(dup)))
        a("v_mfma_f32_16x16x32_bf16 %s, %s, %s, %s" % (v(acc, 4), adata, v(btmp, 4),
                                                      "0" if first else v(acc, 4)))

    def prologue(self):
        a, c = self.a, self.c
        a("s_cmp_ge_u32 s2, 0x100")
        a("s_cbranch_scc1 L_exit")
        a("s_load_dwordx16 s[8:23], s[0:1], 0x0")
        a("s_load_dwordx8 s[24:31], s[0:1], 0x40")
        a("s_load_dwordx4 s[32:35], s[0:1], 0x60")
        a("s_load_dwordx2 s[36:37], s[0:1], 0x70")
        if c.prefetch:
            a("s_getpc_b64 %s" % s(R_CODE, 2))
            a.label("L_pc")
            a("s_mov_b32 %s, L_codeend-L_pc" % s(R_CODE + 2))
            a("s_mov_b32 %s, 0x20000" % s(R_CODE + 3))
            a("s_lshr_b32 %s, s2, 6" % s(sT))
            a("s_lshl_b32 %s, %s, 14" % (s(sT), s(sT)))
            a("v_lshlrev_b32 %s, 6, v0" % v(vA0))
            a("v_add_u32 %s, %s, %s" % (v(vA0), s(sT), v(vA0)))
            a("buffer_load_dword %s, %s, %s, 0 offen" % (v(vDUMMY), v(vA0), s(R_CODE, 4)))
        a("v_and_b32 %s, 63, v0" % v(vL))
        a("v_lshrrev_b32 %s, 6, v0" % v(vA1))
        a("v_lshlrev_b32 %s, 4, %s" % (v(vO16), v(vL)))
        a("v_readfirstlane_b32 %s, %s" % (s(sW), v(vA1)))
        if c.debug:
            a("v_mov_b32 %s, 0" % v(vSTAMP))
        a("s_and_b32 %s, s2, 1" % s(sT1))
        a("s_mul_i32 %s, %s, 288" % (s(sT1), s(sT1)))
        a("s_mul_i32 %s, %s, 72" % (s(sT2), s(sW)))
        a("s_add_u32 %s, %s, %s" % (s(sT1), s(sT1), s(sT2)))
        a("v_lshrrev_b32 %s, 3, %s" % (v(vA1), v(vL)))
        a("v_add_u32 %s, %s, %s" % (v(vA0), s(sT1), v(vA1)))
        a("v_lshlrev_b32 %s, 1, %s" % (v(vA0), v(vA0)))
        a("v_and_b32 %s, 7, %s" % (v(vA2), v(vL)))
        a("v_lshlrev_b32 %s, 4, %s" % (v(vA2), v(vA2)))
        a("v_lshlrev_b32 %s, 13, %s" % (v(vA1), v(vA1)))
        a("v_add_u32 %s, %s, %s" % (v(vA1), v(vA1), v(vA2)))
        a("s_lshl_b32 %s, %s, 13" % (s(sOFF), s(sT1)))
        a("s_lshr_b32 %s, s2, 1" % s(sT2))
        a("s_and_b32 %s, %s, 63" % (s(sT2), s(sT2)))
        a("s_lshl_b32 %s, %s, 7" % (s(sT2), s(sT2)))
        a("s_add_u32 %s, %s, %s" % (s(sOFF), s(sOFF), s(sT2)))
        a("s_waitcnt lgkmcnt(0)")
        a("s_load_dword %s, %s, 0x%x" % (s(sTAG), s(P_WS, 2), WS_EPOCH))
        self.srd(R_X, P_X, "1152")
        a("s_cmp_ge_u32 s2, 0x80")
        a("s_cselect_b32 %s, %s, %s" % (s(R_QW), s(P_WQB), s(P_WQA)))
        a("s_cselect_b32 %s, %s, %s" % (s(R_QW + 1), s(P_WQB + 1), s(P_WQA + 1)))
        a("s_mov_b32 %s, 4718592" % s(R_QW + 2))
        a("s_mov_b32 %s, 0x20000" % s(R_QW + 3))
        for t in range(9):
            a("buffer_load_ushort %s, %s, %s, 0 offen offset:%d" % (v(204 + t), v(vA0), s(R_X, 4), 16 * t))
        for t in range(9):
            a("buffer_load_dwordx4 %s, %s, %s, %s offen %s" % (v(168 + 4 * t, 4), v(vA1), s(R_QW, 4), s(sOFF), c.nt))
            if t < 8:
                a("s_add_u32 %s, %s, 0x10000" % (s(sOFF), s(sOFF)))
        self.srd(R_WS, P_WS, "0x%x" % WS_SIZE)
        self.stamp(0)
        a("s_cmp_lt_u32 s2, 32")
        a("s_cbranch_scc1 L_a_pre")
        self.b_pre()
        a("s_branch L_q")
        a.label("L_a_pre")
        self.a_pre()
        a.label("L_q")

    def b_pre(self):
        a, c = self.a, self.c
        a("s_sub_u32 %s, s2, 32" % s(sB))
        a("s_mul_i32 %s, %s, 4682" % (s(sG), s(sB)))
        a("s_lshr_b32 %s, %s, 16" % (s(sG), s(sG)))
        a("s_mul_i32 %s, %s, 14" % (s(sT1), s(sG)))
        a("s_sub_u32 %s, %s, %s" % (s(sJM), s(sB), s(sT1)))
        a("s_lshl_b32 %s, %s, 2" % (s(sT1), s(sJM)))
        a("s_add_u32 %s, %s, %s" % (s(sT1), s(sT1), s(sW)))
        a("s_mul_i32 %s, %s, 73" % (s(sT2), s(sT1)))
        a("s_min_u32 %s, %s, 8" % (s(sT3), s(sT1)))
        a("s_add_u32 %s, %s, %s" % (s(sT2), s(sT2), s(sT3)))
        a("s_lshl_b32 %s, %s, 10" % (s(sT2), s(sT2)))
        a("s_lshl_b32 %s, %s, 22" % (s(sT3), s(sG)))
        a("s_add_u32 %s, %s, %s" % (s(sT2), s(sT2), s(sT3)))
        self.srd(R_K, P_K, "75776", s(sT2))
        self.srd(R_V, P_V, "75776", s(sT2))
        a("s_cmp_lt_u32 %s, 8" % s(sT1))
        a("s_cselect_b32 %s, 75776, 0" % s(sT3))
        a("s_cselect_b32 %s, 0, 0xff800000" % s(sBIAS))
        self.srd(R_K2, P_K, s(sT3), s(sT2))
        self.srd(R_V2, P_V, s(sT3), s(sT2))
        a("s_mov_b32 %s, 73728" % s(sT1))
        a("buffer_load_dwordx4 %s, %s, %s, %s offen %s" % (v(104, 4), v(vO16), s(R_K, 4), s(sT1), c.nt))
        a("buffer_load_dwordx4 %s, %s, %s, %s offen offset:1024 %s" % (v(108, 4), v(vO16), s(R_K2, 4), s(sT1), c.nt))
        a("s_mov_b32 %s, 0" % s(sOFF))
        for i in range(c.nq):
            self.kv_load(40 + 4 * i, R_K, i)
        a("s_add_u32 %s, %s, 16" % (s(sX1), s(sG)))
        self.mask64(sMSK, 0xFF00FF00)
        a("s_waitcnt vmcnt(%d)" % (c.nq + 2))

    def kv_load(self, reg, srd, i, off=None):
        a, c = self.a, self.c
        off = sOFF if off is None else off
        if i < 4:
            so = s(off)
        else:
            if i % 4 == 0:
                a("s_add_u32 %s, %s, %d" % (s(sT4), s(off), 4096 * (i // 4)))
            so = s(sT4)
        o = " offset:%d" % (1024 * (i % 4)) if i % 4 else ""
        a("buffer_load_dwordx4 %s, %s, %s, %s offen%s %s" % (v(reg, 4), v(vO16), s(srd, 4), so, o, c.nt))

    def a_pre(self):
        a, c = self.a, self.c
        a("s_lshl_b32 %s, s2, 8" % s(sT1))
        self.srd(R_UK, P_UK, "4194304")
        self.srd(R_UV, P_UV, "4194304")
        self.srd(R_V2, P_V, "0")
        a("s_lshl_b32 %s, s2, 19" % s(sT2))
        self.srd(R_C, P_C, "524288", s(sT2))
        a("v_lshrrev_b32 %s, 4, %s" % (v(vA0), v(vL)))
        a("v_lshlrev_b32 %s, 18, %s" % (v(vA0), v(vA0)))
        a("v_and_b32 %s, 15, %s" % (v(vA2), v(vL)))
        a("v_lshlrev_b32 %s, 4, %s" % (v(vA2), v(vA2)))
        a("v_add_u32 %s, %s, %s" % (v(vA0), v(vA0), v(vA2)))
        a("s_lshl_b32 %s, %s, 20" % (s(sOFF), s(sW)))
        a("s_add_u32 %s, %s, %s" % (s(sOFF), s(sOFF), s(sT1)))
        for t in range(32):
            a("buffer_load_dwordx4 %s, %s, %s, %s offen %s" % (v(40 + 4 * t, 4), v(vA0), s(R_UK, 4), s(sOFF), c.nt))
            if t < 31:
                a("s_add_u32 %s, %s, 0x2000" % (s(sOFF), s(sOFF)))
        a("s_lshr_b32 %s, s2, 1" % s(sX1))
        a("s_bitcmp1_b32 s2, 0")
        a("s_cselect_b64 %s, -1, 0" % s(sMSK, 2))
        a("s_waitcnt vmcnt(32)")

    def q_phase(self):
        a, c = self.a, self.c
        self.stamp(1)
        a("v_and_b32 %s, 1, %s" % (v(vA0), v(vL)))
        a("v_lshlrev_b32 %s, 4, %s" % (v(vA0), v(vA0)))
        a("v_mov_b32 %s, 0xffff" % v(vA1))
        a("v_lshlrev_b32 %s, %s, %s" % (v(vA1), v(vA0), v(vA1)))
        for i in range(4):
            self.mask64(sMS2, 0x03030303 << (2 * i))
            a("v_cndmask_b32 %s, 0, %s, %s" % (v(vM[i]), v(vA1), s(sMS2, 2)))
        for t in range(9):
            a("v_lshl_or_b32 %s, %s, 16, %s" % (v(204 + t), v(204 + t), v(204 + t)))
        for t in range(9):
            self.delta_mfma(222, v(168 + 4 * t, 4), 204 + t, 214 + 4 * (t & 1), t == 0)
        a("v_lshrrev_b32 %s, 4, %s" % (v(vA0), v(vL)))
        a("v_and_b32 %s, 1, %s" % (v(vA1), v(vA0)))
        a("v_lshlrev_b32 %s, 10, %s" % (v(vA1), v(vA1)))
        a("v_lshrrev_b32 %s, 1, %s" % (v(vA0), v(vA0)))
        a("v_lshlrev_b32 %s, 2, %s" % (v(vA0), v(vA0)))
        a("v_add_u32 %s, %s, %s" % (v(vA0), v(vA0), v(vA1)))
        a("v_and_b32 %s, 7, %s" % (v(vA1), v(vL)))
        a("v_lshlrev_b32 %s, 5, %s" % (v(vA1), v(vA1)))
        a("s_lshl_b32 %s, %s, 3" % (s(sT1), s(sW)))
        a("s_add_u32 %s, %s, %d" % (s(sT1), s(sT1), LQ))
        a("v_add3_u32 %s, %s, %s, %s" % (v(vA0), v(vA0), v(vA1), s(sT1)))
        self.mask64(sMS2, 0x00FF00FF, 0xFF00FF00)
        a("s_mov_b64 exec, %s" % s(sMS2, 2))
        for r in range(4):
            a("ds_write_b32 %s, %s offset:%d" % (v(vA0), v(222 + r), 256 * r))
        a("s_mov_b64 exec, -1")
        a("s_waitcnt lgkmcnt(0)")
        a("s_add_u32 %s, %s, 0x%x" % (s(sTAG), s(sTAG), EPOCH_STEP))
        a("s_barrier")
        skip = self.lab("qpub")
        a("s_cmp_lg_u32 %s, 0" % s(sW))
        a("s_cbranch_scc1 %s" % skip)
        a("v_lshlrev_b32 %s, 5, %s" % (v(vA0), v(vL)))
        a("v_add_u32 %s, %d, %s" % (v(vA0), LQ, v(vA0)))
        a("ds_read_b128 %s, %s" % (v(226, 4), v(vA0)))
        a("ds_read_b128 %s, %s offset:16" % (v(230, 4), v(vA0)))
        a("v_bfe_u32 %s, %s, 1, 2" % (v(vA1), v(vL)))
        a("v_lshlrev_b32 %s, 10, %s" % (v(vA1), v(vA1)))
        a("v_lshrrev_b32 %s, 3, %s" % (v(vA2), v(vL)))
        a("v_lshlrev_b32 %s, 4, %s" % (v(vA2), v(vA2)))
        a("v_add_u32 %s, %s, %s" % (v(vA1), v(vA1), v(vA2)))
        a("v_and_b32 %s, 1, %s" % (v(vA2), v(vL)))
        a("v_lshlrev_b32 %s, 3, %s" % (v(vA2), v(vA2)))
        a("v_add_u32 %s, %s, %s" % (v(vA1), v(vA1), v(vA2)))
        a("s_lshr_b32 %s, s2, 3" % s(sT1))
        a("s_lshl_b32 %s, %s, 12" % (s(sT1), s(sT1)))
        a("s_bfe_u32 %s, s2, 0x10002" % s(sT2))
        a("s_lshl_b32 %s, %s, 9" % (s(sT2), s(sT2)))
        a("s_add_u32 %s, %s, %s" % (s(sT1), s(sT1), s(sT2)))
        a("s_and_b32 %s, s2, 1" % s(sT2))
        a("s_lshl_b32 %s, %s, 8" % (s(sT2), s(sT2)))
        a("s_add_u32 %s, %s, %s" % (s(sT1), s(sT1), s(sT2)))
        a("s_bfe_u32 %s, s2, 0x10001" % s(sT2))
        a("s_lshl_b32 %s, %s, 7" % (s(sT2), s(sT2)))
        a("s_add_u32 %s, %s, %s" % (s(sT1), s(sT1), s(sT2)))
        a("s_add_u32 %s, %s, 0x%x" % (s(sT1), s(sT1), WS_X1))
        a("s_waitcnt lgkmcnt(0)")
        a("v_add_f32 v226, v226, v227")
        a("v_add_f32 v228, v228, v229")
        a("v_add_f32 v230, v230, v231")
        a("v_add_f32 v232, v232, v233")
        a("v_add_f32 v226, v226, v228")
        a("v_add_f32 v230, v230, v232")
        a("v_add_f32 v226, v226, v230")
        a("v_mul_f32 v226, %s, v226" % f32(C_SCALE))
        a("v_mov_b32 v227, %s" % s(sTAG))
        a("buffer_store_dwordx2 v[226:227], %s, %s, %s offen sc0 sc1" % (v(vA1), s(R_WS, 4), s(sT1)))
        a.label(skip)
        self.stamp(2)

    def q_gather(self):
        a, c = self.a, self.c
        a("s_lshl_b32 %s, %s, 12" % (s(sX1), s(sX1)))
        a("s_add_u32 %s, %s, 0x%x" % (s(sX1), s(sX1), WS_X1))

        def issue():
            for k in range(4):
                a("buffer_load_dwordx4 %s, %s, %s, %s offen offset:%d sc1" % (
                    v(226 + 4 * k, 4), v(vO16), s(R_WS, 4), s(sX1), 1024 * k))

        def check():
            self.tagcheck(242, [226 + 4 * k + j for k in range(4) for j in (1, 3)])
            a("v_cmp_ne_u32 vcc, 0, v242")

        def between():
            isa, join = self.lab("qg_a"), self.lab("qg_j")
            a("s_cmp_lt_u32 s2, 32")
            a("s_cbranch_scc1 %s" % isa)
            a("s_mov_b32 %s, 73728" % s(sT1))
            a("buffer_load_dwordx4 %s, %s, %s, %s offen %s" % (v(112, 4), v(vO16), s(R_V, 4), s(sT1), c.nt))
            a("buffer_load_dwordx4 %s, %s, %s, %s offen offset:1024 %s" % (v(116, 4), v(vO16), s(R_V2, 4), s(sT1), c.nt))
            for i in range(c.nq):
                self.kv_load(72 + 4 * i, R_V, i)
            a("s_waitcnt vmcnt(%d)" % (c.nq + 2))
            a("s_branch %s" % join)
            a.label(isa)
            a("s_waitcnt vmcnt(0)")
            a.label(join)

        self.poll("x1", issue, check, between=between, first_wait=63)
        self.stamp(3)
        vals = [226 + 4 * k + j for k in range(4) for j in (0, 2)]
        for i, x in enumerate(vals):
            a("v_mov_b32 %s, %s" % (v(242 + i), v(x)))
        for i, x in enumerate(vals):
            a("v_permlane16_swap_b32 %s, %s" % (v(x), v(242 + i)))
        for i, x in enumerate(vals):
            a("v_add_f32 %s, %s, %s" % (v(x), v(x), v(242 + i)))
        for k in range(4):
            a("v_cvt_pk_bf16_f32 %s, %s, %s" % (v(242 + k), v(226 + 4 * k), v(228 + 4 * k)))
        for k in range(4):
            a("v_mov_b32 %s, %s" % (v(246 + k), v(242 + k)))
        for k in range(4):
            a("v_permlane32_swap_b32 %s, %s" % (v(242 + k), v(246 + k)))
        for k in range(4):
            a("v_cndmask_b32 %s, %s, %s, %s" % (v(32 + k), v(242 + k), v(246 + k), s(sMSK, 2)))
            a("v_cndmask_b32 %s, %s, %s, %s" % (v(36 + k), v(246 + k), v(242 + k), s(sMSK, 2)))
        a("s_cmp_lt_u32 s2, 32")
        a("s_cbranch_scc1 L_a_main")

    def b_block(self, nq, kreg, vreg, kwait, vwait, knext, vnext, masked_last=False):
        a = self.a
        SA, SB, O, M, L = 16, 24, 10, 14, 15
        for i in range(nq):
            a("s_waitcnt vmcnt(%d)" % kwait(i))
            k = kreg + 4 * i
            for j in range(4):
                a("v_dot2_f32_bf16 %s, %s, %s, %s" % (v(SA + i), v(k + j), v(32 + j), "0" if j == 0 else v(SA + i)))
                a("v_dot2_f32_bf16 %s, %s, %s, %s" % (v(SB + i), v(k + j), v(36 + j), "0" if j == 0 else v(SB + i)))
            knext(i)
        for i in range(nq):
            a("v_add_f32_dpp %s, %s, %s row_ror:8 row_mask:0xf bank_mask:0xf" % (v(SA + i), v(SB + i), v(SA + i)))
        for m in ("quad_perm:[1,0,3,2]", "quad_perm:[2,3,0,1]", "row_half_mirror"):
            for i in range(nq):
                a("v_add_f32_dpp %s, %s, %s %s row_mask:0xf bank_mask:0xf" % (v(SA + i), v(SA + i), v(SA + i), m))
        if masked_last:
            a("v_add_f32 %s, %s, %s" % (v(SA + nq - 1), s(sBIAS), v(SA + nq - 1)))
        BM, T, AL = 130, 131, 132
        a("v_max_f32 %s, %s, %s" % (v(BM), v(SA), v(SA + 1)))
        i = 2
        while i < nq:
            if i + 1 < nq:
                a("v_max3_f32 %s, %s, %s, %s" % (v(BM), v(BM), v(SA + i), v(SA + i + 1)))
                i += 2
            else:
                a("v_max_f32 %s, %s, %s" % (v(BM), v(BM), v(SA + i)))
                i += 1
        self.allsum_g(BM, T, "v_max_f32")
        a("v_max_f32 %s, %s, %s" % (v(BM), v(BM), v(M)))
        a("v_sub_f32 %s, %s, %s" % (v(AL), v(M), v(BM)))
        for i in range(nq):
            a("v_sub_f32 %s, %s, %s" % (v(SA + i), v(SA + i), v(BM)))
        a("v_exp_f32 %s, %s" % (v(AL), v(AL)))
        for i in range(nq):
            a("v_exp_f32 %s, %s" % (v(SA + i), v(SA + i)))
        a("v_mov_b32 %s, %s" % (v(M), v(BM)))
        a("v_mul_f32 %s, %s, %s" % (v(L), v(L), v(AL)))
        for r in range(4):
            a("v_mul_f32 %s, %s, %s" % (v(O + r), v(O + r), v(AL)))
        for i in range(nq):
            a("v_cvt_pk_bf16_f32 %s, %s, %s" % (v(SB + i), v(SA + i), v(SA + i)))
        for i in range(nq):
            a("v_add_f32 %s, %s, %s" % (v(L), v(L), v(SA + i)))
        for i in range(nq):
            bt = 122 + 4 * (i & 1)
            for j in range(4):
                a("v_and_b32 %s, %s, %s" % (v(bt + j), v(vM[j]), v(SB + i)))
            a("s_waitcnt vmcnt(%d)" % vwait(i))
            a("v_mfma_f32_16x16x32_bf16 %s, %s, %s, %s" % (v(O, 4), v(vreg + 4 * i, 4), v(bt, 4), v(O, 4)))
            vnext(i)

    def tail_loads(self):
        a, c = self.a, self.c
        a("s_and_b32 %s, %s, 1" % (s(sT1), s(sW)))
        a("s_lshl_b32 %s, %s, 1" % (s(sT2), s(sG)))
        a("s_add_u32 %s, %s, %s" % (s(sT1), s(sT1), s(sT2)))
        a("s_mul_i32 %s, %s, %d" % (s(sT1), s(sT1), 128 * 1152))
        a("s_lshl_b32 %s, %s, 7" % (s(sT2), s(sJM)))
        a("s_add_u32 %s, %s, %s" % (s(sT1), s(sT1), s(sT2)))
        a("s_cmp_ge_u32 %s, 2" % s(sW))
        a("s_cselect_b32 %s, %s, %s" % (s(R_TW), s(P_WOA), s(P_WOB)))
        a("s_cselect_b32 %s, %s, %s" % (s(R_TW + 1), s(P_WOA + 1), s(P_WOB + 1)))
        a("s_cmp_lt_u32 %s, 9" % s(sJM))
        a("s_cselect_b32 %s, 4718592, 0" % s(R_TW + 2))
        a("s_cselect_b32 %s, 1152, 0" % s(sT3))
        a("s_mov_b32 %s, 0x20000" % s(R_TW + 3))
        self.srd(R_G, P_G, s(sT3))
        a("s_mov_b32 %s, %s" % (s(R_X + 2), s(sT3)))
        a("v_lshrrev_b32 %s, 3, %s" % (v(vA0), v(vL)))
        a("v_mul_u32_u24 %s, 1152, %s" % (v(vA0), v(vA0)))
        a("v_and_b32 %s, 7, %s" % (v(vA1), v(vL)))
        a("v_lshlrev_b32 %s, 4, %s" % (v(vA1), v(vA1)))
        a("v_add_u32 %s, %s, %s" % (v(vA0), v(vA0), v(vA1)))
        a("buffer_load_dwordx4 %s, %s, %s, 0 offen" % (v(204, 4), v(vO16), s(R_X, 4)))
        a("buffer_load_dwordx4 %s, %s, %s, 0 offen offset:1024" % (v(208, 4), v(vO16), s(R_X, 4)))
        a("buffer_load_dwordx4 %s, %s, %s, 0 offen" % (v(212, 4), v(vO16), s(R_G, 4)))
        a("buffer_load_dwordx4 %s, %s, %s, 0 offen offset:1024" % (v(216, 4), v(vO16), s(R_G, 4)))
        for t in range(16):
            a("buffer_load_dwordx4 %s, %s, %s, %s offen %s" % (v(140 + 4 * t, 4), v(vA0), s(R_TW, 4), s(sT1), c.nt))
            if t < 15:
                a("s_add_u32 %s, %s, 9216" % (s(sT1), s(sT1)))
        return 20

    def b_main(self):
        a, c = self.a, self.c
        nq = c.nq
        nb = 72 // nq
        for r in range(4):
            a("v_mov_b32 %s, 0" % v(10 + r))
        a("v_mov_b32 v14, 0xff800000")
        a("v_mov_b32 v15, 0")
        self.b_block(2, 104, 112, lambda i: nq + 2, lambda i: nq + 1 - i, lambda i: None, lambda i: None,
                     masked_last=True)
        self.stamp(4)
        loop = self.lab("b_loop")
        a("s_movk_i32 %s, %d" % (s(sIT), nb - 1))
        a.label(loop)
        a("s_add_u32 %s, %s, %d" % (s(sT5), s(sOFF), nq * 1024))
        self.b_block(nq, 40, 72, lambda i: 2 * nq - 1, lambda i: 2 * nq - 1,
                     lambda i: self.kv_load(40 + 4 * i, R_K, i, sT5),
                     lambda i: self.kv_load(72 + 4 * i, R_V, i, sT5))
        a("s_mov_b32 %s, %s" % (s(sOFF), s(sT5)))
        a("s_sub_u32 %s, %s, 1" % (s(sIT), s(sIT)))
        a("s_cmp_lg_u32 %s, 0" % s(sIT))
        a("s_cbranch_scc1 %s" % loop)
        self.stamp(5)
        nt = self.tail_loads()
        self.b_block(nq, 40, 72, lambda i: 2 * nq - 1 - i + nt, lambda i: nq - 1 - i + nt,
                     lambda i: None, lambda i: None)
        self.stamp(6)
        self.gate()
        self.b_epilogue()

    def gate(self):
        a = self.a
        G, X, Wt = 220, 204, 212
        a("s_waitcnt vmcnt(16)")
        a("v_dot2_f32_bf16 %s, %s, %s, 0" % (v(G), v(X), v(Wt)))
        for j in range(1, 8):
            a("v_dot2_f32_bf16 %s, %s, %s, %s" % (v(G), v(X + j), v(Wt + j), v(G)))
        self.allsum_row(G)
        self.allsum_g(G, 221)
        a("v_mul_f32 %s, %s, %s" % (v(G), f32(-LOG2E), v(G)))
        a("v_exp_f32 %s, %s" % (v(G), v(G)))
        a("v_add_f32 %s, 1.0, %s" % (v(G), v(G)))
        a("v_rcp_f32 %s, %s" % (v(G), v(G)))

    def b_epilogue(self):
        a, c = self.a, self.c
        O, M, L = 10, 14, 15
        self.allsum_g(L, 130)
        a("v_bfe_u32 %s, %s, 3, 1" % (v(vA0), v(vL)))
        a("v_lshlrev_b32 %s, 5, %s" % (v(vA2), v(vA0)))
        a("v_lshlrev_b32 %s, 11, %s" % (v(vA0), v(vA0)))
        a("v_lshrrev_b32 %s, 4, %s" % (v(vA1), v(vL)))
        a("v_lshlrev_b32 %s, 9, %s" % (v(vA1), v(vA1)))
        a("v_add_u32 %s, %s, %s" % (v(vA0), v(vA0), v(vA1)))
        a("v_and_b32 %s, 7, %s" % (v(vA1), v(vL)))
        a("v_lshlrev_b32 %s, 4, %s" % (v(vA1), v(vA1)))
        a("s_lshl_b32 %s, %s, 2" % (s(sT1), s(sW)))
        a("s_add_u32 %s, %s, %d" % (s(sT2), s(sT1), LO))
        a("v_add3_u32 %s, %s, %s, %s" % (v(vA0), v(vA0), v(vA1), s(sT2)))
        a("s_add_u32 %s, %s, %d" % (s(sT2), s(sT1), LML))
        a("v_add_u32 %s, %s, %s" % (v(vA2), s(sT2), v(vA2)))
        for r in range(4):
            a("ds_write_b32 %s, %s offset:%d" % (v(vA0), v(O + r), 128 * r))
        a("ds_write_b32 %s, %s" % (v(vA2), v(M)))
        a("ds_write_b32 %s, %s offset:16" % (v(vA2), v(L)))
        a("s_waitcnt lgkmcnt(0)")
        a("s_barrier")
        skip = self.lab("b_pub")
        a("s_cmp_ge_u32 %s, 2" % s(sW))
        a("s_cbranch_scc1 %s" % skip)
        a("s_lshl_b32 %s, %s, 11" % (s(sT1), s(sW)))
        a("s_add_u32 %s, %s, %d" % (s(sT1), s(sT1), LO))
        a("v_lshlrev_b32 %s, 5, %s" % (v(vA0), v(vL)))
        a("v_add_u32 %s, %s, %s" % (v(vA0), s(sT1), v(vA0)))
        a("s_lshl_b32 %s, %s, 5" % (s(sT1), s(sW)))
        a("s_add_u32 %s, %s, %d" % (s(sT1), s(sT1), LML))
        a("v_mov_b32 %s, %s" % (v(vA1), s(sT1)))
        a("ds_read_b128 v[40:43], %s" % v(vA1))
        a("ds_read_b128 v[44:47], %s offset:16" % v(vA1))
        a("ds_read_b128 v[48:51], %s" % v(vA0))
        a("ds_read_b128 v[52:55], %s offset:16" % v(vA0))
        a("s_lshl_b32 %s, %s, 11" % (s(sT1), s(sB)))
        a("s_lshl_b32 %s, %s, 10" % (s(sT2), s(sW)))
        a("s_add_u32 %s, %s, %s" % (s(sT1), s(sT1), s(sT2)))
        a("s_add_u32 %s, %s, 0x%x" % (s(sT1), s(sT1), WS_X4B))
        a("s_lshl_b32 %s, %s, 1" % (s(sT2), s(sB)))
        a("s_add_u32 %s, %s, %s" % (s(sT2), s(sT2), s(sW)))
        a("s_lshl_b32 %s, %s, 7" % (s(sT2), s(sT2)))
        a("s_add_u32 %s, %s, 0x%x" % (s(sT2), s(sT2), WS_X4L))
        a("s_waitcnt lgkmcnt(2)")
        a("v_max3_f32 v56, v40, v41, v42")
        a("v_max_f32 v56, v56, v43")
        for i in range(4):
            a("v_sub_f32 %s, %s, v56" % (v(40 + i), v(40 + i)))
        for i in range(4):
            a("v_exp_f32 %s, %s" % (v(40 + i), v(40 + i)))
        a("v_mul_f32 v57, v40, v44")
        for i in range(1, 4):
            a("v_fmac_f32 v57, %s, %s" % (v(40 + i), v(44 + i)))
        a("s_waitcnt lgkmcnt(0)")
        a("v_mul_f32 v58, v40, v48")
        a("v_mul_f32 v60, v40, v52")
        for i in range(1, 4):
            a("v_fmac_f32 v58, %s, %s" % (v(40 + i), v(48 + i)))
            a("v_fmac_f32 v60, %s, %s" % (v(40 + i), v(52 + i)))
        a("v_rcp_f32 v62, v57")
        a("v_log_f32 v63, v57")
        a("v_mov_b32 v59, %s" % s(sTAG))
        a("v_mov_b32 v61, %s" % s(sTAG))
        a("v_mul_f32 v58, v58, v62")
        a("v_mul_f32 v60, v60, v62")
        a("v_add_f32 v64, v56, v63")
        a("v_mov_b32 v65, %s" % s(sTAG))
        a("buffer_store_dwordx4 v[58:61], %s, %s, %s offen sc0 sc1" % (v(vO16), s(R_WS, 4), s(sT1)))
        a("v_mov_b32 %s, 0" % v(vA0))
        a("s_mov_b64 exec, 1")
        a("buffer_store_dwordx2 v[64:65], %s, %s, %s offen sc0 sc1" % (v(vA0), s(R_WS, 4), s(sT2)))
        a("s_mov_b64 exec, -1")
        a.label(skip)
        self.stamp(7)
        a("s_cmp_lt_u32 %s, 9" % s(sJM))
        a("s_cbranch_scc1 L_tail")
        a("s_cmp_lg_u32 %s, 9" % s(sJM))
        a("s_cbranch_scc1 L_done")
        a("s_cmp_ge_u32 %s, 9" % s(sG))
        a("s_cbranch_scc1 L_done")
        a("s_cmp_lg_u32 %s, 0" % s(sW))
        a("s_cbranch_scc1 L_done")
        self.final()
        a.label("L_done")
        self.end()

    def final(self):
        a, c = self.a, self.c
        a("s_lshl_b32 %s, %s, 13" % (s(sT1), s(sG)))
        a("s_add_u32 %s, %s, 0x%x" % (s(sX1), s(sT1), WS_X5))
        a("v_and_b32 %s, 31, %s" % (v(vA0), v(vL)))
        a("v_lshlrev_b32 %s, 4, %s" % (v(vA0), v(vA0)))
        a("v_lshrrev_b32 %s, 5, %s" % (v(vA1), v(vL)))
        a("v_lshlrev_b32 %s, 9, %s" % (v(vA1), v(vA1)))
        a("v_add_u32 %s, %s, %s" % (v(vA0), v(vA0), v(vA1)))
        self.srd(R_OUT, P_OUT, "1152")

        def issue():
            for i in range(8):
                if i == 4:
                    a("s_add_u32 %s, %s, 4096" % (s(sT2), s(sX1)))
                a("buffer_load_dwordx4 %s, %s, %s, %s offen offset:%d sc1" % (
                    v(40 + 4 * i, 4), v(vA0), s(R_WS, 4), s(sX1 if i < 4 else sT2), 1024 * (i % 4)))

        def check():
            self.tagcheck(72, [40 + 4 * i + j for i in range(8) for j in (1, 3)])
            a("v_cmp_ne_u32 vcc, 0, v72")

        self.poll("x5", issue, check)
        self.stamp(12)
        for j in (0, 2):
            for i in (0, 2, 4, 6):
                a("v_add_f32 %s, %s, %s" % (v(40 + 4 * i + j), v(40 + 4 * i + j), v(44 + 4 * i + j)))
        for j in (0, 2):
            a("v_add_f32 %s, %s, %s" % (v(40 + j), v(40 + j), v(48 + j)))
            a("v_add_f32 %s, %s, %s" % (v(56 + j), v(56 + j), v(64 + j)))
        for j in (0, 2):
            a("v_add_f32 %s, %s, %s" % (v(40 + j), v(40 + j), v(56 + j)))
        a("v_mov_b32 v44, v40")
        a("v_mov_b32 v45, v42")
        a("v_permlane32_swap_b32 v40, v44")
        a("v_permlane32_swap_b32 v42, v45")
        a("v_add_f32 v40, v40, v44")
        a("v_add_f32 v42, v42, v45")
        a("v_cvt_pk_bf16_f32 v40, v40, v42")
        a("v_lshlrev_b32 %s, 2, %s" % (v(vA0), v(vL)))
        a("s_lshl_b32 %s, %s, 7" % (s(sT1), s(sG)))
        a("s_mov_b32 exec_hi, 0")
        a("buffer_store_dword v40, %s, %s, %s offen" % (v(vA0), s(R_OUT, 4), s(sT1)))
        done = self.lab("fin")
        a("s_cmp_lg_u32 %s, 0" % s(sG))
        a("s_cbranch_scc1 %s" % done)
        a("v_mov_b32 v41, %s" % s(sTAG))
        a("v_mov_b32 %s, %d" % (v(vA0), WS_EPOCH))
        a("s_mov_b64 exec, 1")
        a("buffer_store_dword v41, %s, %s, 0 offen sc0 sc1" % (v(vA0), s(R_WS, 4)))
        a.label(done)
        a("s_mov_b64 exec, -1")
        self.stamp(13)

    def reduce_wu8(self, acc, lds, dst):
        a = self.a
        a("v_lshrrev_b32 %s, 4, %s" % (v(vA0), v(vL)))
        a("v_and_b32 %s, 1, %s" % (v(vA1), v(vA0)))
        a("v_lshlrev_b32 %s, 10, %s" % (v(vA1), v(vA1)))
        a("v_lshrrev_b32 %s, 1, %s" % (v(vA0), v(vA0)))
        a("v_lshlrev_b32 %s, 2, %s" % (v(vA0), v(vA0)))
        a("v_add_u32 %s, %s, %s" % (v(vA0), v(vA0), v(vA1)))
        a("v_and_b32 %s, 7, %s" % (v(vA1), v(vL)))
        a("v_lshlrev_b32 %s, 5, %s" % (v(vA1), v(vA1)))
        a("s_lshl_b32 %s, %s, 3" % (s(sT1), s(sW)))
        a("s_add_u32 %s, %s, %d" % (s(sT1), s(sT1), lds))
        a("v_add3_u32 %s, %s, %s, %s" % (v(vA0), v(vA0), v(vA1), s(sT1)))
        self.mask64(sMS2, 0x00FF00FF, 0xFF00FF00)
        a("s_mov_b64 exec, %s" % s(sMS2, 2))
        for r in range(4):
            a("ds_write_b32 %s, %s offset:%d" % (v(vA0), v(acc + r), 256 * r))
        a("s_mov_b64 exec, -1")
        a("s_waitcnt lgkmcnt(0)")
        a("s_barrier")

    def tail(self):
        a, c = self.a, self.c
        a.label("L_tail")
        G = 220
        isa, join = self.lab("t_a"), self.lab("t_j")
        a("s_and_b32 %s, %s, 1" % (s(sT3), s(sW)))
        a("s_cmp_ge_u32 %s, 2" % s(sW))
        a("s_cbranch_scc1 %s" % isa)
        a("v_sub_f32 %s, 1.0, %s" % (v(G), v(G)))
        a("s_mul_i32 %s, %s, %d" % (s(sX1), s(sG), 14 * 2048))
        a("s_lshl_b32 %s, %s, 10" % (s(sT1), s(sT3)))
        a("s_add_u32 %s, %s, %s" % (s(sX1), s(sX1), s(sT1)))
        a("s_add_u32 %s, %s, 0x%x" % (s(sX1), s(sX1), WS_X4B))
        a("s_mul_i32 %s, %s, %d" % (s(sT5), s(sG), 14 * 256))
        a("s_lshl_b32 %s, %s, 7" % (s(sT1), s(sT3)))
        a("s_add_u32 %s, %s, %s" % (s(sT5), s(sT5), s(sT1)))
        a("s_add_u32 %s, %s, 0x%x" % (s(sT5), s(sT5), WS_X4L))
        a("v_and_b32 %s, 15, %s" % (v(vA1), v(vL)))
        a("v_min_u32 %s, 13, %s" % (v(vA1), v(vA1)))
        a("v_lshlrev_b32 %s, 8, %s" % (v(vA1), v(vA1)))

        def issue():
            a("buffer_load_dwordx2 v[96:97], %s, %s, %s offen sc1" % (v(vA1), s(R_WS, 4), s(sT5)))
            a("s_mov_b32 %s, %s" % (s(sT2), s(sX1)))
            for i in range(14):
                o = " offset:2048" if i & 1 else ""
                a("buffer_load_dwordx4 %s, %s, %s, %s offen%s sc1" % (v(40 + 4 * i, 4), v(vO16), s(R_WS, 4), s(sT2), o))
                if i & 1 and i < 13:
                    a("s_add_u32 %s, %s, 4096" % (s(sT2), s(sT2)))

        def check():
            self.tagcheck(98, [97] + [40 + 4 * i + j for i in range(14) for j in (1, 3)])
            a("v_cmp_ne_u32 vcc, 0, v98")

        self.poll("x4b", issue, check)
        self.stamp(8)
        a("v_mov_b32 v98, v96")
        self.allsum_row(98, "v_max_f32")
        a("v_sub_f32 v96, v96, v98")
        a("v_exp_f32 v96, v96")
        self.mask64(sMS2, 0x3FFF3FFF)
        a("v_cndmask_b32 v96, 0, v96, %s" % s(sMS2, 2))
        a("v_mov_b32 v98, v96")
        self.allsum_row(98)
        a("v_rcp_f32 v98, v98")
        a("v_mul_f32 v96, v96, v98")
        for i in range(14):
            a("v_readlane_b32 %s, v96, %d" % (s(8 + i), i))
        a("v_mul_f32 v100, %s, v40" % s(8))
        a("v_mul_f32 v101, %s, v42" % s(8))
        for i in range(1, 14):
            a("v_fmac_f32 v100, %s, %s" % (s(8 + i), v(40 + 4 * i)))
            a("v_fmac_f32 v101, %s, %s" % (s(8 + i), v(42 + 4 * i)))
        a("s_branch %s" % join)
        a.label(isa)
        a("s_lshl_b32 %s, %s, 1" % (s(sX1), s(sG)))
        a("s_add_u32 %s, %s, %s" % (s(sX1), s(sX1), s(sT3)))
        a("s_lshl_b32 %s, %s, 10" % (s(sX1), s(sX1)))
        a("s_add_u32 %s, %s, 0x%x" % (s(sX1), s(sX1), WS_X4A))

        def issue_a():
            a("buffer_load_dwordx4 v[40:43], %s, %s, %s offen sc1" % (v(vO16), s(R_WS, 4), s(sX1)))

        def check_a():
            self.tagcheck(98, [41, 43])
            a("v_cmp_ne_u32 vcc, 0, v98")

        self.poll("x4a", issue_a, check_a)
        self.stamp(8)
        a("v_mov_b32 v100, v40")
        a("v_mov_b32 v101, v42")
        a.label(join)
        self.dump(0, 100)
        self.dump(1, 101)
        self.dump(2, G)
        a("v_cvt_pk_bf16_f32 v100, v100, v100")
        a("v_cvt_pk_bf16_f32 v101, v101, v101")
        a("s_lshl_b32 %s, %s, 9" % (s(sT1), s(sW)))
        a("s_add_u32 %s, %s, %d" % (s(sT1), s(sT1), LT))
        a("v_lshlrev_b32 %s, 3, %s" % (v(vA0), v(vL)))
        a("v_add_u32 %s, %s, %s" % (v(vA0), s(sT1), v(vA0)))
        a("ds_write_b64 %s, v[100:101]" % v(vA0))
        a("v_lshrrev_b32 %s, 3, %s" % (v(vA1), v(vL)))
        a("v_lshlrev_b32 %s, 2, %s" % (v(vA1), v(vA1)))
        a("v_add_u32 %s, %s, %s" % (v(vA1), s(sT1), v(vA1)))
        for t in range(0, 16, 2):
            a("ds_read2_b32 %s, %s offset0:%d offset1:%d" % (v(40 + t, 2), v(vA1), 8 * t, 8 * t + 8))
        for t in range(16):
            if t % 2 == 0:
                a("s_waitcnt lgkmcnt(%d)" % (7 - t // 2))
            self.delta_mfma(10, v(140 + 4 * t, 4), 40 + t, 122 + 4 * (t & 1), t == 0)
        for r in range(4):
            self.dump(3 + r, 10 + r)
        self.dump(7, 140)
        for r in range(4):
            a("v_mul_f32 %s, %s, %s" % (v(10 + r), v(10 + r), v(G)))
        self.reduce_wu8(10, LR, 0)
        a("s_cmp_lg_u32 %s, 0" % s(sW))
        a("s_cbranch_scc1 L_tail_done")
        a("v_lshlrev_b32 %s, 5, %s" % (v(vA0), v(vL)))
        a("v_add_u32 %s, %d, %s" % (v(vA0), LR, v(vA0)))
        a("ds_read_b128 v[40:43], %s" % v(vA0))
        a("ds_read_b128 v[44:47], %s offset:16" % v(vA0))
        a("s_lshl_b32 %s, %s, 4" % (s(sT1), s(sJM)))
        a("s_add_u32 %s, %s, %s" % (s(sT1), s(sT1), s(sG)))
        a("s_lshl_b32 %s, %s, 9" % (s(sT1), s(sT1)))
        a("s_add_u32 %s, %s, 0x%x" % (s(sT1), s(sT1), WS_X5))
        a("v_lshlrev_b32 %s, 3, %s" % (v(vA1), v(vL)))
        a("s_waitcnt lgkmcnt(0)")
        a("v_add_f32 v40, v40, v41")
        a("v_add_f32 v42, v42, v43")
        a("v_add_f32 v44, v44, v45")
        a("v_add_f32 v46, v46, v47")
        a("v_add_f32 v40, v40, v42")
        a("v_add_f32 v44, v44, v46")
        a("v_add_f32 v40, v40, v44")
        a("v_mov_b32 v41, %s" % s(sTAG))
        a("buffer_store_dwordx2 v[40:41], %s, %s, %s offen sc0 sc1" % (v(vA1), s(R_WS, 4), s(sT1)))
        a.label("L_tail_done")
        self.stamp(9)
        self.end()

    def dma_tile(self, it_off_reg, buf_reg):
        a, c = self.a, self.c
        for grp in range(4):
            if grp == 0:
                a("s_mov_b32 m0, %s" % s(buf_reg))
                so = it_off_reg
            else:
                a("s_add_u32 %s, %s, %d" % (s(sT1), s(buf_reg), 4096 * grp))
                a("s_add_u32 %s, %s, %d" % (s(sT2), s(it_off_reg), 4096 * grp))
                a("s_mov_b32 m0, %s" % s(sT1))
                so = sT2
            for i in range(4):
                o = " offset:%d" % (1024 * i) if i else ""
                a("buffer_load_dwordx4 %s, %s, %s offen%s %s lds" % (
                    v(222 + ((4 * grp + i) & 7)), s(R_C, 4), s(so), o, c.nt))

    def a_main(self):
        a, c = self.a, self.c
        a.label("L_a_main")
        sBUF, sSRC = sT4, sT5
        for k in range(8):
            a("v_xor_b32 %s, %d, %s" % (v(222 + k), 32 * k, v(vO16)))
        a("s_lshl_b32 %s, %s, 14" % (s(sBUF), s(sW)))
        a("s_mov_b32 %s, %s" % (s(sSRC), s(sBUF)))
        self.dma_tile(sSRC, sBUF)
        S = 168
        for t in range(32):
            if t % 4 == 0:
                a("s_waitcnt vmcnt(%d)" % (16 + 28 - t))
            for j in range(4):
                a("v_dot2_f32_bf16 %s, %s, %s, %s" % (v(S + t), v(40 + 4 * t + j), v(32 + j), "0" if j == 0 else v(S + t)))
        R1, R2 = 200, 216
        for par in range(2):
            for m in range(8):
                lo, hi = S + 2 * m + par, S + 2 * (m + 8) + par
                d = R1 + 8 * par + m
                a("v_add_f32_dpp %s, %s, %s row_ror:8 row_mask:0xf bank_mask:0x3" % (v(d), v(lo), v(lo)))
                a("v_add_f32_dpp %s, %s, %s row_ror:8 row_mask:0xf bank_mask:0xc" % (v(d), v(hi), v(hi)))
        for par in range(2):
            for m in range(4):
                lo, hi = R1 + 8 * par + m, R1 + 8 * par + m + 4
                d = S + 4 * par + m
                a("v_add_f32_dpp %s, %s, %s row_half_mirror row_mask:0xf bank_mask:0x5" % (v(d), v(lo), v(lo)))
                a("v_add_f32_dpp %s, %s, %s row_half_mirror row_mask:0xf bank_mask:0xa" % (v(d), v(hi), v(hi)))
        for mod in ("quad_perm:[1,0,3,2]", "quad_perm:[2,3,0,1]"):
            for i in range(8):
                a("v_add_f32_dpp %s, %s, %s %s row_mask:0xf bank_mask:0xf" % (v(S + i), v(S + i), v(S + i), mod))
        for m in range(1, 4):
            self.mask64(sMS2, 0x11111111 << m)
            for par in range(2):
                a("v_cndmask_b32 %s, %s, %s, %s" % (v(S + 4 * par), v(S + 4 * par), v(S + 4 * par + m), s(sMS2, 2)))
        a("v_cvt_pk_bf16_f32 %s, %s, %s" % (v(S), v(S), v(S + 4)))
        a("v_mov_b32 %s, %s" % (v(S + 1), s(sTAG)))
        a("s_lshl_b32 %s, s2, 11" % s(sT1))
        a("s_lshl_b32 %s, %s, 9" % (s(sT2), s(sW)))
        a("s_add_u32 %s, %s, %s" % (s(sT1), s(sT1), s(sT2)))
        a("s_add_u32 %s, %s, 0x%x" % (s(sT1), s(sT1), WS_X2))
        a("v_lshlrev_b32 %s, 3, %s" % (v(vA0), v(vL)))
        a("buffer_store_dwordx2 %s, %s, %s, %s offen sc0 sc1" % (v(S, 2), v(vA0), s(R_WS, 4), s(sT1)))
        self.stamp(4)
        a("s_lshl_b32 %s, %s, 14" % (s(sX1), s(sW)))
        a("s_add_u32 %s, %s, 0x%x" % (s(sX1), s(sX1), WS_X2))

        def issue():
            a("s_mov_b32 %s, %s" % (s(sT3), s(sX1)))
            for i in range(16):
                o = " offset:%d" % (1024 * (i % 4)) if i % 4 else ""
                a("buffer_load_dwordx4 %s, %s, %s, %s offen%s sc1" % (v(40 + 4 * i, 4), v(vO16), s(R_WS, 4), s(sT3), o))
                if i % 4 == 3 and i < 15:
                    a("s_add_u32 %s, %s, 4096" % (s(sT3), s(sT3)))

        def check():
            self.tagcheck(104, [40 + 4 * i + j for i in range(16) for j in (1, 3)])
            a("v_cmp_ne_u32 vcc, 0, v104")

        def between():
            a("s_add_u32 %s, %s, 0x10000" % (s(sBUF), s(sBUF)))
            a("s_add_u32 %s, %s, 0x10000" % (s(sSRC), s(sSRC)))
            self.dma_tile(sSRC, sBUF)

        self.poll("x2", issue, check, between=between, first_wait=16)
        self.stamp(5)
        a("v_lshrrev_b32 %s, 4, %s" % (v(vA0), v(vL)))
        a("v_lshlrev_b32 %s, 13, %s" % (v(vA0), v(vA0)))
        a("v_and_b32 %s, 15, %s" % (v(vA1), v(vL)))
        a("v_lshlrev_b32 %s, 4, %s" % (v(vA1), v(vA1)))
        a("v_add_u32 %s, %s, %s" % (v(vA0), v(vA0), v(vA1)))
        a("s_lshl_b32 %s, %s, 20" % (s(sT1), s(sW)))
        a("s_lshl_b32 %s, s2, 8" % s(sT2))
        a("s_add_u32 %s, %s, %s" % (s(sT1), s(sT1), s(sT2)))
        for t in range(32):
            a("buffer_load_dwordx4 %s, %s, %s, %s offen %s" % (ar(128 + 4 * t, 4), v(vA0), s(R_UV, 4), s(sT1), c.nt))
            if t < 31:
                a("s_add_u32 %s, %s, 0x8000" % (s(sT1), s(sT1)))
        a("v_lshrrev_b32 %s, 1, %s" % (v(vA0), v(vL)))
        a("v_lshlrev_b32 %s, 4, %s" % (v(vA0), v(vA0)))
        a("v_and_b32 %s, 1, %s" % (v(vA1), v(vL)))
        a("v_lshlrev_b32 %s, 3, %s" % (v(vA1), v(vA1)))
        a("s_lshl_b32 %s, %s, 13" % (s(sT1), s(sW)))
        a("s_add_u32 %s, %s, %d" % (s(sT1), s(sT1), LQA))
        a("v_add_u32 %s, %s, %s" % (v(vA0), v(vA0), v(vA1)))
        for hq in range(8):
            a("v_xor_b32 %s, %d, %s" % (v(104 + hq), 32 * hq, v(vA0)))
            a("v_add_u32 %s, %s, %s" % (v(104 + hq), s(sT1), v(104 + hq)))
        for i in range(16):
            a("v_mov_b32 %s, %s" % (v(41 + 4 * i), v(42 + 4 * i)))
        for i in range(16):
            hq, half = i >> 1, i & 1
            a("ds_write_b64 %s, %s offset:%d" % (v(104 + hq), v(40 + 4 * i, 2), hq * 1024 + half * 512))
        AQ, AT = 210, 214
        a("v_and_b32 %s, 15, %s" % (v(vA0), v(vL)))
        a("v_lshlrev_b32 %s, 10, %s" % (v(vA1), v(vA0)))
        a("v_and_b32 %s, 7, %s" % (v(vA0), v(vA0)))
        a("v_lshlrev_b32 %s, 5, %s" % (v(vA0), v(vA0)))
        a("v_lshrrev_b32 %s, 4, %s" % (v(vA2), v(vL)))
        a("v_lshlrev_b32 %s, 4, %s" % (v(vA2), v(vA2)))
        for b in range(4):
            a("v_add_u32 %s, %d, %s" % (v(AQ + b), 64 * b, v(vA2)))
            a("v_xor_b32 %s, %s, %s" % (v(AQ + b), v(AQ + b), v(vA0)))
            a("v_add_u32 %s, %s, %s" % (v(AQ + b), v(AQ + b), v(vA1)))
        a("s_waitcnt lgkmcnt(0)")
        a("s_barrier")
        for b in range(4):
            a("v_add_u32 %s, %d, %s" % (v(112 + b), LQA, v(AQ + b)))
        for ht in range(2):
            for ks in range(16):
                a("ds_read_b128 %s, %s offset:%d" % (ar(ht * 64 + 4 * ks, 4), v(112 + (ks & 3)),
                                                    ht * 16384 + (ks >> 2) * 256))
        a("s_lshl_b32 %s, %s, 14" % (s(sT1), s(sW)))
        for b in range(4):
            a("v_add_u32 %s, %s, %s" % (v(AQ + b), s(sT1), v(AQ + b)))
        a("v_lshrrev_b32 %s, 4, %s" % (v(vA0), v(vL)))
        a("v_lshlrev_b32 %s, 2, %s" % (v(vA0), v(vA0)))
        a("v_bfe_u32 %s, %s, 2, 2" % (v(vA1), v(vL)))
        a("v_add_u32 %s, %s, %s" % (v(vA0), v(vA0), v(vA1)))
        a("v_and_b32 %s, 7, %s" % (v(vA1), v(vA0)))
        a("v_lshlrev_b32 %s, 5, %s" % (v(vA1), v(vA1)))
        a("v_lshlrev_b32 %s, 10, %s" % (v(vA0), v(vA0)))
        a("v_and_b32 %s, 3, %s" % (v(vA2), v(vL)))
        a("v_lshlrev_b32 %s, 3, %s" % (v(vA2), v(vA2)))
        a("s_lshl_b32 %s, %s, 8" % (s(sT1), s(sW)))
        a("v_add3_u32 %s, %s, %s, %s" % (v(vA0), v(vA0), v(vA2), s(sT1)))
        for ct in range(8):
            a("v_xor_b32 %s, %d, %s" % (v(AT + ct), 32 * ct, v(vA1)))
            a("v_add_u32 %s, %s, %s" % (v(AT + ct), v(AT + ct), v(vA0)))
        AMW, AMR, APW, APR = 230, 231, 232, 233
        a("v_and_b32 %s, 15, %s" % (v(vA0), v(vL)))
        a("v_lshlrev_b32 %s, 4, %s" % (v(vA0), v(vA0)))
        a("v_add_u32 %s, %d, %s" % (v(AMR), LMX, v(vA0)))
        a("s_lshl_b32 %s, %s, 2" % (s(sT1), s(sW)))
        a("v_add_u32 %s, %s, %s" % (v(AMW), s(sT1), v(AMR)))
        a("v_add_u32 %s, %d, %s" % (v(APR), LP, v(vO16)))
        a("s_lshr_b32 %s, %s, 1" % (s(sT1), s(sW)))
        a("s_lshl_b32 %s, %s, 10" % (s(sT1), s(sT1)))
        a("s_and_b32 %s, %s, 1" % (s(sT2), s(sW)))
        a("s_lshl_b32 %s, %s, 3" % (s(sT2), s(sT2)))
        a("s_add_u32 %s, %s, %s" % (s(sT1), s(sT1), s(sT2)))
        a("v_add_u32 %s, %s, %s" % (v(APW), s(sT1), v(APR)))
        ACC, OP, S8, M0, L0, AL, PO = 40, 104, 168, 176, 178, 180, 182
        for i in range(64):
            a("v_mov_b32 %s, 0" % v(ACC + i))
        a("v_mov_b32 %s, 0xff800000" % v(M0))
        a("v_mov_b32 %s, 0xff800000" % v(M0 + 1))
        a("v_mov_b32 %s, 0" % v(L0))
        a("v_mov_b32 %s, 0" % v(L0 + 1))
        a("s_waitcnt lgkmcnt(0)")
        a("s_barrier")
        self.stamp(6)
        a("s_mov_b32 %s, 0" % s(sIT))
        loop = self.lab("a_loop")
        a.label(loop)
        w48, w0, wd = self.lab("w48"), self.lab("w0"), self.lab("wd")
        a("s_cmp_lt_u32 %s, 2" % s(sIT))
        a("s_cbranch_scc1 %s" % w48)
        a("s_cmp_eq_u32 %s, 7" % s(sIT))
        a("s_cbranch_scc1 %s" % w0)
        a("s_waitcnt vmcnt(16)")
        a("s_branch %s" % wd)
        a.label(w48)
        a("s_waitcnt vmcnt(48)")
        a("s_branch %s" % wd)
        a.label(w0)
        a("s_waitcnt vmcnt(0)")
        a.label(wd)
        for ks in range(16):
            a("ds_read_b128 %s, %s offset:%d" % (v(OP + 4 * ks, 4), v(AQ + (ks & 3)), (ks >> 2) * 256))
        for ks in range(16):
            a("s_waitcnt lgkmcnt(%d)" % (15 - ks))
            for ht in range(2):
                a("v_mfma_f32_16x16x32_bf16 %s, %s, %s, %s" % (
                    v(S8 + 4 * ht, 4), v(OP + 4 * ks, 4), ar(ht * 64 + 4 * ks, 4), "0" if ks == 0 else v(S8 + 4 * ht, 4)))
        T0 = 198
        for ht in range(2):
            a("v_max3_f32 %s, %s, %s, %s" % (v(T0 + ht), v(S8 + 4 * ht), v(S8 + 4 * ht + 1), v(S8 + 4 * ht + 2)))
        for ht in range(2):
            a("v_max_f32 %s, %s, %s" % (v(T0 + ht), v(T0 + ht), v(S8 + 4 * ht + 3)))
        for sw in ("v_permlane16_swap_b32", "v_permlane32_swap_b32"):
            for ht in range(2):
                a("v_mov_b32 %s, %s" % (v(T0 + 2 + ht), v(T0 + ht)))
            for ht in range(2):
                a("%s %s, %s" % (sw, v(T0 + ht), v(T0 + 2 + ht)))
            for ht in range(2):
                a("v_max_f32 %s, %s, %s" % (v(T0 + ht), v(T0 + ht), v(T0 + 2 + ht)))
        for ht in range(2):
            a("ds_write_b32 %s, %s offset:%d" % (v(AMW), v(T0 + ht), 256 * ht))
        a("s_waitcnt lgkmcnt(0)")
        a("s_barrier")
        for ht in range(2):
            a("ds_read_b128 %s, %s offset:%d" % (v(T0 + 4 * ht, 4), v(AMR), 256 * ht))
        a("s_waitcnt lgkmcnt(0)")
        for ht in range(2):
            t = T0 + 4 * ht
            a("v_max3_f32 %s, %s, %s, %s" % (v(t), v(t), v(t + 1), v(t + 2)))
        for ht in range(2):
            t = T0 + 4 * ht
            a("v_max3_f32 %s, %s, %s, %s" % (v(t), v(t), v(t + 3), v(M0 + ht)))
        for ht in range(2):
            a("v_sub_f32 %s, %s, %s" % (v(AL + ht), v(M0 + ht), v(T0 + 4 * ht)))
        for ht in range(2):
            for r in range(4):
                a("v_sub_f32 %s, %s, %s" % (v(S8 + 4 * ht + r), v(S8 + 4 * ht + r), v(T0 + 4 * ht)))
        for ht in range(2):
            a("v_exp_f32 %s, %s" % (v(AL + ht), v(AL + ht)))
        for i in range(8):
            a("v_exp_f32 %s, %s" % (v(S8 + i), v(S8 + i)))
        for ht in range(2):
            a("v_mov_b32 %s, %s" % (v(M0 + ht), v(T0 + 4 * ht)))
        for ht in range(2):
            for p in range(2):
                a("v_cvt_pk_bf16_f32 %s, %s, %s" % (v(T0 + 2 * ht + p), v(S8 + 4 * ht + 2 * p), v(S8 + 4 * ht + 2 * p + 1)))
        for ht in range(2):
            a("ds_write_b64 %s, %s offset:%d" % (v(APW), v(T0 + 2 * ht, 2), 2048 * ht))
        for ht in range(2):
            a("v_mul_f32 %s, %s, %s" % (v(L0 + ht), v(L0 + ht), v(AL + ht)))
        for ht in range(2):
            for r in range(4):
                a("v_add_f32 %s, %s, %s" % (v(L0 + ht), v(L0 + ht), v(S8 + 4 * ht + r)))
        for ct in range(8):
            for ht in range(2):
                for r in range(4):
                    x = ACC + 8 * ct + 4 * ht + r
                    a("v_mul_f32 %s, %s, %s" % (v(x), v(x), v(AL + ht)))
        a("s_waitcnt lgkmcnt(0)")
        a("s_barrier")
        for ht in range(2):
            for ks in range(2):
                a("ds_read_b128 %s, %s offset:%d" % (v(PO + 4 * (2 * ht + ks), 4), v(APR), (2 * ht + ks) * 1024))
        order = [(ks, ct) for ks in range(2) for ct in range(8)]

        def tr_reads(n):
            ks, ct = order[n]
            for hf in range(2):
                a("ds_read_b64_tr_b16 %s, %s offset:%d" % (v(OP + 4 * n + 2 * hf, 2), v(AT + ct),
                                                          (32 * ks + 16 * hf) * 1024))
        for n in range(5):
            tr_reads(n)
        issued = 5
        for n in range(16):
            ks, ct = order[n]
            outstanding_after = 2 * (issued - n - 1)
            a("s_waitcnt lgkmcnt(%d)" % min(outstanding_after, 15))
            for ht in range(2):
                x = ACC + 8 * ct + 4 * ht
                a("v_mfma_f32_16x16x32_bf16 %s, %s, %s, %s" % (
                    v(x, 4), v(OP + 4 * n, 4), v(PO + 4 * (2 * ht + ks), 4), v(x, 4)))
            if issued < 16:
                tr_reads(issued)
                issued += 1
        a("s_barrier")
        nodma = self.lab("nodma")
        for b in range(4):
            a("v_xor_b32 %s, 0x10000, %s" % (v(AQ + b), v(AQ + b)))
        for ct in range(8):
            a("v_xor_b32 %s, 0x10000, %s" % (v(AT + ct), v(AT + ct)))
        a("s_cmp_ge_u32 %s, 6" % s(sIT))
        a("s_cbranch_scc1 %s" % nodma)
        a("s_xor_b32 %s, %s, 0x10000" % (s(sBUF), s(sBUF)))
        a("s_add_u32 %s, %s, 0x10000" % (s(sSRC), s(sSRC)))
        self.dma_tile(sSRC, sBUF)
        a.label(nodma)
        a("s_add_u32 %s, %s, 1" % (s(sIT), s(sIT)))
        a("s_cmp_lt_u32 %s, 8" % s(sIT))
        a("s_cbranch_scc1 %s" % loop)
        self.stamp(7)
        self.a_finish(ACC, OP, M0, L0)

    def a_finish(self, ACC, OP, M0, L0):
        a, c = self.a, self.c
        for ht in range(2):
            self.allsum_g(L0 + ht, 198 + ht)
        a("v_and_b32 %s, 15, %s" % (v(vA0), v(vL)))
        a("v_lshlrev_b32 %s, 4, %s" % (v(vA1), v(vA0)))
        a("s_lshl_b32 %s, %s, 2" % (s(sT1), s(sW)))
        a("s_add_u32 %s, %s, %d" % (s(sT1), s(sT1), LL))
        a("v_add_u32 %s, %s, %s" % (v(vA1), s(sT1), v(vA1)))
        for ht in range(2):
            a("ds_write_b32 %s, %s offset:%d" % (v(vA1), v(L0 + ht), 256 * ht))
        a("v_mul_u32_u24 %s, 2064, %s" % (v(vA0), v(vA0)))
        a("v_lshrrev_b32 %s, 4, %s" % (v(vA1), v(vL)))
        a("v_lshlrev_b32 %s, 4, %s" % (v(vA1), v(vA1)))
        a("s_lshl_b32 %s, %s, 9" % (s(sT1), s(sW)))
        a("v_add3_u32 %s, %s, %s, %s" % (v(vA0), v(vA0), v(vA1), s(sT1)))
        for ct in range(8):
            for ht in range(2):
                a("ds_write_b128 %s, %s offset:%d" % (v(vA0), v(ACC + 8 * ct + 4 * ht, 4), ht * 33024 + ct * 64))
        a("s_waitcnt lgkmcnt(0)")
        a("s_barrier")
        a("s_mul_i32 %s, %s, %d" % (s(sT1), s(sW), 8 * 2064))
        a("v_add_u32 %s, %s, %s" % (v(vA0), s(sT1), v(vO16)))
        for i in range(16):
            hq, half = i >> 1, i & 1
            a("ds_read_b128 %s, %s offset:%d" % (v(OP + 4 * i, 4), v(vA0), hq * 2064 + half * 1024))
        a("s_lshl_b32 %s, %s, 19" % (s(sT1), s(sW)))
        a("s_lshl_b32 %s, s2, 11" % s(sT2))
        a("s_add_u32 %s, %s, %s" % (s(sT1), s(sT1), s(sT2)))
        a("s_add_u32 %s, %s, 0x%x" % (s(sT1), s(sT1), WS_X3))
        for i in range(16):
            hq, half = i >> 1, i & 1
            a("s_waitcnt lgkmcnt(%d)" % (15 - i))
            o = " offset:1024" if half else ""
            a("buffer_store_dwordx4 %s, %s, %s, %s offen%s sc0 sc1" % (v(OP + 4 * i, 4), v(vO16), s(R_WS, 4), s(sT1), o))
            if half and hq < 7:
                a("s_add_u32 %s, %s, 0x10000" % (s(sT1), s(sT1)))
        a("s_waitcnt vmcnt(0)")
        a("s_barrier")
        skip = self.lab("ml")
        a("s_cmp_lg_u32 %s, 0" % s(sW))
        a("s_cbranch_scc1 %s" % skip)
        a("v_and_b32 %s, 31, %s" % (v(vA0), v(vL)))
        a("v_lshlrev_b32 %s, 4, %s" % (v(vA0), v(vA0)))
        a("v_add_u32 %s, %d, %s" % (v(vA1), LL, v(vA0)))
        a("ds_read_b128 v[200:203], %s" % v(vA1))
        self.mask64(sMS2, 0xFFFF0000)
        a("v_cndmask_b32 v204, %s, %s, %s" % (v(M0), v(M0 + 1), s(sMS2, 2)))
        a("v_mov_b32 v205, %s" % s(sTAG))
        a("v_mov_b32 v207, %s" % s(sTAG))
        a("s_lshl_b32 %s, s2, 9" % s(sT1))
        a("s_add_u32 %s, %s, 0x%x" % (s(sT1), s(sT1), WS_ML))
        a("s_waitcnt lgkmcnt(0)")
        a("v_add_f32 v200, v200, v201")
        a("v_add_f32 v202, v202, v203")
        a("v_add_f32 v206, v200, v202")
        a("s_mov_b32 exec_hi, 0")
        a("buffer_store_dwordx4 v[204:207], %s, %s, %s offen sc0 sc1" % (v(vA0), s(R_WS, 4), s(sT1)))
        a("s_mov_b64 exec, -1")
        a.label(skip)
        self.stamp(8)
        a("v_and_b32 %s, 31, %s" % (v(vA0), v(vL)))
        a("v_lshlrev_b32 %s, 9, %s" % (v(vA0), v(vA0)))
        a("s_lshl_b32 %s, s2, 4" % s(sX1))
        a("s_add_u32 %s, %s, 0x%x" % (s(sX1), s(sX1), WS_ML))

        def issue():
            a("buffer_load_dwordx4 v[200:203], %s, %s, %s offen sc1" % (v(vA0), s(R_WS, 4), s(sX1)))

        def check():
            self.tagcheck(204, [201, 203])
            a("v_cmp_ne_u32 vcc, 0, v204")

        self.poll("ml", issue, check)
        self.stamp(9)
        a("v_lshlrev_b32 %s, 3, %s" % (v(vA1), v(vL)))
        a("s_lshl_b32 %s, s2, 16" % s(sT1))
        a("s_lshl_b32 %s, %s, 9" % (s(sT2), s(sW)))
        a("s_add_u32 %s, %s, %s" % (s(sT1), s(sT1), s(sT2)))
        a("s_add_u32 %s, %s, 0x%x" % (s(sT1), s(sT1), WS_X3))
        for sp in range(32):
            o = " offset:2048" if sp & 1 else ""
            a("buffer_load_dwordx2 %s, %s, %s, %s offen%s sc1" % (v(40 + 2 * sp, 2), v(vA1), s(R_WS, 4), s(sT1), o))
            if sp & 1 and sp < 31:
                a("s_add_u32 %s, %s, 4096" % (s(sT1), s(sT1)))
        a("v_mov_b32 v204, v200")
        self.allsum_row(204, "v_max_f32")
        a("v_mov_b32 v205, v204")
        a("v_permlane16_swap_b32 v204, v205")
        a("v_max_f32 v204, v204, v205")
        a("v_sub_f32 v200, v200, v204")
        a("v_exp_f32 v200, v200")
        a("v_mul_f32 v204, v200, v202")
        self.allsum_row(204)
        a("v_mov_b32 v205, v204")
        a("v_permlane16_swap_b32 v204, v205")
        a("v_add_f32 v204, v204, v205")
        a("v_rcp_f32 v204, v204")
        a("v_mul_f32 v200, v200, v204")
        for sp in range(32):
            a("v_readlane_b32 %s, v200, %d" % (s(8 + sp), sp))
        for sp in range(32):
            if sp % 4 == 0:
                a("s_waitcnt vmcnt(%d)" % (28 - sp))
            if sp == 0:
                a("v_mul_f32 v104, %s, v40" % s(8))
                a("v_mul_f32 v105, %s, v41" % s(8))
            else:
                a("v_fmac_f32 v104, %s, %s" % (s(8 + sp), v(40 + 2 * sp)))
                a("v_fmac_f32 v105, %s, %s" % (s(8 + sp), v(41 + 2 * sp)))
        a("v_cvt_pk_bf16_f32 v104, v104, v104")
        a("v_cvt_pk_bf16_f32 v105, v105, v105")
        a("s_lshl_b32 %s, %s, 9" % (s(sT1), s(sW)))
        a("s_add_u32 %s, %s, %d" % (s(sT1), s(sT1), LT))
        a("v_lshlrev_b32 %s, 3, %s" % (v(vA0), v(vL)))
        a("v_add_u32 %s, %s, %s" % (v(vA0), s(sT1), v(vA0)))
        a("ds_write_b64 %s, v[104:105]" % v(vA0))
        a("v_lshrrev_b32 %s, 4, %s" % (v(vA1), v(vL)))
        a("v_lshlrev_b32 %s, 2, %s" % (v(vA1), v(vA1)))
        a("v_add_u32 %s, %s, %s" % (v(vA1), s(sT1), v(vA1)))
        for t in range(0, 32, 2):
            a("ds_read2_b32 %s, %s offset0:%d offset1:%d" % (v(40 + t, 2), v(vA1), 4 * t, 4 * t + 4))
        for t in range(32):
            if t % 2 == 0:
                a("s_waitcnt lgkmcnt(%d)" % (15 - t // 2))
            self.delta_mfma(108, ar(128 + 4 * t, 4), 40 + t, 112 + 4 * (t & 1), t == 0)
        a("v_lshrrev_b32 %s, 4, %s" % (v(vA0), v(vL)))
        a("v_lshlrev_b32 %s, 9, %s" % (v(vA0), v(vA0)))
        a("v_and_b32 %s, 7, %s" % (v(vA1), v(vL)))
        a("v_lshlrev_b32 %s, 4, %s" % (v(vA1), v(vA1)))
        a("s_lshl_b32 %s, %s, 2" % (s(sT1), s(sW)))
        a("s_add_u32 %s, %s, %d" % (s(sT1), s(sT1), LR))
        a("v_add3_u32 %s, %s, %s, %s" % (v(vA0), v(vA0), v(vA1), s(sT1)))
        for r in range(4):
            a("ds_write_b32 %s, %s offset:%d" % (v(vA0), v(108 + r), 128 * r))
        a("s_waitcnt lgkmcnt(0)")
        a("s_barrier")
        a("s_cmp_ge_u32 %s, 2" % s(sW))
        a("s_cbranch_scc1 L_a_done")
        a("s_lshl_b32 %s, %s, 10" % (s(sT1), s(sW)))
        a("s_add_u32 %s, %s, %d" % (s(sT1), s(sT1), LR))
        a("v_add_u32 %s, %s, %s" % (v(vA0), s(sT1), v(vO16)))
        a("ds_read_b128 v[40:43], %s" % v(vA0))
        a("s_lshl_b32 %s, s2, 10" % s(sT1))
        a("s_lshl_b32 %s, %s, 9" % (s(sT2), s(sW)))
        a("s_add_u32 %s, %s, %s" % (s(sT1), s(sT1), s(sT2)))
        a("s_add_u32 %s, %s, 0x%x" % (s(sT1), s(sT1), WS_X4A))
        a("v_lshlrev_b32 %s, 3, %s" % (v(vA1), v(vL)))
        a("s_waitcnt lgkmcnt(0)")
        a("v_add_f32 v40, v40, v41")
        a("v_add_f32 v42, v42, v43")
        a("v_add_f32 v40, v40, v42")
        a("v_mov_b32 v41, %s" % s(sTAG))
        a("buffer_store_dwordx2 v[40:41], %s, %s, %s offen sc0 sc1" % (v(vA1), s(R_WS, 4), s(sT1)))
        a.label("L_a_done")
        self.stamp(10)
        self.end()

    def build(self):
        a = self.a
        self.prologue()
        self.q_phase()
        self.q_gather()
        self.b_main()
        self.tail()
        self.a_main()
        a.label("L_exit")
        a("s_endpgm")
        a.label("L_codeend")
        body = a.finalize()
        head = open(os.path.join(os.path.dirname(os.path.abspath(__file__)), "header.txt")).read()
        head = head.replace("@LDS@", str(LDS_BYTES))
        return head + body + FOOTER


FOOTER = """.section .rodata,"a"
.p2align 6
.amdhsa_kernel %s_kernel
  .amdhsa_next_free_vgpr 512
  .amdhsa_next_free_sgpr 102
  .amdhsa_accum_offset 256
  .amdhsa_group_segment_fixed_size 0
  .amdhsa_kernarg_size 120
  .amdhsa_user_sgpr_count 2
  .amdhsa_user_sgpr_kernarg_segment_ptr 1
  .amdhsa_system_sgpr_workgroup_id_x 1
.end_amdhsa_kernel
""" % NAME


def main():
    p = argparse.ArgumentParser()
    p.add_argument("-o", default="cdna_kernels/%s.s" % NAME)
    p.add_argument("--nq", type=int, default=8)
    p.add_argument("--nt", default="nt")
    p.add_argument("--debug", action="store_true")
    p.add_argument("--no-prefetch", dest="prefetch", action="store_false")
    p.add_argument("--spin", type=lambda x: int(x, 0), default=0x2000)
    cfg = p.parse_args()
    text = Gen(cfg).build()
    open(cfg.o, "w").write(text)
    print("wrote", cfg.o, len(text), "bytes")


if __name__ == "__main__":
    main()
```

```python
import argparse
import math
import struct
import sys
import os

sys.path.insert(0, os.path.dirname(os.path.abspath(__file__)))
from asmlib import Asm

NAME = "gated_mix__compressed_kv_cla__gqa_block_cached__decode"


def f32(x):
    return "0x%08x" % struct.unpack("<I", struct.pack("<f", x))[0]


LOG2E = math.log2(math.e)
C_SCALE = LOG2E / math.sqrt(128.0)

WS_EPOCH = 0
WS_X1 = 0x10000
WS_X2 = 0x30000
WS_ML = 0x40000
WS_X4A = 0x48000
WS_X4B = 0x60000
WS_X4L = 0xD0000
WS_X5 = 0xE0000
WS_X3 = 0x100000
WS_DBG = 0x300000
WS_SIZE = 0x600000
EPOCH_STEP = 0x9E3779B1

LU = 131072
LQ = LU
LQA = LU
LMX = LU
LP = LU + 1024
LL = LU + 8192
LT = LU + 9216
LR = LU + 12288
LO = LU + 16384
LML = LU + 20480
LDS_BYTES = 163840

sID, sT, sW, sTAG, sT1, sT2 = 2, 3, 4, 5, 6, 7
P_X, P_C, P_WQA, P_UK, P_UV, P_WOA = 8, 10, 12, 14, 16, 18
P_K, P_V, P_WQB, P_WOB, P_G, P_OUT, P_WS = 22, 24, 26, 28, 30, 32, 36
R_CODE, R_X, R_QW, R_WS = 40, 44, 48, 52
R_K, R_V, R_K2, R_V2, R_TW, R_G, R_OUT = 56, 60, 64, 68, 72, 76, 80
R_UK, R_C, R_UV = 56, 60, 64
sG, sJM, sB, sHH = 84, 85, 86, 84
sOFF, sCNT, sIT, sBIAS = 87, 88, 89, 90
sX1, sT3 = 91, 92
sMSK = 94
sMS2 = 96
sT4, sT5 = 98, 99
sST = 100

vL, vO16 = 1, 6
vM = [2, 3, 4, 5]
vA0, vA1, vA2 = 7, 8, 9
vSTAMP, vDUMMY = 254, 255


def v(a, n=1):
    return "v%d" % a if n == 1 else "v[%d:%d]" % (a, a + n - 1)


def ar(a, n=1):
    return "a%d" % a if n == 1 else "a[%d:%d]" % (a, a + n - 1)


def s(a, n=1):
    return "s%d" % a if n == 1 else "s[%d:%d]" % (a, a + n - 1)


class Gen:
    def __init__(self, cfg):
        self.c = cfg
        self.a = Asm()
        self.uid = 0
        self.nstamp = 0

    def lab(self, base):
        self.uid += 1
        return "L_%s_%d" % (base, self.uid)

    def srd(self, r, ptr, size, off=None):
        a = self.a
        if off is None:
            a("s_mov_b32 %s, %s" % (s(r), s(ptr)))
            a("s_mov_b32 %s, %s" % (s(r + 1), s(ptr + 1)))
        else:
            a("s_add_u32 %s, %s, %s" % (s(r), s(ptr), off))
            a("s_addc_u32 %s, %s, 0" % (s(r + 1), s(ptr + 1)))
        a("s_mov_b32 %s, %s" % (s(r + 2), size))
        a("s_mov_b32 %s, 0x20000" % s(r + 3))

    def stamp(self, idx):
        if not self.c.debug:
            return
        a = self.a
        a("s_memrealtime %s" % s(sST, 2))
        a("s_waitcnt lgkmcnt(0)")
        a("v_writelane_b32 %s, %s, %d" % (v(vSTAMP), s(sST), idx))

    def stamp_it(self, phase, nph=5):
        if not self.c.debug:
            return
        a = self.a
        a("s_memrealtime %s" % s(sST, 2))
        a("s_mul_i32 s38, %s, %d" % (s(sIT), nph))
        a("s_add_u32 s38, s38, %d" % (16 + phase))
        a("s_waitcnt lgkmcnt(0)")
        a("s_mov_b32 m0, s38")
        a("v_writelane_b32 %s, %s, m0" % (v(vSTAMP), s(sST)))

    def dump_stamps(self):
        if not self.c.debug:
            return
        a = self.a
        a("s_lshl_b32 %s, %s, 2" % (s(sT1), s(sID)))
        a("s_add_u32 %s, %s, %s" % (s(sT1), s(sT1), s(sW)))
        a("s_lshl_b32 %s, %s, 8" % (s(sT1), s(sT1)))
        a("s_add_u32 %s, %s, 0x%x" % (s(sT1), s(sT1), WS_DBG))
        a("v_lshlrev_b32 %s, 2, %s" % (v(vA0), v(vL)))
        a("buffer_store_dword %s, %s, %s, %s offen" % (v(vSTAMP), v(vA0), s(R_WS, 4), s(sT1)))

    def dump(self, slot, reg):
        if not self.c.debug:
            return
        a = self.a
        a("s_lshl_b32 %s, %s, 2" % (s(sST), s(sID)))
        a("s_add_u32 %s, %s, %s" % (s(sST), s(sST), s(sW)))
        a("s_lshl_b32 %s, %s, 11" % (s(sST), s(sST)))
        a("s_add_u32 %s, %s, 0x%x" % (s(sST), s(sST), WS_DBG + 0x40000 + slot * 256))
        a("v_lshlrev_b32 v253, 2, %s" % v(vL))
        a("buffer_store_dword %s, v253, %s, %s offen" % (v(reg), s(R_WS, 4), s(sST)))

    def end(self):
        self.dump_stamps()
        self.a("s_endpgm")

    def mask64(self, reg, lo, hi=None):
        hi = lo if hi is None else hi
        self.a("s_mov_b32 %s, 0x%x" % (s(reg), lo))
        self.a("s_mov_b32 %s, 0x%x" % (s(reg + 1), hi))

    def tagcheck(self, acc, tags, first=True):
        a = self.a
        for i, t in enumerate(tags):
            if i == 0 and first:
                a("v_xor_b32 %s, %s, %s" % (v(acc), s(sTAG), v(t)))
            else:
                a("v_bitop3_b32 %s, %s, %s, %s bitop3:0xf6" % (v(acc), v(acc), v(t), s(sTAG)))

    def poll(self, name, issue, check, nwait="0", between=None, first_wait=None):
        a = self.a
        retry, ok = self.lab(name + "_retry"), self.lab(name + "_ok")
        a("s_movk_i32 %s, 0x%x" % (s(sCNT), self.c.spin))
        if between is not None:
            issue()
            between()
            a("s_waitcnt vmcnt(%d)" % first_wait)
            check()
            a("s_cbranch_vccz %s" % ok)
        a.label(retry)
        issue()
        a("s_waitcnt vmcnt(0)")
        check()
        a("s_cbranch_vccz %s" % ok)
        a("s_sub_u32 %s, %s, 1" % (s(sCNT), s(sCNT)))
        a("s_cbranch_scc0 %s" % retry)
        a.label(ok)

    def allsum_g(self, x, t, op="v_add_f32"):
        a = self.a
        a("v_mov_b32 %s, %s" % (v(t), v(x)))
        a("v_permlane16_swap_b32 %s, %s" % (v(x), v(t)))
        a("%s %s, %s, %s" % (op, v(x), v(x), v(t)))
        a("v_mov_b32 %s, %s" % (v(t), v(x)))
        a("v_permlane32_swap_b32 %s, %s" % (v(x), v(t)))
        a("%s %s, %s, %s" % (op, v(x), v(x), v(t)))

    def allsum_row(self, x, op="v_add_f32"):
        a = self.a
        o = op + "_dpp"
        for m in ("row_ror:8", "quad_perm:[1,0,3,2]", "quad_perm:[2,3,0,1]", "row_half_mirror"):
            a("%s %s, %s, %s %s row_mask:0xf bank_mask:0xf" % (o, v(x), v(x), v(x), m))

    def delta_mfma(self, acc, adata, dup, btmp, first):
        a = self.a
        for i in range(4):
            a("v_and_b32 %s, %s, %s" % (v(btmp + i), v(vM[i]), v(dup)))
        a("v_mfma_f32_16x16x32_bf16 %s, %s, %s, %s" % (v(acc, 4), adata, v(btmp, 4),
                                                      "0" if first else v(acc, 4)))

    def prologue(self):
        a, c = self.a, self.c
        a("s_cmp_ge_u32 s2, 0x100")
        a("s_cbranch_scc1 L_exit")
        if c.elapsed:
            a("s_memrealtime s[38:39]")
        a("s_load_dwordx16 s[8:23], s[0:1], 0x0")
        a("s_load_dwordx8 s[24:31], s[0:1], 0x40")
        a("s_load_dwordx4 s[32:35], s[0:1], 0x60")
        a("s_load_dwordx2 s[36:37], s[0:1], 0x70")
        if c.prefetch:
            a("s_getpc_b64 %s" % s(R_CODE, 2))
            a.label("L_pc")
            a("s_mov_b32 %s, L_codeend-L_pc" % s(R_CODE + 2))
            a("s_mov_b32 %s, 0x20000" % s(R_CODE + 3))
            a("s_lshr_b32 %s, s2, 6" % s(sT))
            a("s_lshl_b32 %s, %s, 14" % (s(sT), s(sT)))
            a("v_lshlrev_b32 %s, 6, v0" % v(vA0))
            a("v_add_u32 %s, %s, %s" % (v(vA0), s(sT), v(vA0)))
            a("buffer_load_dword %s, %s, %s, 0 offen" % (v(vDUMMY), v(vA0), s(R_CODE, 4)))
        a("v_and_b32 %s, 63, v0" % v(vL))
        a("v_lshrrev_b32 %s, 6, v0" % v(vA1))
        a("v_lshlrev_b32 %s, 4, %s" % (v(vO16), v(vL)))
        a("v_readfirstlane_b32 %s, %s" % (s(sW), v(vA1)))
        if c.debug:
            a("v_mov_b32 %s, 0" % v(vSTAMP))
        a("s_and_b32 %s, s2, 1" % s(sT1))
        a("s_mul_i32 %s, %s, 288" % (s(sT1), s(sT1)))
        a("s_mul_i32 %s, %s, 72" % (s(sT2), s(sW)))
        a("s_add_u32 %s, %s, %s" % (s(sT1), s(sT1), s(sT2)))
        a("v_lshrrev_b32 %s, 3, %s" % (v(vA1), v(vL)))
        a("v_add_u32 %s, %s, %s" % (v(vA0), s(sT1), v(vA1)))
        a("v_lshlrev_b32 %s, 1, %s" % (v(vA0), v(vA0)))
        a("v_and_b32 %s, 7, %s" % (v(vA2), v(vL)))
        a("v_lshlrev_b32 %s, 4, %s" % (v(vA2), v(vA2)))
        a("v_lshlrev_b32 %s, 13, %s" % (v(vA1), v(vA1)))
        a("v_add_u32 %s, %s, %s" % (v(vA1), v(vA1), v(vA2)))
        a("s_lshl_b32 %s, %s, 13" % (s(sOFF), s(sT1)))
        a("s_lshr_b32 %s, s2, 1" % s(sT2))
        a("s_and_b32 %s, %s, 63" % (s(sT2), s(sT2)))
        a("s_lshl_b32 %s, %s, 7" % (s(sT2), s(sT2)))
        a("s_add_u32 %s, %s, %s" % (s(sOFF), s(sOFF), s(sT2)))
        a("s_waitcnt lgkmcnt(0)")
        a("s_load_dword %s, %s, 0x%x" % (s(sTAG), s(P_WS, 2), WS_EPOCH))
        self.srd(R_X, P_X, "1152")
        a("s_cmp_ge_u32 s2, 0x80")
        a("s_cselect_b32 %s, %s, %s" % (s(R_QW), s(P_WQB), s(P_WQA)))
        a("s_cselect_b32 %s, %s, %s" % (s(R_QW + 1), s(P_WQB + 1), s(P_WQA + 1)))
        a("s_mov_b32 %s, 4718592" % s(R_QW + 2))
        a("s_mov_b32 %s, 0x20000" % s(R_QW + 3))
        for t in range(9):
            a("buffer_load_ushort %s, %s, %s, 0 offen offset:%d" % (v(204 + t), v(vA0), s(R_X, 4), 16 * t))
        for t in range(9):
            a("buffer_load_dwordx4 %s, %s, %s, %s offen %s" % (v(168 + 4 * t, 4), v(vA1), s(R_QW, 4), s(sOFF), c.nt))
            if t < 8:
                a("s_add_u32 %s, %s, 0x10000" % (s(sOFF), s(sOFF)))
        self.srd(R_WS, P_WS, "0x%x" % WS_SIZE)
        self.stamp(0)
        a("s_cmp_lt_u32 s2, 32")
        a("s_cbranch_scc1 L_a_pre")
        self.b_pre()
        a("s_branch L_q")
        a.label("L_a_pre")
        self.a_pre()
        a.label("L_q")

    def b_pre(self):
        a, c = self.a, self.c
        a("s_sub_u32 %s, s2, 32" % s(sB))
        a("s_mul_i32 %s, %s, 4682" % (s(sG), s(sB)))
        a("s_lshr_b32 %s, %s, 16" % (s(sG), s(sG)))
        a("s_mul_i32 %s, %s, 14" % (s(sT1), s(sG)))
        a("s_sub_u32 %s, %s, %s" % (s(sJM), s(sB), s(sT1)))
        a("s_lshl_b32 %s, %s, 2" % (s(sT1), s(sJM)))
        a("s_add_u32 %s, %s, %s" % (s(sT1), s(sT1), s(sW)))
        a("s_mul_i32 %s, %s, 73" % (s(sT2), s(sT1)))
        a("s_min_u32 %s, %s, 8" % (s(sT3), s(sT1)))
        a("s_add_u32 %s, %s, %s" % (s(sT2), s(sT2), s(sT3)))
        a("s_lshl_b32 %s, %s, 10" % (s(sT2), s(sT2)))
        a("s_lshl_b32 %s, %s, 22" % (s(sT3), s(sG)))
        a("s_add_u32 %s, %s, %s" % (s(sT2), s(sT2), s(sT3)))
        self.srd(R_K, P_K, "75776", s(sT2))
        self.srd(R_V, P_V, "75776", s(sT2))
        a("s_cmp_lt_u32 %s, 8" % s(sT1))
        a("s_cselect_b32 %s, 75776, 0" % s(sT3))
        a("s_cselect_b32 %s, 0, 0xff800000" % s(sBIAS))
        self.srd(R_K2, P_K, s(sT3), s(sT2))
        self.srd(R_V2, P_V, s(sT3), s(sT2))
        a("s_mov_b32 %s, 73728" % s(sT1))
        a("buffer_load_dwordx4 %s, %s, %s, %s offen %s" % (v(104, 4), v(vO16), s(R_K, 4), s(sT1), c.nt))
        a("buffer_load_dwordx4 %s, %s, %s, %s offen offset:1024 %s" % (v(108, 4), v(vO16), s(R_K2, 4), s(sT1), c.nt))
        a("s_mov_b32 %s, 0" % s(sOFF))
        for i in range(c.nq):
            self.kv_load(40 + 4 * i, R_K, i)
        a("s_add_u32 %s, %s, 16" % (s(sX1), s(sG)))
        self.mask64(sMSK, 0xFF00FF00)
        a("s_waitcnt vmcnt(%d)" % (c.nq + 2))

    def kv_load(self, reg, srd, i, off=None):
        a, c = self.a, self.c
        off = sOFF if off is None else off
        if i < 4:
            so = s(off)
        else:
            if i % 4 == 0:
                a("s_add_u32 %s, %s, %d" % (s(sT4), s(off), 4096 * (i // 4)))
            so = s(sT4)
        o = " offset:%d" % (1024 * (i % 4)) if i % 4 else ""
        a("buffer_load_dwordx4 %s, %s, %s, %s offen%s %s" % (v(reg, 4), v(vO16), s(srd, 4), so, o, c.nt))

    def a_pre(self):
        a, c = self.a, self.c
        a("s_lshl_b32 %s, s2, 8" % s(sT1))
        self.srd(R_UK, P_UK, "4194304")
        self.srd(R_UV, P_UV, "4194304")
        self.srd(R_V2, P_V, "0")
        a("s_lshl_b32 %s, s2, 19" % s(sT2))
        self.srd(R_C, P_C, "524288", s(sT2))
        a("v_lshrrev_b32 %s, 4, %s" % (v(vA0), v(vL)))
        a("v_lshlrev_b32 %s, 18, %s" % (v(vA0), v(vA0)))
        a("v_and_b32 %s, 15, %s" % (v(vA2), v(vL)))
        a("v_lshlrev_b32 %s, 4, %s" % (v(vA2), v(vA2)))
        a("v_add_u32 %s, %s, %s" % (v(vA0), v(vA0), v(vA2)))
        a("s_lshl_b32 %s, %s, 20" % (s(sOFF), s(sW)))
        a("s_add_u32 %s, %s, %s" % (s(sOFF), s(sOFF), s(sT1)))
        for t in range(32):
            a("buffer_load_dwordx4 %s, %s, %s, %s offen %s" % (v(40 + 4 * t, 4), v(vA0), s(R_UK, 4), s(sOFF), c.nt))
            if t < 31:
                a("s_add_u32 %s, %s, 0x2000" % (s(sOFF), s(sOFF)))
        a("s_lshr_b32 %s, s2, 1" % s(sX1))
        a("s_bitcmp1_b32 s2, 0")
        a("s_cselect_b64 %s, -1, 0" % s(sMSK, 2))
        a("s_waitcnt vmcnt(32)")

    def q_phase(self):
        a, c = self.a, self.c
        self.stamp(1)
        a("v_and_b32 %s, 1, %s" % (v(vA0), v(vL)))
        a("v_lshlrev_b32 %s, 4, %s" % (v(vA0), v(vA0)))
        a("v_mov_b32 %s, 0xffff" % v(vA1))
        a("v_lshlrev_b32 %s, %s, %s" % (v(vA1), v(vA0), v(vA1)))
        for i in range(4):
            self.mask64(sMS2, 0x03030303 << (2 * i))
            a("v_cndmask_b32 %s, 0, %s, %s" % (v(vM[i]), v(vA1), s(sMS2, 2)))
        for t in range(9):
            a("v_lshl_or_b32 %s, %s, 16, %s" % (v(204 + t), v(204 + t), v(204 + t)))
        for t in range(9):
            self.delta_mfma(222, v(168 + 4 * t, 4), 204 + t, 214 + 4 * (t & 1), t == 0)
        a("v_lshrrev_b32 %s, 4, %s" % (v(vA0), v(vL)))
        a("v_and_b32 %s, 1, %s" % (v(vA1), v(vA0)))
        a("v_lshlrev_b32 %s, 10, %s" % (v(vA1), v(vA1)))
        a("v_lshrrev_b32 %s, 1, %s" % (v(vA0), v(vA0)))
        a("v_lshlrev_b32 %s, 2, %s" % (v(vA0), v(vA0)))
        a("v_add_u32 %s, %s, %s" % (v(vA0), v(vA0), v(vA1)))
        a("v_and_b32 %s, 7, %s" % (v(vA1), v(vL)))
        a("v_lshlrev_b32 %s, 5, %s" % (v(vA1), v(vA1)))
        a("s_lshl_b32 %s, %s, 3" % (s(sT1), s(sW)))
        a("s_add_u32 %s, %s, %d" % (s(sT1), s(sT1), LQ))
        a("v_add3_u32 %s, %s, %s, %s" % (v(vA0), v(vA0), v(vA1), s(sT1)))
        self.mask64(sMS2, 0x00FF00FF, 0xFF00FF00)
        a("s_mov_b64 exec, %s" % s(sMS2, 2))
        for r in range(4):
            a("ds_write_b32 %s, %s offset:%d" % (v(vA0), v(222 + r), 256 * r))
        a("s_mov_b64 exec, -1")
        a("s_waitcnt lgkmcnt(0)")
        a("s_add_u32 %s, %s, 0x%x" % (s(sTAG), s(sTAG), EPOCH_STEP))
        a("s_barrier")
        skip = self.lab("qpub")
        a("s_cmp_lg_u32 %s, 0" % s(sW))
        a("s_cbranch_scc1 %s" % skip)
        a("v_lshlrev_b32 %s, 5, %s" % (v(vA0), v(vL)))
        a("v_add_u32 %s, %d, %s" % (v(vA0), LQ, v(vA0)))
        a("ds_read_b128 %s, %s" % (v(226, 4), v(vA0)))
        a("ds_read_b128 %s, %s offset:16" % (v(230, 4), v(vA0)))
        a("v_bfe_u32 %s, %s, 1, 2" % (v(vA1), v(vL)))
        a("v_lshlrev_b32 %s, 10, %s" % (v(vA1), v(vA1)))
        a("v_lshrrev_b32 %s, 3, %s" % (v(vA2), v(vL)))
        a("v_lshlrev_b32 %s, 4, %s" % (v(vA2), v(vA2)))
        a("v_add_u32 %s, %s, %s" % (v(vA1), v(vA1), v(vA2)))
        a("v_and_b32 %s, 1, %s" % (v(vA2), v(vL)))
        a("v_lshlrev_b32 %s, 3, %s" % (v(vA2), v(vA2)))
        a("v_add_u32 %s, %s, %s" % (v(vA1), v(vA1), v(vA2)))
        a("s_lshr_b32 %s, s2, 3" % s(sT1))
        a("s_lshl_b32 %s, %s, 12" % (s(sT1), s(sT1)))
        a("s_bfe_u32 %s, s2, 0x10002" % s(sT2))
        a("s_lshl_b32 %s, %s, 9" % (s(sT2), s(sT2)))
        a("s_add_u32 %s, %s, %s" % (s(sT1), s(sT1), s(sT2)))
        a("s_and_b32 %s, s2, 1" % s(sT2))
        a("s_lshl_b32 %s, %s, 8" % (s(sT2), s(sT2)))
        a("s_add_u32 %s, %s, %s" % (s(sT1), s(sT1), s(sT2)))
        a("s_bfe_u32 %s, s2, 0x10001" % s(sT2))
        a("s_lshl_b32 %s, %s, 7" % (s(sT2), s(sT2)))
        a("s_add_u32 %s, %s, %s" % (s(sT1), s(sT1), s(sT2)))
        a("s_add_u32 %s, %s, 0x%x" % (s(sT1), s(sT1), WS_X1))
        a("s_waitcnt lgkmcnt(0)")
        a("v_add_f32 v226, v226, v227")
        a("v_add_f32 v228, v228, v229")
        a("v_add_f32 v230, v230, v231")
        a("v_add_f32 v232, v232, v233")
        a("v_add_f32 v226, v226, v228")
        a("v_add_f32 v230, v230, v232")
        a("v_add_f32 v226, v226, v230")
        a("v_mul_f32 v226, %s, v226" % f32(C_SCALE))
        a("v_mov_b32 v227, %s" % s(sTAG))
        a("buffer_store_dwordx2 v[226:227], %s, %s, %s offen sc0 sc1" % (v(vA1), s(R_WS, 4), s(sT1)))
        a.label(skip)
        self.stamp(2)

    def q_gather(self):
        a, c = self.a, self.c
        a("s_lshl_b32 %s, %s, 12" % (s(sX1), s(sX1)))
        a("s_add_u32 %s, %s, 0x%x" % (s(sX1), s(sX1), WS_X1))

        def issue():
            for k in range(4):
                a("buffer_load_dwordx4 %s, %s, %s, %s offen offset:%d sc1" % (
                    v(226 + 4 * k, 4), v(vO16), s(R_WS, 4), s(sX1), 1024 * k))

        def check():
            self.tagcheck(242, [226 + 4 * k + j for k in range(4) for j in (1, 3)])
            a("v_cmp_ne_u32 vcc, 0, v242")

        def between():
            isa, join = self.lab("qg_a"), self.lab("qg_j")
            a("s_cmp_lt_u32 s2, 32")
            a("s_cbranch_scc1 %s" % isa)
            a("s_mov_b32 %s, 73728" % s(sT1))
            a("buffer_load_dwordx4 %s, %s, %s, %s offen %s" % (v(112, 4), v(vO16), s(R_V, 4), s(sT1), c.nt))
            a("buffer_load_dwordx4 %s, %s, %s, %s offen offset:1024 %s" % (v(116, 4), v(vO16), s(R_V2, 4), s(sT1), c.nt))
            for i in range(c.nq):
                self.kv_load(72 + 4 * i, R_V, i)
            a("s_waitcnt vmcnt(%d)" % (c.nq + 2))
            a("s_branch %s" % join)
            a.label(isa)
            a("s_waitcnt vmcnt(0)")
            a.label(join)

        self.poll("x1", issue, check, between=between, first_wait=63)
        self.stamp(3)
        vals = [226 + 4 * k + j for k in range(4) for j in (0, 2)]
        for i, x in enumerate(vals):
            a("v_mov_b32 %s, %s" % (v(242 + i), v(x)))
        for i, x in enumerate(vals):
            a("v_permlane16_swap_b32 %s, %s" % (v(x), v(242 + i)))
        for i, x in enumerate(vals):
            a("v_add_f32 %s, %s, %s" % (v(x), v(x), v(242 + i)))
        for k in range(4):
            a("v_cvt_pk_bf16_f32 %s, %s, %s" % (v(242 + k), v(226 + 4 * k), v(228 + 4 * k)))
        for k in range(4):
            a("v_mov_b32 %s, %s" % (v(246 + k), v(242 + k)))
        for k in range(4):
            a("v_permlane32_swap_b32 %s, %s" % (v(242 + k), v(246 + k)))
        for k in range(4):
            a("v_cndmask_b32 %s, %s, %s, %s" % (v(32 + k), v(242 + k), v(246 + k), s(sMSK, 2)))
            a("v_cndmask_b32 %s, %s, %s, %s" % (v(36 + k), v(246 + k), v(242 + k), s(sMSK, 2)))
        a("s_cmp_lt_u32 s2, 32")
        a("s_cbranch_scc1 L_a_main")

    def b_block(self, nq, kreg, vreg, kwait, vwait, knext, vnext, masked_last=False):
        a = self.a
        SA, SB, O, M, L = 16, 24, 10, 14, 15
        for i in range(nq):
            a("s_waitcnt vmcnt(%d)" % kwait(i))
            k = kreg + 4 * i
            for j in range(4):
                a("v_dot2_f32_bf16 %s, %s, %s, %s" % (v(SA + i), v(k + j), v(32 + j), "0" if j == 0 else v(SA + i)))
                a("v_dot2_f32_bf16 %s, %s, %s, %s" % (v(SB + i), v(k + j), v(36 + j), "0" if j == 0 else v(SB + i)))
            knext(i)
        for i in range(nq):
            a("v_add_f32_dpp %s, %s, %s row_ror:8 row_mask:0xf bank_mask:0xf" % (v(SA + i), v(SB + i), v(SA + i)))
        for m in ("quad_perm:[1,0,3,2]", "quad_perm:[2,3,0,1]", "row_half_mirror"):
            for i in range(nq):
                a("v_add_f32_dpp %s, %s, %s %s row_mask:0xf bank_mask:0xf" % (v(SA + i), v(SA + i), v(SA + i), m))
        if masked_last:
            a("v_add_f32 %s, %s, %s" % (v(SA + nq - 1), s(sBIAS), v(SA + nq - 1)))
        BM, T, AL = 130, 131, 132
        a("v_max_f32 %s, %s, %s" % (v(BM), v(SA), v(SA + 1)))
        i = 2
        while i < nq:
            if i + 1 < nq:
                a("v_max3_f32 %s, %s, %s, %s" % (v(BM), v(BM), v(SA + i), v(SA + i + 1)))
                i += 2
            else:
                a("v_max_f32 %s, %s, %s" % (v(BM), v(BM), v(SA + i)))
                i += 1
        self.allsum_g(BM, T, "v_max_f32")
        a("v_max_f32 %s, %s, %s" % (v(BM), v(BM), v(M)))
        a("v_sub_f32 %s, %s, %s" % (v(AL), v(M), v(BM)))
        for i in range(nq):
            a("v_sub_f32 %s, %s, %s" % (v(SA + i), v(SA + i), v(BM)))
        a("v_exp_f32 %s, %s" % (v(AL), v(AL)))
        for i in range(nq):
            a("v_exp_f32 %s, %s" % (v(SA + i), v(SA + i)))
        a("v_mov_b32 %s, %s" % (v(M), v(BM)))
        a("v_mul_f32 %s, %s, %s" % (v(L), v(L), v(AL)))
        for r in range(4):
            a("v_mul_f32 %s, %s, %s" % (v(O + r), v(O + r), v(AL)))
        for i in range(nq):
            a("v_cvt_pk_bf16_f32 %s, %s, %s" % (v(SB + i), v(SA + i), v(SA + i)))
        for i in range(nq):
            a("v_add_f32 %s, %s, %s" % (v(L), v(L), v(SA + i)))
        for i in range(nq):
            bt = 122 + 4 * (i & 1)
            for j in range(4):
                a("v_and_b32 %s, %s, %s" % (v(bt + j), v(vM[j]), v(SB + i)))
            a("s_waitcnt vmcnt(%d)" % vwait(i))
            a("v_mfma_f32_16x16x32_bf16 %s, %s, %s, %s" % (v(O, 4), v(vreg + 4 * i, 4), v(bt, 4), v(O, 4)))
            vnext(i)

    def tail_loads(self):
        a, c = self.a, self.c
        a("s_and_b32 %s, %s, 1" % (s(sT1), s(sW)))
        a("s_lshl_b32 %s, %s, 1" % (s(sT2), s(sG)))
        a("s_add_u32 %s, %s, %s" % (s(sT1), s(sT1), s(sT2)))
        a("s_mul_i32 %s, %s, %d" % (s(sT1), s(sT1), 128 * 1152))
        a("s_lshl_b32 %s, %s, 7" % (s(sT2), s(sJM)))
        a("s_add_u32 %s, %s, %s" % (s(sT1), s(sT1), s(sT2)))
        a("s_cmp_ge_u32 %s, 2" % s(sW))
        a("s_cselect_b32 %s, %s, %s" % (s(R_TW), s(P_WOA), s(P_WOB)))
        a("s_cselect_b32 %s, %s, %s" % (s(R_TW + 1), s(P_WOA + 1), s(P_WOB + 1)))
        a("s_cmp_lt_u32 %s, 9" % s(sJM))
        a("s_cselect_b32 %s, 4718592, 0" % s(R_TW + 2))
        a("s_cselect_b32 %s, 1152, 0" % s(sT3))
        a("s_mov_b32 %s, 0x20000" % s(R_TW + 3))
        self.srd(R_G, P_G, s(sT3))
        a("s_mov_b32 %s, %s" % (s(R_X + 2), s(sT3)))
        a("v_lshrrev_b32 %s, 3, %s" % (v(vA0), v(vL)))
        a("v_mul_u32_u24 %s, 1152, %s" % (v(vA0), v(vA0)))
        a("v_and_b32 %s, 7, %s" % (v(vA1), v(vL)))
        a("v_lshlrev_b32 %s, 4, %s" % (v(vA1), v(vA1)))
        a("v_add_u32 %s, %s, %s" % (v(vA0), v(vA0), v(vA1)))
        a("buffer_load_dwordx4 %s, %s, %s, 0 offen" % (v(204, 4), v(vO16), s(R_X, 4)))
        a("buffer_load_dwordx4 %s, %s, %s, 0 offen offset:1024" % (v(208, 4), v(vO16), s(R_X, 4)))
        a("buffer_load_dwordx4 %s, %s, %s, 0 offen" % (v(212, 4), v(vO16), s(R_G, 4)))
        a("buffer_load_dwordx4 %s, %s, %s, 0 offen offset:1024" % (v(216, 4), v(vO16), s(R_G, 4)))
        for t in range(16):
            a("buffer_load_dwordx4 %s, %s, %s, %s offen %s" % (v(140 + 4 * t, 4), v(vA0), s(R_TW, 4), s(sT1), c.nt))
            if t < 15:
                a("s_add_u32 %s, %s, 9216" % (s(sT1), s(sT1)))
        return 20

    def b_main(self):
        a, c = self.a, self.c
        nq = c.nq
        nb = 72 // nq
        for r in range(4):
            a("v_mov_b32 %s, 0" % v(10 + r))
        a("v_mov_b32 v14, 0xff800000")
        a("v_mov_b32 v15, 0")
        self.b_block(2, 104, 112, lambda i: nq + 2, lambda i: nq + 1 - i, lambda i: None, lambda i: None,
                     masked_last=True)
        self.stamp(4)
        loop = self.lab("b_loop")
        a("s_movk_i32 %s, %d" % (s(sIT), nb - 1))
        a.label(loop)
        a("s_add_u32 %s, %s, %d" % (s(sT5), s(sOFF), nq * 1024))
        self.b_block(nq, 40, 72, lambda i: 2 * nq - 1, lambda i: 2 * nq - 1,
                     lambda i: self.kv_load(40 + 4 * i, R_K, i, sT5),
                     lambda i: self.kv_load(72 + 4 * i, R_V, i, sT5))
        a("s_mov_b32 %s, %s" % (s(sOFF), s(sT5)))
        a("s_sub_u32 %s, %s, 1" % (s(sIT), s(sIT)))
        a("s_cmp_lg_u32 %s, 0" % s(sIT))
        a("s_cbranch_scc1 %s" % loop)
        self.stamp(5)
        nt = self.tail_loads()
        self.b_block(nq, 40, 72, lambda i: 2 * nq - 1 - i + nt, lambda i: nq - 1 - i + nt,
                     lambda i: None, lambda i: None)
        self.stamp(6)
        self.gate()
        self.b_epilogue()

    def gate(self):
        a = self.a
        G, X, Wt = 220, 204, 212
        a("s_waitcnt vmcnt(16)")
        a("v_dot2_f32_bf16 %s, %s, %s, 0" % (v(G), v(X), v(Wt)))
        for j in range(1, 8):
            a("v_dot2_f32_bf16 %s, %s, %s, %s" % (v(G), v(X + j), v(Wt + j), v(G)))
        self.allsum_row(G)
        self.allsum_g(G, 221)
        a("v_mul_f32 %s, %s, %s" % (v(G), f32(-LOG2E), v(G)))
        a("v_exp_f32 %s, %s" % (v(G), v(G)))
        a("v_add_f32 %s, 1.0, %s" % (v(G), v(G)))
        a("v_rcp_f32 %s, %s" % (v(G), v(G)))

    def b_epilogue(self):
        a, c = self.a, self.c
        O, M, L = 10, 14, 15
        self.allsum_g(L, 130)
        a("v_bfe_u32 %s, %s, 3, 1" % (v(vA0), v(vL)))
        a("v_lshlrev_b32 %s, 5, %s" % (v(vA2), v(vA0)))
        a("v_lshlrev_b32 %s, 11, %s" % (v(vA0), v(vA0)))
        a("v_lshrrev_b32 %s, 4, %s" % (v(vA1), v(vL)))
        a("v_lshlrev_b32 %s, 9, %s" % (v(vA1), v(vA1)))
        a("v_add_u32 %s, %s, %s" % (v(vA0), v(vA0), v(vA1)))
        a("v_and_b32 %s, 7, %s" % (v(vA1), v(vL)))
        a("v_lshlrev_b32 %s, 4, %s" % (v(vA1), v(vA1)))
        a("s_lshl_b32 %s, %s, 2" % (s(sT1), s(sW)))
        a("s_add_u32 %s, %s, %d" % (s(sT2), s(sT1), LO))
        a("v_add3_u32 %s, %s, %s, %s" % (v(vA0), v(vA0), v(vA1), s(sT2)))
        a("s_add_u32 %s, %s, %d" % (s(sT2), s(sT1), LML))
        a("v_add_u32 %s, %s, %s" % (v(vA2), s(sT2), v(vA2)))
        for r in range(4):
            a("ds_write_b32 %s, %s offset:%d" % (v(vA0), v(O + r), 128 * r))
        a("ds_write_b32 %s, %s" % (v(vA2), v(M)))
        a("ds_write_b32 %s, %s offset:16" % (v(vA2), v(L)))
        a("s_waitcnt lgkmcnt(0)")
        a("s_barrier")
        skip = self.lab("b_pub")
        a("s_cmp_ge_u32 %s, 2" % s(sW))
        a("s_cbranch_scc1 %s" % skip)
        a("s_lshl_b32 %s, %s, 11" % (s(sT1), s(sW)))
        a("s_add_u32 %s, %s, %d" % (s(sT1), s(sT1), LO))
        a("v_lshlrev_b32 %s, 5, %s" % (v(vA0), v(vL)))
        a("v_add_u32 %s, %s, %s" % (v(vA0), s(sT1), v(vA0)))
        a("s_lshl_b32 %s, %s, 5" % (s(sT1), s(sW)))
        a("s_add_u32 %s, %s, %d" % (s(sT1), s(sT1), LML))
        a("v_mov_b32 %s, %s" % (v(vA1), s(sT1)))
        a("ds_read_b128 v[40:43], %s" % v(vA1))
        a("ds_read_b128 v[44:47], %s offset:16" % v(vA1))
        a("ds_read_b128 v[48:51], %s" % v(vA0))
        a("ds_read_b128 v[52:55], %s offset:16" % v(vA0))
        a("s_lshl_b32 %s, %s, 11" % (s(sT1), s(sB)))
        a("s_lshl_b32 %s, %s, 10" % (s(sT2), s(sW)))
        a("s_add_u32 %s, %s, %s" % (s(sT1), s(sT1), s(sT2)))
        a("s_add_u32 %s, %s, 0x%x" % (s(sT1), s(sT1), WS_X4B))
        a("s_lshl_b32 %s, %s, 1" % (s(sT2), s(sB)))
        a("s_add_u32 %s, %s, %s" % (s(sT2), s(sT2), s(sW)))
        a("s_lshl_b32 %s, %s, 7" % (s(sT2), s(sT2)))
        a("s_add_u32 %s, %s, 0x%x" % (s(sT2), s(sT2), WS_X4L))
        a("s_waitcnt lgkmcnt(2)")
        a("v_max3_f32 v56, v40, v41, v42")
        a("v_max_f32 v56, v56, v43")
        for i in range(4):
            a("v_sub_f32 %s, %s, v56" % (v(40 + i), v(40 + i)))
        for i in range(4):
            a("v_exp_f32 %s, %s" % (v(40 + i), v(40 + i)))
        a("v_mul_f32 v57, v40, v44")
        for i in range(1, 4):
            a("v_fmac_f32 v57, %s, %s" % (v(40 + i), v(44 + i)))
        a("s_waitcnt lgkmcnt(0)")
        a("v_mul_f32 v58, v40, v48")
        a("v_mul_f32 v60, v40, v52")
        for i in range(1, 4):
            a("v_fmac_f32 v58, %s, %s" % (v(40 + i), v(48 + i)))
            a("v_fmac_f32 v60, %s, %s" % (v(40 + i), v(52 + i)))
        a("v_rcp_f32 v62, v57")
        a("v_log_f32 v63, v57")
        a("v_mov_b32 v59, %s" % s(sTAG))
        a("v_mov_b32 v61, %s" % s(sTAG))
        a("v_mul_f32 v58, v58, v62")
        a("v_mul_f32 v60, v60, v62")
        a("v_add_f32 v64, v56, v63")
        a("v_mov_b32 v65, %s" % s(sTAG))
        a("buffer_store_dwordx4 v[58:61], %s, %s, %s offen sc0 sc1" % (v(vO16), s(R_WS, 4), s(sT1)))
        a("v_mov_b32 %s, 0" % v(vA0))
        a("s_mov_b64 exec, 1")
        a("buffer_store_dwordx2 v[64:65], %s, %s, %s offen sc0 sc1" % (v(vA0), s(R_WS, 4), s(sT2)))
        a("s_mov_b64 exec, -1")
        a.label(skip)
        self.stamp(7)
        a("s_cmp_lt_u32 %s, 9" % s(sJM))
        a("s_cbranch_scc1 L_tail")
        a("s_cmp_lg_u32 %s, 9" % s(sJM))
        a("s_cbranch_scc1 L_done")
        a("s_cmp_ge_u32 %s, 9" % s(sG))
        a("s_cbranch_scc1 L_done")
        a("s_cmp_lg_u32 %s, 0" % s(sW))
        a("s_cbranch_scc1 L_done")
        self.final()
        a.label("L_done")
        self.end()

    def final(self):
        a, c = self.a, self.c
        a("s_lshl_b32 %s, %s, 13" % (s(sT1), s(sG)))
        a("s_add_u32 %s, %s, 0x%x" % (s(sX1), s(sT1), WS_X5))
        a("v_and_b32 %s, 31, %s" % (v(vA0), v(vL)))
        a("v_lshlrev_b32 %s, 4, %s" % (v(vA0), v(vA0)))
        a("v_lshrrev_b32 %s, 5, %s" % (v(vA1), v(vL)))
        a("v_lshlrev_b32 %s, 9, %s" % (v(vA1), v(vA1)))
        a("v_add_u32 %s, %s, %s" % (v(vA0), v(vA0), v(vA1)))
        self.srd(R_OUT, P_OUT, "1152")

        def issue():
            for i in range(8):
                if i == 4:
                    a("s_add_u32 %s, %s, 4096" % (s(sT2), s(sX1)))
                a("buffer_load_dwordx4 %s, %s, %s, %s offen offset:%d sc1" % (
                    v(40 + 4 * i, 4), v(vA0), s(R_WS, 4), s(sX1 if i < 4 else sT2), 1024 * (i % 4)))

        def check():
            self.tagcheck(72, [40 + 4 * i + j for i in range(8) for j in (1, 3)])
            a("v_cmp_ne_u32 vcc, 0, v72")

        self.poll("x5", issue, check)
        self.stamp(12)
        for j in (0, 2):
            for i in (0, 2, 4, 6):
                a("v_add_f32 %s, %s, %s" % (v(40 + 4 * i + j), v(40 + 4 * i + j), v(44 + 4 * i + j)))
        for j in (0, 2):
            a("v_add_f32 %s, %s, %s" % (v(40 + j), v(40 + j), v(48 + j)))
            a("v_add_f32 %s, %s, %s" % (v(56 + j), v(56 + j), v(64 + j)))
        for j in (0, 2):
            a("v_add_f32 %s, %s, %s" % (v(40 + j), v(40 + j), v(56 + j)))
        a("v_mov_b32 v44, v40")
        a("v_mov_b32 v45, v42")
        a("v_permlane32_swap_b32 v40, v44")
        a("v_permlane32_swap_b32 v42, v45")
        a("v_add_f32 v40, v40, v44")
        a("v_add_f32 v42, v42, v45")
        a("v_cvt_pk_bf16_f32 v40, v40, v42")
        a("v_lshlrev_b32 %s, 2, %s" % (v(vA0), v(vL)))
        a("s_lshl_b32 %s, %s, 7" % (s(sT1), s(sG)))
        a("s_mov_b32 exec_hi, 0")
        a("buffer_store_dword v40, %s, %s, %s offen" % (v(vA0), s(R_OUT, 4), s(sT1)))
        done = self.lab("fin")
        a("s_cmp_lg_u32 %s, 0" % s(sG))
        a("s_cbranch_scc1 %s" % done)
        a("v_mov_b32 v41, %s" % s(sTAG))
        a("v_mov_b32 %s, %d" % (v(vA0), WS_EPOCH))
        a("s_mov_b64 exec, 1")
        a("buffer_store_dword v41, %s, %s, 0 offen sc0 sc1" % (v(vA0), s(R_WS, 4)))
        if c.elapsed:
            a("s_memrealtime %s" % s(sST, 2))
            a("s_waitcnt lgkmcnt(0)")
            a("s_sub_u32 %s, %s, s38" % (s(sT1), s(sST)))
            a("v_mov_b32 v41, %s" % s(sT1))
            a("v_mov_b32 %s, 0" % v(vA0))
            self.srd(R_OUT, 34, "256")
            a("buffer_store_dword v41, %s, %s, 0 offen" % (v(vA0), s(R_OUT, 4)))
        a.label(done)
        a("s_mov_b64 exec, -1")
        self.stamp(13)

    def reduce_wu8(self, acc, lds, dst):
        a = self.a
        a("v_lshrrev_b32 %s, 4, %s" % (v(vA0), v(vL)))
        a("v_and_b32 %s, 1, %s" % (v(vA1), v(vA0)))
        a("v_lshlrev_b32 %s, 10, %s" % (v(vA1), v(vA1)))
        a("v_lshrrev_b32 %s, 1, %s" % (v(vA0), v(vA0)))
        a("v_lshlrev_b32 %s, 2, %s" % (v(vA0), v(vA0)))
        a("v_add_u32 %s, %s, %s" % (v(vA0), v(vA0), v(vA1)))
        a("v_and_b32 %s, 7, %s" % (v(vA1), v(vL)))
        a("v_lshlrev_b32 %s, 5, %s" % (v(vA1), v(vA1)))
        a("s_lshl_b32 %s, %s, 3" % (s(sT1), s(sW)))
        a("s_add_u32 %s, %s, %d" % (s(sT1), s(sT1), lds))
        a("v_add3_u32 %s, %s, %s, %s" % (v(vA0), v(vA0), v(vA1), s(sT1)))
        self.mask64(sMS2, 0x00FF00FF, 0xFF00FF00)
        a("s_mov_b64 exec, %s" % s(sMS2, 2))
        for r in range(4):
            a("ds_write_b32 %s, %s offset:%d" % (v(vA0), v(acc + r), 256 * r))
        a("s_mov_b64 exec, -1")
        a("s_waitcnt lgkmcnt(0)")
        a("s_barrier")

    def tail(self):
        a, c = self.a, self.c
        a.label("L_tail")
        G = 220
        isa, join = self.lab("t_a"), self.lab("t_j")
        a("s_and_b32 %s, %s, 1" % (s(sT3), s(sW)))
        a("s_cmp_ge_u32 %s, 2" % s(sW))
        a("s_cbranch_scc1 %s" % isa)
        a("v_sub_f32 %s, 1.0, %s" % (v(G), v(G)))
        a("s_mul_i32 %s, %s, %d" % (s(sX1), s(sG), 14 * 2048))
        a("s_lshl_b32 %s, %s, 10" % (s(sT1), s(sT3)))
        a("s_add_u32 %s, %s, %s" % (s(sX1), s(sX1), s(sT1)))
        a("s_add_u32 %s, %s, 0x%x" % (s(sX1), s(sX1), WS_X4B))
        a("s_mul_i32 %s, %s, %d" % (s(sT5), s(sG), 14 * 256))
        a("s_lshl_b32 %s, %s, 7" % (s(sT1), s(sT3)))
        a("s_add_u32 %s, %s, %s" % (s(sT5), s(sT5), s(sT1)))
        a("s_add_u32 %s, %s, 0x%x" % (s(sT5), s(sT5), WS_X4L))
        a("v_and_b32 %s, 15, %s" % (v(vA1), v(vL)))
        a("v_min_u32 %s, 13, %s" % (v(vA1), v(vA1)))
        a("v_lshlrev_b32 %s, 8, %s" % (v(vA1), v(vA1)))

        def issue():
            a("buffer_load_dwordx2 v[96:97], %s, %s, %s offen sc1" % (v(vA1), s(R_WS, 4), s(sT5)))
            a("s_mov_b32 %s, %s" % (s(sT2), s(sX1)))
            for i in range(14):
                o = " offset:2048" if i & 1 else ""
                a("buffer_load_dwordx4 %s, %s, %s, %s offen%s sc1" % (v(40 + 4 * i, 4), v(vO16), s(R_WS, 4), s(sT2), o))
                if i & 1 and i < 13:
                    a("s_add_u32 %s, %s, 4096" % (s(sT2), s(sT2)))

        def check():
            self.tagcheck(98, [97] + [40 + 4 * i + j for i in range(14) for j in (1, 3)])
            a("v_cmp_ne_u32 vcc, 0, v98")

        self.poll("x4b", issue, check)
        self.stamp(8)
        a("v_mov_b32 v98, v96")
        self.allsum_row(98, "v_max_f32")
        a("v_sub_f32 v96, v96, v98")
        a("v_exp_f32 v96, v96")
        self.mask64(sMS2, 0x3FFF3FFF)
        a("v_cndmask_b32 v96, 0, v96, %s" % s(sMS2, 2))
        a("v_mov_b32 v98, v96")
        self.allsum_row(98)
        a("v_rcp_f32 v98, v98")
        a("v_mul_f32 v96, v96, v98")
        for i in range(14):
            a("v_readlane_b32 %s, v96, %d" % (s(8 + i), i))
        a("v_mul_f32 v100, %s, v40" % s(8))
        a("v_mul_f32 v101, %s, v42" % s(8))
        for i in range(1, 14):
            a("v_fmac_f32 v100, %s, %s" % (s(8 + i), v(40 + 4 * i)))
            a("v_fmac_f32 v101, %s, %s" % (s(8 + i), v(42 + 4 * i)))
        a("s_branch %s" % join)
        a.label(isa)
        a("s_lshl_b32 %s, %s, 1" % (s(sX1), s(sG)))
        a("s_add_u32 %s, %s, %s" % (s(sX1), s(sX1), s(sT3)))
        a("s_lshl_b32 %s, %s, 10" % (s(sX1), s(sX1)))
        a("s_add_u32 %s, %s, 0x%x" % (s(sX1), s(sX1), WS_X4A))

        def issue_a():
            a("buffer_load_dwordx4 v[40:43], %s, %s, %s offen sc1" % (v(vO16), s(R_WS, 4), s(sX1)))

        def check_a():
            self.tagcheck(98, [41, 43])
            a("v_cmp_ne_u32 vcc, 0, v98")

        self.poll("x4a", issue_a, check_a)
        self.stamp(8)
        a("v_mov_b32 v100, v40")
        a("v_mov_b32 v101, v42")
        a.label(join)
        self.dump(0, 100)
        self.dump(1, 101)
        self.dump(2, G)
        a("v_cvt_pk_bf16_f32 v100, v100, v100")
        a("v_cvt_pk_bf16_f32 v101, v101, v101")
        a("s_lshl_b32 %s, %s, 9" % (s(sT1), s(sW)))
        a("s_add_u32 %s, %s, %d" % (s(sT1), s(sT1), LT))
        a("v_lshlrev_b32 %s, 3, %s" % (v(vA0), v(vL)))
        a("v_add_u32 %s, %s, %s" % (v(vA0), s(sT1), v(vA0)))
        a("ds_write_b64 %s, v[100:101]" % v(vA0))
        a("v_lshrrev_b32 %s, 3, %s" % (v(vA1), v(vL)))
        a("v_lshlrev_b32 %s, 2, %s" % (v(vA1), v(vA1)))
        a("v_add_u32 %s, %s, %s" % (v(vA1), s(sT1), v(vA1)))
        for t in range(0, 16, 2):
            a("ds_read2_b32 %s, %s offset0:%d offset1:%d" % (v(40 + t, 2), v(vA1), 8 * t, 8 * t + 8))
        for t in range(16):
            if t % 2 == 0:
                a("s_waitcnt lgkmcnt(%d)" % (7 - t // 2))
            self.delta_mfma(10, v(140 + 4 * t, 4), 40 + t, 122 + 4 * (t & 1), t == 0)
        for r in range(4):
            self.dump(3 + r, 10 + r)
        self.dump(7, 140)
        for r in range(4):
            a("v_mul_f32 %s, %s, %s" % (v(10 + r), v(10 + r), v(G)))
        self.reduce_wu8(10, LR, 0)
        a("s_cmp_lg_u32 %s, 0" % s(sW))
        a("s_cbranch_scc1 L_tail_done")
        a("v_lshlrev_b32 %s, 5, %s" % (v(vA0), v(vL)))
        a("v_add_u32 %s, %d, %s" % (v(vA0), LR, v(vA0)))
        a("ds_read_b128 v[40:43], %s" % v(vA0))
        a("ds_read_b128 v[44:47], %s offset:16" % v(vA0))
        a("s_lshl_b32 %s, %s, 4" % (s(sT1), s(sJM)))
        a("s_add_u32 %s, %s, %s" % (s(sT1), s(sT1), s(sG)))
        a("s_lshl_b32 %s, %s, 9" % (s(sT1), s(sT1)))
        a("s_add_u32 %s, %s, 0x%x" % (s(sT1), s(sT1), WS_X5))
        a("v_lshlrev_b32 %s, 3, %s" % (v(vA1), v(vL)))
        a("s_waitcnt lgkmcnt(0)")
        a("v_add_f32 v40, v40, v41")
        a("v_add_f32 v42, v42, v43")
        a("v_add_f32 v44, v44, v45")
        a("v_add_f32 v46, v46, v47")
        a("v_add_f32 v40, v40, v42")
        a("v_add_f32 v44, v44, v46")
        a("v_add_f32 v40, v40, v44")
        a("v_mov_b32 v41, %s" % s(sTAG))
        a("buffer_store_dwordx2 v[40:41], %s, %s, %s offen sc0 sc1" % (v(vA1), s(R_WS, 4), s(sT1)))
        a.label("L_tail_done")
        self.stamp(9)
        self.end()

    def dma_tile(self, it_off_reg, buf_reg):
        a, c = self.a, self.c
        for grp in range(4):
            if grp == 0:
                a("s_mov_b32 m0, %s" % s(buf_reg))
                so = it_off_reg
            else:
                a("s_add_u32 %s, %s, %d" % (s(sT1), s(buf_reg), 4096 * grp))
                a("s_add_u32 %s, %s, %d" % (s(sT2), s(it_off_reg), 4096 * grp))
                a("s_mov_b32 m0, %s" % s(sT1))
                so = sT2
            for i in range(4):
                o = " offset:%d" % (1024 * i) if i else ""
                a("buffer_load_dwordx4 %s, %s, %s offen%s %s lds" % (
                    v(222 + ((4 * grp + i) & 7)), s(R_C, 4), s(so), o, c.nt))

    def a_main(self):
        a, c = self.a, self.c
        a.label("L_a_main")
        sBUF, sSRC = sT4, sT5
        for k in range(8):
            a("v_xor_b32 %s, %d, %s" % (v(222 + k), 32 * k, v(vO16)))
        a("s_lshl_b32 %s, %s, 14" % (s(sBUF), s(sW)))
        a("s_mov_b32 %s, %s" % (s(sSRC), s(sBUF)))
        self.dma_tile(sSRC, sBUF)
        S = 168
        for t in range(32):
            if t % 4 == 0:
                a("s_waitcnt vmcnt(%d)" % (16 + 28 - t))
            for j in range(4):
                a("v_dot2_f32_bf16 %s, %s, %s, %s" % (v(S + t), v(40 + 4 * t + j), v(32 + j), "0" if j == 0 else v(S + t)))
        R1, R2 = 200, 216
        for par in range(2):
            for m in range(8):
                lo, hi = S + 2 * m + par, S + 2 * (m + 8) + par
                d = R1 + 8 * par + m
                a("v_add_f32_dpp %s, %s, %s row_ror:8 row_mask:0xf bank_mask:0x3" % (v(d), v(lo), v(lo)))
                a("v_add_f32_dpp %s, %s, %s row_ror:8 row_mask:0xf bank_mask:0xc" % (v(d), v(hi), v(hi)))
        for par in range(2):
            for m in range(4):
                lo, hi = R1 + 8 * par + m, R1 + 8 * par + m + 4
                d = S + 4 * par + m
                a("v_add_f32_dpp %s, %s, %s row_half_mirror row_mask:0xf bank_mask:0x5" % (v(d), v(lo), v(lo)))
                a("v_add_f32_dpp %s, %s, %s row_half_mirror row_mask:0xf bank_mask:0xa" % (v(d), v(hi), v(hi)))
        for mod in ("quad_perm:[1,0,3,2]", "quad_perm:[2,3,0,1]"):
            for i in range(8):
                a("v_add_f32_dpp %s, %s, %s %s row_mask:0xf bank_mask:0xf" % (v(S + i), v(S + i), v(S + i), mod))
        for m in range(1, 4):
            self.mask64(sMS2, 0x11111111 << m)
            for par in range(2):
                a("v_cndmask_b32 %s, %s, %s, %s" % (v(S + 4 * par), v(S + 4 * par), v(S + 4 * par + m), s(sMS2, 2)))
        a("v_cvt_pk_bf16_f32 %s, %s, %s" % (v(S), v(S), v(S + 4)))
        a("v_mov_b32 %s, %s" % (v(S + 1), s(sTAG)))
        a("s_lshl_b32 %s, s2, 11" % s(sT1))
        a("s_lshl_b32 %s, %s, 9" % (s(sT2), s(sW)))
        a("s_add_u32 %s, %s, %s" % (s(sT1), s(sT1), s(sT2)))
        a("s_add_u32 %s, %s, 0x%x" % (s(sT1), s(sT1), WS_X2))
        a("v_lshlrev_b32 %s, 3, %s" % (v(vA0), v(vL)))
        a("buffer_store_dwordx2 %s, %s, %s, %s offen sc0 sc1" % (v(S, 2), v(vA0), s(R_WS, 4), s(sT1)))
        self.stamp(4)
        a("s_lshl_b32 %s, %s, 14" % (s(sX1), s(sW)))
        a("s_add_u32 %s, %s, 0x%x" % (s(sX1), s(sX1), WS_X2))

        def issue():
            a("s_mov_b32 %s, %s" % (s(sT3), s(sX1)))
            for i in range(16):
                o = " offset:%d" % (1024 * (i % 4)) if i % 4 else ""
                a("buffer_load_dwordx4 %s, %s, %s, %s offen%s sc1" % (v(40 + 4 * i, 4), v(vO16), s(R_WS, 4), s(sT3), o))
                if i % 4 == 3 and i < 15:
                    a("s_add_u32 %s, %s, 4096" % (s(sT3), s(sT3)))

        def check():
            self.tagcheck(104, [40 + 4 * i + j for i in range(16) for j in (1, 3)])
            a("v_cmp_ne_u32 vcc, 0, v104")

        def between():
            a("s_add_u32 %s, %s, 0x10000" % (s(sBUF), s(sBUF)))
            a("s_add_u32 %s, %s, 0x10000" % (s(sSRC), s(sSRC)))
            self.dma_tile(sSRC, sBUF)

        self.poll("x2", issue, check, between=between, first_wait=16)
        self.stamp(5)
        a("v_lshrrev_b32 %s, 4, %s" % (v(vA0), v(vL)))
        a("v_lshlrev_b32 %s, 13, %s" % (v(vA0), v(vA0)))
        a("v_and_b32 %s, 15, %s" % (v(vA1), v(vL)))
        a("v_lshlrev_b32 %s, 4, %s" % (v(vA1), v(vA1)))
        a("v_add_u32 %s, %s, %s" % (v(vA0), v(vA0), v(vA1)))
        a("s_lshl_b32 %s, %s, 20" % (s(sT1), s(sW)))
        a("s_lshl_b32 %s, s2, 8" % s(sT2))
        a("s_add_u32 %s, %s, %s" % (s(sT1), s(sT1), s(sT2)))
        for t in range(32):
            a("buffer_load_dwordx4 %s, %s, %s, %s offen %s" % (ar(128 + 4 * t, 4), v(vA0), s(R_UV, 4), s(sT1), c.nt))
            if t < 31:
                a("s_add_u32 %s, %s, 0x8000" % (s(sT1), s(sT1)))
        a("v_lshrrev_b32 %s, 1, %s" % (v(vA0), v(vL)))
        a("v_lshlrev_b32 %s, 4, %s" % (v(vA0), v(vA0)))
        a("v_and_b32 %s, 1, %s" % (v(vA1), v(vL)))
        a("v_lshlrev_b32 %s, 3, %s" % (v(vA1), v(vA1)))
        a("s_lshl_b32 %s, %s, 13" % (s(sT1), s(sW)))
        a("s_add_u32 %s, %s, %d" % (s(sT1), s(sT1), LQA))
        a("v_add_u32 %s, %s, %s" % (v(vA0), v(vA0), v(vA1)))
        for hq in range(8):
            a("v_xor_b32 %s, %d, %s" % (v(104 + hq), 32 * hq, v(vA0)))
            a("v_add_u32 %s, %s, %s" % (v(104 + hq), s(sT1), v(104 + hq)))
        for i in range(16):
            a("v_mov_b32 %s, %s" % (v(41 + 4 * i), v(42 + 4 * i)))
        for i in range(16):
            hq, half = i >> 1, i & 1
            a("ds_write_b64 %s, %s offset:%d" % (v(104 + hq), v(40 + 4 * i, 2), hq * 1024 + half * 512))
        AQ, AT = 210, 214
        a("v_and_b32 %s, 15, %s" % (v(vA0), v(vL)))
        a("v_lshlrev_b32 %s, 10, %s" % (v(vA1), v(vA0)))
        a("v_and_b32 %s, 7, %s" % (v(vA0), v(vA0)))
        a("v_lshlrev_b32 %s, 5, %s" % (v(vA0), v(vA0)))
        a("v_lshrrev_b32 %s, 4, %s" % (v(vA2), v(vL)))
        a("v_lshlrev_b32 %s, 4, %s" % (v(vA2), v(vA2)))
        for b in range(4):
            a("v_add_u32 %s, %d, %s" % (v(AQ + b), 64 * b, v(vA2)))
            a("v_xor_b32 %s, %s, %s" % (v(AQ + b), v(AQ + b), v(vA0)))
            a("v_add_u32 %s, %s, %s" % (v(AQ + b), v(AQ + b), v(vA1)))
        a("s_waitcnt lgkmcnt(0)")
        a("s_barrier")
        for b in range(4):
            a("v_add_u32 %s, %d, %s" % (v(112 + b), LQA, v(AQ + b)))
        for ht in range(2):
            for ks in range(16):
                a("ds_read_b128 %s, %s offset:%d" % (ar(ht * 64 + 4 * ks, 4), v(112 + (ks & 3)),
                                                    ht * 16384 + (ks >> 2) * 256))
        a("s_lshl_b32 %s, %s, 14" % (s(sT1), s(sW)))
        for b in range(4):
            a("v_add_u32 %s, %s, %s" % (v(AQ + b), s(sT1), v(AQ + b)))
        a("v_lshrrev_b32 %s, 4, %s" % (v(vA0), v(vL)))
        a("v_lshlrev_b32 %s, 2, %s" % (v(vA0), v(vA0)))
        a("v_bfe_u32 %s, %s, 2, 2" % (v(vA1), v(vL)))
        a("v_add_u32 %s, %s, %s" % (v(vA0), v(vA0), v(vA1)))
        a("v_and_b32 %s, 7, %s" % (v(vA1), v(vA0)))
        a("v_lshlrev_b32 %s, 5, %s" % (v(vA1), v(vA1)))
        a("v_lshlrev_b32 %s, 10, %s" % (v(vA0), v(vA0)))
        a("v_and_b32 %s, 3, %s" % (v(vA2), v(vL)))
        a("v_lshlrev_b32 %s, 3, %s" % (v(vA2), v(vA2)))
        a("s_lshl_b32 %s, %s, 8" % (s(sT1), s(sW)))
        a("v_add3_u32 %s, %s, %s, %s" % (v(vA0), v(vA0), v(vA2), s(sT1)))
        for ct in range(8):
            a("v_xor_b32 %s, %d, %s" % (v(AT + ct), 32 * ct, v(vA1)))
            a("v_add_u32 %s, %s, %s" % (v(AT + ct), v(AT + ct), v(vA0)))
        AMW, AMR, APW, APR = 230, 231, 232, 233
        a("v_and_b32 %s, 15, %s" % (v(vA0), v(vL)))
        a("v_lshlrev_b32 %s, 4, %s" % (v(vA0), v(vA0)))
        a("v_add_u32 %s, %d, %s" % (v(AMR), LMX, v(vA0)))
        a("s_lshl_b32 %s, %s, 2" % (s(sT1), s(sW)))
        a("v_add_u32 %s, %s, %s" % (v(AMW), s(sT1), v(AMR)))
        a("v_add_u32 %s, %d, %s" % (v(APR), LP, v(vO16)))
        a("s_lshr_b32 %s, %s, 1" % (s(sT1), s(sW)))
        a("s_lshl_b32 %s, %s, 10" % (s(sT1), s(sT1)))
        a("s_and_b32 %s, %s, 1" % (s(sT2), s(sW)))
        a("s_lshl_b32 %s, %s, 3" % (s(sT2), s(sT2)))
        a("s_add_u32 %s, %s, %s" % (s(sT1), s(sT1), s(sT2)))
        a("v_add_u32 %s, %s, %s" % (v(APW), s(sT1), v(APR)))
        ACC, OP, S8, M0, L0, AL, PO = 40, 104, 168, 176, 178, 180, 182
        for i in range(64):
            a("v_mov_b32 %s, 0" % v(ACC + i))
        a("v_mov_b32 %s, 0xff800000" % v(M0))
        a("v_mov_b32 %s, 0xff800000" % v(M0 + 1))
        a("v_mov_b32 %s, 0" % v(L0))
        a("v_mov_b32 %s, 0" % v(L0 + 1))
        a("s_waitcnt lgkmcnt(0)")
        a("s_barrier")
        self.stamp(6)
        a("s_mov_b32 %s, 0" % s(sIT))
        loop = self.lab("a_loop")
        a.label(loop)
        w48, w0, wd = self.lab("w48"), self.lab("w0"), self.lab("wd")
        a("s_cmp_lt_u32 %s, 2" % s(sIT))
        a("s_cbranch_scc1 %s" % w48)
        a("s_cmp_eq_u32 %s, 7" % s(sIT))
        a("s_cbranch_scc1 %s" % w0)
        a("s_waitcnt vmcnt(16)")
        a("s_branch %s" % wd)
        a.label(w48)
        a("s_waitcnt vmcnt(48)")
        a("s_branch %s" % wd)
        a.label(w0)
        a("s_waitcnt vmcnt(0)")
        a.label(wd)
        self.stamp_it(0)
        for ks in range(16):
            a("ds_read_b128 %s, %s offset:%d" % (v(OP + 4 * ks, 4), v(AQ + (ks & 3)), (ks >> 2) * 256))
        for ks in range(16):
            a("s_waitcnt lgkmcnt(%d)" % (15 - ks))
            for ht in range(2):
                a("v_mfma_f32_16x16x32_bf16 %s, %s, %s, %s" % (
                    v(S8 + 4 * ht, 4), v(OP + 4 * ks, 4), ar(ht * 64 + 4 * ks, 4), "0" if ks == 0 else v(S8 + 4 * ht, 4)))
        T0 = 198
        self.stamp_it(1)
        for ht in range(2):
            a("v_max3_f32 %s, %s, %s, %s" % (v(T0 + ht), v(S8 + 4 * ht), v(S8 + 4 * ht + 1), v(S8 + 4 * ht + 2)))
        for ht in range(2):
            a("v_max_f32 %s, %s, %s" % (v(T0 + ht), v(T0 + ht), v(S8 + 4 * ht + 3)))
        for sw in ("v_permlane16_swap_b32", "v_permlane32_swap_b32"):
            for ht in range(2):
                a("v_mov_b32 %s, %s" % (v(T0 + 2 + ht), v(T0 + ht)))
            for ht in range(2):
                a("%s %s, %s" % (sw, v(T0 + ht), v(T0 + 2 + ht)))
            for ht in range(2):
                a("v_max_f32 %s, %s, %s" % (v(T0 + ht), v(T0 + ht), v(T0 + 2 + ht)))
        for ht in range(2):
            a("ds_write_b32 %s, %s offset:%d" % (v(AMW), v(T0 + ht), 256 * ht))
        a("s_waitcnt lgkmcnt(0)")
        a("s_barrier")
        for ht in range(2):
            a("ds_read_b128 %s, %s offset:%d" % (v(T0 + 4 * ht, 4), v(AMR), 256 * ht))
        a("s_waitcnt lgkmcnt(0)")
        for ht in range(2):
            t = T0 + 4 * ht
            a("v_max3_f32 %s, %s, %s, %s" % (v(t), v(t), v(t + 1), v(t + 2)))
        for ht in range(2):
            t = T0 + 4 * ht
            a("v_max3_f32 %s, %s, %s, %s" % (v(t), v(t), v(t + 3), v(M0 + ht)))
        for ht in range(2):
            a("v_sub_f32 %s, %s, %s" % (v(AL + ht), v(M0 + ht), v(T0 + 4 * ht)))
        for ht in range(2):
            for r in range(4):
                a("v_sub_f32 %s, %s, %s" % (v(S8 + 4 * ht + r), v(S8 + 4 * ht + r), v(T0 + 4 * ht)))
        for ht in range(2):
            a("v_exp_f32 %s, %s" % (v(AL + ht), v(AL + ht)))
        for i in range(8):
            a("v_exp_f32 %s, %s" % (v(S8 + i), v(S8 + i)))
        for ht in range(2):
            a("v_mov_b32 %s, %s" % (v(M0 + ht), v(T0 + 4 * ht)))
        for ht in range(2):
            for p in range(2):
                a("v_cvt_pk_bf16_f32 %s, %s, %s" % (v(T0 + 2 * ht + p), v(S8 + 4 * ht + 2 * p), v(S8 + 4 * ht + 2 * p + 1)))
        for ht in range(2):
            a("ds_write_b64 %s, %s offset:%d" % (v(APW), v(T0 + 2 * ht, 2), 2048 * ht))
        for ht in range(2):
            a("v_mul_f32 %s, %s, %s" % (v(L0 + ht), v(L0 + ht), v(AL + ht)))
        for ht in range(2):
            for r in range(4):
                a("v_add_f32 %s, %s, %s" % (v(L0 + ht), v(L0 + ht), v(S8 + 4 * ht + r)))
        for ct in range(8):
            for ht in range(2):
                for r in range(4):
                    x = ACC + 8 * ct + 4 * ht + r
                    a("v_mul_f32 %s, %s, %s" % (v(x), v(x), v(AL + ht)))
        a("s_waitcnt lgkmcnt(0)")
        a("s_barrier")
        self.stamp_it(2)
        for ht in range(2):
            for ks in range(2):
                a("ds_read_b128 %s, %s offset:%d" % (v(PO + 4 * (2 * ht + ks), 4), v(APR), (2 * ht + ks) * 1024))
        order = [(ks, ct) for ks in range(2) for ct in range(8)]

        def tr_reads(n):
            ks, ct = order[n]
            for hf in range(2):
                a("ds_read_b64_tr_b16 %s, %s offset:%d" % (v(OP + 4 * n + 2 * hf, 2), v(AT + ct),
                                                          (32 * ks + 16 * hf) * 1024))
        for n in range(5):
            tr_reads(n)
        issued = 5
        for n in range(16):
            ks, ct = order[n]
            outstanding_after = 2 * (issued - n - 1)
            a("s_waitcnt lgkmcnt(%d)" % min(outstanding_after, 15))
            for ht in range(2):
                x = ACC + 8 * ct + 4 * ht
                a("v_mfma_f32_16x16x32_bf16 %s, %s, %s, %s" % (
                    v(x, 4), v(OP + 4 * n, 4), v(PO + 4 * (2 * ht + ks), 4), v(x, 4)))
            if issued < 16:
                tr_reads(issued)
                issued += 1
        a("s_barrier")
        self.stamp_it(3)
        nodma = self.lab("nodma")
        for b in range(4):
            a("v_xor_b32 %s, 0x10000, %s" % (v(AQ + b), v(AQ + b)))
        for ct in range(8):
            a("v_xor_b32 %s, 0x10000, %s" % (v(AT + ct), v(AT + ct)))
        a("s_cmp_ge_u32 %s, 6" % s(sIT))
        a("s_cbranch_scc1 %s" % nodma)
        a("s_xor_b32 %s, %s, 0x10000" % (s(sBUF), s(sBUF)))
        a("s_add_u32 %s, %s, 0x10000" % (s(sSRC), s(sSRC)))
        self.dma_tile(sSRC, sBUF)
        a.label(nodma)
        self.stamp_it(4)
        a("s_add_u32 %s, %s, 1" % (s(sIT), s(sIT)))
        a("s_cmp_lt_u32 %s, 8" % s(sIT))
        a("s_cbranch_scc1 %s" % loop)
        self.stamp(7)
        self.a_finish(ACC, OP, M0, L0)

    def a_finish(self, ACC, OP, M0, L0):
        a, c = self.a, self.c
        for ht in range(2):
            self.allsum_g(L0 + ht, 198 + ht)
        a("v_and_b32 %s, 15, %s" % (v(vA0), v(vL)))
        a("v_lshlrev_b32 %s, 4, %s" % (v(vA1), v(vA0)))
        a("s_lshl_b32 %s, %s, 2" % (s(sT1), s(sW)))
        a("s_add_u32 %s, %s, %d" % (s(sT1), s(sT1), LL))
        a("v_add_u32 %s, %s, %s" % (v(vA1), s(sT1), v(vA1)))
        for ht in range(2):
            a("ds_write_b32 %s, %s offset:%d" % (v(vA1), v(L0 + ht), 256 * ht))
        a("v_mul_u32_u24 %s, 2064, %s" % (v(vA0), v(vA0)))
        a("v_lshrrev_b32 %s, 4, %s" % (v(vA1), v(vL)))
        a("v_lshlrev_b32 %s, 4, %s" % (v(vA1), v(vA1)))
        a("s_lshl_b32 %s, %s, 9" % (s(sT1), s(sW)))
        a("v_add3_u32 %s, %s, %s, %s" % (v(vA0), v(vA0), v(vA1), s(sT1)))
        for ct in range(8):
            for ht in range(2):
                a("ds_write_b128 %s, %s offset:%d" % (v(vA0), v(ACC + 8 * ct + 4 * ht, 4), ht * 33024 + ct * 64))
        a("s_waitcnt lgkmcnt(0)")
        a("s_barrier")
        a("s_mul_i32 %s, %s, %d" % (s(sT1), s(sW), 8 * 2064))
        a("v_add_u32 %s, %s, %s" % (v(vA0), s(sT1), v(vO16)))
        for i in range(16):
            hq, half = i >> 1, i & 1
            a("ds_read_b128 %s, %s offset:%d" % (v(OP + 4 * i, 4), v(vA0), hq * 2064 + half * 1024))
        a("s_lshl_b32 %s, %s, 19" % (s(sT1), s(sW)))
        a("s_lshl_b32 %s, s2, 11" % s(sT2))
        a("s_add_u32 %s, %s, %s" % (s(sT1), s(sT1), s(sT2)))
        a("s_add_u32 %s, %s, 0x%x" % (s(sT1), s(sT1), WS_X3))
        for i in range(16):
            hq, half = i >> 1, i & 1
            a("s_waitcnt lgkmcnt(%d)" % (15 - i))
            o = " offset:1024" if half else ""
            a("buffer_store_dwordx4 %s, %s, %s, %s offen%s sc0 sc1" % (v(OP + 4 * i, 4), v(vO16), s(R_WS, 4), s(sT1), o))
            if half and hq < 7:
                a("s_add_u32 %s, %s, 0x10000" % (s(sT1), s(sT1)))
        a("s_waitcnt vmcnt(0)")
        a("s_barrier")
        skip = self.lab("ml")
        a("s_cmp_lg_u32 %s, 0" % s(sW))
        a("s_cbranch_scc1 %s" % skip)
        a("v_and_b32 %s, 31, %s" % (v(vA0), v(vL)))
        a("v_lshlrev_b32 %s, 4, %s" % (v(vA0), v(vA0)))
        a("v_add_u32 %s, %d, %s" % (v(vA1), LL, v(vA0)))
        a("ds_read_b128 v[200:203], %s" % v(vA1))
        self.mask64(sMS2, 0xFFFF0000)
        a("v_cndmask_b32 v204, %s, %s, %s" % (v(M0), v(M0 + 1), s(sMS2, 2)))
        a("v_mov_b32 v205, %s" % s(sTAG))
        a("v_mov_b32 v207, %s" % s(sTAG))
        a("s_lshl_b32 %s, s2, 9" % s(sT1))
        a("s_add_u32 %s, %s, 0x%x" % (s(sT1), s(sT1), WS_ML))
        a("s_waitcnt lgkmcnt(0)")
        a("v_add_f32 v200, v200, v201")
        a("v_add_f32 v202, v202, v203")
        a("v_add_f32 v206, v200, v202")
        a("s_mov_b32 exec_hi, 0")
        a("buffer_store_dwordx4 v[204:207], %s, %s, %s offen sc0 sc1" % (v(vA0), s(R_WS, 4), s(sT1)))
        a("s_mov_b64 exec, -1")
        a.label(skip)
        self.stamp(8)
        a("v_and_b32 %s, 31, %s" % (v(vA0), v(vL)))
        a("v_lshlrev_b32 %s, 9, %s" % (v(vA0), v(vA0)))
        a("s_lshl_b32 %s, s2, 4" % s(sX1))
        a("s_add_u32 %s, %s, 0x%x" % (s(sX1), s(sX1), WS_ML))

        def issue():
            a("buffer_load_dwordx4 v[200:203], %s, %s, %s offen sc1" % (v(vA0), s(R_WS, 4), s(sX1)))

        def check():
            self.tagcheck(204, [201, 203])
            a("v_cmp_ne_u32 vcc, 0, v204")

        self.poll("ml", issue, check)
        self.stamp(9)
        a("v_lshlrev_b32 %s, 3, %s" % (v(vA1), v(vL)))
        a("s_lshl_b32 %s, s2, 16" % s(sT1))
        a("s_lshl_b32 %s, %s, 9" % (s(sT2), s(sW)))
        a("s_add_u32 %s, %s, %s" % (s(sT1), s(sT1), s(sT2)))
        a("s_add_u32 %s, %s, 0x%x" % (s(sT1), s(sT1), WS_X3))
        for sp in range(32):
            o = " offset:2048" if sp & 1 else ""
            a("buffer_load_dwordx2 %s, %s, %s, %s offen%s sc1" % (v(40 + 2 * sp, 2), v(vA1), s(R_WS, 4), s(sT1), o))
            if sp & 1 and sp < 31:
                a("s_add_u32 %s, %s, 4096" % (s(sT1), s(sT1)))
        a("v_mov_b32 v204, v200")
        self.allsum_row(204, "v_max_f32")
        a("v_mov_b32 v205, v204")
        a("v_permlane16_swap_b32 v204, v205")
        a("v_max_f32 v204, v204, v205")
        a("v_sub_f32 v200, v200, v204")
        a("v_exp_f32 v200, v200")
        a("v_mul_f32 v204, v200, v202")
        self.allsum_row(204)
        a("v_mov_b32 v205, v204")
        a("v_permlane16_swap_b32 v204, v205")
        a("v_add_f32 v204, v204, v205")
        a("v_rcp_f32 v204, v204")
        a("v_mul_f32 v200, v200, v204")
        for sp in range(32):
            a("v_readlane_b32 %s, v200, %d" % (s(8 + sp), sp))
        for sp in range(32):
            if sp % 4 == 0:
                a("s_waitcnt vmcnt(%d)" % (28 - sp))
            if sp == 0:
                a("v_mul_f32 v104, %s, v40" % s(8))
                a("v_mul_f32 v105, %s, v41" % s(8))
            else:
                a("v_fmac_f32 v104, %s, %s" % (s(8 + sp), v(40 + 2 * sp)))
                a("v_fmac_f32 v105, %s, %s" % (s(8 + sp), v(41 + 2 * sp)))
        a("v_cvt_pk_bf16_f32 v104, v104, v104")
        a("v_cvt_pk_bf16_f32 v105, v105, v105")
        a("s_lshl_b32 %s, %s, 9" % (s(sT1), s(sW)))
        a("s_add_u32 %s, %s, %d" % (s(sT1), s(sT1), LT))
        a("v_lshlrev_b32 %s, 3, %s" % (v(vA0), v(vL)))
        a("v_add_u32 %s, %s, %s" % (v(vA0), s(sT1), v(vA0)))
        a("ds_write_b64 %s, v[104:105]" % v(vA0))
        a("v_lshrrev_b32 %s, 4, %s" % (v(vA1), v(vL)))
        a("v_lshlrev_b32 %s, 2, %s" % (v(vA1), v(vA1)))
        a("v_add_u32 %s, %s, %s" % (v(vA1), s(sT1), v(vA1)))
        for t in range(0, 32, 2):
            a("ds_read2_b32 %s, %s offset0:%d offset1:%d" % (v(40 + t, 2), v(vA1), 4 * t, 4 * t + 4))
        for t in range(32):
            if t % 2 == 0:
                a("s_waitcnt lgkmcnt(%d)" % (15 - t // 2))
            self.delta_mfma(108, ar(128 + 4 * t, 4), 40 + t, 112 + 4 * (t & 1), t == 0)
        a("v_lshrrev_b32 %s, 4, %s" % (v(vA0), v(vL)))
        a("v_lshlrev_b32 %s, 9, %s" % (v(vA0), v(vA0)))
        a("v_and_b32 %s, 7, %s" % (v(vA1), v(vL)))
        a("v_lshlrev_b32 %s, 4, %s" % (v(vA1), v(vA1)))
        a("s_lshl_b32 %s, %s, 2" % (s(sT1), s(sW)))
        a("s_add_u32 %s, %s, %d" % (s(sT1), s(sT1), LR))
        a("v_add3_u32 %s, %s, %s, %s" % (v(vA0), v(vA0), v(vA1), s(sT1)))
        for r in range(4):
            a("ds_write_b32 %s, %s offset:%d" % (v(vA0), v(108 + r), 128 * r))
        a("s_waitcnt lgkmcnt(0)")
        a("s_barrier")
        a("s_cmp_ge_u32 %s, 2" % s(sW))
        a("s_cbranch_scc1 L_a_done")
        a("s_lshl_b32 %s, %s, 10" % (s(sT1), s(sW)))
        a("s_add_u32 %s, %s, %d" % (s(sT1), s(sT1), LR))
        a("v_add_u32 %s, %s, %s" % (v(vA0), s(sT1), v(vO16)))
        a("ds_read_b128 v[40:43], %s" % v(vA0))
        a("s_lshl_b32 %s, s2, 10" % s(sT1))
        a("s_lshl_b32 %s, %s, 9" % (s(sT2), s(sW)))
        a("s_add_u32 %s, %s, %s" % (s(sT1), s(sT1), s(sT2)))
        a("s_add_u32 %s, %s, 0x%x" % (s(sT1), s(sT1), WS_X4A))
        a("v_lshlrev_b32 %s, 3, %s" % (v(vA1), v(vL)))
        a("s_waitcnt lgkmcnt(0)")
        a("v_add_f32 v40, v40, v41")
        a("v_add_f32 v42, v42, v43")
        a("v_add_f32 v40, v40, v42")
        a("v_mov_b32 v41, %s" % s(sTAG))
        a("buffer_store_dwordx2 v[40:41], %s, %s, %s offen sc0 sc1" % (v(vA1), s(R_WS, 4), s(sT1)))
        a.label("L_a_done")
        self.stamp(10)
        self.end()

    def build(self):
        a = self.a
        self.prologue()
        self.q_phase()
        self.q_gather()
        self.b_main()
        self.tail()
        self.a_main()
        a.label("L_exit")
        a("s_endpgm")
        a.label("L_codeend")
        body = a.finalize()
        head = open(os.path.join(os.path.dirname(os.path.abspath(__file__)), "header.txt")).read()
        head = head.replace("@LDS@", str(LDS_BYTES))
        return head + body + FOOTER


FOOTER = """.section .rodata,"a"
.p2align 6
.amdhsa_kernel %s_kernel
  .amdhsa_next_free_vgpr 512
  .amdhsa_next_free_sgpr 102
  .amdhsa_accum_offset 256
  .amdhsa_group_segment_fixed_size 0
  .amdhsa_kernarg_size 120
  .amdhsa_user_sgpr_count 2
  .amdhsa_user_sgpr_kernarg_segment_ptr 1
  .amdhsa_system_sgpr_workgroup_id_x 1
.end_amdhsa_kernel
""" % NAME


def main():
    p = argparse.ArgumentParser()
    p.add_argument("-o", default="cdna_kernels/%s.s" % NAME)
    p.add_argument("--nq", type=int, default=8)
    p.add_argument("--nt", default="nt")
    p.add_argument("--debug", action="store_true")
    p.add_argument("--elapsed", action="store_true")
    p.add_argument("--no-prefetch", dest="prefetch", action="store_false")
    p.add_argument("--spin", type=lambda x: int(x, 0), default=0x2000)
    cfg = p.parse_args()
    text = Gen(cfg).build()
    open(cfg.o, "w").write(text)
    print("wrote", cfg.o, len(text), "bytes")


if __name__ == "__main__":
    main()
```

```python
import argparse
import math
import struct
import sys
import os

sys.path.insert(0, os.path.dirname(os.path.abspath(__file__)))
from asmlib import Asm

NAME = "gated_mix__compressed_kv_cla__gqa_block_cached__decode"


def f32(x):
    return "0x%08x" % struct.unpack("<I", struct.pack("<f", x))[0]


LOG2E = math.log2(math.e)
C_SCALE = LOG2E / math.sqrt(128.0)

WS_EPOCH = 0
WS_X1 = 0x10000
WS_X2 = 0x30000
WS_ML = 0x40000
WS_X4A = 0x50000
WS_X4B = 0x60000
WS_X4L = 0xD0000
WS_X5 = 0xE0000
WS_X3 = 0x100000
WS_DBG = 0x500000
WS_SIZE = 0x800000
EPOCH_STEP = 0x9E3779B1

LU = 131072
LQ = LU
LQA = LU
LMX = LU
LP = LU + 1024
LL = LU + 8192
LT = LU + 9216
LR = LU + 12288
LO = LU + 16384
LML = LU + 20480
LX = LU + 4096
LDS_BYTES = 163840

sID, sT, sW, sTAG, sT1, sT2 = 2, 3, 4, 5, 6, 7
P_X, P_C, P_WQA, P_UK, P_UV, P_WOA = 8, 10, 12, 14, 16, 18
P_K, P_V, P_WQB, P_WOB, P_G, P_OUT, P_WS = 22, 24, 26, 28, 30, 32, 36
R_CODE, R_X, R_QW, R_WS = 40, 44, 48, 52
R_K, R_V, R_K2, R_V2, R_TW, R_G, R_OUT = 56, 60, 64, 68, 72, 76, 80
R_C, R_UV = 60, 64
R_UK = 40
sG, sJM, sB, sHH = 84, 85, 86, 84
sOFF, sCNT, sIT, sBIAS = 87, 88, 89, 90
sX1, sT3 = 91, 92
sMSK = 94
sMS2 = 96
sT4, sT5 = 98, 99
sST = 100

vL, vO16 = 1, 6
vM = [2, 3, 4, 5]
vA0, vA1, vA2 = 7, 8, 9
vSTAMP, vDUMMY = 254, 255
UKW, X1A, QU, UKS, UKQ = 56, 88, 16, 20, 24


def v(a, n=1):
    return "v%d" % a if n == 1 else "v[%d:%d]" % (a, a + n - 1)


def ar(a, n=1):
    return "a%d" % a if n == 1 else "a[%d:%d]" % (a, a + n - 1)


def s(a, n=1):
    return "s%d" % a if n == 1 else "s[%d:%d]" % (a, a + n - 1)


class Gen:
    def __init__(self, cfg):
        self.c = cfg
        self.a = Asm()
        self.uid = 0
        self.nstamp = 0
        self.NA = cfg.na
        self.NP = (256 - self.NA) // 16
        self.QB = 4096 // (4 * self.NP)
        self.QX = 4096 - self.QB * 4 * self.NP
        self.MAGIC = {14: 4682, 12: 5462}[self.NP]
        self.KEYS = 16384 // self.NA
        self.NIT = self.KEYS // 32
        self.NH = self.NA // 32

    def lab(self, base):
        self.uid += 1
        return "L_%s_%d" % (base, self.uid)

    def srd(self, r, ptr, size, off=None):
        a = self.a
        if off is None:
            a("s_mov_b32 %s, %s" % (s(r), s(ptr)))
            a("s_mov_b32 %s, %s" % (s(r + 1), s(ptr + 1)))
        else:
            a("s_add_u32 %s, %s, %s" % (s(r), s(ptr), off))
            a("s_addc_u32 %s, %s, 0" % (s(r + 1), s(ptr + 1)))
        a("s_mov_b32 %s, %s" % (s(r + 2), size))
        a("s_mov_b32 %s, 0x20000" % s(r + 3))

    def stamp(self, idx):
        if not self.c.debug:
            return
        a = self.a
        a("s_memrealtime %s" % s(sST, 2))
        a("s_waitcnt lgkmcnt(0)")
        a("v_writelane_b32 %s, %s, %d" % (v(vSTAMP), s(sST), idx))

    def stamp_it(self, phase, nph=5):
        if not self.c.debug:
            return
        a = self.a
        a("s_memrealtime %s" % s(sST, 2))
        a("s_mul_i32 s38, %s, %d" % (s(sIT), nph))
        a("s_add_u32 s38, s38, %d" % (16 + phase))
        a("s_waitcnt lgkmcnt(0)")
        a("s_mov_b32 m0, s38")
        a("v_writelane_b32 %s, %s, m0" % (v(vSTAMP), s(sST)))

    def dump_stamps(self):
        if not self.c.debug:
            return
        a = self.a
        a("s_lshl_b32 %s, %s, 2" % (s(sT1), s(sID)))
        a("s_add_u32 %s, %s, %s" % (s(sT1), s(sT1), s(sW)))
        a("s_lshl_b32 %s, %s, 8" % (s(sT1), s(sT1)))
        a("s_add_u32 %s, %s, 0x%x" % (s(sT1), s(sT1), WS_DBG))
        a("v_lshlrev_b32 %s, 2, %s" % (v(vA0), v(vL)))
        a("buffer_store_dword %s, %s, %s, %s offen" % (v(vSTAMP), v(vA0), s(R_WS, 4), s(sT1)))

    def dump(self, slot, reg):
        if not self.c.debug:
            return
        a = self.a
        a("s_lshl_b32 %s, %s, 2" % (s(sST), s(sID)))
        a("s_add_u32 %s, %s, %s" % (s(sST), s(sST), s(sW)))
        a("s_lshl_b32 %s, %s, 11" % (s(sST), s(sST)))
        a("s_add_u32 %s, %s, 0x%x" % (s(sST), s(sST), WS_DBG + 0x40000 + slot * 256))
        a("v_lshlrev_b32 v253, 2, %s" % v(vL))
        a("buffer_store_dword %s, v253, %s, %s offen" % (v(reg), s(R_WS, 4), s(sST)))

    def end(self):
        self.dump_stamps()
        self.a("s_endpgm")

    def mask64(self, reg, lo, hi=None):
        hi = lo if hi is None else hi
        self.a("s_mov_b32 %s, 0x%x" % (s(reg), lo))
        self.a("s_mov_b32 %s, 0x%x" % (s(reg + 1), hi))

    def tagcheck(self, acc, tags, first=True):
        a = self.a
        for i, t in enumerate(tags):
            if i == 0 and first:
                a("v_xor_b32 %s, %s, %s" % (v(acc), s(sTAG), v(t)))
            else:
                a("v_bitop3_b32 %s, %s, %s, %s bitop3:0xf6" % (v(acc), v(acc), v(t), s(sTAG)))

    def poll(self, name, issue, check, nwait="0", between=None, first_wait=None):
        a = self.a
        retry, ok = self.lab(name + "_retry"), self.lab(name + "_ok")
        a("s_movk_i32 %s, 0x%x" % (s(sCNT), self.c.spin))
        if between is not None:
            issue()
            between()
            a("s_waitcnt vmcnt(%d)" % first_wait)
            check()
            a("s_cbranch_vccz %s" % ok)
        a.label(retry)
        issue()
        a("s_waitcnt vmcnt(0)")
        check()
        a("s_cbranch_vccz %s" % ok)
        a("s_sub_u32 %s, %s, 1" % (s(sCNT), s(sCNT)))
        a("s_cbranch_scc0 %s" % retry)
        a.label(ok)

    def allsum_g(self, x, t, op="v_add_f32"):
        a = self.a
        a("v_mov_b32 %s, %s" % (v(t), v(x)))
        a("v_permlane16_swap_b32 %s, %s" % (v(x), v(t)))
        a("%s %s, %s, %s" % (op, v(x), v(x), v(t)))
        a("v_mov_b32 %s, %s" % (v(t), v(x)))
        a("v_permlane32_swap_b32 %s, %s" % (v(x), v(t)))
        a("%s %s, %s, %s" % (op, v(x), v(x), v(t)))

    def allsum_row(self, x, op="v_add_f32"):
        a = self.a
        o = op + "_dpp"
        for m in ("row_ror:8", "quad_perm:[1,0,3,2]", "quad_perm:[2,3,0,1]", "row_half_mirror"):
            a("%s %s, %s, %s %s row_mask:0xf bank_mask:0xf" % (o, v(x), v(x), v(x), m))

    def delta_mfma(self, acc, adata, dup, btmp, first):
        a = self.a
        for i in range(4):
            a("v_and_b32 %s, %s, %s" % (v(btmp + i), v(vM[i]), v(dup)))
        a("v_mfma_f32_16x16x32_bf16 %s, %s, %s, %s" % (v(acc, 4), adata, v(btmp, 4),
                                                      "0" if first else v(acc, 4)))

    def prologue(self):
        a, c = self.a, self.c
        a("s_cmp_ge_u32 s2, 0x100")
        a("s_cbranch_scc1 L_exit")
        if c.elapsed:
            a("s_memrealtime s[38:39]")
        a("s_load_dwordx16 s[8:23], s[0:1], 0x0")
        a("s_load_dwordx8 s[24:31], s[0:1], 0x40")
        a("s_load_dwordx4 s[32:35], s[0:1], 0x60")
        a("s_load_dwordx2 s[36:37], s[0:1], 0x70")
        if c.prefetch:
            a("s_getpc_b64 %s" % s(R_CODE, 2))
            a.label("L_pc")
            a("s_mov_b32 %s, L_codeend-L_pc" % s(R_CODE + 2))
            a("s_mov_b32 %s, 0x20000" % s(R_CODE + 3))
            a("s_lshr_b32 %s, s2, 6" % s(sT))
            a("s_lshl_b32 %s, %s, 14" % (s(sT), s(sT)))
            a("v_lshlrev_b32 %s, 6, v0" % v(vA0))
            a("v_add_u32 %s, %s, %s" % (v(vA0), s(sT), v(vA0)))
            a("buffer_load_dword %s, %s, %s, 0 offen" % (v(vDUMMY), v(vA0), s(R_CODE, 4)))
        a("v_and_b32 %s, 63, v0" % v(vL))
        a("v_lshrrev_b32 %s, 6, v0" % v(vA1))
        a("v_lshlrev_b32 %s, 4, %s" % (v(vO16), v(vL)))
        a("v_readfirstlane_b32 %s, %s" % (s(sW), v(vA1)))
        if c.debug:
            a("v_mov_b32 %s, 0" % v(vSTAMP))
        a("s_and_b32 %s, s2, 1" % s(sT1))
        a("s_mul_i32 %s, %s, 288" % (s(sT1), s(sT1)))
        a("s_mul_i32 %s, %s, 72" % (s(sT2), s(sW)))
        a("s_add_u32 %s, %s, %s" % (s(sT1), s(sT1), s(sT2)))
        a("v_lshrrev_b32 %s, 3, %s" % (v(vA1), v(vL)))
        a("v_add_u32 %s, %s, %s" % (v(vA0), s(sT1), v(vA1)))
        a("v_lshlrev_b32 %s, 1, %s" % (v(vA0), v(vA0)))
        a("v_and_b32 %s, 7, %s" % (v(vA2), v(vL)))
        a("v_lshlrev_b32 %s, 4, %s" % (v(vA2), v(vA2)))
        a("v_lshlrev_b32 %s, 13, %s" % (v(vA1), v(vA1)))
        a("v_add_u32 %s, %s, %s" % (v(vA1), v(vA1), v(vA2)))
        a("s_lshl_b32 %s, %s, 13" % (s(sOFF), s(sT1)))
        a("s_lshr_b32 %s, s2, 1" % s(sT2))
        a("s_and_b32 %s, %s, 63" % (s(sT2), s(sT2)))
        a("s_lshl_b32 %s, %s, 7" % (s(sT2), s(sT2)))
        a("s_add_u32 %s, %s, %s" % (s(sOFF), s(sOFF), s(sT2)))
        a("s_waitcnt lgkmcnt(0)")
        a("s_load_dword %s, %s, 0x%x" % (s(sTAG), s(P_WS, 2), WS_EPOCH))
        self.srd(R_X, P_X, "1152")
        a("s_cmp_ge_u32 s2, 0x80")
        a("s_cselect_b32 %s, %s, %s" % (s(R_QW), s(P_WQB), s(P_WQA)))
        a("s_cselect_b32 %s, %s, %s" % (s(R_QW + 1), s(P_WQB + 1), s(P_WQA + 1)))
        a("s_mov_b32 %s, 4718592" % s(R_QW + 2))
        a("s_mov_b32 %s, 0x20000" % s(R_QW + 3))
        for t in range(9):
            a("buffer_load_ushort %s, %s, %s, 0 offen offset:%d" % (v(204 + t), v(vA0), s(R_X, 4), 16 * t))
        for t in range(9):
            a("buffer_load_dwordx4 %s, %s, %s, %s offen %s" % (v(168 + 4 * t, 4), v(vA1), s(R_QW, 4), s(sOFF), c.nt))
            if t < 8:
                a("s_add_u32 %s, %s, 0x10000" % (s(sOFF), s(sOFF)))
        self.srd(R_UK, P_UK, "4194304")
        a("v_lshrrev_b32 %s, 4, %s" % (v(vA0), v(vL)))
        a("v_lshlrev_b32 %s, 15, %s" % (v(vA0), v(vA0)))
        a("v_and_b32 %s, 15, %s" % (v(vA2), v(vL)))
        a("v_lshlrev_b32 %s, 4, %s" % (v(vA2), v(vA2)))
        a("v_add_u32 %s, %s, %s" % (v(vA0), v(vA0), v(vA2)))
        a("s_and_b32 %s, s2, 7" % s(sT1))
        a("s_lshl_b32 %s, %s, 2" % (s(sT1), s(sT1)))
        a("s_add_u32 %s, %s, %s" % (s(sT1), s(sT1), s(sW)))
        a("s_lshl_b32 %s, %s, 17" % (s(sT1), s(sT1)))
        a("s_lshr_b32 %s, s2, 3" % s(sT2))
        a("s_lshl_b32 %s, %s, 8" % (s(sT2), s(sT2)))
        a("s_add_u32 %s, %s, %s" % (s(sT1), s(sT1), s(sT2)))
        for t in range(4):
            a("buffer_load_dwordx4 %s, %s, %s, %s offen %s" % (v(UKW + 4 * t, 4), v(vA0), s(R_UK, 4), s(sT1), c.nt))
            if t < 3:
                a("s_add_u32 %s, %s, 0x2000" % (s(sT1), s(sT1)))
        self.srd(R_WS, P_WS, "0x%x" % WS_SIZE)
        self.stamp(0)
        a("s_cmp_lt_u32 s2, %d" % self.NA)
        a("s_cbranch_scc1 L_a_pre")
        self.b_pre()
        a("s_branch L_q")
        a.label("L_a_pre")
        self.a_pre()
        a.label("L_q")

    def b_pre(self):
        a, c = self.a, self.c
        a("s_sub_u32 %s, s2, %d" % (s(sB), self.NA))
        a("s_mul_i32 %s, %s, %d" % (s(sG), s(sB), self.MAGIC))
        a("s_lshr_b32 %s, %s, 16" % (s(sG), s(sG)))
        a("s_mul_i32 %s, %s, %d" % (s(sT1), s(sG), self.NP))
        a("s_sub_u32 %s, %s, %s" % (s(sJM), s(sB), s(sT1)))
        a("s_lshl_b32 %s, %s, 2" % (s(sT1), s(sJM)))
        a("s_add_u32 %s, %s, %s" % (s(sT1), s(sT1), s(sW)))
        a("s_mul_i32 %s, %s, %d" % (s(sT2), s(sT1), self.QB))
        a("s_min_u32 %s, %s, %d" % (s(sT3), s(sT1), self.QX))
        a("s_add_u32 %s, %s, %s" % (s(sT2), s(sT2), s(sT3)))
        a("s_lshl_b32 %s, %s, 10" % (s(sT2), s(sT2)))
        a("s_lshl_b32 %s, %s, 22" % (s(sT3), s(sG)))
        a("s_add_u32 %s, %s, %s" % (s(sT2), s(sT2), s(sT3)))
        ksz = (self.QB + 1) * 1024
        self.srd(R_K, P_K, str(ksz), s(sT2))
        self.srd(R_V, P_V, str(ksz), s(sT2))
        a("s_cmp_lt_u32 %s, %d" % (s(sT1), self.QX))
        a("s_cselect_b32 %s, %d, 0" % (s(sT3), ksz))
        a("s_cselect_b32 %s, 0, 0xff800000" % s(sBIAS))
        self.srd(R_K2, P_K, s(sT3), s(sT2))
        self.srd(R_V2, P_V, s(sT3), s(sT2))
        a("s_mov_b32 %s, %d" % (s(sT1), (self.QB - 1) * 1024))
        a("buffer_load_dwordx4 %s, %s, %s, %s offen %s" % (v(104, 4), v(vO16), s(R_K, 4), s(sT1), c.nt))
        a("buffer_load_dwordx4 %s, %s, %s, %s offen offset:1024 %s" % (v(108, 4), v(vO16), s(R_K2, 4), s(sT1), c.nt))
        a("s_mov_b32 %s, 0" % s(sOFF))
        for i in range(c.nq):
            self.kv_load(40 + 4 * i, R_K, i)
        a("s_add_u32 %s, %s, 16" % (s(sX1), s(sG)))
        self.mask64(sMSK, 0xFF00FF00)
        a("s_waitcnt vmcnt(%d)" % (c.nq + 6))

    def kv_load(self, reg, srd, i, off=None):
        a, c = self.a, self.c
        off = sOFF if off is None else off
        if i < 4:
            so = s(off)
        else:
            if i % 4 == 0:
                a("s_add_u32 %s, %s, %d" % (s(sT4), s(off), 4096 * (i // 4)))
            so = s(sT4)
        o = " offset:%d" % (1024 * (i % 4)) if i % 4 else ""
        a("buffer_load_dwordx4 %s, %s, %s, %s offen%s %s" % (v(reg, 4), v(vO16), s(srd, 4), so, o, c.nt))

    def a_pre(self):
        a, c = self.a, self.c
        self.srd(R_K, P_V, "0")
        self.srd(R_UV, P_UV, "4194304")
        self.srd(R_V2, P_V, "0")
        a("s_mul_i32 %s, s2, %d" % (s(sT2), self.KEYS * 1024))
        self.srd(R_C, P_C, str(self.KEYS * 1024), s(sT2))
        a("s_waitcnt vmcnt(4)")

    def q_phase(self):
        a, c = self.a, self.c
        self.stamp(1)
        a("v_and_b32 %s, 1, %s" % (v(vA0), v(vL)))
        a("v_lshlrev_b32 %s, 4, %s" % (v(vA0), v(vA0)))
        a("v_mov_b32 %s, 0xffff" % v(vA1))
        a("v_lshlrev_b32 %s, %s, %s" % (v(vA1), v(vA0), v(vA1)))
        for i in range(4):
            self.mask64(sMS2, 0x03030303 << (2 * i))
            a("v_cndmask_b32 %s, 0, %s, %s" % (v(vM[i]), v(vA1), s(sMS2, 2)))
        for t in range(9):
            a("v_lshl_or_b32 %s, %s, 16, %s" % (v(204 + t), v(204 + t), v(204 + t)))
        for t in range(9):
            self.delta_mfma(222, v(168 + 4 * t, 4), 204 + t, 214 + 4 * (t & 1), t == 0)
        a("v_lshrrev_b32 %s, 4, %s" % (v(vA0), v(vL)))
        a("v_and_b32 %s, 1, %s" % (v(vA1), v(vA0)))
        a("v_lshlrev_b32 %s, 10, %s" % (v(vA1), v(vA1)))
        a("v_lshrrev_b32 %s, 1, %s" % (v(vA0), v(vA0)))
        a("v_lshlrev_b32 %s, 2, %s" % (v(vA0), v(vA0)))
        a("v_add_u32 %s, %s, %s" % (v(vA0), v(vA0), v(vA1)))
        a("v_and_b32 %s, 7, %s" % (v(vA1), v(vL)))
        a("v_lshlrev_b32 %s, 5, %s" % (v(vA1), v(vA1)))
        a("s_lshl_b32 %s, %s, 3" % (s(sT1), s(sW)))
        a("s_add_u32 %s, %s, %d" % (s(sT1), s(sT1), LQ))
        a("v_add3_u32 %s, %s, %s, %s" % (v(vA0), v(vA0), v(vA1), s(sT1)))
        self.mask64(sMS2, 0x00FF00FF, 0xFF00FF00)
        a("s_mov_b64 exec, %s" % s(sMS2, 2))
        for r in range(4):
            a("ds_write_b32 %s, %s offset:%d" % (v(vA0), v(222 + r), 256 * r))
        a("s_mov_b64 exec, -1")
        a("s_waitcnt lgkmcnt(0)")
        a("s_add_u32 %s, %s, 0x%x" % (s(sTAG), s(sTAG), EPOCH_STEP))
        a("s_barrier")
        skip = self.lab("qpub")
        a("s_cmp_lg_u32 %s, 0" % s(sW))
        a("s_cbranch_scc1 %s" % skip)
        a("v_lshlrev_b32 %s, 5, %s" % (v(vA0), v(vL)))
        a("v_add_u32 %s, %d, %s" % (v(vA0), LQ, v(vA0)))
        a("ds_read_b128 %s, %s" % (v(226, 4), v(vA0)))
        a("ds_read_b128 %s, %s offset:16" % (v(230, 4), v(vA0)))
        a("v_bfe_u32 %s, %s, 1, 2" % (v(vA1), v(vL)))
        a("v_lshlrev_b32 %s, 10, %s" % (v(vA1), v(vA1)))
        a("v_lshrrev_b32 %s, 3, %s" % (v(vA2), v(vL)))
        a("v_lshlrev_b32 %s, 4, %s" % (v(vA2), v(vA2)))
        a("v_add_u32 %s, %s, %s" % (v(vA1), v(vA1), v(vA2)))
        a("v_and_b32 %s, 1, %s" % (v(vA2), v(vL)))
        a("v_lshlrev_b32 %s, 3, %s" % (v(vA2), v(vA2)))
        a("v_add_u32 %s, %s, %s" % (v(vA1), v(vA1), v(vA2)))
        a("s_lshr_b32 %s, s2, 3" % s(sT1))
        a("s_lshl_b32 %s, %s, 12" % (s(sT1), s(sT1)))
        a("s_bfe_u32 %s, s2, 0x10002" % s(sT2))
        a("s_lshl_b32 %s, %s, 9" % (s(sT2), s(sT2)))
        a("s_add_u32 %s, %s, %s" % (s(sT1), s(sT1), s(sT2)))
        a("s_and_b32 %s, s2, 1" % s(sT2))
        a("s_lshl_b32 %s, %s, 8" % (s(sT2), s(sT2)))
        a("s_add_u32 %s, %s, %s" % (s(sT1), s(sT1), s(sT2)))
        a("s_bfe_u32 %s, s2, 0x10001" % s(sT2))
        a("s_lshl_b32 %s, %s, 7" % (s(sT2), s(sT2)))
        a("s_add_u32 %s, %s, %s" % (s(sT1), s(sT1), s(sT2)))
        a("s_add_u32 %s, %s, 0x%x" % (s(sT1), s(sT1), WS_X1))
        a("s_waitcnt lgkmcnt(0)")
        a("v_add_f32 v226, v226, v227")
        a("v_add_f32 v228, v228, v229")
        a("v_add_f32 v230, v230, v231")
        a("v_add_f32 v232, v232, v233")
        a("v_add_f32 v226, v226, v228")
        a("v_add_f32 v230, v230, v232")
        a("v_add_f32 v226, v226, v230")
        a("v_mul_f32 v226, %s, v226" % f32(C_SCALE))
        a("v_mov_b32 v227, %s" % s(sTAG))
        a("buffer_store_dwordx2 v[226:227], %s, %s, %s offen sc0 sc1" % (v(vA1), s(R_WS, 4), s(sT1)))
        a.label(skip)
        self.stamp(2)

    def x1_issue(self, base, soff):
        self.a("buffer_load_dwordx4 %s, %s, %s, %s offen sc1" % (v(base, 4), v(vO16), s(R_WS, 4), s(soff)))

    def x1_pack(self, bases):
        a = self.a
        a("s_lshl_b32 %s, %s, 2" % (s(sT1), s(sW)))
        a("s_add_u32 %s, %s, %d" % (s(sT1), s(sT1), LX))
        a("v_add_u32 %s, %s, %s" % (v(vA0), s(sT1), v(vO16)))
        for b in bases:
            a("v_mov_b32 %s, %s" % (v(b + 1), v(b)))
            a("v_mov_b32 %s, %s" % (v(b + 3), v(b + 2)))
        for b in bases:
            a("v_permlane16_swap_b32 %s, %s" % (v(b), v(b + 1)))
            a("v_permlane16_swap_b32 %s, %s" % (v(b + 2), v(b + 3)))
        for b in bases:
            a("v_add_f32 %s, %s, %s" % (v(b), v(b), v(b + 1)))
            a("v_add_f32 %s, %s, %s" % (v(b + 2), v(b + 2), v(b + 3)))
        for b in bases:
            a("v_cvt_pk_bf16_f32 %s, %s, %s" % (v(b), v(b), v(b + 2)))
        for i, b in enumerate(bases):
            a("ds_write_b32 %s, %s offset:%d" % (v(vA0), v(b), 1024 * i))
        a("v_add_u32 %s, %d, %s" % (v(vA0), LX, v(vO16)))
        a("s_waitcnt lgkmcnt(0)")
        a("s_barrier")

    def x1_select(self, region, tmp, mask, dst0, dst1=None):
        a = self.a
        a("ds_read_b128 %s, %s offset:%d" % (v(tmp, 4), v(vA0), 1024 * region))
        a("s_waitcnt lgkmcnt(0)")
        for k in range(4):
            a("v_mov_b32 %s, %s" % (v(tmp + 4 + k), v(tmp + k)))
        for k in range(4):
            a("v_permlane32_swap_b32 %s, %s" % (v(tmp + k), v(tmp + 4 + k)))
        for k in range(4):
            a("v_cndmask_b32 %s, %s, %s, %s" % (v(dst0 + k), v(tmp + k), v(tmp + 4 + k), s(mask, 2)))
            if dst1 is not None:
                a("v_cndmask_b32 %s, %s, %s, %s" % (v(dst1 + k), v(tmp + 4 + k), v(tmp + k), s(mask, 2)))

    def uk_slice(self):
        a = self.a
        S, quad = UKS, UKQ
        a("s_bitcmp1_b32 s2, 3")
        a("s_cselect_b64 %s, -1, 0" % s(sMS2, 2))
        self.x1_select(0, 242, sMS2, QU)
        for j in range(4):
            for t in range(4):
                a("v_dot2_f32_bf16 %s, %s, %s, %s" % (v(S + t), v(UKW + 4 * t + j), v(QU + j), "0" if j == 0 else v(S + t)))
        for m in ("row_ror:8", "quad_perm:[1,0,3,2]", "quad_perm:[2,3,0,1]", "row_half_mirror"):
            for t in range(4):
                a("v_add_f32_dpp %s, %s, %s %s row_mask:0xf bank_mask:0xf" % (v(S + t), v(S + t), v(S + t), m))
        a("v_cvt_pk_bf16_f32 %s, %s, %s" % (v(quad), v(S), v(S + 1)))
        a("v_cvt_pk_bf16_f32 %s, %s, %s" % (v(quad + 2), v(S + 2), v(S + 3)))
        a("v_mov_b32 %s, %s" % (v(quad + 1), s(sTAG)))
        a("v_mov_b32 %s, %s" % (v(quad + 3), s(sTAG)))
        a("s_lshl_b32 %s, s2, 8" % s(sT1))
        a("s_lshl_b32 %s, %s, 6" % (s(sT2), s(sW)))
        a("s_add_u32 %s, %s, %s" % (s(sT1), s(sT1), s(sT2)))
        a("s_add_u32 %s, %s, 0x%x" % (s(sT1), s(sT1), WS_X2))
        self.mask64(sMS2, 0x00010001)
        a("s_mov_b64 exec, %s" % s(sMS2, 2))
        a("buffer_store_dwordx4 %s, %s, %s, %s offen sc0 sc1" % (v(quad, 4), v(vL), s(R_WS, 4), s(sT1)))
        a("s_mov_b64 exec, -1")

    def q_gather(self):
        a, c = self.a, self.c
        assert c.nq <= 4
        a("s_lshr_b32 %s, s2, 4" % s(sT5))
        a("s_lshl_b32 %s, %s, 12" % (s(sT5), s(sT5)))
        a("s_lshl_b32 %s, %s, 10" % (s(sT1), s(sW)))
        a("s_add_u32 %s, %s, 0x%x" % (s(sT1), s(sT1), WS_X1))
        a("s_add_u32 %s, %s, %s" % (s(sT5), s(sT5), s(sT1)))
        a("s_cmp_lt_u32 s2, %d" % self.NA)
        a("s_cbranch_scc1 L_a_main")
        a("s_lshl_b32 %s, %s, 12" % (s(sX1), s(sX1)))
        a("s_add_u32 %s, %s, %s" % (s(sX1), s(sX1), s(sT1)))
        self.tail_setup()
        self.tail_loads(0, c.t0)
        a("s_mov_b32 %s, %d" % (s(sT1), (self.QB - 1) * 1024))
        a("buffer_load_dwordx4 %s, %s, %s, %s offen %s" % (v(112, 4), v(vO16), s(R_V, 4), s(sT1), c.nt))
        a("buffer_load_dwordx4 %s, %s, %s, %s offen offset:1024 %s" % (v(116, 4), v(vO16), s(R_V2, 4), s(sT1), c.nt))
        for i in range(c.nq):
            self.kv_load(72 + 4 * i, R_V, i)

        def issue():
            self.x1_issue(X1A, sT5)
            self.x1_issue(X1A + 4, sX1)

        def check():
            self.tagcheck(242, [X1A + 1, X1A + 3, X1A + 5, X1A + 7])
            a("v_cmp_ne_u32 vcc, 0, v242")

        self.poll("x1", issue, check)
        self.stamp(11)
        self.x1_pack([X1A, X1A + 4])
        self.uk_slice()
        self.stamp(10)
        self.tail_loads(c.t0, 20)
        self.x1_select(1, 242, sMSK, 32, 36)
        self.stamp(3)

    def b_block(self, nq, kreg, vreg, kwait, vwait, knext, vnext, masked_last=False):
        a = self.a
        SA, SB, O, M, L = 16, 24, 10, 14, 15
        for i in range(nq):
            a("s_waitcnt vmcnt(%d)" % kwait(i))
            k = kreg + 4 * i
            for j in range(4):
                a("v_dot2_f32_bf16 %s, %s, %s, %s" % (v(SA + i), v(k + j), v(32 + j), "0" if j == 0 else v(SA + i)))
                a("v_dot2_f32_bf16 %s, %s, %s, %s" % (v(SB + i), v(k + j), v(36 + j), "0" if j == 0 else v(SB + i)))
            knext(i)
        for i in range(nq):
            a("v_add_f32_dpp %s, %s, %s row_ror:8 row_mask:0xf bank_mask:0xf" % (v(SA + i), v(SB + i), v(SA + i)))
        for m in ("quad_perm:[1,0,3,2]", "quad_perm:[2,3,0,1]", "row_half_mirror"):
            for i in range(nq):
                a("v_add_f32_dpp %s, %s, %s %s row_mask:0xf bank_mask:0xf" % (v(SA + i), v(SA + i), v(SA + i), m))
        if masked_last:
            a("v_add_f32 %s, %s, %s" % (v(SA + nq - 1), s(sBIAS), v(SA + nq - 1)))
        BM, T, AL = 130, 131, 132
        a("v_max_f32 %s, %s, %s" % (v(BM), v(SA), v(SA + 1)))
        i = 2
        while i < nq:
            if i + 1 < nq:
                a("v_max3_f32 %s, %s, %s, %s" % (v(BM), v(BM), v(SA + i), v(SA + i + 1)))
                i += 2
            else:
                a("v_max_f32 %s, %s, %s" % (v(BM), v(BM), v(SA + i)))
                i += 1
        self.allsum_g(BM, T, "v_max_f32")
        a("v_max_f32 %s, %s, %s" % (v(BM), v(BM), v(M)))
        a("v_sub_f32 %s, %s, %s" % (v(AL), v(M), v(BM)))
        for i in range(nq):
            a("v_sub_f32 %s, %s, %s" % (v(SA + i), v(SA + i), v(BM)))
        a("v_exp_f32 %s, %s" % (v(AL), v(AL)))
        for i in range(nq):
            a("v_exp_f32 %s, %s" % (v(SA + i), v(SA + i)))
        a("v_mov_b32 %s, %s" % (v(M), v(BM)))
        a("v_mul_f32 %s, %s, %s" % (v(L), v(L), v(AL)))
        for r in range(4):
            a("v_mul_f32 %s, %s, %s" % (v(O + r), v(O + r), v(AL)))
        for i in range(nq):
            a("v_cvt_pk_bf16_f32 %s, %s, %s" % (v(SB + i), v(SA + i), v(SA + i)))
        for i in range(nq):
            a("v_add_f32 %s, %s, %s" % (v(L), v(L), v(SA + i)))
        for i in range(nq):
            bt = 122 + 4 * (i & 1)
            for j in range(4):
                a("v_and_b32 %s, %s, %s" % (v(bt + j), v(vM[j]), v(SB + i)))
            a("s_waitcnt vmcnt(%d)" % vwait(i))
            a("v_mfma_f32_16x16x32_bf16 %s, %s, %s, %s" % (v(O, 4), v(vreg + 4 * i, 4), v(bt, 4), v(O, 4)))
            vnext(i)

    def tail_setup(self):
        a, c = self.a, self.c
        a("s_and_b32 %s, %s, 1" % (s(sT1), s(sW)))
        a("s_lshl_b32 %s, %s, 1" % (s(sT2), s(sG)))
        a("s_add_u32 %s, %s, %s" % (s(sT1), s(sT1), s(sT2)))
        a("s_mul_i32 %s, %s, %d" % (s(sT1), s(sT1), 128 * 1152))
        a("s_lshl_b32 %s, %s, 7" % (s(sT2), s(sJM)))
        a("s_add_u32 %s, %s, %s" % (s(sIT), s(sT1), s(sT2)))
        a("s_cmp_ge_u32 %s, 2" % s(sW))
        a("s_cselect_b32 %s, %s, %s" % (s(R_TW), s(P_WOA), s(P_WOB)))
        a("s_cselect_b32 %s, %s, %s" % (s(R_TW + 1), s(P_WOA + 1), s(P_WOB + 1)))
        a("s_cmp_lt_u32 %s, 9" % s(sJM))
        a("s_cselect_b32 %s, 4718592, 0" % s(R_TW + 2))
        a("s_cselect_b32 %s, 1152, 0" % s(sT3))
        a("s_mov_b32 %s, 0x20000" % s(R_TW + 3))
        self.srd(R_G, P_G, s(sT3))
        a("s_mov_b32 %s, %s" % (s(R_X + 2), s(sT3)))
        a("v_lshrrev_b32 v250, 3, %s" % v(vL))
        a("v_mul_u32_u24 v250, 1152, v250")
        a("v_and_b32 %s, 7, %s" % (v(vA1), v(vL)))
        a("v_lshlrev_b32 %s, 4, %s" % (v(vA1), v(vA1)))
        a("v_add_u32 v250, v250, %s" % v(vA1))

    def tail_loads(self, n0, n1):
        a, c = self.a, self.c
        for t in range(n0, n1):
            if t < 16:
                a("buffer_load_dwordx4 %s, v250, %s, %s offen %s" % (v(140 + 4 * t, 4), s(R_TW, 4), s(sIT), c.nt))
                if t < 15:
                    a("s_add_u32 %s, %s, 9216" % (s(sIT), s(sIT)))
            else:
                i = t - 16
                o = " offset:1024" if i & 1 else ""
                a("buffer_load_dwordx4 %s, %s, %s, 0 offen%s" % (v(204 + 4 * i, 4), v(vO16), s(R_X if i < 2 else R_G, 4), o))

    def b_main(self):
        a, c = self.a, self.c
        nq = c.nq
        assert (self.QB - 1) % nq == 0
        nb = (self.QB - 1) // nq
        for r in range(4):
            a("v_mov_b32 %s, 0" % v(10 + r))
        a("v_mov_b32 v14, 0xff800000")
        a("v_mov_b32 v15, 0")
        self.b_block(2, 104, 112, lambda i: 63, lambda i: 63, lambda i: None, lambda i: None,
                     masked_last=True)
        self.stamp(4)
        loop = self.lab("b_loop")
        a("s_movk_i32 %s, %d" % (s(sIT), nb - 1))
        a.label(loop)
        a("s_add_u32 %s, %s, %d" % (s(sT5), s(sOFF), nq * 1024))
        self.b_block(nq, 40, 72, lambda i: 2 * nq - 1, lambda i: 2 * nq - 1,
                     lambda i: self.kv_load(40 + 4 * i, R_K, i, sT5),
                     lambda i: self.kv_load(72 + 4 * i, R_V, i, sT5))
        a("s_mov_b32 %s, %s" % (s(sOFF), s(sT5)))
        if c.bstamp:
            self.stamp_it(0, 1)
        a("s_sub_u32 %s, %s, 1" % (s(sIT), s(sIT)))
        a("s_cmp_lg_u32 %s, 0" % s(sIT))
        a("s_cbranch_scc1 %s" % loop)
        self.stamp(5)
        self.b_block(nq, 40, 72, lambda i: 2 * nq - 1 - i, lambda i: nq - 1 - i,
                     lambda i: None, lambda i: None)
        self.stamp(6)
        self.gate()
        self.b_epilogue()

    def gate(self):
        a = self.a
        G, X, Wt = 220, 204, 212
        a("v_dot2_f32_bf16 %s, %s, %s, 0" % (v(G), v(X), v(Wt)))
        for j in range(1, 8):
            a("v_dot2_f32_bf16 %s, %s, %s, %s" % (v(G), v(X + j), v(Wt + j), v(G)))
        self.allsum_row(G)
        self.allsum_g(G, 221)
        a("v_mul_f32 %s, %s, %s" % (v(G), f32(-LOG2E), v(G)))
        a("v_exp_f32 %s, %s" % (v(G), v(G)))
        a("v_add_f32 %s, 1.0, %s" % (v(G), v(G)))
        a("v_rcp_f32 %s, %s" % (v(G), v(G)))

    def b_epilogue(self):
        a, c = self.a, self.c
        O, M, L = 10, 14, 15
        self.allsum_g(L, 130)
        a("v_bfe_u32 %s, %s, 3, 1" % (v(vA0), v(vL)))
        a("v_lshlrev_b32 %s, 5, %s" % (v(vA2), v(vA0)))
        a("v_lshlrev_b32 %s, 11, %s" % (v(vA0), v(vA0)))
        a("v_lshrrev_b32 %s, 4, %s" % (v(vA1), v(vL)))
        a("v_lshlrev_b32 %s, 9, %s" % (v(vA1), v(vA1)))
        a("v_add_u32 %s, %s, %s" % (v(vA0), v(vA0), v(vA1)))
        a("v_and_b32 %s, 7, %s" % (v(vA1), v(vL)))
        a("v_lshlrev_b32 %s, 4, %s" % (v(vA1), v(vA1)))
        a("s_lshl_b32 %s, %s, 2" % (s(sT1), s(sW)))
        a("s_add_u32 %s, %s, %d" % (s(sT2), s(sT1), LO))
        a("v_add3_u32 %s, %s, %s, %s" % (v(vA0), v(vA0), v(vA1), s(sT2)))
        a("s_add_u32 %s, %s, %d" % (s(sT2), s(sT1), LML))
        a("v_add_u32 %s, %s, %s" % (v(vA2), s(sT2), v(vA2)))
        for r in range(4):
            a("ds_write_b32 %s, %s offset:%d" % (v(vA0), v(O + r), 128 * r))
        a("ds_write_b32 %s, %s" % (v(vA2), v(M)))
        a("ds_write_b32 %s, %s offset:16" % (v(vA2), v(L)))
        a("s_waitcnt lgkmcnt(0)")
        a("s_barrier")
        skip = self.lab("b_pub")
        a("s_cmp_ge_u32 %s, 2" % s(sW))
        a("s_cbranch_scc1 %s" % skip)
        a("s_lshl_b32 %s, %s, 11" % (s(sT1), s(sW)))
        a("s_add_u32 %s, %s, %d" % (s(sT1), s(sT1), LO))
        a("v_lshlrev_b32 %s, 5, %s" % (v(vA0), v(vL)))
        a("v_add_u32 %s, %s, %s" % (v(vA0), s(sT1), v(vA0)))
        a("s_lshl_b32 %s, %s, 5" % (s(sT1), s(sW)))
        a("s_add_u32 %s, %s, %d" % (s(sT1), s(sT1), LML))
        a("v_mov_b32 %s, %s" % (v(vA1), s(sT1)))
        a("ds_read_b128 v[40:43], %s" % v(vA1))
        a("ds_read_b128 v[44:47], %s offset:16" % v(vA1))
        a("ds_read_b128 v[48:51], %s" % v(vA0))
        a("ds_read_b128 v[52:55], %s offset:16" % v(vA0))
        a("s_lshl_b32 %s, %s, 11" % (s(sT1), s(sB)))
        a("s_lshl_b32 %s, %s, 10" % (s(sT2), s(sW)))
        a("s_add_u32 %s, %s, %s" % (s(sT1), s(sT1), s(sT2)))
        a("s_add_u32 %s, %s, 0x%x" % (s(sT1), s(sT1), WS_X4B))
        a("s_lshl_b32 %s, %s, 1" % (s(sT2), s(sB)))
        a("s_add_u32 %s, %s, %s" % (s(sT2), s(sT2), s(sW)))
        a("s_lshl_b32 %s, %s, 7" % (s(sT2), s(sT2)))
        a("s_add_u32 %s, %s, 0x%x" % (s(sT2), s(sT2), WS_X4L))
        a("s_waitcnt lgkmcnt(2)")
        a("v_max3_f32 v56, v40, v41, v42")
        a("v_max_f32 v56, v56, v43")
        for i in range(4):
            a("v_sub_f32 %s, %s, v56" % (v(40 + i), v(40 + i)))
        for i in range(4):
            a("v_exp_f32 %s, %s" % (v(40 + i), v(40 + i)))
        a("v_mul_f32 v57, v40, v44")
        for i in range(1, 4):
            a("v_fmac_f32 v57, %s, %s" % (v(40 + i), v(44 + i)))
        a("s_waitcnt lgkmcnt(0)")
        a("v_mul_f32 v58, v40, v48")
        a("v_mul_f32 v60, v40, v52")
        for i in range(1, 4):
            a("v_fmac_f32 v58, %s, %s" % (v(40 + i), v(48 + i)))
            a("v_fmac_f32 v60, %s, %s" % (v(40 + i), v(52 + i)))
        a("v_rcp_f32 v62, v57")
        a("v_log_f32 v63, v57")
        a("v_mov_b32 v59, %s" % s(sTAG))
        a("v_mov_b32 v61, %s" % s(sTAG))
        a("v_mul_f32 v58, v58, v62")
        a("v_mul_f32 v60, v60, v62")
        a("v_add_f32 v64, v56, v63")
        a("v_mov_b32 v65, %s" % s(sTAG))
        a("buffer_store_dwordx4 v[58:61], %s, %s, %s offen sc0 sc1" % (v(vO16), s(R_WS, 4), s(sT1)))
        a("v_mov_b32 %s, 0" % v(vA0))
        a("s_mov_b64 exec, 1")
        a("buffer_store_dwordx2 v[64:65], %s, %s, %s offen sc0 sc1" % (v(vA0), s(R_WS, 4), s(sT2)))
        a("s_mov_b64 exec, -1")
        a.label(skip)
        self.stamp(7)
        a("s_cmp_lt_u32 %s, 9" % s(sJM))
        a("s_cbranch_scc1 L_tail")
        a("s_cmp_lg_u32 %s, 9" % s(sJM))
        a("s_cbranch_scc1 L_done")
        a("s_cmp_ge_u32 %s, 9" % s(sG))
        a("s_cbranch_scc1 L_done")
        a("s_cmp_lg_u32 %s, 0" % s(sW))
        a("s_cbranch_scc1 L_done")
        self.final()
        a.label("L_done")
        self.end()

    def final(self):
        a, c = self.a, self.c
        a("s_lshl_b32 %s, %s, 13" % (s(sT1), s(sG)))
        a("s_add_u32 %s, %s, 0x%x" % (s(sX1), s(sT1), WS_X5))
        a("v_and_b32 %s, 31, %s" % (v(vA0), v(vL)))
        a("v_lshlrev_b32 %s, 4, %s" % (v(vA0), v(vA0)))
        a("v_lshrrev_b32 %s, 5, %s" % (v(vA1), v(vL)))
        a("v_lshlrev_b32 %s, 9, %s" % (v(vA1), v(vA1)))
        a("v_add_u32 %s, %s, %s" % (v(vA0), v(vA0), v(vA1)))
        self.srd(R_OUT, P_OUT, "1152")

        def issue():
            for i in range(8):
                if i == 4:
                    a("s_add_u32 %s, %s, 4096" % (s(sT2), s(sX1)))
                a("buffer_load_dwordx4 %s, %s, %s, %s offen offset:%d sc1" % (
                    v(40 + 4 * i, 4), v(vA0), s(R_WS, 4), s(sX1 if i < 4 else sT2), 1024 * (i % 4)))

        def check():
            self.tagcheck(72, [40 + 4 * i + j for i in range(8) for j in (1, 3)])
            a("v_cmp_ne_u32 vcc, 0, v72")

        self.poll("x5", issue, check)
        self.stamp(12)
        for j in (0, 2):
            for i in (0, 2, 4, 6):
                a("v_add_f32 %s, %s, %s" % (v(40 + 4 * i + j), v(40 + 4 * i + j), v(44 + 4 * i + j)))
        for j in (0, 2):
            a("v_add_f32 %s, %s, %s" % (v(40 + j), v(40 + j), v(48 + j)))
            a("v_add_f32 %s, %s, %s" % (v(56 + j), v(56 + j), v(64 + j)))
        for j in (0, 2):
            a("v_add_f32 %s, %s, %s" % (v(40 + j), v(40 + j), v(56 + j)))
        a("v_mov_b32 v44, v40")
        a("v_mov_b32 v45, v42")
        a("v_permlane32_swap_b32 v40, v44")
        a("v_permlane32_swap_b32 v42, v45")
        a("v_add_f32 v40, v40, v44")
        a("v_add_f32 v42, v42, v45")
        a("v_cvt_pk_bf16_f32 v40, v40, v42")
        a("v_lshlrev_b32 %s, 2, %s" % (v(vA0), v(vL)))
        a("s_lshl_b32 %s, %s, 7" % (s(sT1), s(sG)))
        a("s_mov_b32 exec_hi, 0")
        a("buffer_store_dword v40, %s, %s, %s offen" % (v(vA0), s(R_OUT, 4), s(sT1)))
        done = self.lab("fin")
        a("s_cmp_lg_u32 %s, 0" % s(sG))
        a("s_cbranch_scc1 %s" % done)
        a("v_mov_b32 v41, %s" % s(sTAG))
        a("v_mov_b32 %s, %d" % (v(vA0), WS_EPOCH))
        a("s_mov_b64 exec, 1")
        a("buffer_store_dword v41, %s, %s, 0 offen sc0 sc1" % (v(vA0), s(R_WS, 4)))
        if c.elapsed:
            a("s_memrealtime %s" % s(sST, 2))
            a("s_waitcnt lgkmcnt(0)")
            a("s_sub_u32 %s, %s, s38" % (s(sT1), s(sST)))
            a("v_mov_b32 v41, %s" % s(sT1))
            a("v_mov_b32 %s, 0" % v(vA0))
            self.srd(R_OUT, 34, "256")
            a("buffer_store_dword v41, %s, %s, 0 offen" % (v(vA0), s(R_OUT, 4)))
        a.label(done)
        a("s_mov_b64 exec, -1")
        self.stamp(13)

    def reduce_wu8(self, acc, lds, dst):
        a = self.a
        a("v_lshrrev_b32 %s, 4, %s" % (v(vA0), v(vL)))
        a("v_and_b32 %s, 1, %s" % (v(vA1), v(vA0)))
        a("v_lshlrev_b32 %s, 10, %s" % (v(vA1), v(vA1)))
        a("v_lshrrev_b32 %s, 1, %s" % (v(vA0), v(vA0)))
        a("v_lshlrev_b32 %s, 2, %s" % (v(vA0), v(vA0)))
        a("v_add_u32 %s, %s, %s" % (v(vA0), v(vA0), v(vA1)))
        a("v_and_b32 %s, 7, %s" % (v(vA1), v(vL)))
        a("v_lshlrev_b32 %s, 5, %s" % (v(vA1), v(vA1)))
        a("s_lshl_b32 %s, %s, 3" % (s(sT1), s(sW)))
        a("s_add_u32 %s, %s, %d" % (s(sT1), s(sT1), lds))
        a("v_add3_u32 %s, %s, %s, %s" % (v(vA0), v(vA0), v(vA1), s(sT1)))
        self.mask64(sMS2, 0x00FF00FF, 0xFF00FF00)
        a("s_mov_b64 exec, %s" % s(sMS2, 2))
        for r in range(4):
            a("ds_write_b32 %s, %s offset:%d" % (v(vA0), v(acc + r), 256 * r))
        a("s_mov_b64 exec, -1")
        a("s_waitcnt lgkmcnt(0)")
        a("s_barrier")

    def tail(self):
        a, c = self.a, self.c
        a.label("L_tail")
        G = 220
        isa, join = self.lab("t_a"), self.lab("t_j")
        a("s_and_b32 %s, %s, 1" % (s(sT3), s(sW)))
        a("s_cmp_ge_u32 %s, 2" % s(sW))
        a("s_cbranch_scc1 %s" % isa)
        a("v_sub_f32 %s, 1.0, %s" % (v(G), v(G)))
        NP = self.NP
        a("s_mul_i32 %s, %s, %d" % (s(sX1), s(sG), NP * 2048))
        a("s_lshl_b32 %s, %s, 10" % (s(sT1), s(sT3)))
        a("s_add_u32 %s, %s, %s" % (s(sX1), s(sX1), s(sT1)))
        a("s_add_u32 %s, %s, 0x%x" % (s(sX1), s(sX1), WS_X4B))
        a("s_mul_i32 %s, %s, %d" % (s(sT5), s(sG), NP * 256))
        a("s_lshl_b32 %s, %s, 7" % (s(sT1), s(sT3)))
        a("s_add_u32 %s, %s, %s" % (s(sT5), s(sT5), s(sT1)))
        a("s_add_u32 %s, %s, 0x%x" % (s(sT5), s(sT5), WS_X4L))
        a("v_and_b32 %s, 15, %s" % (v(vA1), v(vL)))
        a("v_min_u32 %s, %d, %s" % (v(vA1), NP - 1, v(vA1)))
        a("v_lshlrev_b32 %s, 8, %s" % (v(vA1), v(vA1)))

        def issue():
            a("buffer_load_dwordx2 v[96:97], %s, %s, %s offen sc1" % (v(vA1), s(R_WS, 4), s(sT5)))
            a("s_mov_b32 %s, %s" % (s(sT2), s(sX1)))
            for i in range(NP):
                o = " offset:2048" if i & 1 else ""
                a("buffer_load_dwordx4 %s, %s, %s, %s offen%s sc1" % (v(40 + 4 * i, 4), v(vO16), s(R_WS, 4), s(sT2), o))
                if i & 1 and i < NP - 1:
                    a("s_add_u32 %s, %s, 4096" % (s(sT2), s(sT2)))

        def check():
            self.tagcheck(98, [97] + [40 + 4 * i + j for i in range(NP) for j in (1, 3)])
            a("v_cmp_ne_u32 vcc, 0, v98")

        if c.lfirst:
            def issue_l():
                a("buffer_load_dwordx2 v[96:97], %s, %s, %s offen sc1" % (v(vA1), s(R_WS, 4), s(sT5)))

            def check_l():
                self.tagcheck(98, [97])
                a("v_cmp_ne_u32 vcc, 0, v98")

            self.poll("x4l", issue_l, check_l)
        self.poll("x4b", issue, check)
        self.stamp(8)
        a("v_mov_b32 v98, v96")
        self.allsum_row(98, "v_max_f32")
        a("v_sub_f32 v96, v96, v98")
        a("v_exp_f32 v96, v96")
        self.mask64(sMS2, ((1 << NP) - 1) * 0x10001)
        a("v_cndmask_b32 v96, 0, v96, %s" % s(sMS2, 2))
        a("v_mov_b32 v98, v96")
        self.allsum_row(98)
        a("v_rcp_f32 v98, v98")
        a("v_mul_f32 v96, v96, v98")
        for i in range(NP):
            a("v_readlane_b32 %s, v96, %d" % (s(8 + i), i))
        a("v_mul_f32 v100, %s, v40" % s(8))
        a("v_mul_f32 v101, %s, v42" % s(8))
        for i in range(1, NP):
            a("v_fmac_f32 v100, %s, %s" % (s(8 + i), v(40 + 4 * i)))
            a("v_fmac_f32 v101, %s, %s" % (s(8 + i), v(42 + 4 * i)))
        a("s_branch %s" % join)
        a.label(isa)
        a("s_lshl_b32 %s, %s, 1" % (s(sX1), s(sG)))
        a("s_add_u32 %s, %s, %s" % (s(sX1), s(sX1), s(sT3)))
        NH = self.NH
        a("s_lshl_b32 %s, %s, %d" % (s(sX1), s(sX1), 9 + NH))
        a("s_add_u32 %s, %s, 0x%x" % (s(sX1), s(sX1), WS_X4A))

        def issue_a():
            for h in range(NH):
                o = " offset:1024" if h else ""
                a("buffer_load_dwordx4 %s, %s, %s, %s offen%s sc1" % (v(40 + 4 * h, 4), v(vO16), s(R_WS, 4), s(sX1), o))

        def check_a():
            self.tagcheck(98, [41 + 4 * h + j for h in range(NH) for j in (0, 2)])
            a("v_cmp_ne_u32 vcc, 0, v98")

        self.poll("x4a", issue_a, check_a)
        self.stamp(8)
        if NH == 1:
            a("v_mov_b32 v100, v40")
            a("v_mov_b32 v101, v42")
        else:
            a("v_add_f32 v100, v40, v44")
            a("v_add_f32 v101, v42, v46")
        a.label(join)
        self.dump(0, 100)
        self.dump(1, 101)
        self.dump(2, G)
        a("v_cvt_pk_bf16_f32 v100, v100, v100")
        a("v_cvt_pk_bf16_f32 v101, v101, v101")
        a("s_lshl_b32 %s, %s, 9" % (s(sT1), s(sW)))
        a("s_add_u32 %s, %s, %d" % (s(sT1), s(sT1), LT))
        a("v_lshlrev_b32 %s, 3, %s" % (v(vA0), v(vL)))
        a("v_add_u32 %s, %s, %s" % (v(vA0), s(sT1), v(vA0)))
        a("ds_write_b64 %s, v[100:101]" % v(vA0))
        a("v_lshrrev_b32 %s, 3, %s" % (v(vA1), v(vL)))
        a("v_lshlrev_b32 %s, 2, %s" % (v(vA1), v(vA1)))
        a("v_add_u32 %s, %s, %s" % (v(vA1), s(sT1), v(vA1)))
        for t in range(0, 16, 2):
            a("ds_read2_b32 %s, %s offset0:%d offset1:%d" % (v(40 + t, 2), v(vA1), 8 * t, 8 * t + 8))
        for t in range(16):
            if t % 2 == 0:
                a("s_waitcnt lgkmcnt(%d)" % (7 - t // 2))
            self.delta_mfma(10, v(140 + 4 * t, 4), 40 + t, 122 + 4 * (t & 1), t == 0)
        for r in range(4):
            self.dump(3 + r, 10 + r)
        self.dump(7, 140)
        for r in range(4):
            a("v_mul_f32 %s, %s, %s" % (v(10 + r), v(10 + r), v(G)))
        self.reduce_wu8(10, LR, 0)
        a("s_cmp_lg_u32 %s, 0" % s(sW))
        a("s_cbranch_scc1 L_tail_done")
        a("v_lshlrev_b32 %s, 5, %s" % (v(vA0), v(vL)))
        a("v_add_u32 %s, %d, %s" % (v(vA0), LR, v(vA0)))
        a("ds_read_b128 v[40:43], %s" % v(vA0))
        a("ds_read_b128 v[44:47], %s offset:16" % v(vA0))
        a("s_lshl_b32 %s, %s, 4" % (s(sT1), s(sJM)))
        a("s_add_u32 %s, %s, %s" % (s(sT1), s(sT1), s(sG)))
        a("s_lshl_b32 %s, %s, 9" % (s(sT1), s(sT1)))
        a("s_add_u32 %s, %s, 0x%x" % (s(sT1), s(sT1), WS_X5))
        a("v_lshlrev_b32 %s, 3, %s" % (v(vA1), v(vL)))
        a("s_waitcnt lgkmcnt(0)")
        a("v_add_f32 v40, v40, v41")
        a("v_add_f32 v42, v42, v43")
        a("v_add_f32 v44, v44, v45")
        a("v_add_f32 v46, v46, v47")
        a("v_add_f32 v40, v40, v42")
        a("v_add_f32 v44, v44, v46")
        a("v_add_f32 v40, v40, v44")
        a("v_mov_b32 v41, %s" % s(sTAG))
        a("buffer_store_dwordx2 v[40:41], %s, %s, %s offen sc0 sc1" % (v(vA1), s(R_WS, 4), s(sT1)))
        a.label("L_tail_done")
        self.stamp(9)
        self.end()

    def dma_rows(self, rows):
        a, c = self.a, self.c
        sDS, sDB = sT5, sT4
        grp = None
        for i in rows:
            if i // 4 != grp:
                grp = i // 4
                if grp == 0:
                    a("s_mov_b32 m0, %s" % s(sDB))
                    so = sDS
                else:
                    a("s_add_u32 %s, %s, 4096" % (s(sT1), s(sDB)))
                    a("s_add_u32 %s, %s, 4096" % (s(sT2), s(sDS)))
                    a("s_mov_b32 m0, %s" % s(sT1))
                    so = sT2
            o = " offset:%d" % (1024 * (i % 4)) if i % 4 else ""
            a("buffer_load_dwordx4 %s, %s, %s offen%s %s lds" % (v(222 + i), s(R_C, 4), s(so), o, c.nt))

    def dma_next(self):
        a = self.a
        sDS, sDB, sDX = sT5, sT4, sT3
        a("s_add_u32 %s, %s, 0x8000" % (s(sDS), s(sDS)))
        a("s_xor_b32 %s, %s, %s" % (s(sDB), s(sDB), s(sDX)))
        a("s_xor_b32 %s, %s, 0x18000" % (s(sDX), s(sDX)))

    def uv_loads(self, t0, t1):
        a, c = self.a, self.c
        for t in range(t0, t1):
            a("buffer_load_dwordx4 %s, v250, %s, %s offen %s" % (ar(128 + 4 * t, 4), s(R_UV, 4), s(sB), c.nt))
            if t < 32 // self.NH - 1:
                a("s_add_u32 %s, %s, 0x8000" % (s(sB), s(sB)))

    def a_main(self):
        a, c = self.a, self.c
        a.label("L_a_main")
        sDS, sDB, sDX = sT5, sT4, sT3
        na, nb_, nc = [int(x) for x in c.dsplit.split(",")]
        assert na + nb_ + nc == 8
        rowsA, rowsB, rowsC = list(range(na)), list(range(na, na + nb_)), list(range(na + nb_, 8))
        a("s_mov_b32 %s, %s" % (s(sX1), s(sT5)))
        for k in range(8):
            a("v_xor_b32 %s, %d, %s" % (v(222 + k), 32 * k, v(vO16)))
        a("s_lshl_b32 %s, %s, 13" % (s(sDB), s(sW)))
        a("s_mov_b32 %s, %s" % (s(sDS), s(sDB)))
        a("s_mov_b32 %s, 0x8000" % s(sDX))
        self.dma_rows(range(8))

        def issue_q():
            self.x1_issue(X1A, sX1)

        def check_q():
            self.tagcheck(242, [X1A + 1, X1A + 3])
            a("v_cmp_ne_u32 vcc, 0, v242")

        self.poll("x1a", issue_q, check_q)
        self.stamp(3)
        self.x1_pack([X1A])
        self.uk_slice()
        self.stamp(4)
        self.dma_next()
        self.dma_rows(range(8))
        a("v_lshrrev_b32 %s, 4, %s" % (v(vA0), v(vL)))
        a("v_lshlrev_b32 %s, 13, %s" % (v(vA0), v(vA0)))
        a("v_and_b32 %s, 15, %s" % (v(vA1), v(vL)))
        a("v_lshlrev_b32 v250, 4, %s" % v(vA1))
        a("v_add_u32 v250, %s, v250" % v(vA0))
        if self.NH == 1:
            a("s_lshl_b32 %s, %s, 20" % (s(sB), s(sW)))
            a("s_lshl_b32 %s, s2, 8" % s(sT2))
        else:
            a("s_and_b32 %s, s2, 1" % s(sT2))
            a("s_lshl_b32 %s, %s, 2" % (s(sT2), s(sT2)))
            a("s_add_u32 %s, %s, %s" % (s(sB), s(sT2), s(sW)))
            a("s_lshl_b32 %s, %s, 19" % (s(sB), s(sB)))
            a("s_lshr_b32 %s, s2, 1" % s(sT2))
            a("s_lshl_b32 %s, %s, 8" % (s(sT2), s(sT2)))
        a("s_add_u32 %s, %s, %s" % (s(sB), s(sB), s(sT2)))
        a("s_lshl_b32 %s, %s, 14" % (s(sX1), s(sW)))
        a("s_add_u32 %s, %s, 0x%x" % (s(sX1), s(sX1), WS_X2))

        def issue():
            a("s_mov_b32 %s, %s" % (s(sOFF), s(sX1)))
            for i in range(16):
                o = " offset:%d" % (1024 * (i % 4)) if i % 4 else ""
                a("buffer_load_dwordx4 %s, %s, %s, %s offen%s sc1" % (v(40 + 4 * i, 4), v(vO16), s(R_WS, 4), s(sOFF), o))
                if i % 4 == 3 and i < 15:
                    a("s_add_u32 %s, %s, 4096" % (s(sOFF), s(sOFF)))

        def check():
            self.tagcheck(104, [40 + 4 * i + j for i in range(16) for j in (1, 3)])
            a("v_cmp_ne_u32 vcc, 0, v104")

        self.poll("x2", issue, check)
        self.stamp(5)
        self.dma_next()
        self.dma_rows(rowsA + rowsB)
        self.uv_loads(0, min(c.uv0, 32 // self.NH))
        a("v_lshrrev_b32 %s, 1, %s" % (v(vA0), v(vL)))
        a("v_lshlrev_b32 %s, 4, %s" % (v(vA0), v(vA0)))
        a("v_and_b32 %s, 1, %s" % (v(vA1), v(vL)))
        a("v_lshlrev_b32 %s, 3, %s" % (v(vA1), v(vA1)))
        a("s_lshl_b32 %s, %s, 13" % (s(sT1), s(sW)))
        a("s_add_u32 %s, %s, %d" % (s(sT1), s(sT1), LQA))
        a("v_add_u32 %s, %s, %s" % (v(vA0), v(vA0), v(vA1)))
        for hq in range(8):
            a("v_xor_b32 %s, %d, %s" % (v(104 + hq), 32 * hq, v(vA0)))
            a("v_add_u32 %s, %s, %s" % (v(104 + hq), s(sT1), v(104 + hq)))
        for i in range(16):
            a("v_mov_b32 %s, %s" % (v(41 + 4 * i), v(42 + 4 * i)))
        for i in range(16):
            hq, half = i >> 1, i & 1
            a("ds_write_b64 %s, %s offset:%d" % (v(104 + hq), v(40 + 4 * i, 2), hq * 1024 + half * 512))
        AQ, AT = 210, 214
        a("v_and_b32 %s, 15, %s" % (v(vA0), v(vL)))
        a("v_lshlrev_b32 %s, 10, %s" % (v(vA1), v(vA0)))
        a("v_and_b32 %s, 7, %s" % (v(vA0), v(vA0)))
        a("v_lshlrev_b32 %s, 5, %s" % (v(vA0), v(vA0)))
        a("v_lshrrev_b32 %s, 4, %s" % (v(vA2), v(vL)))
        a("v_lshlrev_b32 %s, 4, %s" % (v(vA2), v(vA2)))
        for b in range(4):
            a("v_add_u32 %s, %d, %s" % (v(AQ + b), 64 * b, v(vA2)))
            a("v_xor_b32 %s, %s, %s" % (v(AQ + b), v(AQ + b), v(vA0)))
            a("v_add_u32 %s, %s, %s" % (v(AQ + b), v(AQ + b), v(vA1)))
        a("s_waitcnt lgkmcnt(0)")
        a("s_barrier")
        a("s_lshr_b32 %s, %s, 1" % (s(sT1), s(sW)))
        a("s_lshl_b32 %s, %s, 14" % (s(sT1), s(sT1)))
        a("s_add_u32 %s, %s, %d" % (s(sT1), s(sT1), LQA))
        for b in range(4):
            a("v_add_u32 %s, %s, %s" % (v(112 + b), s(sT1), v(AQ + b)))
        for ks in range(16):
            a("ds_read_b128 %s, %s offset:%d" % (ar(4 * ks, 4), v(112 + (ks & 3)), (ks >> 2) * 256))
        a("s_and_b32 %s, %s, 1" % (s(sT1), s(sW)))
        a("s_lshl_b32 %s, %s, 14" % (s(sT1), s(sT1)))
        for b in range(4):
            a("v_add_u32 %s, %s, %s" % (v(AQ + b), s(sT1), v(AQ + b)))
        a("v_lshrrev_b32 %s, 4, %s" % (v(vA0), v(vL)))
        a("v_lshlrev_b32 %s, 2, %s" % (v(vA0), v(vA0)))
        a("v_bfe_u32 %s, %s, 2, 2" % (v(vA1), v(vL)))
        a("v_add_u32 %s, %s, %s" % (v(vA0), v(vA0), v(vA1)))
        a("v_and_b32 %s, 7, %s" % (v(vA1), v(vA0)))
        a("v_lshlrev_b32 %s, 5, %s" % (v(vA1), v(vA1)))
        a("v_lshlrev_b32 %s, 10, %s" % (v(vA0), v(vA0)))
        a("v_and_b32 %s, 3, %s" % (v(vA2), v(vL)))
        a("v_lshlrev_b32 %s, 3, %s" % (v(vA2), v(vA2)))
        a("s_lshl_b32 %s, %s, 8" % (s(sT1), s(sW)))
        a("v_add3_u32 %s, %s, %s, %s" % (v(vA0), v(vA0), v(vA2), s(sT1)))
        for ct in range(8):
            a("v_xor_b32 %s, %d, %s" % (v(AT + ct), 32 * ct, v(vA1)))
            a("v_add_u32 %s, %s, %s" % (v(AT + ct), v(AT + ct), v(vA0)))
        AMW, AMR, APW, APR = 230, 231, 232, 233
        a("v_and_b32 %s, 15, %s" % (v(vA0), v(vL)))
        a("v_lshlrev_b32 %s, 4, %s" % (v(vA0), v(vA0)))
        a("v_add_u32 %s, %d, %s" % (v(AMR), LMX, v(vA0)))
        a("s_lshr_b32 %s, %s, 1" % (s(sT1), s(sW)))
        a("s_and_b32 %s, %s, 1" % (s(sT2), s(sW)))
        a("s_lshl_b32 %s, %s, 3" % (s(sOFF), s(sT1)))
        a("s_lshl_b32 %s, %s, 2" % (s(sX1), s(sT2)))
        a("s_add_u32 %s, %s, %s" % (s(sOFF), s(sOFF), s(sX1)))
        a("v_add_u32 %s, %s, %s" % (v(AMW), s(sOFF), v(AMR)))
        a("v_add_u32 %s, %d, %s" % (v(APR), LP, v(vO16)))
        a("s_lshl_b32 %s, %s, 10" % (s(sOFF), s(sT1)))
        a("s_lshl_b32 %s, %s, 3" % (s(sX1), s(sT2)))
        a("s_add_u32 %s, %s, %s" % (s(sOFF), s(sOFF), s(sX1)))
        a("v_add_u32 %s, %s, %s" % (v(APW), s(sOFF), v(APR)))
        a("s_cmp_ge_u32 %s, 2" % s(sW))
        a("s_cselect_b64 %s, -1, 0" % s(sMSK, 2))
        ACC, OP, S8, M0, L0, AL, PO = 40, 104, 168, 176, 178, 180, 182
        for i in range(64):
            a("v_mov_b32 %s, 0" % v(ACC + i))
        a("v_mov_b32 %s, 0xff800000" % v(M0))
        a("v_mov_b32 %s, 0xff800000" % v(M0 + 1))
        a("v_mov_b32 %s, 0" % v(L0))
        a("s_waitcnt lgkmcnt(0)")
        a("s_barrier")
        self.stamp(6)
        a("s_mov_b32 %s, 0" % s(sIT))
        a("s_mov_b32 %s, 0x8000" % s(sOFF))
        loop = self.lab("a_loop")
        a.label(loop)
        self.stamp_it(0, 3)
        for ks in range(16):
            a("ds_read_b128 %s, %s offset:%d" % (v(OP + 4 * ks, 4), v(AQ + (ks & 3)), (ks >> 2) * 256))
        cpos = {(4 + 4 * i): r for i, r in enumerate(rowsC)}
        for ks in range(16):
            a("s_waitcnt lgkmcnt(%d)" % (15 - ks))
            acc = S8 + 4 * (ks & 1)
            a("v_mfma_f32_16x16x32_bf16 %s, %s, %s, %s" % (
                v(acc, 4), v(OP + 4 * ks, 4), ar(4 * ks, 4), "0" if ks < 2 else v(acc, 4)))
            if ks in cpos:
                self.dma_rows([cpos[ks]])
        T0 = 198
        for r in range(4):
            a("v_add_f32 %s, %s, %s" % (v(S8 + r), v(S8 + r), v(S8 + 4 + r)))
        a("v_max3_f32 %s, %s, %s, %s" % (v(T0), v(S8), v(S8 + 1), v(S8 + 2)))
        a("v_max_f32 %s, %s, %s" % (v(T0), v(T0), v(S8 + 3)))
        self.allsum_g(T0, T0 + 1, "v_max_f32")
        a("ds_write_b32 %s, %s" % (v(AMW), v(T0)))
        a("s_waitcnt lgkmcnt(0)")
        a("s_barrier")
        a("ds_read_b128 %s, %s" % (v(T0, 4), v(AMR)))
        self.dma_next()
        a("s_cmp_ge_u32 %s, %d" % (s(sIT), self.NIT - 3))
        a("s_cselect_b32 %s, 0, %d" % (s(R_C + 2), self.KEYS * 1024))
        self.dma_rows(rowsA)
        a("s_waitcnt lgkmcnt(0)")
        a("v_max3_f32 %s, %s, %s, %s" % (v(T0), v(T0), v(T0 + 1), v(M0)))
        a("v_max3_f32 %s, %s, %s, %s" % (v(T0 + 2), v(T0 + 2), v(T0 + 3), v(M0 + 1)))
        a("v_cndmask_b32 %s, %s, %s, %s" % (v(T0 + 1), v(T0), v(T0 + 2), s(sMSK, 2)))
        a("v_sub_f32 %s, %s, %s" % (v(AL), v(M0), v(T0)))
        a("v_sub_f32 %s, %s, %s" % (v(AL + 1), v(M0 + 1), v(T0 + 2)))
        for r in range(4):
            a("v_sub_f32 %s, %s, %s" % (v(S8 + r), v(S8 + r), v(T0 + 1)))
        a("v_exp_f32 %s, %s" % (v(AL), v(AL)))
        a("v_exp_f32 %s, %s" % (v(AL + 1), v(AL + 1)))
        for r in range(4):
            a("v_exp_f32 %s, %s" % (v(S8 + r), v(S8 + r)))
        a("v_mov_b32 %s, %s" % (v(M0), v(T0)))
        a("v_mov_b32 %s, %s" % (v(M0 + 1), v(T0 + 2)))
        a("v_cvt_pk_bf16_f32 %s, %s, %s" % (v(T0), v(S8), v(S8 + 1)))
        a("v_cvt_pk_bf16_f32 %s, %s, %s" % (v(T0 + 1), v(S8 + 2), v(S8 + 3)))
        a("ds_write_b64 %s, %s" % (v(APW), v(T0, 2)))
        a("v_cndmask_b32 %s, %s, %s, %s" % (v(T0 + 2), v(AL), v(AL + 1), s(sMSK, 2)))
        a("v_add_f32 %s, %s, %s" % (v(S8), v(S8), v(S8 + 1)))
        a("v_add_f32 %s, %s, %s" % (v(S8 + 2), v(S8 + 2), v(S8 + 3)))
        a("v_add_f32 %s, %s, %s" % (v(S8), v(S8), v(S8 + 2)))
        a("v_fma_f32 %s, %s, %s, %s" % (v(L0), v(L0), v(T0 + 2), v(S8)))

        def rescale(ct):
            for ht in range(2):
                sel = "op_sel_hi:[1,0]" if ht == 0 else "op_sel:[0,1] op_sel_hi:[1,1]"
                for h in range(2):
                    x = ACC + 8 * ct + 4 * ht + 2 * h
                    a("v_pk_mul_f32 %s, %s, %s %s" % (v(x, 2), v(x, 2), v(AL, 2), sel))
        rescale(0)
        nowait = self.lab("a_nw")
        a("s_cmp_eq_u32 %s, 0" % s(sIT))
        a("s_cbranch_scc1 %s" % nowait)
        a("s_waitcnt vmcnt(%d)" % (na + 8))
        a.label(nowait)
        a("s_waitcnt lgkmcnt(0)")
        a("s_barrier")
        self.stamp_it(1, 3)
        for ht in range(2):
            a("ds_read_b128 %s, %s offset:%d" % (v(PO + 4 * ht, 4), v(APR), ht * 1024))

        def tr_reads(ct):
            for hf in range(2):
                a("ds_read_b64_tr_b16 %s, %s offset:%d" % (v(OP + 4 * ct + 2 * hf, 2), v(AT + ct), 16384 * hf))
        for ct in range(6):
            tr_reads(ct)
        issued = 6
        bpos = {(1 + 2 * i): r for i, r in enumerate(rowsB)}
        for ct in range(8):
            if ct < 7:
                rescale(ct + 1)
            a("s_waitcnt lgkmcnt(%d)" % (2 * (issued - ct - 1)))
            for ht in range(2):
                x = ACC + 8 * ct + 4 * ht
                a("v_mfma_f32_16x16x32_bf16 %s, %s, %s, %s" % (
                    v(x, 4), v(OP + 4 * ct, 4), v(PO + 4 * ht, 4), v(x, 4)))
            if issued < 8:
                tr_reads(issued)
                issued += 1
            if ct in bpos:
                self.dma_rows([bpos[ct]])
        for b in range(4):
            a("v_xor_b32 %s, %s, %s" % (v(AQ + b), s(sOFF), v(AQ + b)))
        for ct in range(8):
            a("v_xor_b32 %s, %s, %s" % (v(AT + ct), s(sOFF), v(AT + ct)))
        a("s_xor_b32 %s, %s, 0x18000" % (s(sOFF), s(sOFF)))
        self.stamp_it(2, 3)
        a("s_add_u32 %s, %s, 1" % (s(sIT), s(sIT)))
        a("s_cmp_lt_u32 %s, %d" % (s(sIT), self.NIT))
        a("s_cbranch_scc1 %s" % loop)
        self.stamp(7)
        self.a_finish(ACC, OP, M0, L0)

    def a_finish(self, ACC, OP, M0, L0):
        a, c = self.a, self.c
        a("v_and_b32 %s, 15, %s" % (v(vA1), v(vL)))
        NH = self.NH
        HS = 15 + NH
        a("v_lshlrev_b32 %s, %d, %s" % (v(vA0), HS, v(vA1)))
        a("v_lshrrev_b32 %s, 4, %s" % (v(vA2), v(vL)))
        a("v_lshlrev_b32 %s, 4, %s" % (v(vA2), v(vA2)))
        a("v_add_u32 %s, %s, %s" % (v(vA0), v(vA0), v(vA2)))
        a("s_lshl_b32 %s, s2, 11" % s(sT1))
        a("s_lshl_b32 %s, %s, 9" % (s(sT2), s(sW)))
        a("s_add_u32 %s, %s, %s" % (s(sT1), s(sT1), s(sT2)))
        a("s_add_u32 %s, %s, 0x%x" % (s(sT1), s(sT1), WS_X3))
        a("s_add_u32 %s, %s, 0x%x" % (s(sT2), s(sT1), 16 << HS))
        for i in range(8):
            a("v_mov_b32 %s, %s" % (v(OP + 2 * i + 1), s(sTAG)))
        n = 0
        for ct in range(8):
            for ht in range(2):
                x, q = ACC + 8 * ct + 4 * ht, OP + 4 * (n & 3)
                a("v_cvt_pk_bf16_f32 %s, %s, %s" % (v(q), v(x), v(x + 1)))
                a("v_cvt_pk_bf16_f32 %s, %s, %s" % (v(q + 2), v(x + 2), v(x + 3)))
                o = " offset:%d" % (64 * ct) if ct else ""
                a("buffer_store_dwordx4 %s, %s, %s, %s offen%s sc0 sc1" % (
                    v(q, 4), v(vA0), s(R_WS, 4), s(sT2 if ht else sT1), o))
                n += 1
        self.stamp(12)
        self.allsum_g(L0, 198)
        a("v_cndmask_b32 v204, %s, %s, %s" % (v(M0), v(M0 + 1), s(sMSK, 2)))
        a("v_mov_b32 v205, %s" % s(sTAG))
        a("v_mov_b32 v206, %s" % v(L0))
        a("v_mov_b32 v207, %s" % s(sTAG))
        a("v_lshlrev_b32 %s, %d, %s" % (v(vA1), 9 + NH, v(vA1)))
        a("s_lshr_b32 %s, %s, 1" % (s(sT1), s(sW)))
        a("s_lshl_b32 %s, %s, %d" % (s(sT1), s(sT1), 13 + NH))
        a("s_and_b32 %s, %s, 1" % (s(sT2), s(sW)))
        a("s_lshl_b32 %s, %s, 4" % (s(sT2), s(sT2)))
        a("s_add_u32 %s, %s, %s" % (s(sT1), s(sT1), s(sT2)))
        a("s_lshl_b32 %s, s2, 5" % s(sT2))
        a("s_add_u32 %s, %s, %s" % (s(sT1), s(sT1), s(sT2)))
        a("s_add_u32 %s, %s, 0x%x" % (s(sT1), s(sT1), WS_ML))
        a("s_mov_b64 exec, 0xffff")
        a("buffer_store_dwordx4 v[204:207], %s, %s, %s offen sc0 sc1" % (v(vA1), s(R_WS, 4), s(sT1)))
        a("s_mov_b64 exec, -1")
        NT = 32 // NH
        self.uv_loads(min(c.uv0, NT), NT)
        self.stamp(8)
        a("s_lshr_b32 %s, s2, %d" % (s(sB), NH - 1))
        a("s_lshl_b32 %s, %s, %d" % (s(sX1), s(sB), 9 + NH))
        a("s_add_u32 %s, %s, 0x%x" % (s(sX1), s(sX1), WS_ML))
        MR = [200, 210][:NH]

        def issue():
            for h in range(NH):
                o = " offset:1024" if h else ""
                a("buffer_load_dwordx4 %s, %s, %s, %s offen%s sc1" % (v(MR[h], 4), v(vO16), s(R_WS, 4), s(sX1), o))

        def check():
            self.tagcheck(204, [m + j for m in MR for j in (1, 3)])
            a("v_cmp_ne_u32 vcc, 0, v204")

        self.poll("ml", issue, check)
        self.stamp(9)
        SP = 2 * NH
        LS = 6 - NH
        a("v_lshrrev_b32 %s, %d, %s" % (v(vA0), LS, v(vL)))
        a("v_lshlrev_b32 %s, 11, %s" % (v(vA1), v(vA0)))
        a("v_and_b32 %s, %d, %s" % (v(vA2), (1 << LS) - 1, v(vL)))
        a("v_lshlrev_b32 %s, 4, %s" % (v(vA2), v(vA2)))
        a("v_add_u32 v208, %s, %s" % (v(vA1), v(vA2)))
        a("v_lshlrev_b32 v209, 3, %s" % v(vA0))
        a("s_lshl_b32 %s, %s, %d" % (s(sX1), s(sB), HS))
        a("s_lshl_b32 %s, %s, %d" % (s(sT2), s(sW), 10 - NH))
        a("s_add_u32 %s, %s, %s" % (s(sX1), s(sX1), s(sT2)))
        if NH == 2:
            a("s_and_b32 %s, s2, 1" % s(sT2))
            a("s_lshl_b32 %s, %s, 10" % (s(sT2), s(sT2)))
            a("s_add_u32 %s, %s, %s" % (s(sX1), s(sX1), s(sT2)))
        a("s_add_u32 %s, %s, 0x%x" % (s(sX1), s(sX1), WS_X3))

        def issue3():
            a("s_mov_b32 %s, %s" % (s(sT1), s(sX1)))
            for i in range(16):
                a("buffer_load_dwordx4 %s, v208, %s, %s offen sc1" % (v(40 + 4 * i, 4), s(R_WS, 4), s(sT1)))
                if i < 15:
                    a("s_add_u32 %s, %s, %d" % (s(sT1), s(sT1), 2048 * SP))

        def check3():
            self.tagcheck(204, [40 + 4 * i + j for i in range(16) for j in (1, 3)])
            a("v_cmp_ne_u32 vcc, 0, v204")

        def weights():
            if NH == 1:
                a("v_mov_b32 v204, v200")
            else:
                a("v_max_f32 v204, v200, v210")
            self.allsum_row(204, "v_max_f32")
            self.allsum_g(204, 205, "v_max_f32")
            for m in MR:
                a("v_sub_f32 %s, %s, v204" % (v(m), v(m)))
            for m in MR:
                a("v_exp_f32 %s, %s" % (v(m), v(m)))
            a("v_mul_f32 v204, v200, v202")
            if NH == 2:
                a("v_fmac_f32 v204, v210, v212")
            self.allsum_row(204)
            self.allsum_g(204, 205)
            a("v_rcp_f32 v204, v204")
            for m in MR:
                a("v_mul_f32 %s, %s, v204" % (v(m), v(m)))
            for i in range(16):
                a("v_add_u32 %s, %d, v209" % (v(168 + i), (8 * SP * i) & 255))
            for i in range(16):
                a("ds_bpermute_b32 %s, %s, %s" % (v(168 + i), v(168 + i), v(MR[(SP * i) >> 5])))

        self.poll("x3", issue3, check3, between=weights, first_wait=0)
        self.stamp(11)
        a("s_waitcnt lgkmcnt(0)")
        for i in range(16):
            q, wt = 40 + 4 * i, 168 + i
            for h in range(2):
                lo, hi = 112 + 4 * (i & 1) + 2 * h, 113 + 4 * (i & 1) + 2 * h
                a("v_lshlrev_b32 %s, 16, %s" % (v(lo), v(q + 2 * h)))
                a("v_and_b32 %s, 0xffff0000, %s" % (v(hi), v(q + 2 * h)))
            for h in range(2):
                lo = 112 + 4 * (i & 1) + 2 * h
                sel = "op_sel_hi:[1,0,1]" if wt % 2 == 0 else "op_sel:[0,1,0] op_sel_hi:[1,1,1]"
                wp = v(wt & ~1, 2)
                if i == 0:
                    a("v_pk_mul_f32 %s, %s, %s op_sel_hi:[1,0]" % (v(104 + 2 * h, 2), v(lo, 2), wp))
                else:
                    a("v_pk_fma_f32 %s, %s, %s, %s %s" % (v(104 + 2 * h, 2), v(lo, 2), wp, v(104 + 2 * h, 2), sel))
        for swap in ["v_permlane32_swap_b32"] + (["v_permlane16_swap_b32"] if NH == 2 else []):
            for r in range(4):
                a("v_mov_b32 %s, %s" % (v(108 + r), v(104 + r)))
            for r in range(4):
                a("%s %s, %s" % (swap, v(104 + r), v(108 + r)))
            for r in range(4):
                a("v_add_f32 %s, %s, %s" % (v(104 + r), v(104 + r), v(108 + r)))
        for r in range(4):
            a("v_cvt_pk_bf16_f32 %s, %s, %s" % (v(104 + r), v(104 + r), v(104 + r)))
        a("s_lshl_b32 %s, %s, 9" % (s(sT1), s(sW)))
        a("s_add_u32 %s, %s, %d" % (s(sT1), s(sT1), LT))
        a("v_add_u32 %s, %s, %s" % (v(vA0), s(sT1), v(vA2)))
        a("ds_write_b128 %s, v[104:107]" % v(vA0))
        a("v_lshrrev_b32 %s, 4, %s" % (v(vA1), v(vL)))
        a("v_lshlrev_b32 %s, 2, %s" % (v(vA1), v(vA1)))
        a("v_add_u32 %s, %s, %s" % (v(vA1), s(sT1), v(vA1)))
        for t in range(0, NT, 2):
            a("ds_read2_b32 %s, %s offset0:%d offset1:%d" % (v(40 + t, 2), v(vA1), 4 * t, 4 * t + 4))
        for t in range(NT):
            if t % 2 == 0:
                a("s_waitcnt lgkmcnt(%d)" % (NT // 2 - 1 - t // 2))
            self.delta_mfma(108, ar(128 + 4 * t, 4), 40 + t, 112 + 4 * (t & 1), t == 0)
        a("v_lshrrev_b32 %s, 4, %s" % (v(vA0), v(vL)))
        a("v_lshlrev_b32 %s, 9, %s" % (v(vA0), v(vA0)))
        a("v_and_b32 %s, 7, %s" % (v(vA1), v(vL)))
        a("v_lshlrev_b32 %s, 4, %s" % (v(vA1), v(vA1)))
        a("s_lshl_b32 %s, %s, 2" % (s(sT1), s(sW)))
        a("s_add_u32 %s, %s, %d" % (s(sT1), s(sT1), LR))
        a("v_add3_u32 %s, %s, %s, %s" % (v(vA0), v(vA0), v(vA1), s(sT1)))
        for r in range(4):
            a("ds_write_b32 %s, %s offset:%d" % (v(vA0), v(108 + r), 128 * r))
        a("s_waitcnt lgkmcnt(0)")
        a("s_barrier")
        a("s_cmp_ge_u32 %s, 2" % s(sW))
        a("s_cbranch_scc1 L_a_done")
        a("s_lshl_b32 %s, %s, 10" % (s(sT1), s(sW)))
        a("s_add_u32 %s, %s, %d" % (s(sT1), s(sT1), LR))
        a("v_add_u32 %s, %s, %s" % (v(vA0), s(sT1), v(vO16)))
        a("ds_read_b128 v[40:43], %s" % v(vA0))
        a("s_lshl_b32 %s, s2, 10" % s(sT1))
        a("s_lshl_b32 %s, %s, 9" % (s(sT2), s(sW)))
        a("s_add_u32 %s, %s, %s" % (s(sT1), s(sT1), s(sT2)))
        a("s_add_u32 %s, %s, 0x%x" % (s(sT1), s(sT1), WS_X4A))
        a("v_lshlrev_b32 %s, 3, %s" % (v(vA1), v(vL)))
        a("s_waitcnt lgkmcnt(0)")
        a("v_add_f32 v40, v40, v41")
        a("v_add_f32 v42, v42, v43")
        a("v_add_f32 v40, v40, v42")
        a("v_mov_b32 v41, %s" % s(sTAG))
        a("buffer_store_dwordx2 v[40:41], %s, %s, %s offen sc0 sc1" % (v(vA1), s(R_WS, 4), s(sT1)))
        a.label("L_a_done")
        self.stamp(10)
        self.end()

    def build(self):
        a = self.a
        self.prologue()
        self.q_phase()
        self.q_gather()
        self.b_main()
        self.tail()
        self.a_main()
        a.label("L_exit")
        a("s_endpgm")
        a.label("L_codeend")
        body = a.finalize()
        head = open(os.path.join(os.path.dirname(os.path.abspath(__file__)), "header.txt")).read()
        head = head.replace("@LDS@", str(LDS_BYTES))
        if self.c.xnt & 1:
            body = body.replace(" sc0 sc1\n", " sc0 sc1 nt\n")
        if self.c.xnt & 2:
            body = body.replace(" sc1\n", " sc1 nt\n").replace(" sc0 sc1 nt\n", " sc0 sc1\n" if not self.c.xnt & 1 else " sc0 sc1 nt\n")
        return head + body + FOOTER


FOOTER = """.section .rodata,"a"
.p2align 6
.amdhsa_kernel %s_kernel
  .amdhsa_next_free_vgpr 512
  .amdhsa_next_free_sgpr 102
  .amdhsa_accum_offset 256
  .amdhsa_group_segment_fixed_size 0
  .amdhsa_kernarg_size 120
  .amdhsa_user_sgpr_count 2
  .amdhsa_user_sgpr_kernarg_segment_ptr 1
  .amdhsa_system_sgpr_workgroup_id_x 1
.end_amdhsa_kernel
""" % NAME


def main():
    p = argparse.ArgumentParser()
    p.add_argument("-o", default="cdna_kernels/%s.s" % NAME)
    p.add_argument("--nq", type=int, default=8)
    p.add_argument("--nt", default="nt")
    p.add_argument("--debug", action="store_true")
    p.add_argument("--na", type=int, default=64)
    p.add_argument("--uv0", type=int, default=16)
    p.add_argument("--t0", type=int, default=20)
    p.add_argument("--bstamp", action="store_true")
    p.add_argument("--xnt", type=int, default=0)
    p.add_argument("--lfirst", type=int, default=1)
    p.add_argument("--dsplit", default="2,3,3")
    p.add_argument("--elapsed", action="store_true")
    p.add_argument("--no-prefetch", dest="prefetch", action="store_false")
    p.add_argument("--spin", type=lambda x: int(x, 0), default=0x2000)
    cfg = p.parse_args()
    text = Gen(cfg).build()
    open(cfg.o, "w").write(text)
    print("wrote", cfg.o, len(text), "bytes")


if __name__ == "__main__":
    main()
```

```python
import argparse
import math
import struct
import sys
import os

sys.path.insert(0, os.path.dirname(os.path.abspath(__file__)))
from asmlib import Asm

NAME = "gated_mix__compressed_kv_cla__gqa_block_cached__decode"


def f32(x):
    return "0x%08x" % struct.unpack("<I", struct.pack("<f", x))[0]


LOG2E = math.log2(math.e)
C_SCALE = LOG2E / math.sqrt(128.0)

WS_EPOCH = 0
WS_CNT = 0x8000
WS_X1 = 0x10000
WS_X2 = 0x30000
WS_ML = 0x40000
WS_X4A = 0x50000
WS_X4B = 0x60000
WS_X4L = 0xD0000
WS_X5 = 0xE0000
WS_X3 = 0x100000
WS_DBG = 0x500000
WS_SIZE = 0x800000
EPOCH_STEP = 0x9E3779B1

LU = 131072
LQ = LU
LQA = LU
LMX = LU
LP = LU + 1024
LL = LU + 8192
LT = LU + 9216
LR = LU + 12288
LO = LU + 16384
LML = LU + 20480
LX = LU + 4096
LDS_BYTES = 163840

sID, sT, sW, sTAG, sT1, sT2 = 2, 3, 4, 5, 6, 7
P_X, P_C, P_WQA, P_UK, P_UV, P_WOA = 8, 10, 12, 14, 16, 18
P_K, P_V, P_WQB, P_WOB, P_G, P_OUT, P_WS = 22, 24, 26, 28, 30, 32, 36
R_CODE, R_X, R_QW, R_WS = 40, 44, 48, 52
R_K, R_V, R_K2, R_V2, R_TW, R_G, R_OUT = 56, 60, 64, 68, 72, 76, 80
R_C, R_UV = 60, 64
R_UK = 40
sG, sJM, sB, sHH = 84, 85, 86, 84
sOFF, sCNT, sIT, sBIAS = 87, 88, 89, 90
sX1, sT3 = 91, 92
sMSK = 94
sMS2 = 96
sT4, sT5 = 98, 99
sST = 100
sB2 = 20
sQT, sUS = 3, 21

vL, vO16 = 1, 6
vM = [2, 3, 4, 5]
vA0, vA1, vA2 = 7, 8, 9
vSTAMP, vDUMMY = 254, 255
vAT = 133
UKW, X1A, QU, UKS, UKQ = 56, 88, 16, 20, 24


def v(a, n=1):
    return "v%d" % a if n == 1 else "v[%d:%d]" % (a, a + n - 1)


def ar(a, n=1):
    return "a%d" % a if n == 1 else "a[%d:%d]" % (a, a + n - 1)


def s(a, n=1):
    return "s%d" % a if n == 1 else "s[%d:%d]" % (a, a + n - 1)


class Gen:
    def __init__(self, cfg):
        self.c = cfg
        self.a = Asm()
        self.uid = 0
        self.nstamp = 0
        self.NA = cfg.na
        self.NP = (256 - self.NA) // 16
        self.QB = 4096 // (4 * self.NP)
        self.QX = 4096 - self.QB * 4 * self.NP
        self.MAGIC = {14: 4682, 12: 5462}[self.NP]
        self.KEYS = 16384 // self.NA
        self.NIT = self.KEYS // 32
        self.NH = self.NA // 32

    def lab(self, base):
        self.uid += 1
        return "L_%s_%d" % (base, self.uid)

    def srd(self, r, ptr, size, off=None):
        a = self.a
        if off is None:
            a("s_mov_b32 %s, %s" % (s(r), s(ptr)))
            a("s_mov_b32 %s, %s" % (s(r + 1), s(ptr + 1)))
        else:
            a("s_add_u32 %s, %s, %s" % (s(r), s(ptr), off))
            a("s_addc_u32 %s, %s, 0" % (s(r + 1), s(ptr + 1)))
        a("s_mov_b32 %s, %s" % (s(r + 2), size))
        a("s_mov_b32 %s, 0x20000" % s(r + 3))

    def stamp(self, idx):
        if not self.c.debug:
            return
        a = self.a
        a("s_memrealtime %s" % s(sST, 2))
        a("s_waitcnt lgkmcnt(0)")
        a("v_writelane_b32 %s, %s, %d" % (v(vSTAMP), s(sST), idx))

    def stamp_it(self, phase, nph=5):
        if not self.c.debug:
            return
        a = self.a
        a("s_memrealtime %s" % s(sST, 2))
        a("s_mul_i32 s38, %s, %d" % (s(sIT), nph))
        a("s_add_u32 s38, s38, %d" % (16 + phase))
        a("s_waitcnt lgkmcnt(0)")
        a("s_mov_b32 m0, s38")
        a("v_writelane_b32 %s, %s, m0" % (v(vSTAMP), s(sST)))

    def dump_stamps(self):
        if not self.c.debug:
            return
        a = self.a
        a("s_lshl_b32 %s, %s, 2" % (s(sT1), s(sID)))
        a("s_add_u32 %s, %s, %s" % (s(sT1), s(sT1), s(sW)))
        a("s_lshl_b32 %s, %s, 8" % (s(sT1), s(sT1)))
        a("s_add_u32 %s, %s, 0x%x" % (s(sT1), s(sT1), WS_DBG))
        a("v_lshlrev_b32 %s, 2, %s" % (v(vA0), v(vL)))
        a("buffer_store_dword %s, %s, %s, %s offen" % (v(vSTAMP), v(vA0), s(R_WS, 4), s(sT1)))

    def dump(self, slot, reg):
        if not self.c.debug:
            return
        a = self.a
        a("s_lshl_b32 %s, %s, 2" % (s(sST), s(sID)))
        a("s_add_u32 %s, %s, %s" % (s(sST), s(sST), s(sW)))
        a("s_lshl_b32 %s, %s, 11" % (s(sST), s(sST)))
        a("s_add_u32 %s, %s, 0x%x" % (s(sST), s(sST), WS_DBG + 0x40000 + slot * 256))
        a("v_lshlrev_b32 v253, 2, %s" % v(vL))
        a("buffer_store_dword %s, v253, %s, %s offen" % (v(reg), s(R_WS, 4), s(sST)))

    def end(self):
        self.dump_stamps()
        self.a("s_endpgm")

    def mask64(self, reg, lo, hi=None):
        hi = lo if hi is None else hi
        self.a("s_mov_b32 %s, 0x%x" % (s(reg), lo))
        self.a("s_mov_b32 %s, 0x%x" % (s(reg + 1), hi))

    def tagcheck(self, acc, tags, first=True):
        a = self.a
        for i, t in enumerate(tags):
            if i == 0 and first:
                a("v_xor_b32 %s, %s, %s" % (v(acc), s(sTAG), v(t)))
            else:
                a("v_bitop3_b32 %s, %s, %s, %s bitop3:0xf6" % (v(acc), v(acc), v(t), s(sTAG)))

    def poll(self, name, issue, check, nwait="0", between=None, first_wait=None):
        a = self.a
        retry, ok = self.lab(name + "_retry"), self.lab(name + "_ok")
        a("s_movk_i32 %s, 0x%x" % (s(sCNT), self.c.spin))
        if between is not None:
            issue()
            between()
            a("s_waitcnt vmcnt(%d)" % first_wait)
            check()
            a("s_cbranch_vccz %s" % ok)
        a.label(retry)
        issue()
        a("s_waitcnt vmcnt(0)")
        check()
        a("s_cbranch_vccz %s" % ok)
        a("s_sub_u32 %s, %s, 1" % (s(sCNT), s(sCNT)))
        a("s_cbranch_scc0 %s" % retry)
        a.label(ok)

    def allsum_g(self, x, t, op="v_add_f32"):
        a = self.a
        a("v_mov_b32 %s, %s" % (v(t), v(x)))
        a("v_permlane16_swap_b32 %s, %s" % (v(x), v(t)))
        a("%s %s, %s, %s" % (op, v(x), v(x), v(t)))
        a("v_mov_b32 %s, %s" % (v(t), v(x)))
        a("v_permlane32_swap_b32 %s, %s" % (v(x), v(t)))
        a("%s %s, %s, %s" % (op, v(x), v(x), v(t)))

    def allsum_row(self, x, op="v_add_f32"):
        a = self.a
        o = op + "_dpp"
        for m in ("row_ror:8", "quad_perm:[1,0,3,2]", "quad_perm:[2,3,0,1]", "row_half_mirror"):
            a("%s %s, %s, %s %s row_mask:0xf bank_mask:0xf" % (o, v(x), v(x), v(x), m))

    def delta_mfma(self, acc, adata, dup, btmp, first):
        a = self.a
        for i in range(4):
            a("v_and_b32 %s, %s, %s" % (v(btmp + i), v(vM[i]), v(dup)))
        a("v_mfma_f32_16x16x32_bf16 %s, %s, %s, %s" % (v(acc, 4), adata, v(btmp, 4),
                                                      "0" if first else v(acc, 4)))

    def prologue(self):
        a, c = self.a, self.c
        a("s_cmp_ge_u32 s2, 0x100")
        a("s_cbranch_scc1 L_exit")
        if c.elapsed:
            a("s_memrealtime s[38:39]")
        a("s_load_dwordx16 s[8:23], s[0:1], 0x0")
        a("s_load_dwordx8 s[24:31], s[0:1], 0x40")
        a("s_load_dwordx4 s[32:35], s[0:1], 0x60")
        a("s_load_dwordx2 s[36:37], s[0:1], 0x70")
        if c.prefetch:
            a("s_getpc_b64 %s" % s(R_CODE, 2))
            a.label("L_pc")
            a("s_mov_b32 %s, L_codeend-L_pc" % s(R_CODE + 2))
            a("s_mov_b32 %s, 0x20000" % s(R_CODE + 3))
            a("s_lshr_b32 %s, s2, 6" % s(sT))
            a("s_lshl_b32 %s, %s, 14" % (s(sT), s(sT)))
            a("v_lshlrev_b32 %s, 6, v0" % v(vA0))
            a("v_add_u32 %s, %s, %s" % (v(vA0), s(sT), v(vA0)))
            a("buffer_load_dword %s, %s, %s, 0 offen" % (v(vDUMMY), v(vA0), s(R_CODE, 4)))
        a("v_and_b32 %s, 63, v0" % v(vL))
        a("v_lshrrev_b32 %s, 6, v0" % v(vA1))
        a("v_lshlrev_b32 %s, 4, %s" % (v(vO16), v(vL)))
        a("v_readfirstlane_b32 %s, %s" % (s(sW), v(vA1)))
        if c.debug:
            a("v_mov_b32 %s, 0" % v(vSTAMP))
        if c.local:
            a("s_lshr_b32 %s, s2, 3" % s(sT1))
            a("s_and_b32 %s, %s, 16" % (s(sQT), s(sT1)))
            a("s_lshl_b32 %s, %s, 3" % (s(sQT), s(sQT)))
            a("s_and_b32 %s, %s, 15" % (s(sT1), s(sT1)))
            a("s_add_u32 %s, %s, %s" % (s(sQT), s(sQT), s(sT1)))
            a("s_and_b32 %s, s2, 7" % s(sT1))
            a("s_lshl_b32 %s, %s, 4" % (s(sT1), s(sT1)))
            a("s_add_u32 %s, %s, %s" % (s(sQT), s(sQT), s(sT1)))
        else:
            a("s_mov_b32 %s, s2" % s(sQT))
        a("s_and_b32 %s, %s, 1" % (s(sT1), s(sQT)))
        a("s_mul_i32 %s, %s, 288" % (s(sT1), s(sT1)))
        a("s_mul_i32 %s, %s, 72" % (s(sT2), s(sW)))
        a("s_add_u32 %s, %s, %s" % (s(sT1), s(sT1), s(sT2)))
        a("v_lshrrev_b32 %s, 3, %s" % (v(vA1), v(vL)))
        a("v_add_u32 %s, %s, %s" % (v(vA0), s(sT1), v(vA1)))
        a("v_lshlrev_b32 %s, 1, %s" % (v(vA0), v(vA0)))
        a("v_and_b32 %s, 7, %s" % (v(vA2), v(vL)))
        a("v_lshlrev_b32 %s, 4, %s" % (v(vA2), v(vA2)))
        a("v_lshlrev_b32 %s, 13, %s" % (v(vA1), v(vA1)))
        a("v_add_u32 %s, %s, %s" % (v(vA1), v(vA1), v(vA2)))
        a("s_lshl_b32 %s, %s, 13" % (s(sOFF), s(sT1)))
        a("s_lshr_b32 %s, %s, 1" % (s(sT2), s(sQT)))
        a("s_and_b32 %s, %s, 63" % (s(sT2), s(sT2)))
        a("s_lshl_b32 %s, %s, 7" % (s(sT2), s(sT2)))
        a("s_add_u32 %s, %s, %s" % (s(sOFF), s(sOFF), s(sT2)))
        a("s_waitcnt lgkmcnt(0)")
        a("s_load_dword %s, %s, 0x%x" % (s(sTAG), s(P_WS, 2), WS_EPOCH))
        self.srd(R_X, P_X, "1152")
        if c.dyn:
            self.srd(R_WS, P_WS, "0x%x" % WS_SIZE)
            noinit = self.lab("cnt")
            a("s_and_b32 %s, %s, 0x87" % (s(sT1), s(sQT)))
            a("s_lshl_b32 %s, %s, 8" % (s(sT2), s(sW)))
            a("s_or_b32 %s, %s, %s" % (s(sT1), s(sT1), s(sT2)))
            a("s_cmp_lg_u32 %s, 0x80" % s(sT1))
            a("s_cbranch_scc1 %s" % noinit)
            a("s_bfe_u32 %s, %s, 0x40003" % (s(sT1), s(sQT)))
            a("s_lshl_b32 %s, %s, 8" % (s(sT1), s(sT1)))
            a("s_add_u32 %s, %s, 0x%x" % (s(sT1), s(sT1), WS_CNT))
            a("v_mov_b32 %s, 0" % v(vA2))
            a("s_mov_b64 exec, 1")
            a("buffer_store_dword %s, %s, %s, %s offen sc0 sc1" % (v(vA2), v(vA2), s(R_WS, 4), s(sT1)))
            a("s_mov_b64 exec, -1")
            a.label(noinit)
        if c.local:
            a("s_and_b32 %s, s2, 7" % s(sT1))
            a("s_lshl_b32 %s, %s, 5" % (s(sT1), s(sT1)))
            a("s_lshr_b32 %s, s2, 3" % s(sUS))
            a("s_add_u32 %s, %s, %s" % (s(sUS), s(sUS), s(sT1)))
        else:
            a("s_mov_b32 %s, s2" % s(sUS))
        a("s_cmp_ge_u32 %s, 0x80" % s(sQT))
        a("s_cselect_b32 %s, %s, %s" % (s(R_QW), s(P_WQB), s(P_WQA)))
        a("s_cselect_b32 %s, %s, %s" % (s(R_QW + 1), s(P_WQB + 1), s(P_WQA + 1)))
        a("s_mov_b32 %s, 4718592" % s(R_QW + 2))
        a("s_mov_b32 %s, 0x20000" % s(R_QW + 3))
        for t in range(9):
            a("buffer_load_ushort %s, %s, %s, 0 offen offset:%d" % (v(204 + t), v(vA0), s(R_X, 4), 16 * t))
        for t in range(9):
            a("buffer_load_dwordx4 %s, %s, %s, %s offen %s" % (v(168 + 4 * t, 4), v(vA1), s(R_QW, 4), s(sOFF), c.nt))
            if t < 8:
                a("s_add_u32 %s, %s, 0x10000" % (s(sOFF), s(sOFF)))
        self.srd(R_UK, P_UK, "4194304")
        a("v_lshrrev_b32 %s, 4, %s" % (v(vA0), v(vL)))
        a("v_lshlrev_b32 %s, 15, %s" % (v(vA0), v(vA0)))
        a("v_and_b32 %s, 15, %s" % (v(vA2), v(vL)))
        a("v_lshlrev_b32 %s, 4, %s" % (v(vA2), v(vA2)))
        a("v_add_u32 %s, %s, %s" % (v(vA0), v(vA0), v(vA2)))
        a("s_and_b32 %s, %s, 7" % (s(sT1), s(sUS)))
        a("s_lshl_b32 %s, %s, 2" % (s(sT1), s(sT1)))
        a("s_add_u32 %s, %s, %s" % (s(sT1), s(sT1), s(sW)))
        a("s_lshl_b32 %s, %s, 17" % (s(sT1), s(sT1)))
        a("s_lshr_b32 %s, %s, 3" % (s(sT2), s(sUS)))
        a("s_lshl_b32 %s, %s, 8" % (s(sT2), s(sT2)))
        a("s_add_u32 %s, %s, %s" % (s(sT1), s(sT1), s(sT2)))
        for t in range(4):
            a("buffer_load_dwordx4 %s, %s, %s, %s offen %s" % (v(UKW + 4 * t, 4), v(vA0), s(R_UK, 4), s(sT1), c.nt))
            if t < 3:
                a("s_add_u32 %s, %s, 0x2000" % (s(sT1), s(sT1)))
        if not c.dyn:
            self.srd(R_WS, P_WS, "0x%x" % WS_SIZE)
        self.stamp(0)
        a("s_cmp_lt_u32 s2, %d" % self.NA)
        a("s_cbranch_scc1 L_a_pre")
        self.b_pre()
        a("s_branch L_q")
        a.label("L_a_pre")
        self.a_pre()
        a.label("L_q")

    def b_pre(self):
        a, c = self.a, self.c
        a("s_sub_u32 %s, s2, %d" % (s(sB), self.NA))
        if c.local:
            a("s_lshr_b32 %s, %s, 3" % (s(sJM), s(sB)))
            a("s_and_b32 %s, s2, 7" % s(sG))
            a("s_lshl_b32 %s, %s, 1" % (s(sG), s(sG)))
            a("s_cmp_ge_u32 %s, %d" % (s(sJM), self.NP))
            a("s_cselect_b32 %s, %d, 0" % (s(sT1), self.NP))
            a("s_addc_u32 %s, %s, 0" % (s(sG), s(sG)))
            a("s_sub_u32 %s, %s, %s" % (s(sJM), s(sJM), s(sT1)))
            a("s_mul_i32 %s, %s, %d" % (s(sB), s(sG), self.NP))
            a("s_add_u32 %s, %s, %s" % (s(sB), s(sB), s(sJM)))
        else:
            a("s_mul_i32 %s, %s, %d" % (s(sG), s(sB), self.MAGIC))
            a("s_lshr_b32 %s, %s, 16" % (s(sG), s(sG)))
            a("s_mul_i32 %s, %s, %d" % (s(sT1), s(sG), self.NP))
            a("s_sub_u32 %s, %s, %s" % (s(sJM), s(sB), s(sT1)))
        a("s_lshl_b32 %s, %s, 2" % (s(sT1), s(sJM)))
        a("s_add_u32 %s, %s, %s" % (s(sT1), s(sT1), s(sW)))
        if c.dyn:
            a("s_mul_i32 %s, %s, %d" % (s(sOFF), s(sT1), c.sblk * c.nq * 1024))
            a("s_lshl_b32 %s, %s, 22" % (s(sT2), s(sG)))
            self.srd(R_K, P_K, "0x400000", s(sT2))
            self.srd(R_V, P_V, "0x400000", s(sT2))
            self.srd(R_K2, P_K, "0", s(sT2))
            self.srd(R_V2, P_V, "0", s(sT2))
            for i in range(c.nq):
                self.kv_load(40 + 4 * i, R_K, i)
            a("s_add_u32 %s, %s, 16" % (s(sX1), s(sG)))
            self.mask64(sMSK, 0xFF00FF00)
            a("s_waitcnt vmcnt(%d)" % (c.nq + 4))
            return
        a("s_mul_i32 %s, %s, %d" % (s(sT2), s(sT1), self.QB))
        a("s_min_u32 %s, %s, %d" % (s(sT3), s(sT1), self.QX))
        a("s_add_u32 %s, %s, %s" % (s(sT2), s(sT2), s(sT3)))
        a("s_lshl_b32 %s, %s, 10" % (s(sT2), s(sT2)))
        a("s_lshl_b32 %s, %s, 22" % (s(sT3), s(sG)))
        a("s_add_u32 %s, %s, %s" % (s(sT2), s(sT2), s(sT3)))
        ksz = (self.QB + 1) * 1024
        self.srd(R_K, P_K, str(ksz), s(sT2))
        self.srd(R_V, P_V, str(ksz), s(sT2))
        a("s_cmp_lt_u32 %s, %d" % (s(sT1), self.QX))
        a("s_cselect_b32 %s, %d, 0" % (s(sT3), ksz))
        a("s_cselect_b32 %s, 0, 0xff800000" % s(sBIAS))
        self.srd(R_K2, P_K, s(sT3), s(sT2))
        self.srd(R_V2, P_V, s(sT3), s(sT2))
        a("s_mov_b32 %s, %d" % (s(sT1), (self.QB - 1) * 1024))
        a("buffer_load_dwordx4 %s, %s, %s, %s offen %s" % (v(104, 4), v(vO16), s(R_K, 4), s(sT1), c.nt))
        a("buffer_load_dwordx4 %s, %s, %s, %s offen offset:1024 %s" % (v(108, 4), v(vO16), s(R_K2, 4), s(sT1), c.nt))
        a("s_mov_b32 %s, 0" % s(sOFF))
        for i in range(c.nq):
            self.kv_load(40 + 4 * i, R_K, i)
        a("s_add_u32 %s, %s, 16" % (s(sX1), s(sG)))
        self.mask64(sMSK, 0xFF00FF00)
        a("s_waitcnt vmcnt(%d)" % (c.nq + 6))

    def kv_load(self, reg, srd, i, off=None):
        a, c = self.a, self.c
        off = sOFF if off is None else off
        if i < 4:
            so = s(off)
        else:
            if i % 4 == 0:
                a("s_add_u32 %s, %s, %d" % (s(sT4), s(off), 4096 * (i // 4)))
            so = s(sT4)
        o = " offset:%d" % (1024 * (i % 4)) if i % 4 else ""
        a("buffer_load_dwordx4 %s, %s, %s, %s offen%s %s" % (v(reg, 4), v(vO16), s(srd, 4), so, o, c.nt))

    def a_pre(self):
        a, c = self.a, self.c
        self.srd(R_K, P_V, "0")
        self.srd(R_UV, P_UV, "4194304")
        self.srd(R_V2, P_V, "0")
        a("s_mul_i32 %s, s2, %d" % (s(sT2), self.KEYS * 1024))
        self.srd(R_C, P_C, str(self.KEYS * 1024), s(sT2))
        a("s_waitcnt vmcnt(4)")

    def q_phase(self):
        a, c = self.a, self.c
        self.stamp(1)
        a("v_and_b32 %s, 1, %s" % (v(vA0), v(vL)))
        a("v_lshlrev_b32 %s, 4, %s" % (v(vA0), v(vA0)))
        a("v_mov_b32 %s, 0xffff" % v(vA1))
        a("v_lshlrev_b32 %s, %s, %s" % (v(vA1), v(vA0), v(vA1)))
        for i in range(4):
            self.mask64(sMS2, 0x03030303 << (2 * i))
            a("v_cndmask_b32 %s, 0, %s, %s" % (v(vM[i]), v(vA1), s(sMS2, 2)))
        for t in range(9):
            a("v_lshl_or_b32 %s, %s, 16, %s" % (v(204 + t), v(204 + t), v(204 + t)))
        for t in range(9):
            self.delta_mfma(222, v(168 + 4 * t, 4), 204 + t, 214 + 4 * (t & 1), t == 0)
        a("v_lshrrev_b32 %s, 4, %s" % (v(vA0), v(vL)))
        a("v_and_b32 %s, 1, %s" % (v(vA1), v(vA0)))
        a("v_lshlrev_b32 %s, 10, %s" % (v(vA1), v(vA1)))
        a("v_lshrrev_b32 %s, 1, %s" % (v(vA0), v(vA0)))
        a("v_lshlrev_b32 %s, 2, %s" % (v(vA0), v(vA0)))
        a("v_add_u32 %s, %s, %s" % (v(vA0), v(vA0), v(vA1)))
        a("v_and_b32 %s, 7, %s" % (v(vA1), v(vL)))
        a("v_lshlrev_b32 %s, 5, %s" % (v(vA1), v(vA1)))
        a("s_lshl_b32 %s, %s, 3" % (s(sT1), s(sW)))
        a("s_add_u32 %s, %s, %d" % (s(sT1), s(sT1), LQ))
        a("v_add3_u32 %s, %s, %s, %s" % (v(vA0), v(vA0), v(vA1), s(sT1)))
        self.mask64(sMS2, 0x00FF00FF, 0xFF00FF00)
        a("s_mov_b64 exec, %s" % s(sMS2, 2))
        for r in range(4):
            a("ds_write_b32 %s, %s offset:%d" % (v(vA0), v(222 + r), 256 * r))
        a("s_mov_b64 exec, -1")
        a("s_waitcnt lgkmcnt(0)")
        a("s_add_u32 %s, %s, 0x%x" % (s(sTAG), s(sTAG), EPOCH_STEP))
        a("s_barrier")
        skip = self.lab("qpub")
        a("s_cmp_lg_u32 %s, 0" % s(sW))
        a("s_cbranch_scc1 %s" % skip)
        a("v_lshlrev_b32 %s, 5, %s" % (v(vA0), v(vL)))
        a("v_add_u32 %s, %d, %s" % (v(vA0), LQ, v(vA0)))
        a("ds_read_b128 %s, %s" % (v(226, 4), v(vA0)))
        a("ds_read_b128 %s, %s offset:16" % (v(230, 4), v(vA0)))
        a("v_bfe_u32 %s, %s, 1, 2" % (v(vA1), v(vL)))
        a("v_lshlrev_b32 %s, 10, %s" % (v(vA1), v(vA1)))
        a("v_lshrrev_b32 %s, 3, %s" % (v(vA2), v(vL)))
        a("v_lshlrev_b32 %s, 4, %s" % (v(vA2), v(vA2)))
        a("v_add_u32 %s, %s, %s" % (v(vA1), v(vA1), v(vA2)))
        a("v_and_b32 %s, 1, %s" % (v(vA2), v(vL)))
        a("v_lshlrev_b32 %s, 3, %s" % (v(vA2), v(vA2)))
        a("v_add_u32 %s, %s, %s" % (v(vA1), v(vA1), v(vA2)))
        a("s_lshr_b32 %s, %s, 3" % (s(sT1), s(sQT)))
        a("s_lshl_b32 %s, %s, 12" % (s(sT1), s(sT1)))
        a("s_bfe_u32 %s, %s, 0x10002" % (s(sT2), s(sQT)))
        a("s_lshl_b32 %s, %s, 9" % (s(sT2), s(sT2)))
        a("s_add_u32 %s, %s, %s" % (s(sT1), s(sT1), s(sT2)))
        a("s_and_b32 %s, %s, 1" % (s(sT2), s(sQT)))
        a("s_lshl_b32 %s, %s, 8" % (s(sT2), s(sT2)))
        a("s_add_u32 %s, %s, %s" % (s(sT1), s(sT1), s(sT2)))
        a("s_bfe_u32 %s, %s, 0x10001" % (s(sT2), s(sQT)))
        a("s_lshl_b32 %s, %s, 7" % (s(sT2), s(sT2)))
        a("s_add_u32 %s, %s, %s" % (s(sT1), s(sT1), s(sT2)))
        a("s_add_u32 %s, %s, 0x%x" % (s(sT1), s(sT1), WS_X1))
        a("s_waitcnt lgkmcnt(0)")
        a("v_add_f32 v226, v226, v227")
        a("v_add_f32 v228, v228, v229")
        a("v_add_f32 v230, v230, v231")
        a("v_add_f32 v232, v232, v233")
        a("v_add_f32 v226, v226, v228")
        a("v_add_f32 v230, v230, v232")
        a("v_add_f32 v226, v226, v230")
        a("v_mul_f32 v226, %s, v226" % f32(C_SCALE))
        a("v_mov_b32 v227, %s" % s(sTAG))
        a("buffer_store_dwordx2 v[226:227], %s, %s, %s offen sc0 sc1" % (v(vA1), s(R_WS, 4), s(sT1)))
        a.label(skip)
        self.stamp(2)

    def x1_issue(self, base, soff):
        self.a("buffer_load_dwordx4 %s, %s, %s, %s offen sc1" % (v(base, 4), v(vO16), s(R_WS, 4), s(soff)))

    def x1_pack(self, bases):
        a = self.a
        a("s_lshl_b32 %s, %s, 2" % (s(sT1), s(sW)))
        a("s_add_u32 %s, %s, %d" % (s(sT1), s(sT1), LX))
        a("v_add_u32 %s, %s, %s" % (v(vA0), s(sT1), v(vO16)))
        for b in bases:
            a("v_mov_b32 %s, %s" % (v(b + 1), v(b)))
            a("v_mov_b32 %s, %s" % (v(b + 3), v(b + 2)))
        for b in bases:
            a("v_permlane16_swap_b32 %s, %s" % (v(b), v(b + 1)))
            a("v_permlane16_swap_b32 %s, %s" % (v(b + 2), v(b + 3)))
        for b in bases:
            a("v_add_f32 %s, %s, %s" % (v(b), v(b), v(b + 1)))
            a("v_add_f32 %s, %s, %s" % (v(b + 2), v(b + 2), v(b + 3)))
        for b in bases:
            a("v_cvt_pk_bf16_f32 %s, %s, %s" % (v(b), v(b), v(b + 2)))
        for i, b in enumerate(bases):
            a("ds_write_b32 %s, %s offset:%d" % (v(vA0), v(b), 1024 * i))
        a("v_add_u32 %s, %d, %s" % (v(vA0), LX, v(vO16)))
        a("s_waitcnt lgkmcnt(0)")
        a("s_barrier")

    def x1_select(self, region, tmp, mask, dst0, dst1=None):
        a = self.a
        a("ds_read_b128 %s, %s offset:%d" % (v(tmp, 4), v(vA0), 1024 * region))
        a("s_waitcnt lgkmcnt(0)")
        for k in range(4):
            a("v_mov_b32 %s, %s" % (v(tmp + 4 + k), v(tmp + k)))
        for k in range(4):
            a("v_permlane32_swap_b32 %s, %s" % (v(tmp + k), v(tmp + 4 + k)))
        for k in range(4):
            a("v_cndmask_b32 %s, %s, %s, %s" % (v(dst0 + k), v(tmp + k), v(tmp + 4 + k), s(mask, 2)))
            if dst1 is not None:
                a("v_cndmask_b32 %s, %s, %s, %s" % (v(dst1 + k), v(tmp + 4 + k), v(tmp + k), s(mask, 2)))

    def uk_slice(self):
        a = self.a
        S, quad = UKS, UKQ
        a("s_bitcmp1_b32 %s, 3" % s(sUS))
        a("s_cselect_b64 %s, -1, 0" % s(sMS2, 2))
        self.x1_select(0, 242, sMS2, QU)
        for j in range(4):
            for t in range(4):
                a("v_dot2_f32_bf16 %s, %s, %s, %s" % (v(S + t), v(UKW + 4 * t + j), v(QU + j), "0" if j == 0 else v(S + t)))
        for m in ("row_ror:8", "quad_perm:[1,0,3,2]", "quad_perm:[2,3,0,1]", "row_half_mirror"):
            for t in range(4):
                a("v_add_f32_dpp %s, %s, %s %s row_mask:0xf bank_mask:0xf" % (v(S + t), v(S + t), v(S + t), m))
        a("v_cvt_pk_bf16_f32 %s, %s, %s" % (v(quad), v(S), v(S + 1)))
        a("v_cvt_pk_bf16_f32 %s, %s, %s" % (v(quad + 2), v(S + 2), v(S + 3)))
        a("v_mov_b32 %s, %s" % (v(quad + 1), s(sTAG)))
        a("v_mov_b32 %s, %s" % (v(quad + 3), s(sTAG)))
        a("s_lshl_b32 %s, %s, 8" % (s(sT1), s(sUS)))
        a("s_lshl_b32 %s, %s, 6" % (s(sT2), s(sW)))
        a("s_add_u32 %s, %s, %s" % (s(sT1), s(sT1), s(sT2)))
        a("s_add_u32 %s, %s, 0x%x" % (s(sT1), s(sT1), WS_X2))
        self.mask64(sMS2, 0x00010001)
        a("s_mov_b64 exec, %s" % s(sMS2, 2))
        a("buffer_store_dwordx4 %s, %s, %s, %s offen sc0 sc1" % (v(quad, 4), v(vL), s(R_WS, 4), s(sT1)))
        a("s_mov_b64 exec, -1")

    def q_gather(self):
        a, c = self.a, self.c
        assert c.nq <= 4
        a("s_lshr_b32 %s, %s, 4" % (s(sT5), s(sUS)))
        a("s_lshl_b32 %s, %s, 12" % (s(sT5), s(sT5)))
        a("s_lshl_b32 %s, %s, 10" % (s(sT1), s(sW)))
        a("s_add_u32 %s, %s, 0x%x" % (s(sT1), s(sT1), WS_X1))
        a("s_add_u32 %s, %s, %s" % (s(sT5), s(sT5), s(sT1)))
        a("s_cmp_lt_u32 s2, %d" % self.NA)
        a("s_cbranch_scc1 L_a_main")
        a("s_lshl_b32 %s, %s, 12" % (s(sX1), s(sX1)))
        a("s_add_u32 %s, %s, %s" % (s(sX1), s(sX1), s(sT1)))
        self.tail_setup()
        self.tail_loads(0, c.t0)
        if not c.dyn:
            a("s_mov_b32 %s, %d" % (s(sT1), (self.QB - 1) * 1024))
            a("buffer_load_dwordx4 %s, %s, %s, %s offen %s" % (v(112, 4), v(vO16), s(R_V, 4), s(sT1), c.nt))
            a("buffer_load_dwordx4 %s, %s, %s, %s offen offset:1024 %s" % (v(116, 4), v(vO16), s(R_V2, 4), s(sT1), c.nt))
        for i in range(c.nq):
            self.kv_load(72 + 4 * i, R_V, i)

        def issue():
            self.x1_issue(X1A, sT5)
            self.x1_issue(X1A + 4, sX1)

        def check():
            self.tagcheck(242, [X1A + 1, X1A + 3, X1A + 5, X1A + 7])
            a("v_cmp_ne_u32 vcc, 0, v242")

        self.poll("x1", issue, check)
        self.stamp(11)
        self.x1_pack([X1A, X1A + 4])
        self.uk_slice()
        self.stamp(10)
        self.tail_loads(c.t0, 20)
        if c.dyn:
            a("s_lshl_b32 %s, %s, 8" % (s(sB2), s(sG)))
            a("s_add_u32 %s, %s, 0x%x" % (s(sB2), s(sB2), WS_CNT))
            a("v_mov_b32 v134, 0")
            self.grab()
        self.x1_select(1, 242, sMSK, 32, 36)
        self.stamp(3)

    def b_block(self, nq, kreg, vreg, kwait, vwait, knext, vnext, masked_last=False):
        a = self.a
        SA, SB, O, M, L = 16, 24, 10, 14, 15
        for i in range(nq):
            a("s_waitcnt vmcnt(%d)" % kwait(i))
            k = kreg + 4 * i
            for j in range(4):
                a("v_dot2_f32_bf16 %s, %s, %s, %s" % (v(SA + i), v(k + j), v(32 + j), "0" if j == 0 else v(SA + i)))
                a("v_dot2_f32_bf16 %s, %s, %s, %s" % (v(SB + i), v(k + j), v(36 + j), "0" if j == 0 else v(SB + i)))
            knext(i)
        for i in range(nq):
            a("v_add_f32_dpp %s, %s, %s row_ror:8 row_mask:0xf bank_mask:0xf" % (v(SA + i), v(SB + i), v(SA + i)))
        for m in ("quad_perm:[1,0,3,2]", "quad_perm:[2,3,0,1]", "row_half_mirror"):
            for i in range(nq):
                a("v_add_f32_dpp %s, %s, %s %s row_mask:0xf bank_mask:0xf" % (v(SA + i), v(SA + i), v(SA + i), m))
        if masked_last:
            a("v_add_f32 %s, %s, %s" % (v(SA + nq - 1), s(sBIAS), v(SA + nq - 1)))
        BM, T, AL = 130, 131, 132
        a("v_max_f32 %s, %s, %s" % (v(BM), v(SA), v(SA + 1)))
        i = 2
        while i < nq:
            if i + 1 < nq:
                a("v_max3_f32 %s, %s, %s, %s" % (v(BM), v(BM), v(SA + i), v(SA + i + 1)))
                i += 2
            else:
                a("v_max_f32 %s, %s, %s" % (v(BM), v(BM), v(SA + i)))
                i += 1
        self.allsum_g(BM, T, "v_max_f32")
        a("v_max_f32 %s, %s, %s" % (v(BM), v(BM), v(M)))
        a("v_sub_f32 %s, %s, %s" % (v(AL), v(M), v(BM)))
        for i in range(nq):
            a("v_sub_f32 %s, %s, %s" % (v(SA + i), v(SA + i), v(BM)))
        a("v_exp_f32 %s, %s" % (v(AL), v(AL)))
        for i in range(nq):
            a("v_exp_f32 %s, %s" % (v(SA + i), v(SA + i)))
        a("v_mov_b32 %s, %s" % (v(M), v(BM)))
        a("v_mul_f32 %s, %s, %s" % (v(L), v(L), v(AL)))
        for r in range(4):
            a("v_mul_f32 %s, %s, %s" % (v(O + r), v(O + r), v(AL)))
        for i in range(nq):
            a("v_cvt_pk_bf16_f32 %s, %s, %s" % (v(SB + i), v(SA + i), v(SA + i)))
        for i in range(nq):
            a("v_add_f32 %s, %s, %s" % (v(L), v(L), v(SA + i)))
        for i in range(nq):
            bt = 122 + 4 * (i & 1)
            for j in range(4):
                a("v_and_b32 %s, %s, %s" % (v(bt + j), v(vM[j]), v(SB + i)))
            a("s_waitcnt vmcnt(%d)" % vwait(i))
            a("v_mfma_f32_16x16x32_bf16 %s, %s, %s, %s" % (v(O, 4), v(vreg + 4 * i, 4), v(bt, 4), v(O, 4)))
            vnext(i)

    def tail_setup(self):
        a, c = self.a, self.c
        a("s_and_b32 %s, %s, 1" % (s(sT1), s(sW)))
        a("s_lshl_b32 %s, %s, 1" % (s(sT2), s(sG)))
        a("s_add_u32 %s, %s, %s" % (s(sT1), s(sT1), s(sT2)))
        a("s_mul_i32 %s, %s, %d" % (s(sT1), s(sT1), 128 * 1152))
        a("s_lshl_b32 %s, %s, 7" % (s(sT2), s(sJM)))
        a("s_add_u32 %s, %s, %s" % (s(sIT), s(sT1), s(sT2)))
        a("s_cmp_ge_u32 %s, 2" % s(sW))
        a("s_cselect_b32 %s, %s, %s" % (s(R_TW), s(P_WOA), s(P_WOB)))
        a("s_cselect_b32 %s, %s, %s" % (s(R_TW + 1), s(P_WOA + 1), s(P_WOB + 1)))
        a("s_cmp_lt_u32 %s, 9" % s(sJM))
        a("s_cselect_b32 %s, 4718592, 0" % s(R_TW + 2))
        a("s_cselect_b32 %s, 1152, 0" % s(sT3))
        a("s_mov_b32 %s, 0x20000" % s(R_TW + 3))
        self.srd(R_G, P_G, s(sT3))
        a("s_mov_b32 %s, %s" % (s(R_X + 2), s(sT3)))
        a("v_lshrrev_b32 v250, 3, %s" % v(vL))
        a("v_mul_u32_u24 v250, 1152, v250")
        a("v_and_b32 %s, 7, %s" % (v(vA1), v(vL)))
        a("v_lshlrev_b32 %s, 4, %s" % (v(vA1), v(vA1)))
        a("v_add_u32 v250, v250, %s" % v(vA1))

    def tail_loads(self, n0, n1):
        a, c = self.a, self.c
        for t in range(n0, n1):
            if t < 16:
                a("buffer_load_dwordx4 %s, v250, %s, %s offen %s" % (v(140 + 4 * t, 4), s(R_TW, 4), s(sIT), c.nt))
                if t < 15:
                    a("s_add_u32 %s, %s, 9216" % (s(sIT), s(sIT)))
            else:
                i = t - 16
                o = " offset:1024" if i & 1 else ""
                a("buffer_load_dwordx4 %s, %s, %s, 0 offen%s" % (v(204 + 4 * i, 4), v(vO16), s(R_X if i < 2 else R_G, 4), o))

    def grab(self):
        a = self.a
        a("v_mov_b32 %s, 1" % v(vAT))
        a("s_mov_b64 exec, 1")
        a("buffer_atomic_add %s, v134, %s, %s offen sc0 sc1" % (v(vAT), s(R_WS, 4), s(sB2)))
        a("s_mov_b64 exec, -1")

    def b_main_dyn(self):
        a, c = self.a, self.c
        nq, S = c.nq, c.sblk
        assert 4096 % nq == 0
        nblk = 4096 // nq
        nstat = S * 4 * self.NP
        for r in range(4):
            a("v_mov_b32 %s, 0" % v(10 + r))
        a("v_mov_b32 v14, 0xff800000")
        a("v_mov_b32 v15, 0")
        self.stamp(4)
        loop = self.lab("b_loop")
        a("s_movk_i32 %s, %d" % (s(sIT), S - 1))
        a.label(loop)
        a("s_add_u32 %s, %s, %d" % (s(sT5), s(sOFF), nq * 1024))
        self.b_block(nq, 40, 72, lambda i: 2 * nq - 1, lambda i: 2 * nq - 1,
                     lambda i: self.kv_load(40 + 4 * i, R_K, i, sT5),
                     lambda i: self.kv_load(72 + 4 * i, R_V, i, sT5))
        a("s_mov_b32 %s, %s" % (s(sOFF), s(sT5)))
        a("s_sub_u32 %s, %s, 1" % (s(sIT), s(sIT)))
        a("s_cmp_lg_u32 %s, 0" % s(sIT))
        a("s_cbranch_scc1 %s" % loop)
        self.stamp(14)
        dyn, last = self.lab("b_dyn"), self.lab("b_last")
        a.label(dyn)
        a("s_waitcnt vmcnt(%d)" % (2 * nq - 1))
        a("v_readfirstlane_b32 %s, %s" % (s(sT5), v(vAT)))
        a("s_cmp_ge_u32 %s, %d" % (s(sT5), nblk - nstat))
        a("s_cbranch_scc1 %s" % last)
        self.grab()
        a("s_add_u32 %s, %s, %d" % (s(sT5), s(sT5), nstat))
        a("s_mul_i32 %s, %s, %d" % (s(sT5), s(sT5), nq * 1024))
        self.b_block(nq, 40, 72, lambda i: 2 * nq, lambda i: 2 * nq,
                     lambda i: self.kv_load(40 + 4 * i, R_K, i, sT5),
                     lambda i: self.kv_load(72 + 4 * i, R_V, i, sT5))
        if c.debug:
            a("s_add_u32 %s, %s, 1" % (s(sIT), s(sIT)))
        a("s_branch %s" % dyn)
        a.label(last)
        self.stamp(5)
        if c.debug:
            a("v_writelane_b32 %s, %s, 15" % (v(vSTAMP), s(sIT)))
        self.b_block(nq, 40, 72, lambda i: 2 * nq - 1 - i, lambda i: nq - 1 - i,
                     lambda i: None, lambda i: None)
        self.stamp(6)
        self.gate()
        self.b_epilogue()

    def b_main(self):
        a, c = self.a, self.c
        if c.dyn:
            return self.b_main_dyn()
        nq = c.nq
        assert (self.QB - 1) % nq == 0
        nb = (self.QB - 1) // nq
        for r in range(4):
            a("v_mov_b32 %s, 0" % v(10 + r))
        a("v_mov_b32 v14, 0xff800000")
        a("v_mov_b32 v15, 0")
        self.b_block(2, 104, 112, lambda i: 63, lambda i: 63, lambda i: None, lambda i: None,
                     masked_last=True)
        self.stamp(4)
        loop = self.lab("b_loop")
        a("s_movk_i32 %s, %d" % (s(sIT), nb - 1))
        a.label(loop)
        a("s_add_u32 %s, %s, %d" % (s(sT5), s(sOFF), nq * 1024))
        self.b_block(nq, 40, 72, lambda i: 2 * nq - 1, lambda i: 2 * nq - 1,
                     lambda i: self.kv_load(40 + 4 * i, R_K, i, sT5),
                     lambda i: self.kv_load(72 + 4 * i, R_V, i, sT5))
        a("s_mov_b32 %s, %s" % (s(sOFF), s(sT5)))
        if c.bstamp:
            self.stamp_it(0, 1)
        a("s_sub_u32 %s, %s, 1" % (s(sIT), s(sIT)))
        a("s_cmp_lg_u32 %s, 0" % s(sIT))
        a("s_cbranch_scc1 %s" % loop)
        self.stamp(5)
        self.b_block(nq, 40, 72, lambda i: 2 * nq - 1 - i, lambda i: nq - 1 - i,
                     lambda i: None, lambda i: None)
        self.stamp(6)
        self.gate()
        self.b_epilogue()

    def gate(self):
        a = self.a
        G, X, Wt = 220, 204, 212
        a("v_dot2_f32_bf16 %s, %s, %s, 0" % (v(G), v(X), v(Wt)))
        for j in range(1, 8):
            a("v_dot2_f32_bf16 %s, %s, %s, %s" % (v(G), v(X + j), v(Wt + j), v(G)))
        self.allsum_row(G)
        self.allsum_g(G, 221)
        a("v_mul_f32 %s, %s, %s" % (v(G), f32(-LOG2E), v(G)))
        a("v_exp_f32 %s, %s" % (v(G), v(G)))
        a("v_add_f32 %s, 1.0, %s" % (v(G), v(G)))
        a("v_rcp_f32 %s, %s" % (v(G), v(G)))

    def b_epilogue(self):
        a, c = self.a, self.c
        O, M, L = 10, 14, 15
        self.allsum_g(L, 130)
        a("v_bfe_u32 %s, %s, 3, 1" % (v(vA0), v(vL)))
        a("v_lshlrev_b32 %s, 5, %s" % (v(vA2), v(vA0)))
        a("v_lshlrev_b32 %s, 11, %s" % (v(vA0), v(vA0)))
        a("v_lshrrev_b32 %s, 4, %s" % (v(vA1), v(vL)))
        a("v_lshlrev_b32 %s, 9, %s" % (v(vA1), v(vA1)))
        a("v_add_u32 %s, %s, %s" % (v(vA0), v(vA0), v(vA1)))
        a("v_and_b32 %s, 7, %s" % (v(vA1), v(vL)))
        a("v_lshlrev_b32 %s, 4, %s" % (v(vA1), v(vA1)))
        a("s_lshl_b32 %s, %s, 2" % (s(sT1), s(sW)))
        a("s_add_u32 %s, %s, %d" % (s(sT2), s(sT1), LO))
        a("v_add3_u32 %s, %s, %s, %s" % (v(vA0), v(vA0), v(vA1), s(sT2)))
        a("s_add_u32 %s, %s, %d" % (s(sT2), s(sT1), LML))
        a("v_add_u32 %s, %s, %s" % (v(vA2), s(sT2), v(vA2)))
        for r in range(4):
            a("ds_write_b32 %s, %s offset:%d" % (v(vA0), v(O + r), 128 * r))
        a("ds_write_b32 %s, %s" % (v(vA2), v(M)))
        a("ds_write_b32 %s, %s offset:16" % (v(vA2), v(L)))
        a("s_waitcnt lgkmcnt(0)")
        a("s_barrier")
        skip = self.lab("b_pub")
        a("s_cmp_ge_u32 %s, 2" % s(sW))
        a("s_cbranch_scc1 %s" % skip)
        a("s_lshl_b32 %s, %s, 11" % (s(sT1), s(sW)))
        a("s_add_u32 %s, %s, %d" % (s(sT1), s(sT1), LO))
        a("v_lshlrev_b32 %s, 5, %s" % (v(vA0), v(vL)))
        a("v_add_u32 %s, %s, %s" % (v(vA0), s(sT1), v(vA0)))
        a("s_lshl_b32 %s, %s, 5" % (s(sT1), s(sW)))
        a("s_add_u32 %s, %s, %d" % (s(sT1), s(sT1), LML))
        a("v_mov_b32 %s, %s" % (v(vA1), s(sT1)))
        a("ds_read_b128 v[40:43], %s" % v(vA1))
        a("ds_read_b128 v[44:47], %s offset:16" % v(vA1))
        a("ds_read_b128 v[48:51], %s" % v(vA0))
        a("ds_read_b128 v[52:55], %s offset:16" % v(vA0))
        a("s_lshl_b32 %s, %s, 11" % (s(sT1), s(sB)))
        a("s_lshl_b32 %s, %s, 10" % (s(sT2), s(sW)))
        a("s_add_u32 %s, %s, %s" % (s(sT1), s(sT1), s(sT2)))
        a("s_add_u32 %s, %s, 0x%x" % (s(sT1), s(sT1), WS_X4B))
        a("s_lshl_b32 %s, %s, 1" % (s(sT2), s(sB)))
        a("s_add_u32 %s, %s, %s" % (s(sT2), s(sT2), s(sW)))
        a("s_lshl_b32 %s, %s, 7" % (s(sT2), s(sT2)))
        a("s_add_u32 %s, %s, 0x%x" % (s(sT2), s(sT2), WS_X4L))
        a("s_waitcnt lgkmcnt(2)")
        a("v_max3_f32 v56, v40, v41, v42")
        a("v_max_f32 v56, v56, v43")
        for i in range(4):
            a("v_sub_f32 %s, %s, v56" % (v(40 + i), v(40 + i)))
        for i in range(4):
            a("v_exp_f32 %s, %s" % (v(40 + i), v(40 + i)))
        a("v_mul_f32 v57, v40, v44")
        for i in range(1, 4):
            a("v_fmac_f32 v57, %s, %s" % (v(40 + i), v(44 + i)))
        a("s_waitcnt lgkmcnt(0)")
        a("v_mul_f32 v58, v40, v48")
        a("v_mul_f32 v60, v40, v52")
        for i in range(1, 4):
            a("v_fmac_f32 v58, %s, %s" % (v(40 + i), v(48 + i)))
            a("v_fmac_f32 v60, %s, %s" % (v(40 + i), v(52 + i)))
        a("v_rcp_f32 v62, v57")
        a("v_log_f32 v63, v57")
        a("v_mov_b32 v59, %s" % s(sTAG))
        a("v_mov_b32 v61, %s" % s(sTAG))
        a("v_mul_f32 v58, v58, v62")
        a("v_mul_f32 v60, v60, v62")
        a("v_add_f32 v64, v56, v63")
        a("v_mov_b32 v65, %s" % s(sTAG))
        a("buffer_store_dwordx4 v[58:61], %s, %s, %s offen sc0 sc1" % (v(vO16), s(R_WS, 4), s(sT1)))
        a("v_mov_b32 %s, 0" % v(vA0))
        a("s_mov_b64 exec, 1")
        a("buffer_store_dwordx2 v[64:65], %s, %s, %s offen sc0 sc1" % (v(vA0), s(R_WS, 4), s(sT2)))
        a("s_mov_b64 exec, -1")
        a.label(skip)
        self.stamp(7)
        a("s_cmp_lt_u32 %s, 9" % s(sJM))
        a("s_cbranch_scc1 L_tail")
        a("s_cmp_lg_u32 %s, 9" % s(sJM))
        a("s_cbranch_scc1 L_done")
        a("s_cmp_ge_u32 %s, 9" % s(sG))
        a("s_cbranch_scc1 L_done")
        a("s_cmp_lg_u32 %s, 0" % s(sW))
        a("s_cbranch_scc1 L_done")
        self.final()
        a.label("L_done")
        self.end()

    def final(self):
        a, c = self.a, self.c
        a("s_lshl_b32 %s, %s, 13" % (s(sT1), s(sG)))
        a("s_add_u32 %s, %s, 0x%x" % (s(sX1), s(sT1), WS_X5))
        a("v_and_b32 %s, 31, %s" % (v(vA0), v(vL)))
        a("v_lshlrev_b32 %s, 4, %s" % (v(vA0), v(vA0)))
        a("v_lshrrev_b32 %s, 5, %s" % (v(vA1), v(vL)))
        a("v_lshlrev_b32 %s, 9, %s" % (v(vA1), v(vA1)))
        a("v_add_u32 %s, %s, %s" % (v(vA0), v(vA0), v(vA1)))
        self.srd(R_OUT, P_OUT, "1152")

        def issue():
            for i in range(8):
                if i == 4:
                    a("s_add_u32 %s, %s, 4096" % (s(sT2), s(sX1)))
                a("buffer_load_dwordx4 %s, %s, %s, %s offen offset:%d sc1" % (
                    v(40 + 4 * i, 4), v(vA0), s(R_WS, 4), s(sX1 if i < 4 else sT2), 1024 * (i % 4)))

        def check():
            self.tagcheck(72, [40 + 4 * i + j for i in range(8) for j in (1, 3)])
            a("v_cmp_ne_u32 vcc, 0, v72")

        self.poll("x5", issue, check)
        self.stamp(12)
        for j in (0, 2):
            for i in (0, 2, 4, 6):
                a("v_add_f32 %s, %s, %s" % (v(40 + 4 * i + j), v(40 + 4 * i + j), v(44 + 4 * i + j)))
        for j in (0, 2):
            a("v_add_f32 %s, %s, %s" % (v(40 + j), v(40 + j), v(48 + j)))
            a("v_add_f32 %s, %s, %s" % (v(56 + j), v(56 + j), v(64 + j)))
        for j in (0, 2):
            a("v_add_f32 %s, %s, %s" % (v(40 + j), v(40 + j), v(56 + j)))
        a("v_mov_b32 v44, v40")
        a("v_mov_b32 v45, v42")
        a("v_permlane32_swap_b32 v40, v44")
        a("v_permlane32_swap_b32 v42, v45")
        a("v_add_f32 v40, v40, v44")
        a("v_add_f32 v42, v42, v45")
        a("v_cvt_pk_bf16_f32 v40, v40, v42")
        a("v_lshlrev_b32 %s, 2, %s" % (v(vA0), v(vL)))
        a("s_lshl_b32 %s, %s, 7" % (s(sT1), s(sG)))
        a("s_mov_b32 exec_hi, 0")
        a("buffer_store_dword v40, %s, %s, %s offen" % (v(vA0), s(R_OUT, 4), s(sT1)))
        done = self.lab("fin")
        a("s_cmp_lg_u32 %s, 0" % s(sG))
        a("s_cbranch_scc1 %s" % done)
        a("v_mov_b32 v41, %s" % s(sTAG))
        a("v_mov_b32 %s, %d" % (v(vA0), WS_EPOCH))
        a("s_mov_b64 exec, 1")
        a("buffer_store_dword v41, %s, %s, 0 offen sc0 sc1" % (v(vA0), s(R_WS, 4)))
        if c.elapsed:
            a("s_memrealtime %s" % s(sST, 2))
            a("s_waitcnt lgkmcnt(0)")
            a("s_sub_u32 %s, %s, s38" % (s(sT1), s(sST)))
            a("v_mov_b32 v41, %s" % s(sT1))
            a("v_mov_b32 %s, 0" % v(vA0))
            self.srd(R_OUT, 34, "256")
            a("buffer_store_dword v41, %s, %s, 0 offen" % (v(vA0), s(R_OUT, 4)))
        a.label(done)
        a("s_mov_b64 exec, -1")
        self.stamp(13)

    def reduce_wu8(self, acc, lds, dst):
        a = self.a
        a("v_lshrrev_b32 %s, 4, %s" % (v(vA0), v(vL)))
        a("v_and_b32 %s, 1, %s" % (v(vA1), v(vA0)))
        a("v_lshlrev_b32 %s, 10, %s" % (v(vA1), v(vA1)))
        a("v_lshrrev_b32 %s, 1, %s" % (v(vA0), v(vA0)))
        a("v_lshlrev_b32 %s, 2, %s" % (v(vA0), v(vA0)))
        a("v_add_u32 %s, %s, %s" % (v(vA0), v(vA0), v(vA1)))
        a("v_and_b32 %s, 7, %s" % (v(vA1), v(vL)))
        a("v_lshlrev_b32 %s, 5, %s" % (v(vA1), v(vA1)))
        a("s_lshl_b32 %s, %s, 3" % (s(sT1), s(sW)))
        a("s_add_u32 %s, %s, %d" % (s(sT1), s(sT1), lds))
        a("v_add3_u32 %s, %s, %s, %s" % (v(vA0), v(vA0), v(vA1), s(sT1)))
        self.mask64(sMS2, 0x00FF00FF, 0xFF00FF00)
        a("s_mov_b64 exec, %s" % s(sMS2, 2))
        for r in range(4):
            a("ds_write_b32 %s, %s offset:%d" % (v(vA0), v(acc + r), 256 * r))
        a("s_mov_b64 exec, -1")
        a("s_waitcnt lgkmcnt(0)")
        a("s_barrier")

    def tail(self):
        a, c = self.a, self.c
        a.label("L_tail")
        G = 220
        isa, join = self.lab("t_a"), self.lab("t_j")
        a("s_and_b32 %s, %s, 1" % (s(sT3), s(sW)))
        a("s_cmp_ge_u32 %s, 2" % s(sW))
        a("s_cbranch_scc1 %s" % isa)
        a("v_sub_f32 %s, 1.0, %s" % (v(G), v(G)))
        NP = self.NP
        a("s_mul_i32 %s, %s, %d" % (s(sX1), s(sG), NP * 2048))
        a("s_lshl_b32 %s, %s, 10" % (s(sT1), s(sT3)))
        a("s_add_u32 %s, %s, %s" % (s(sX1), s(sX1), s(sT1)))
        a("s_add_u32 %s, %s, 0x%x" % (s(sX1), s(sX1), WS_X4B))
        a("s_mul_i32 %s, %s, %d" % (s(sT5), s(sG), NP * 256))
        a("s_lshl_b32 %s, %s, 7" % (s(sT1), s(sT3)))
        a("s_add_u32 %s, %s, %s" % (s(sT5), s(sT5), s(sT1)))
        a("s_add_u32 %s, %s, 0x%x" % (s(sT5), s(sT5), WS_X4L))
        a("v_and_b32 %s, 15, %s" % (v(vA1), v(vL)))
        a("v_min_u32 %s, %d, %s" % (v(vA1), NP - 1, v(vA1)))
        a("v_lshlrev_b32 %s, 8, %s" % (v(vA1), v(vA1)))

        def issue():
            a("buffer_load_dwordx2 v[96:97], %s, %s, %s offen sc1" % (v(vA1), s(R_WS, 4), s(sT5)))
            a("s_mov_b32 %s, %s" % (s(sT2), s(sX1)))
            for i in range(NP):
                o = " offset:2048" if i & 1 else ""
                a("buffer_load_dwordx4 %s, %s, %s, %s offen%s sc1" % (v(40 + 4 * i, 4), v(vO16), s(R_WS, 4), s(sT2), o))
                if i & 1 and i < NP - 1:
                    a("s_add_u32 %s, %s, 4096" % (s(sT2), s(sT2)))

        def check():
            self.tagcheck(98, [97] + [40 + 4 * i + j for i in range(NP) for j in (1, 3)])
            a("v_cmp_ne_u32 vcc, 0, v98")

        if c.lfirst:
            def issue_l():
                a("buffer_load_dwordx2 v[96:97], %s, %s, %s offen sc1" % (v(vA1), s(R_WS, 4), s(sT5)))

            def check_l():
                self.tagcheck(98, [97])
                a("v_cmp_ne_u32 vcc, 0, v98")

            self.poll("x4l", issue_l, check_l)
        self.poll("x4b", issue, check)
        self.stamp(8)
        a("v_mov_b32 v98, v96")
        self.allsum_row(98, "v_max_f32")
        a("v_sub_f32 v96, v96, v98")
        a("v_exp_f32 v96, v96")
        self.mask64(sMS2, ((1 << NP) - 1) * 0x10001)
        a("v_cndmask_b32 v96, 0, v96, %s" % s(sMS2, 2))
        a("v_mov_b32 v98, v96")
        self.allsum_row(98)
        a("v_rcp_f32 v98, v98")
        a("v_mul_f32 v96, v96, v98")
        for i in range(NP):
            a("v_readlane_b32 %s, v96, %d" % (s(8 + i), i))
        a("v_mul_f32 v100, %s, v40" % s(8))
        a("v_mul_f32 v101, %s, v42" % s(8))
        for i in range(1, NP):
            a("v_fmac_f32 v100, %s, %s" % (s(8 + i), v(40 + 4 * i)))
            a("v_fmac_f32 v101, %s, %s" % (s(8 + i), v(42 + 4 * i)))
        a("s_branch %s" % join)
        a.label(isa)
        a("s_lshl_b32 %s, %s, 1" % (s(sX1), s(sG)))
        a("s_add_u32 %s, %s, %s" % (s(sX1), s(sX1), s(sT3)))
        NH = self.NH
        a("s_lshl_b32 %s, %s, %d" % (s(sX1), s(sX1), 9 + NH))
        a("s_add_u32 %s, %s, 0x%x" % (s(sX1), s(sX1), WS_X4A))

        def issue_a():
            for h in range(NH):
                o = " offset:1024" if h else ""
                a("buffer_load_dwordx4 %s, %s, %s, %s offen%s sc1" % (v(40 + 4 * h, 4), v(vO16), s(R_WS, 4), s(sX1), o))

        def check_a():
            self.tagcheck(98, [41 + 4 * h + j for h in range(NH) for j in (0, 2)])
            a("v_cmp_ne_u32 vcc, 0, v98")

        self.poll("x4a", issue_a, check_a)
        self.stamp(8)
        if NH == 1:
            a("v_mov_b32 v100, v40")
            a("v_mov_b32 v101, v42")
        else:
            a("v_add_f32 v100, v40, v44")
            a("v_add_f32 v101, v42, v46")
        a.label(join)
        self.dump(0, 100)
        self.dump(1, 101)
        self.dump(2, G)
        a("v_cvt_pk_bf16_f32 v100, v100, v100")
        a("v_cvt_pk_bf16_f32 v101, v101, v101")
        a("s_lshl_b32 %s, %s, 9" % (s(sT1), s(sW)))
        a("s_add_u32 %s, %s, %d" % (s(sT1), s(sT1), LT))
        a("v_lshlrev_b32 %s, 3, %s" % (v(vA0), v(vL)))
        a("v_add_u32 %s, %s, %s" % (v(vA0), s(sT1), v(vA0)))
        a("ds_write_b64 %s, v[100:101]" % v(vA0))
        a("v_lshrrev_b32 %s, 3, %s" % (v(vA1), v(vL)))
        a("v_lshlrev_b32 %s, 2, %s" % (v(vA1), v(vA1)))
        a("v_add_u32 %s, %s, %s" % (v(vA1), s(sT1), v(vA1)))
        for t in range(0, 16, 2):
            a("ds_read2_b32 %s, %s offset0:%d offset1:%d" % (v(40 + t, 2), v(vA1), 8 * t, 8 * t + 8))
        for t in range(16):
            if t % 2 == 0:
                a("s_waitcnt lgkmcnt(%d)" % (7 - t // 2))
            self.delta_mfma(10, v(140 + 4 * t, 4), 40 + t, 122 + 4 * (t & 1), t == 0)
        for r in range(4):
            self.dump(3 + r, 10 + r)
        self.dump(7, 140)
        for r in range(4):
            a("v_mul_f32 %s, %s, %s" % (v(10 + r), v(10 + r), v(G)))
        self.reduce_wu8(10, LR, 0)
        a("s_cmp_lg_u32 %s, 0" % s(sW))
        a("s_cbranch_scc1 L_tail_done")
        a("v_lshlrev_b32 %s, 5, %s" % (v(vA0), v(vL)))
        a("v_add_u32 %s, %d, %s" % (v(vA0), LR, v(vA0)))
        a("ds_read_b128 v[40:43], %s" % v(vA0))
        a("ds_read_b128 v[44:47], %s offset:16" % v(vA0))
        a("s_lshl_b32 %s, %s, 4" % (s(sT1), s(sJM)))
        a("s_add_u32 %s, %s, %s" % (s(sT1), s(sT1), s(sG)))
        a("s_lshl_b32 %s, %s, 9" % (s(sT1), s(sT1)))
        a("s_add_u32 %s, %s, 0x%x" % (s(sT1), s(sT1), WS_X5))
        a("v_lshlrev_b32 %s, 3, %s" % (v(vA1), v(vL)))
        a("s_waitcnt lgkmcnt(0)")
        a("v_add_f32 v40, v40, v41")
        a("v_add_f32 v42, v42, v43")
        a("v_add_f32 v44, v44, v45")
        a("v_add_f32 v46, v46, v47")
        a("v_add_f32 v40, v40, v42")
        a("v_add_f32 v44, v44, v46")
        a("v_add_f32 v40, v40, v44")
        a("v_mov_b32 v41, %s" % s(sTAG))
        a("buffer_store_dwordx2 v[40:41], %s, %s, %s offen sc0 sc1" % (v(vA1), s(R_WS, 4), s(sT1)))
        a.label("L_tail_done")
        self.stamp(9)
        self.end()

    def dma_rows(self, rows):
        a, c = self.a, self.c
        sDS, sDB = sT5, sT4
        grp = None
        for i in rows:
            if i // 4 != grp:
                grp = i // 4
                if grp == 0:
                    a("s_mov_b32 m0, %s" % s(sDB))
                    so = sDS
                else:
                    a("s_add_u32 %s, %s, 4096" % (s(sT1), s(sDB)))
                    a("s_add_u32 %s, %s, 4096" % (s(sT2), s(sDS)))
                    a("s_mov_b32 m0, %s" % s(sT1))
                    so = sT2
            o = " offset:%d" % (1024 * (i % 4)) if i % 4 else ""
            a("buffer_load_dwordx4 %s, %s, %s offen%s %s lds" % (v(222 + i), s(R_C, 4), s(so), o, c.nt))

    def dma_next(self):
        a = self.a
        sDS, sDB, sDX = sT5, sT4, sT3
        a("s_add_u32 %s, %s, 0x8000" % (s(sDS), s(sDS)))
        a("s_xor_b32 %s, %s, %s" % (s(sDB), s(sDB), s(sDX)))
        a("s_xor_b32 %s, %s, 0x18000" % (s(sDX), s(sDX)))

    def uv_loads(self, t0, t1):
        a, c = self.a, self.c
        for t in range(t0, t1):
            a("buffer_load_dwordx4 %s, v250, %s, %s offen %s" % (ar(128 + 4 * t, 4), s(R_UV, 4), s(sB), c.nt))
            if t < 32 // self.NH - 1:
                a("s_add_u32 %s, %s, 0x8000" % (s(sB), s(sB)))

    def a_main(self):
        a, c = self.a, self.c
        a.label("L_a_main")
        sDS, sDB, sDX = sT5, sT4, sT3
        na, nb_, nc = [int(x) for x in c.dsplit.split(",")]
        assert na + nb_ + nc == 8
        rowsA, rowsB, rowsC = list(range(na)), list(range(na, na + nb_)), list(range(na + nb_, 8))
        a("s_mov_b32 %s, %s" % (s(sX1), s(sT5)))
        for k in range(8):
            a("v_xor_b32 %s, %d, %s" % (v(222 + k), 32 * k, v(vO16)))
        a("s_lshl_b32 %s, %s, 13" % (s(sDB), s(sW)))
        a("s_mov_b32 %s, %s" % (s(sDS), s(sDB)))
        a("s_mov_b32 %s, 0x8000" % s(sDX))
        self.dma_rows(range(8))

        def issue_q():
            self.x1_issue(X1A, sX1)

        def check_q():
            self.tagcheck(242, [X1A + 1, X1A + 3])
            a("v_cmp_ne_u32 vcc, 0, v242")

        self.poll("x1a", issue_q, check_q)
        self.stamp(3)
        self.x1_pack([X1A])
        self.uk_slice()
        self.stamp(4)
        self.dma_next()
        self.dma_rows(range(8))
        a("v_lshrrev_b32 %s, 4, %s" % (v(vA0), v(vL)))
        a("v_lshlrev_b32 %s, 13, %s" % (v(vA0), v(vA0)))
        a("v_and_b32 %s, 15, %s" % (v(vA1), v(vL)))
        a("v_lshlrev_b32 v250, 4, %s" % v(vA1))
        a("v_add_u32 v250, %s, v250" % v(vA0))
        if self.NH == 1:
            a("s_lshl_b32 %s, %s, 20" % (s(sB), s(sW)))
            a("s_lshl_b32 %s, s2, 8" % s(sT2))
        else:
            a("s_and_b32 %s, s2, 1" % s(sT2))
            a("s_lshl_b32 %s, %s, 2" % (s(sT2), s(sT2)))
            a("s_add_u32 %s, %s, %s" % (s(sB), s(sT2), s(sW)))
            a("s_lshl_b32 %s, %s, 19" % (s(sB), s(sB)))
            a("s_lshr_b32 %s, s2, 1" % s(sT2))
            a("s_lshl_b32 %s, %s, 8" % (s(sT2), s(sT2)))
        a("s_add_u32 %s, %s, %s" % (s(sB), s(sB), s(sT2)))
        a("s_lshl_b32 %s, %s, 14" % (s(sX1), s(sW)))
        a("s_add_u32 %s, %s, 0x%x" % (s(sX1), s(sX1), WS_X2))

        def issue():
            a("s_mov_b32 %s, %s" % (s(sOFF), s(sX1)))
            for i in range(16):
                o = " offset:%d" % (1024 * (i % 4)) if i % 4 else ""
                a("buffer_load_dwordx4 %s, %s, %s, %s offen%s sc1" % (v(40 + 4 * i, 4), v(vO16), s(R_WS, 4), s(sOFF), o))
                if i % 4 == 3 and i < 15:
                    a("s_add_u32 %s, %s, 4096" % (s(sOFF), s(sOFF)))

        def check():
            self.tagcheck(104, [40 + 4 * i + j for i in range(16) for j in (1, 3)])
            a("v_cmp_ne_u32 vcc, 0, v104")

        self.poll("x2", issue, check)
        self.stamp(5)
        self.dma_next()
        self.dma_rows(rowsA + rowsB)
        self.uv_loads(0, min(c.uv0, 32 // self.NH))
        a("v_lshrrev_b32 %s, 1, %s" % (v(vA0), v(vL)))
        a("v_lshlrev_b32 %s, 4, %s" % (v(vA0), v(vA0)))
        a("v_and_b32 %s, 1, %s" % (v(vA1), v(vL)))
        a("v_lshlrev_b32 %s, 3, %s" % (v(vA1), v(vA1)))
        a("s_lshl_b32 %s, %s, 13" % (s(sT1), s(sW)))
        a("s_add_u32 %s, %s, %d" % (s(sT1), s(sT1), LQA))
        a("v_add_u32 %s, %s, %s" % (v(vA0), v(vA0), v(vA1)))
        for hq in range(8):
            a("v_xor_b32 %s, %d, %s" % (v(104 + hq), 32 * hq, v(vA0)))
            a("v_add_u32 %s, %s, %s" % (v(104 + hq), s(sT1), v(104 + hq)))
        for i in range(16):
            a("v_mov_b32 %s, %s" % (v(41 + 4 * i), v(42 + 4 * i)))
        for i in range(16):
            hq, half = i >> 1, i & 1
            a("ds_write_b64 %s, %s offset:%d" % (v(104 + hq), v(40 + 4 * i, 2), hq * 1024 + half * 512))
        AQ, AT = 210, 214
        a("v_and_b32 %s, 15, %s" % (v(vA0), v(vL)))
        a("v_lshlrev_b32 %s, 10, %s" % (v(vA1), v(vA0)))
        a("v_and_b32 %s, 7, %s" % (v(vA0), v(vA0)))
        a("v_lshlrev_b32 %s, 5, %s" % (v(vA0), v(vA0)))
        a("v_lshrrev_b32 %s, 4, %s" % (v(vA2), v(vL)))
        a("v_lshlrev_b32 %s, 4, %s" % (v(vA2), v(vA2)))
        for b in range(4):
            a("v_add_u32 %s, %d, %s" % (v(AQ + b), 64 * b, v(vA2)))
            a("v_xor_b32 %s, %s, %s" % (v(AQ + b), v(AQ + b), v(vA0)))
            a("v_add_u32 %s, %s, %s" % (v(AQ + b), v(AQ + b), v(vA1)))
        a("s_waitcnt lgkmcnt(0)")
        a("s_barrier")
        a("s_lshr_b32 %s, %s, 1" % (s(sT1), s(sW)))
        a("s_lshl_b32 %s, %s, 14" % (s(sT1), s(sT1)))
        a("s_add_u32 %s, %s, %d" % (s(sT1), s(sT1), LQA))
        for b in range(4):
            a("v_add_u32 %s, %s, %s" % (v(112 + b), s(sT1), v(AQ + b)))
        for ks in range(16):
            a("ds_read_b128 %s, %s offset:%d" % (ar(4 * ks, 4), v(112 + (ks & 3)), (ks >> 2) * 256))
        a("s_and_b32 %s, %s, 1" % (s(sT1), s(sW)))
        a("s_lshl_b32 %s, %s, 14" % (s(sT1), s(sT1)))
        for b in range(4):
            a("v_add_u32 %s, %s, %s" % (v(AQ + b), s(sT1), v(AQ + b)))
        a("v_lshrrev_b32 %s, 4, %s" % (v(vA0), v(vL)))
        a("v_lshlrev_b32 %s, 2, %s" % (v(vA0), v(vA0)))
        a("v_bfe_u32 %s, %s, 2, 2" % (v(vA1), v(vL)))
        a("v_add_u32 %s, %s, %s" % (v(vA0), v(vA0), v(vA1)))
        a("v_and_b32 %s, 7, %s" % (v(vA1), v(vA0)))
        a("v_lshlrev_b32 %s, 5, %s" % (v(vA1), v(vA1)))
        a("v_lshlrev_b32 %s, 10, %s" % (v(vA0), v(vA0)))
        a("v_and_b32 %s, 3, %s" % (v(vA2), v(vL)))
        a("v_lshlrev_b32 %s, 3, %s" % (v(vA2), v(vA2)))
        a("s_lshl_b32 %s, %s, 8" % (s(sT1), s(sW)))
        a("v_add3_u32 %s, %s, %s, %s" % (v(vA0), v(vA0), v(vA2), s(sT1)))
        for ct in range(8):
            a("v_xor_b32 %s, %d, %s" % (v(AT + ct), 32 * ct, v(vA1)))
            a("v_add_u32 %s, %s, %s" % (v(AT + ct), v(AT + ct), v(vA0)))
        AMW, AMR, APW, APR = 230, 231, 232, 233
        a("v_and_b32 %s, 15, %s" % (v(vA0), v(vL)))
        a("v_lshlrev_b32 %s, 4, %s" % (v(vA0), v(vA0)))
        a("v_add_u32 %s, %d, %s" % (v(AMR), LMX, v(vA0)))
        a("s_lshr_b32 %s, %s, 1" % (s(sT1), s(sW)))
        a("s_and_b32 %s, %s, 1" % (s(sT2), s(sW)))
        a("s_lshl_b32 %s, %s, 3" % (s(sOFF), s(sT1)))
        a("s_lshl_b32 %s, %s, 2" % (s(sX1), s(sT2)))
        a("s_add_u32 %s, %s, %s" % (s(sOFF), s(sOFF), s(sX1)))
        a("v_add_u32 %s, %s, %s" % (v(AMW), s(sOFF), v(AMR)))
        a("v_add_u32 %s, %d, %s" % (v(APR), LP, v(vO16)))
        a("s_lshl_b32 %s, %s, 10" % (s(sOFF), s(sT1)))
        a("s_lshl_b32 %s, %s, 3" % (s(sX1), s(sT2)))
        a("s_add_u32 %s, %s, %s" % (s(sOFF), s(sOFF), s(sX1)))
        a("v_add_u32 %s, %s, %s" % (v(APW), s(sOFF), v(APR)))
        a("s_cmp_ge_u32 %s, 2" % s(sW))
        a("s_cselect_b64 %s, -1, 0" % s(sMSK, 2))
        ACC, OP, S8, M0, L0, AL, PO = 40, 104, 168, 176, 178, 180, 182
        for i in range(64):
            a("v_mov_b32 %s, 0" % v(ACC + i))
        a("v_mov_b32 %s, 0xff800000" % v(M0))
        a("v_mov_b32 %s, 0xff800000" % v(M0 + 1))
        a("v_mov_b32 %s, 0" % v(L0))
        a("s_waitcnt lgkmcnt(0)")
        a("s_barrier")
        self.stamp(6)
        a("s_mov_b32 %s, 0" % s(sIT))
        a("s_mov_b32 %s, 0x8000" % s(sOFF))
        loop = self.lab("a_loop")
        a.label(loop)
        self.stamp_it(0, 3)
        for ks in range(16):
            a("ds_read_b128 %s, %s offset:%d" % (v(OP + 4 * ks, 4), v(AQ + (ks & 3)), (ks >> 2) * 256))
        cpos = {(4 + 4 * i): r for i, r in enumerate(rowsC)}
        for ks in range(16):
            a("s_waitcnt lgkmcnt(%d)" % (15 - ks))
            acc = S8 + 4 * (ks & 1)
            a("v_mfma_f32_16x16x32_bf16 %s, %s, %s, %s" % (
                v(acc, 4), v(OP + 4 * ks, 4), ar(4 * ks, 4), "0" if ks < 2 else v(acc, 4)))
            if ks in cpos:
                self.dma_rows([cpos[ks]])
        T0 = 198
        for r in range(4):
            a("v_add_f32 %s, %s, %s" % (v(S8 + r), v(S8 + r), v(S8 + 4 + r)))
        a("v_max3_f32 %s, %s, %s, %s" % (v(T0), v(S8), v(S8 + 1), v(S8 + 2)))
        a("v_max_f32 %s, %s, %s" % (v(T0), v(T0), v(S8 + 3)))
        self.allsum_g(T0, T0 + 1, "v_max_f32")
        a("ds_write_b32 %s, %s" % (v(AMW), v(T0)))
        a("s_waitcnt lgkmcnt(0)")
        a("s_barrier")
        a("ds_read_b128 %s, %s" % (v(T0, 4), v(AMR)))
        self.dma_next()
        a("s_cmp_ge_u32 %s, %d" % (s(sIT), self.NIT - 3))
        a("s_cselect_b32 %s, 0, %d" % (s(R_C + 2), self.KEYS * 1024))
        self.dma_rows(rowsA)
        a("s_waitcnt lgkmcnt(0)")
        a("v_max3_f32 %s, %s, %s, %s" % (v(T0), v(T0), v(T0 + 1), v(M0)))
        a("v_max3_f32 %s, %s, %s, %s" % (v(T0 + 2), v(T0 + 2), v(T0 + 3), v(M0 + 1)))
        a("v_cndmask_b32 %s, %s, %s, %s" % (v(T0 + 1), v(T0), v(T0 + 2), s(sMSK, 2)))
        a("v_sub_f32 %s, %s, %s" % (v(AL), v(M0), v(T0)))
        a("v_sub_f32 %s, %s, %s" % (v(AL + 1), v(M0 + 1), v(T0 + 2)))
        for r in range(4):
            a("v_sub_f32 %s, %s, %s" % (v(S8 + r), v(S8 + r), v(T0 + 1)))
        a("v_exp_f32 %s, %s" % (v(AL), v(AL)))
        a("v_exp_f32 %s, %s" % (v(AL + 1), v(AL + 1)))
        for r in range(4):
            a("v_exp_f32 %s, %s" % (v(S8 + r), v(S8 + r)))
        a("v_mov_b32 %s, %s" % (v(M0), v(T0)))
        a("v_mov_b32 %s, %s" % (v(M0 + 1), v(T0 + 2)))
        a("v_cvt_pk_bf16_f32 %s, %s, %s" % (v(T0), v(S8), v(S8 + 1)))
        a("v_cvt_pk_bf16_f32 %s, %s, %s" % (v(T0 + 1), v(S8 + 2), v(S8 + 3)))
        a("ds_write_b64 %s, %s" % (v(APW), v(T0, 2)))
        a("v_cndmask_b32 %s, %s, %s, %s" % (v(T0 + 2), v(AL), v(AL + 1), s(sMSK, 2)))
        a("v_add_f32 %s, %s, %s" % (v(S8), v(S8), v(S8 + 1)))
        a("v_add_f32 %s, %s, %s" % (v(S8 + 2), v(S8 + 2), v(S8 + 3)))
        a("v_add_f32 %s, %s, %s" % (v(S8), v(S8), v(S8 + 2)))
        a("v_fma_f32 %s, %s, %s, %s" % (v(L0), v(L0), v(T0 + 2), v(S8)))

        def rescale(ct):
            for ht in range(2):
                sel = "op_sel_hi:[1,0]" if ht == 0 else "op_sel:[0,1] op_sel_hi:[1,1]"
                for h in range(2):
                    x = ACC + 8 * ct + 4 * ht + 2 * h
                    a("v_pk_mul_f32 %s, %s, %s %s" % (v(x, 2), v(x, 2), v(AL, 2), sel))
        rescale(0)
        nowait = self.lab("a_nw")
        a("s_cmp_eq_u32 %s, 0" % s(sIT))
        a("s_cbranch_scc1 %s" % nowait)
        a("s_waitcnt vmcnt(%d)" % (na + 8))
        a.label(nowait)
        a("s_waitcnt lgkmcnt(0)")
        a("s_barrier")
        self.stamp_it(1, 3)
        for ht in range(2):
            a("ds_read_b128 %s, %s offset:%d" % (v(PO + 4 * ht, 4), v(APR), ht * 1024))

        def tr_reads(ct):
            for hf in range(2):
                a("ds_read_b64_tr_b16 %s, %s offset:%d" % (v(OP + 4 * ct + 2 * hf, 2), v(AT + ct), 16384 * hf))
        for ct in range(6):
            tr_reads(ct)
        issued = 6
        bpos = {(1 + 2 * i): r for i, r in enumerate(rowsB)}
        for ct in range(8):
            if ct < 7:
                rescale(ct + 1)
            a("s_waitcnt lgkmcnt(%d)" % (2 * (issued - ct - 1)))
            for ht in range(2):
                x = ACC + 8 * ct + 4 * ht
                a("v_mfma_f32_16x16x32_bf16 %s, %s, %s, %s" % (
                    v(x, 4), v(OP + 4 * ct, 4), v(PO + 4 * ht, 4), v(x, 4)))
            if issued < 8:
                tr_reads(issued)
                issued += 1
            if ct in bpos:
                self.dma_rows([bpos[ct]])
        for b in range(4):
            a("v_xor_b32 %s, %s, %s" % (v(AQ + b), s(sOFF), v(AQ + b)))
        for ct in range(8):
            a("v_xor_b32 %s, %s, %s" % (v(AT + ct), s(sOFF), v(AT + ct)))
        a("s_xor_b32 %s, %s, 0x18000" % (s(sOFF), s(sOFF)))
        self.stamp_it(2, 3)
        a("s_add_u32 %s, %s, 1" % (s(sIT), s(sIT)))
        a("s_cmp_lt_u32 %s, %d" % (s(sIT), self.NIT))
        a("s_cbranch_scc1 %s" % loop)
        self.stamp(7)
        self.a_finish(ACC, OP, M0, L0)

    def a_finish_u(self, ACC, OP, M0, L0):
        a, c = self.a, self.c
        assert self.NH == 2
        NT = 16
        a("v_and_b32 %s, 15, %s" % (v(vA1), v(vL)))
        a("v_lshlrev_b32 %s, 16, %s" % (v(vA0), v(vA1)))
        a("v_lshrrev_b32 %s, 4, %s" % (v(vA2), v(vL)))
        a("v_lshlrev_b32 %s, 4, %s" % (v(vA2), v(vA2)))
        a("v_add_u32 %s, %s, %s" % (v(vA0), v(vA0), v(vA2)))
        a("s_lshl_b32 %s, s2, 10" % s(sT1))
        a("s_lshl_b32 %s, %s, 8" % (s(sT2), s(sW)))
        a("s_add_u32 %s, %s, %s" % (s(sT1), s(sT1), s(sT2)))
        a("s_add_u32 %s, %s, 0x%x" % (s(sT1), s(sT1), WS_X3))
        a("s_add_u32 %s, %s, 0x100000" % (s(sT2), s(sT1)))
        n = 0
        for q in range(4):
            for ht in range(2):
                r = OP + 4 * n
                for k in range(2):
                    x = ACC + 8 * (2 * q + k) + 4 * ht
                    a("v_cvt_pk_bf16_f32 %s, %s, %s" % (v(r + 2 * k), v(x), v(x + 1)))
                    a("v_cvt_pk_bf16_f32 %s, %s, %s" % (v(r + 2 * k + 1), v(x + 2), v(x + 3)))
                o = " offset:%d" % (64 * q) if q else ""
                a("buffer_store_dwordx4 %s, %s, %s, %s offen%s sc0 sc1" % (
                    v(r, 4), v(vA0), s(R_WS, 4), s(sT2 if ht else sT1), o))
                n += 1
        self.stamp(12)
        u0 = min(c.uv0, NT)
        self.uv_loads(u0, NT)
        self.allsum_g(L0, 198)
        a("v_cndmask_b32 v204, %s, %s, %s" % (v(M0), v(M0 + 1), s(sMSK, 2)))
        a("v_mov_b32 v205, %s" % s(sTAG))
        a("v_mov_b32 v206, %s" % v(L0))
        a("v_mov_b32 v207, %s" % s(sTAG))
        a("v_lshlrev_b32 %s, 11, %s" % (v(vA1), v(vA1)))
        a("s_lshr_b32 %s, %s, 1" % (s(sT1), s(sW)))
        a("s_lshl_b32 %s, %s, 15" % (s(sT1), s(sT1)))
        a("s_and_b32 %s, %s, 1" % (s(sT2), s(sW)))
        a("s_lshl_b32 %s, %s, 4" % (s(sT2), s(sT2)))
        a("s_add_u32 %s, %s, %s" % (s(sT1), s(sT1), s(sT2)))
        a("s_lshl_b32 %s, s2, 5" % s(sT2))
        a("s_add_u32 %s, %s, %s" % (s(sT1), s(sT1), s(sT2)))
        a("s_add_u32 %s, %s, 0x%x" % (s(sT1), s(sT1), WS_ML))
        a("s_waitcnt vmcnt(%d)" % (NT - u0))
        a("s_barrier")
        a("s_mov_b64 exec, 0xffff")
        a("buffer_store_dwordx4 v[204:207], %s, %s, %s offen sc0 sc1" % (v(vA1), s(R_WS, 4), s(sT1)))
        a("s_mov_b64 exec, -1")
        self.stamp(8)
        a("s_lshr_b32 %s, s2, 1" % s(sB))
        a("s_lshl_b32 %s, %s, 11" % (s(sX1), s(sB)))
        a("s_add_u32 %s, %s, 0x%x" % (s(sX1), s(sX1), WS_ML))
        MR = [200, 210]

        def issue():
            for h in range(2):
                o = " offset:1024" if h else ""
                a("buffer_load_dwordx4 %s, %s, %s, %s offen%s sc1" % (v(MR[h], 4), v(vO16), s(R_WS, 4), s(sX1), o))

        def check():
            self.tagcheck(204, [m + j for m in MR for j in (1, 3)])
            a("v_cmp_ne_u32 vcc, 0, v204")

        a("v_lshrrev_b32 %s, 3, %s" % (v(vA0), v(vL)))
        a("v_lshlrev_b32 %s, 10, %s" % (v(vA1), v(vA0)))
        a("v_and_b32 %s, 7, %s" % (v(vA2), v(vL)))
        a("v_lshlrev_b32 v208, 4, %s" % v(vA2))
        a("v_add_u32 v208, %s, v208" % v(vA1))
        a("v_lshlrev_b32 v209, 3, %s" % v(vA0))
        self.poll("ml", issue, check)
        self.stamp(9)
        a("s_lshl_b32 %s, %s, 16" % (s(sX1), s(sB)))
        a("s_lshl_b32 %s, %s, 7" % (s(sT2), s(sW)))
        a("s_add_u32 %s, %s, %s" % (s(sX1), s(sX1), s(sT2)))
        a("s_and_b32 %s, s2, 1" % s(sT2))
        a("s_lshl_b32 %s, %s, 9" % (s(sT2), s(sT2)))
        a("s_add_u32 %s, %s, %s" % (s(sX1), s(sX1), s(sT2)))
        a("s_add_u32 %s, %s, 0x%x" % (s(sX1), s(sX1), WS_X3))
        for i in range(8):
            a("buffer_load_dwordx4 %s, v208, %s, %s offen sc1" % (v(40 + 4 * i, 4), s(R_WS, 4), s(sX1)))
            if i < 7:
                a("s_add_u32 %s, %s, 8192" % (s(sX1), s(sX1)))
        a("v_max_f32 v204, v200, v210")
        self.allsum_row(204, "v_max_f32")
        self.allsum_g(204, 205, "v_max_f32")
        for m in MR:
            a("v_sub_f32 %s, %s, v204" % (v(m), v(m)))
        for m in MR:
            a("v_exp_f32 %s, %s" % (v(m), v(m)))
        a("v_mul_f32 v204, v200, v202")
        a("v_fmac_f32 v204, v210, v212")
        self.allsum_row(204)
        self.allsum_g(204, 205)
        a("v_rcp_f32 v204, v204")
        for m in MR:
            a("v_mul_f32 %s, %s, v204" % (v(m), v(m)))
        for i in range(8):
            a("v_add_u32 %s, %d, v209" % (v(168 + i), (64 * i) & 255))
        for i in range(8):
            a("ds_bpermute_b32 %s, %s, %s" % (v(168 + i), v(168 + i), v(MR[i >> 2])))
        a("s_waitcnt lgkmcnt(0)")
        for i in range(8):
            q, wt = 40 + 4 * i, 168 + i
            tb = 112 + 8 * (i & 1)
            a("s_waitcnt vmcnt(%d)" % (7 - i))
            for d in range(4):
                a("v_lshlrev_b32 %s, 16, %s" % (v(tb + 2 * d), v(q + d)))
                a("v_and_b32 %s, 0xffff0000, %s" % (v(tb + 2 * d + 1), v(q + d)))
            sel = "op_sel_hi:[1,0,1]" if wt % 2 == 0 else "op_sel:[0,1,0] op_sel_hi:[1,1,1]"
            wp = v(wt & ~1, 2)
            for d in range(4):
                if i == 0:
                    a("v_pk_mul_f32 %s, %s, %s op_sel_hi:[1,0]" % (v(104 + 2 * d, 2), v(tb + 2 * d, 2), wp))
                else:
                    a("v_pk_fma_f32 %s, %s, %s, %s %s" % (v(104 + 2 * d, 2), v(tb + 2 * d, 2), wp, v(104 + 2 * d, 2), sel))
        self.stamp(11)
        for r in range(8):
            a("v_add_f32_dpp %s, %s, %s row_ror:8 row_mask:0xf bank_mask:0xf" % (v(104 + r), v(104 + r), v(104 + r)))
        for swap in ("v_permlane16_swap_b32", "v_permlane32_swap_b32"):
            for r in range(8):
                a("v_mov_b32 %s, %s" % (v(112 + r), v(104 + r)))
            for r in range(8):
                a("%s %s, %s" % (swap, v(104 + r), v(112 + r)))
            for r in range(8):
                a("v_add_f32 %s, %s, %s" % (v(104 + r), v(104 + r), v(112 + r)))
        for r in range(8):
            a("v_cvt_pk_bf16_f32 %s, %s, %s" % (v(104 + r), v(104 + r), v(104 + r)))
        a("s_lshl_b32 %s, %s, 9" % (s(sT1), s(sW)))
        a("s_add_u32 %s, %s, %d" % (s(sT1), s(sT1), LT))
        a("v_lshrrev_b32 %s, 2, %s" % (v(vA0), v(vA2)))
        a("v_lshlrev_b32 %s, 7, %s" % (v(vA0), v(vA0)))
        a("v_and_b32 %s, 3, %s" % (v(vA2), v(vA2)))
        a("v_lshlrev_b32 %s, 4, %s" % (v(vA2), v(vA2)))
        a("v_add3_u32 %s, %s, %s, %s" % (v(vA0), v(vA0), v(vA2), s(sT1)))
        a("ds_write_b128 %s, v[104:107]" % v(vA0))
        a("ds_write_b128 %s, v[108:111] offset:64" % v(vA0))
        self.a_gemv()

    def a_finish(self, ACC, OP, M0, L0):
        a, c = self.a, self.c
        if c.x3u:
            return self.a_finish_u(ACC, OP, M0, L0)
        a("v_and_b32 %s, 15, %s" % (v(vA1), v(vL)))
        NH = self.NH
        HS = 15 + NH
        a("v_lshlrev_b32 %s, %d, %s" % (v(vA0), HS, v(vA1)))
        a("v_lshrrev_b32 %s, 4, %s" % (v(vA2), v(vL)))
        a("v_lshlrev_b32 %s, 4, %s" % (v(vA2), v(vA2)))
        a("v_add_u32 %s, %s, %s" % (v(vA0), v(vA0), v(vA2)))
        a("s_lshl_b32 %s, s2, 11" % s(sT1))
        a("s_lshl_b32 %s, %s, 9" % (s(sT2), s(sW)))
        a("s_add_u32 %s, %s, %s" % (s(sT1), s(sT1), s(sT2)))
        a("s_add_u32 %s, %s, 0x%x" % (s(sT1), s(sT1), WS_X3))
        a("s_add_u32 %s, %s, 0x%x" % (s(sT2), s(sT1), 16 << HS))
        for i in range(8):
            a("v_mov_b32 %s, %s" % (v(OP + 2 * i + 1), s(sTAG)))
        n = 0
        for ct in range(8):
            for ht in range(2):
                x, q = ACC + 8 * ct + 4 * ht, OP + 4 * (n & 3)
                a("v_cvt_pk_bf16_f32 %s, %s, %s" % (v(q), v(x), v(x + 1)))
                a("v_cvt_pk_bf16_f32 %s, %s, %s" % (v(q + 2), v(x + 2), v(x + 3)))
                o = " offset:%d" % (64 * ct) if ct else ""
                a("buffer_store_dwordx4 %s, %s, %s, %s offen%s sc0 sc1" % (
                    v(q, 4), v(vA0), s(R_WS, 4), s(sT2 if ht else sT1), o))
                n += 1
        self.stamp(12)
        self.allsum_g(L0, 198)
        a("v_cndmask_b32 v204, %s, %s, %s" % (v(M0), v(M0 + 1), s(sMSK, 2)))
        a("v_mov_b32 v205, %s" % s(sTAG))
        a("v_mov_b32 v206, %s" % v(L0))
        a("v_mov_b32 v207, %s" % s(sTAG))
        a("v_lshlrev_b32 %s, %d, %s" % (v(vA1), 9 + NH, v(vA1)))
        a("s_lshr_b32 %s, %s, 1" % (s(sT1), s(sW)))
        a("s_lshl_b32 %s, %s, %d" % (s(sT1), s(sT1), 13 + NH))
        a("s_and_b32 %s, %s, 1" % (s(sT2), s(sW)))
        a("s_lshl_b32 %s, %s, 4" % (s(sT2), s(sT2)))
        a("s_add_u32 %s, %s, %s" % (s(sT1), s(sT1), s(sT2)))
        a("s_lshl_b32 %s, s2, 5" % s(sT2))
        a("s_add_u32 %s, %s, %s" % (s(sT1), s(sT1), s(sT2)))
        a("s_add_u32 %s, %s, 0x%x" % (s(sT1), s(sT1), WS_ML))
        a("s_mov_b64 exec, 0xffff")
        a("buffer_store_dwordx4 v[204:207], %s, %s, %s offen sc0 sc1" % (v(vA1), s(R_WS, 4), s(sT1)))
        a("s_mov_b64 exec, -1")
        NT = 32 // NH
        self.uv_loads(min(c.uv0, NT), NT)
        self.stamp(8)
        a("s_lshr_b32 %s, s2, %d" % (s(sB), NH - 1))
        a("s_lshl_b32 %s, %s, %d" % (s(sX1), s(sB), 9 + NH))
        a("s_add_u32 %s, %s, 0x%x" % (s(sX1), s(sX1), WS_ML))
        MR = [200, 210][:NH]

        def issue():
            for h in range(NH):
                o = " offset:1024" if h else ""
                a("buffer_load_dwordx4 %s, %s, %s, %s offen%s sc1" % (v(MR[h], 4), v(vO16), s(R_WS, 4), s(sX1), o))

        def check():
            self.tagcheck(204, [m + j for m in MR for j in (1, 3)])
            a("v_cmp_ne_u32 vcc, 0, v204")

        self.poll("ml", issue, check)
        self.stamp(9)
        SP = 2 * NH
        LS = 6 - NH
        a("v_lshrrev_b32 %s, %d, %s" % (v(vA0), LS, v(vL)))
        a("v_lshlrev_b32 %s, 11, %s" % (v(vA1), v(vA0)))
        a("v_and_b32 %s, %d, %s" % (v(vA2), (1 << LS) - 1, v(vL)))
        a("v_lshlrev_b32 %s, 4, %s" % (v(vA2), v(vA2)))
        a("v_add_u32 v208, %s, %s" % (v(vA1), v(vA2)))
        a("v_lshlrev_b32 v209, 3, %s" % v(vA0))
        a("s_lshl_b32 %s, %s, %d" % (s(sX1), s(sB), HS))
        a("s_lshl_b32 %s, %s, %d" % (s(sT2), s(sW), 10 - NH))
        a("s_add_u32 %s, %s, %s" % (s(sX1), s(sX1), s(sT2)))
        if NH == 2:
            a("s_and_b32 %s, s2, 1" % s(sT2))
            a("s_lshl_b32 %s, %s, 10" % (s(sT2), s(sT2)))
            a("s_add_u32 %s, %s, %s" % (s(sX1), s(sX1), s(sT2)))
        a("s_add_u32 %s, %s, 0x%x" % (s(sX1), s(sX1), WS_X3))

        def issue3():
            a("s_mov_b32 %s, %s" % (s(sT1), s(sX1)))
            for i in range(16):
                a("buffer_load_dwordx4 %s, v208, %s, %s offen sc1" % (v(40 + 4 * i, 4), s(R_WS, 4), s(sT1)))
                if i < 15:
                    a("s_add_u32 %s, %s, %d" % (s(sT1), s(sT1), 2048 * SP))

        def check3():
            self.tagcheck(204, [40 + 4 * i + j for i in range(16) for j in (1, 3)])
            a("v_cmp_ne_u32 vcc, 0, v204")

        def weights():
            if NH == 1:
                a("v_mov_b32 v204, v200")
            else:
                a("v_max_f32 v204, v200, v210")
            self.allsum_row(204, "v_max_f32")
            self.allsum_g(204, 205, "v_max_f32")
            for m in MR:
                a("v_sub_f32 %s, %s, v204" % (v(m), v(m)))
            for m in MR:
                a("v_exp_f32 %s, %s" % (v(m), v(m)))
            a("v_mul_f32 v204, v200, v202")
            if NH == 2:
                a("v_fmac_f32 v204, v210, v212")
            self.allsum_row(204)
            self.allsum_g(204, 205)
            a("v_rcp_f32 v204, v204")
            for m in MR:
                a("v_mul_f32 %s, %s, v204" % (v(m), v(m)))
            for i in range(16):
                a("v_add_u32 %s, %d, v209" % (v(168 + i), (8 * SP * i) & 255))
            for i in range(16):
                a("ds_bpermute_b32 %s, %s, %s" % (v(168 + i), v(168 + i), v(MR[(SP * i) >> 5])))

        self.poll("x3", issue3, check3, between=weights, first_wait=0)
        self.stamp(11)
        a("s_waitcnt lgkmcnt(0)")
        for i in range(16):
            q, wt = 40 + 4 * i, 168 + i
            for h in range(2):
                lo, hi = 112 + 4 * (i & 1) + 2 * h, 113 + 4 * (i & 1) + 2 * h
                a("v_lshlrev_b32 %s, 16, %s" % (v(lo), v(q + 2 * h)))
                a("v_and_b32 %s, 0xffff0000, %s" % (v(hi), v(q + 2 * h)))
            for h in range(2):
                lo = 112 + 4 * (i & 1) + 2 * h
                sel = "op_sel_hi:[1,0,1]" if wt % 2 == 0 else "op_sel:[0,1,0] op_sel_hi:[1,1,1]"
                wp = v(wt & ~1, 2)
                if i == 0:
                    a("v_pk_mul_f32 %s, %s, %s op_sel_hi:[1,0]" % (v(104 + 2 * h, 2), v(lo, 2), wp))
                else:
                    a("v_pk_fma_f32 %s, %s, %s, %s %s" % (v(104 + 2 * h, 2), v(lo, 2), wp, v(104 + 2 * h, 2), sel))
        for swap in ["v_permlane32_swap_b32"] + (["v_permlane16_swap_b32"] if NH == 2 else []):
            for r in range(4):
                a("v_mov_b32 %s, %s" % (v(108 + r), v(104 + r)))
            for r in range(4):
                a("%s %s, %s" % (swap, v(104 + r), v(108 + r)))
            for r in range(4):
                a("v_add_f32 %s, %s, %s" % (v(104 + r), v(104 + r), v(108 + r)))
        for r in range(4):
            a("v_cvt_pk_bf16_f32 %s, %s, %s" % (v(104 + r), v(104 + r), v(104 + r)))
        a("s_lshl_b32 %s, %s, 9" % (s(sT1), s(sW)))
        a("s_add_u32 %s, %s, %d" % (s(sT1), s(sT1), LT))
        a("v_add_u32 %s, %s, %s" % (v(vA0), s(sT1), v(vA2)))
        a("ds_write_b128 %s, v[104:107]" % v(vA0))
        self.a_gemv()

    def a_gemv(self):
        a, c = self.a, self.c
        NT = 32 // self.NH
        a("v_lshrrev_b32 %s, 4, %s" % (v(vA1), v(vL)))
        a("v_lshlrev_b32 %s, 2, %s" % (v(vA1), v(vA1)))
        a("v_add_u32 %s, %s, %s" % (v(vA1), s(sT1), v(vA1)))
        for t in range(0, NT, 2):
            a("ds_read2_b32 %s, %s offset0:%d offset1:%d" % (v(40 + t, 2), v(vA1), 4 * t, 4 * t + 4))
        for t in range(NT):
            if t % 2 == 0:
                a("s_waitcnt lgkmcnt(%d)" % (NT // 2 - 1 - t // 2))
            self.delta_mfma(108, ar(128 + 4 * t, 4), 40 + t, 112 + 4 * (t & 1), t == 0)
        a("v_lshrrev_b32 %s, 4, %s" % (v(vA0), v(vL)))
        a("v_lshlrev_b32 %s, 9, %s" % (v(vA0), v(vA0)))
        a("v_and_b32 %s, 7, %s" % (v(vA1), v(vL)))
        a("v_lshlrev_b32 %s, 4, %s" % (v(vA1), v(vA1)))
        a("s_lshl_b32 %s, %s, 2" % (s(sT1), s(sW)))
        a("s_add_u32 %s, %s, %d" % (s(sT1), s(sT1), LR))
        a("v_add3_u32 %s, %s, %s, %s" % (v(vA0), v(vA0), v(vA1), s(sT1)))
        for r in range(4):
            a("ds_write_b32 %s, %s offset:%d" % (v(vA0), v(108 + r), 128 * r))
        a("s_waitcnt lgkmcnt(0)")
        a("s_barrier")
        a("s_cmp_ge_u32 %s, 2" % s(sW))
        a("s_cbranch_scc1 L_a_done")
        a("s_lshl_b32 %s, %s, 10" % (s(sT1), s(sW)))
        a("s_add_u32 %s, %s, %d" % (s(sT1), s(sT1), LR))
        a("v_add_u32 %s, %s, %s" % (v(vA0), s(sT1), v(vO16)))
        a("ds_read_b128 v[40:43], %s" % v(vA0))
        a("s_lshl_b32 %s, s2, 10" % s(sT1))
        a("s_lshl_b32 %s, %s, 9" % (s(sT2), s(sW)))
        a("s_add_u32 %s, %s, %s" % (s(sT1), s(sT1), s(sT2)))
        a("s_add_u32 %s, %s, 0x%x" % (s(sT1), s(sT1), WS_X4A))
        a("v_lshlrev_b32 %s, 3, %s" % (v(vA1), v(vL)))
        a("s_waitcnt lgkmcnt(0)")
        a("v_add_f32 v40, v40, v41")
        a("v_add_f32 v42, v42, v43")
        a("v_add_f32 v40, v40, v42")
        a("v_mov_b32 v41, %s" % s(sTAG))
        a("buffer_store_dwordx2 v[40:41], %s, %s, %s offen sc0 sc1" % (v(vA1), s(R_WS, 4), s(sT1)))
        a.label("L_a_done")
        self.stamp(10)
        self.end()

    def build(self):
        a = self.a
        self.prologue()
        self.q_phase()
        self.q_gather()
        self.b_main()
        self.tail()
        self.a_main()
        a.label("L_exit")
        a("s_endpgm")
        a.label("L_codeend")
        body = a.finalize()
        head = open(os.path.join(os.path.dirname(os.path.abspath(__file__)), "header.txt")).read()
        head = head.replace("@LDS@", str(LDS_BYTES))
        if self.c.xnt & 1:
            body = body.replace(" sc0 sc1\n", " sc0 sc1 nt\n")
        if self.c.xnt & 2:
            body = body.replace(" sc1\n", " sc1 nt\n").replace(" sc0 sc1 nt\n", " sc0 sc1\n" if not self.c.xnt & 1 else " sc0 sc1 nt\n")
        return head + body + FOOTER


FOOTER = """.section .rodata,"a"
.p2align 6
.amdhsa_kernel %s_kernel
  .amdhsa_next_free_vgpr 512
  .amdhsa_next_free_sgpr 102
  .amdhsa_accum_offset 256
  .amdhsa_group_segment_fixed_size 0
  .amdhsa_kernarg_size 120
  .amdhsa_user_sgpr_count 2
  .amdhsa_user_sgpr_kernarg_segment_ptr 1
  .amdhsa_system_sgpr_workgroup_id_x 1
.end_amdhsa_kernel
""" % NAME


def main():
    p = argparse.ArgumentParser()
    p.add_argument("-o", default="cdna_kernels/%s.s" % NAME)
    p.add_argument("--nq", type=int, default=8)
    p.add_argument("--nt", default="nt")
    p.add_argument("--debug", action="store_true")
    p.add_argument("--na", type=int, default=64)
    p.add_argument("--uv0", type=int, default=16)
    p.add_argument("--t0", type=int, default=20)
    p.add_argument("--bstamp", action="store_true")
    p.add_argument("--xnt", type=int, default=0)
    p.add_argument("--lfirst", type=int, default=1)
    p.add_argument("--local", type=int, default=1)
    p.add_argument("--dyn", type=int, default=1)
    p.add_argument("--x3u", type=int, default=1)
    p.add_argument("--sblk", type=int, default=16)
    p.add_argument("--dsplit", default="2,3,3")
    p.add_argument("--elapsed", action="store_true")
    p.add_argument("--no-prefetch", dest="prefetch", action="store_false")
    p.add_argument("--spin", type=lambda x: int(x, 0), default=0x2000)
    cfg = p.parse_args()
    text = Gen(cfg).build()
    open(cfg.o, "w").write(text)
    print("wrote", cfg.o, len(text), "bytes")


if __name__ == "__main__":
    main()
```

```python
import argparse
import math
import struct
import sys
import os

sys.path.insert(0, os.path.dirname(os.path.abspath(__file__)))
from asmlib import Asm

NAME = "gated_mix__compressed_kv_cla__gqa_block_cached__decode"


def f32(x):
    return "0x%08x" % struct.unpack("<I", struct.pack("<f", x))[0]


LOG2E = math.log2(math.e)
C_SCALE = LOG2E / math.sqrt(128.0)

WS_EPOCH = 0
WS_CNT = 0x8000
WS_HINT = 0x9000
WS_X1 = 0x10000
WS_X2 = 0x30000
WS_ML = 0x40000
WS_X4A = 0x50000
WS_X4B = 0x60000
WS_X4L = 0xD0000
WS_X5 = 0xE0000
WS_X3 = 0x100000
WS_DBG = 0x500000
WS_SIZE = 0x800000
EPOCH_STEP = 0x9E3779B1

LU = 131072
LQ = LU
LQA = LU
LMX = LU
LP = LU + 1024
LL = LU + 8192
LT = LU + 9216
LR = LU + 12288
LO = LU + 16384
LML = LU + 20480
LX = LU + 4096
LDS_BYTES = 163840

sID, sT, sW, sTAG, sT1, sT2 = 2, 3, 4, 5, 6, 7
P_X, P_C, P_WQA, P_UK, P_UV, P_WOA = 8, 10, 12, 14, 16, 18
P_K, P_V, P_WQB, P_WOB, P_G, P_OUT, P_WS = 22, 24, 26, 28, 30, 32, 36
R_CODE, R_X, R_QW, R_WS = 40, 44, 48, 52
R_K, R_V, R_K2, R_V2, R_TW, R_G, R_OUT = 56, 60, 64, 68, 72, 76, 80
R_C, R_UV = 60, 64
R_UK = 40
sG, sJM, sB, sHH = 84, 85, 86, 84
sOFF, sCNT, sIT, sBIAS = 87, 88, 89, 90
sX1, sT3, sTW = 91, 92, 93
sMSK = 94
sMS2 = 96
sT4, sT5 = 98, 99
sST = 100
sB2 = 20
sQT, sUS = 3, 21

vL, vO16 = 1, 6
vM = [2, 3, 4, 5]
vA0, vA1, vA2 = 7, 8, 9
vSTAMP, vDUMMY = 254, 255
vAT = 133
UKW, X1A, QU, UKS, UKQ = 56, 88, 16, 20, 24


def v(a, n=1):
    return "v%d" % a if n == 1 else "v[%d:%d]" % (a, a + n - 1)


def ar(a, n=1):
    return "a%d" % a if n == 1 else "a[%d:%d]" % (a, a + n - 1)


def s(a, n=1):
    return "s%d" % a if n == 1 else "s[%d:%d]" % (a, a + n - 1)


class Gen:
    def __init__(self, cfg):
        self.c = cfg
        self.a = Asm()
        self.uid = 0
        self.nstamp = 0
        self.NA = cfg.na
        self.NP = (256 - self.NA) // 16
        self.QB = 4096 // (4 * self.NP)
        self.QX = 4096 - self.QB * 4 * self.NP
        self.MAGIC = {14: 4682, 12: 5462}[self.NP]
        self.KEYS = 16384 // self.NA
        self.NIT = self.KEYS // 32
        self.NH = self.NA // 32

    def lab(self, base):
        self.uid += 1
        return "L_%s_%d" % (base, self.uid)

    def srd(self, r, ptr, size, off=None):
        a = self.a
        if off is None:
            a("s_mov_b32 %s, %s" % (s(r), s(ptr)))
            a("s_mov_b32 %s, %s" % (s(r + 1), s(ptr + 1)))
        else:
            a("s_add_u32 %s, %s, %s" % (s(r), s(ptr), off))
            a("s_addc_u32 %s, %s, 0" % (s(r + 1), s(ptr + 1)))
        a("s_mov_b32 %s, %s" % (s(r + 2), size))
        a("s_mov_b32 %s, 0x20000" % s(r + 3))

    def stamp(self, idx):
        if not self.c.debug:
            return
        a = self.a
        a("s_memrealtime %s" % s(sST, 2))
        a("s_waitcnt lgkmcnt(0)")
        a("v_writelane_b32 %s, %s, %d" % (v(vSTAMP), s(sST), idx))

    def stamp_it(self, phase, nph=5):
        if not self.c.debug:
            return
        a = self.a
        a("s_memrealtime %s" % s(sST, 2))
        a("s_mul_i32 s38, %s, %d" % (s(sIT), nph))
        a("s_add_u32 s38, s38, %d" % (16 + phase))
        a("s_waitcnt lgkmcnt(0)")
        a("s_mov_b32 m0, s38")
        a("v_writelane_b32 %s, %s, m0" % (v(vSTAMP), s(sST)))

    def dump_stamps(self):
        if not self.c.debug:
            return
        a = self.a
        a("s_lshl_b32 %s, %s, 2" % (s(sT1), s(sID)))
        a("s_add_u32 %s, %s, %s" % (s(sT1), s(sT1), s(sW)))
        a("s_lshl_b32 %s, %s, 8" % (s(sT1), s(sT1)))
        a("s_add_u32 %s, %s, 0x%x" % (s(sT1), s(sT1), WS_DBG))
        a("v_lshlrev_b32 %s, 2, %s" % (v(vA0), v(vL)))
        a("buffer_store_dword %s, %s, %s, %s offen" % (v(vSTAMP), v(vA0), s(R_WS, 4), s(sT1)))

    def dump(self, slot, reg):
        if not self.c.debug:
            return
        a = self.a
        a("s_lshl_b32 %s, %s, 2" % (s(sST), s(sID)))
        a("s_add_u32 %s, %s, %s" % (s(sST), s(sST), s(sW)))
        a("s_lshl_b32 %s, %s, 11" % (s(sST), s(sST)))
        a("s_add_u32 %s, %s, 0x%x" % (s(sST), s(sST), WS_DBG + 0x40000 + slot * 256))
        a("v_lshlrev_b32 v253, 2, %s" % v(vL))
        a("buffer_store_dword %s, v253, %s, %s offen" % (v(reg), s(R_WS, 4), s(sST)))

    def end(self):
        self.dump_stamps()
        self.a("s_endpgm")

    def mask64(self, reg, lo, hi=None):
        hi = lo if hi is None else hi
        self.a("s_mov_b32 %s, 0x%x" % (s(reg), lo))
        self.a("s_mov_b32 %s, 0x%x" % (s(reg + 1), hi))

    def tagcheck(self, acc, tags, first=True):
        a = self.a
        for i, t in enumerate(tags):
            if i == 0 and first:
                a("v_xor_b32 %s, %s, %s" % (v(acc), s(sTAG), v(t)))
            else:
                a("v_bitop3_b32 %s, %s, %s, %s bitop3:0xf6" % (v(acc), v(acc), v(t), s(sTAG)))

    def poll(self, name, issue, check, nwait="0", between=None, first_wait=None):
        a = self.a
        retry, ok = self.lab(name + "_retry"), self.lab(name + "_ok")
        a("s_movk_i32 %s, 0x%x" % (s(sCNT), self.c.spin))
        if between is not None:
            issue()
            between()
            a("s_waitcnt vmcnt(%d)" % first_wait)
            check()
            a("s_cbranch_vccz %s" % ok)
        a.label(retry)
        issue()
        a("s_waitcnt vmcnt(0)")
        check()
        a("s_cbranch_vccz %s" % ok)
        a("s_sub_u32 %s, %s, 1" % (s(sCNT), s(sCNT)))
        a("s_cbranch_scc0 %s" % retry)
        a.label(ok)

    def allsum_g(self, x, t, op="v_add_f32"):
        a = self.a
        a("v_mov_b32 %s, %s" % (v(t), v(x)))
        a("v_permlane16_swap_b32 %s, %s" % (v(x), v(t)))
        a("%s %s, %s, %s" % (op, v(x), v(x), v(t)))
        a("v_mov_b32 %s, %s" % (v(t), v(x)))
        a("v_permlane32_swap_b32 %s, %s" % (v(x), v(t)))
        a("%s %s, %s, %s" % (op, v(x), v(x), v(t)))

    def allsum_row(self, x, op="v_add_f32"):
        a = self.a
        o = op + "_dpp"
        for m in ("row_ror:8", "quad_perm:[1,0,3,2]", "quad_perm:[2,3,0,1]", "row_half_mirror"):
            a("%s %s, %s, %s %s row_mask:0xf bank_mask:0xf" % (o, v(x), v(x), v(x), m))

    def delta_mfma(self, acc, adata, dup, btmp, first):
        a = self.a
        for i in range(4):
            a("v_and_b32 %s, %s, %s" % (v(btmp + i), v(vM[i]), v(dup)))
        a("v_mfma_f32_16x16x32_bf16 %s, %s, %s, %s" % (v(acc, 4), adata, v(btmp, 4),
                                                      "0" if first else v(acc, 4)))

    def prologue(self):
        a, c = self.a, self.c
        a("s_cmp_ge_u32 s2, 0x100")
        a("s_cbranch_scc1 L_exit")
        if c.elapsed:
            a("s_memrealtime s[38:39]")
        a("s_load_dwordx16 s[8:23], s[0:1], 0x0")
        a("s_load_dwordx8 s[24:31], s[0:1], 0x40")
        a("s_load_dwordx4 s[32:35], s[0:1], 0x60")
        a("s_load_dwordx2 s[36:37], s[0:1], 0x70")
        if c.prefetch:
            a("s_getpc_b64 %s" % s(R_CODE, 2))
            a.label("L_pc")
            a("s_mov_b32 %s, L_codeend-L_pc" % s(R_CODE + 2))
            a("s_mov_b32 %s, 0x20000" % s(R_CODE + 3))
            a("s_lshr_b32 %s, s2, 6" % s(sT))
            a("s_lshl_b32 %s, %s, 14" % (s(sT), s(sT)))
            a("v_lshlrev_b32 %s, 6, v0" % v(vA0))
            a("v_add_u32 %s, %s, %s" % (v(vA0), s(sT), v(vA0)))
            a("buffer_load_dword %s, %s, %s, 0 offen" % (v(vDUMMY), v(vA0), s(R_CODE, 4)))
        a("v_and_b32 %s, 63, v0" % v(vL))
        a("v_lshrrev_b32 %s, 6, v0" % v(vA1))
        a("v_lshlrev_b32 %s, 4, %s" % (v(vO16), v(vL)))
        a("v_readfirstlane_b32 %s, %s" % (s(sW), v(vA1)))
        if c.debug:
            a("v_mov_b32 %s, 0" % v(vSTAMP))
        if c.local:
            a("s_lshr_b32 %s, s2, 3" % s(sT1))
            a("s_and_b32 %s, %s, 16" % (s(sQT), s(sT1)))
            a("s_lshl_b32 %s, %s, 3" % (s(sQT), s(sQT)))
            a("s_and_b32 %s, %s, 15" % (s(sT1), s(sT1)))
            a("s_add_u32 %s, %s, %s" % (s(sQT), s(sQT), s(sT1)))
            a("s_and_b32 %s, s2, 7" % s(sT1))
            a("s_lshl_b32 %s, %s, 4" % (s(sT1), s(sT1)))
            a("s_add_u32 %s, %s, %s" % (s(sQT), s(sQT), s(sT1)))
        else:
            a("s_mov_b32 %s, s2" % s(sQT))
        a("s_and_b32 %s, %s, 1" % (s(sT1), s(sQT)))
        a("s_mul_i32 %s, %s, 288" % (s(sT1), s(sT1)))
        a("s_mul_i32 %s, %s, 72" % (s(sT2), s(sW)))
        a("s_add_u32 %s, %s, %s" % (s(sT1), s(sT1), s(sT2)))
        a("v_lshrrev_b32 %s, 3, %s" % (v(vA1), v(vL)))
        a("v_add_u32 %s, %s, %s" % (v(vA0), s(sT1), v(vA1)))
        a("v_lshlrev_b32 %s, 1, %s" % (v(vA0), v(vA0)))
        a("v_and_b32 %s, 7, %s" % (v(vA2), v(vL)))
        a("v_lshlrev_b32 %s, 4, %s" % (v(vA2), v(vA2)))
        a("v_lshlrev_b32 %s, 13, %s" % (v(vA1), v(vA1)))
        a("v_add_u32 %s, %s, %s" % (v(vA1), v(vA1), v(vA2)))
        a("s_lshl_b32 %s, %s, 13" % (s(sOFF), s(sT1)))
        a("s_lshr_b32 %s, %s, 1" % (s(sT2), s(sQT)))
        a("s_and_b32 %s, %s, 63" % (s(sT2), s(sT2)))
        a("s_lshl_b32 %s, %s, 7" % (s(sT2), s(sT2)))
        a("s_add_u32 %s, %s, %s" % (s(sOFF), s(sOFF), s(sT2)))
        a("s_waitcnt lgkmcnt(0)")
        a("s_load_dword %s, %s, 0x%x" % (s(sTAG), s(P_WS, 2), WS_EPOCH))
        self.srd(R_X, P_X, "1152")
        if c.dyn:
            self.srd(R_WS, P_WS, "0x%x" % WS_SIZE)
            noinit = self.lab("cnt")
            a("s_and_b32 %s, %s, 0x87" % (s(sT1), s(sQT)))
            a("s_lshl_b32 %s, %s, 8" % (s(sT2), s(sW)))
            a("s_or_b32 %s, %s, %s" % (s(sT1), s(sT1), s(sT2)))
            a("s_cmp_lg_u32 %s, 0x80" % s(sT1))
            a("s_cbranch_scc1 %s" % noinit)
            a("s_bfe_u32 %s, %s, 0x40003" % (s(sT1), s(sQT)))
            a("s_mul_i32 %s, %s, %d" % (s(sT1), s(sT1), c.cstride))
            a("s_add_u32 %s, %s, 0x%x" % (s(sT1), s(sT1), WS_CNT))
            a("v_mov_b32 %s, 0" % v(vA2))
            a("s_mov_b64 exec, 1")
            a("buffer_store_dword %s, %s, %s, %s offen sc0 sc1" % (v(vA2), v(vA2), s(R_WS, 4), s(sT1)))
            a("s_mov_b64 exec, -1")
            a.label(noinit)
            if c.mlw == 2:
                nohint = self.lab("hint")
                a("s_lshl_b32 %s, %s, 8" % (s(sT1), s(sW)))
                a("s_or_b32 %s, %s, %s" % (s(sT1), s(sT1), s(sQT)))
                a("s_cmp_lg_u32 %s, 0" % s(sT1))
                a("s_cbranch_scc1 %s" % nohint)
                a("s_mov_b32 %s, 0x%x" % (s(sT1), WS_HINT))
                a("v_lshlrev_b32 v10, 8, %s" % v(vL))
                a("v_mov_b32 v11, 0")
                a("s_mov_b64 exec, 0xff")
                a("buffer_store_dword v11, v10, %s, %s offen sc0 sc1" % (s(R_WS, 4), s(sT1)))
                a("s_mov_b64 exec, -1")
                a.label(nohint)
        if c.local:
            a("s_and_b32 %s, s2, 7" % s(sT1))
            a("s_lshl_b32 %s, %s, 5" % (s(sT1), s(sT1)))
            a("s_lshr_b32 %s, s2, 3" % s(sUS))
            a("s_add_u32 %s, %s, %s" % (s(sUS), s(sUS), s(sT1)))
        else:
            a("s_mov_b32 %s, s2" % s(sUS))
        a("s_cmp_ge_u32 %s, 0x80" % s(sQT))
        a("s_cselect_b32 %s, %s, %s" % (s(R_QW), s(P_WQB), s(P_WQA)))
        a("s_cselect_b32 %s, %s, %s" % (s(R_QW + 1), s(P_WQB + 1), s(P_WQA + 1)))
        a("s_mov_b32 %s, 4718592" % s(R_QW + 2))
        a("s_mov_b32 %s, 0x20000" % s(R_QW + 3))
        for t in range(9):
            a("buffer_load_ushort %s, %s, %s, 0 offen offset:%d" % (v(204 + t), v(vA0), s(R_X, 4), 16 * t))
        for t in range(9):
            a("buffer_load_dwordx4 %s, %s, %s, %s offen %s" % (v(168 + 4 * t, 4), v(vA1), s(R_QW, 4), s(sOFF), c.nt))
            if t < 8:
                a("s_add_u32 %s, %s, 0x10000" % (s(sOFF), s(sOFF)))
        self.srd(R_UK, P_UK, "4194304")
        a("v_lshrrev_b32 %s, 4, %s" % (v(vA0), v(vL)))
        a("v_lshlrev_b32 %s, 15, %s" % (v(vA0), v(vA0)))
        a("v_and_b32 %s, 15, %s" % (v(vA2), v(vL)))
        a("v_lshlrev_b32 %s, 4, %s" % (v(vA2), v(vA2)))
        a("v_add_u32 %s, %s, %s" % (v(vA0), v(vA0), v(vA2)))
        a("s_and_b32 %s, %s, 7" % (s(sT1), s(sUS)))
        a("s_lshl_b32 %s, %s, 2" % (s(sT1), s(sT1)))
        a("s_add_u32 %s, %s, %s" % (s(sT1), s(sT1), s(sW)))
        a("s_lshl_b32 %s, %s, 17" % (s(sT1), s(sT1)))
        a("s_lshr_b32 %s, %s, 3" % (s(sT2), s(sUS)))
        a("s_lshl_b32 %s, %s, 8" % (s(sT2), s(sT2)))
        a("s_add_u32 %s, %s, %s" % (s(sT1), s(sT1), s(sT2)))
        for t in range(4):
            a("buffer_load_dwordx4 %s, %s, %s, %s offen %s" % (v(UKW + 4 * t, 4), v(vA0), s(R_UK, 4), s(sT1), c.nt))
            if t < 3:
                a("s_add_u32 %s, %s, 0x2000" % (s(sT1), s(sT1)))
        if not c.dyn:
            self.srd(R_WS, P_WS, "0x%x" % WS_SIZE)
        self.stamp(0)
        a("s_cmp_lt_u32 s2, %d" % self.NA)
        a("s_cbranch_scc1 L_a_pre")
        self.b_pre()
        a("s_branch L_q")
        a.label("L_a_pre")
        self.a_pre()
        a.label("L_q")

    def b_pre(self):
        a, c = self.a, self.c
        a("s_sub_u32 %s, s2, %d" % (s(sB), self.NA))
        if c.local:
            a("s_lshr_b32 %s, %s, 3" % (s(sJM), s(sB)))
            a("s_and_b32 %s, s2, 7" % s(sG))
            a("s_lshl_b32 %s, %s, 1" % (s(sG), s(sG)))
            a("s_cmp_ge_u32 %s, %d" % (s(sJM), self.NP))
            a("s_cselect_b32 %s, %d, 0" % (s(sT1), self.NP))
            a("s_addc_u32 %s, %s, 0" % (s(sG), s(sG)))
            a("s_sub_u32 %s, %s, %s" % (s(sJM), s(sJM), s(sT1)))
            a("s_mul_i32 %s, %s, %d" % (s(sB), s(sG), self.NP))
            a("s_add_u32 %s, %s, %s" % (s(sB), s(sB), s(sJM)))
        else:
            a("s_mul_i32 %s, %s, %d" % (s(sG), s(sB), self.MAGIC))
            a("s_lshr_b32 %s, %s, 16" % (s(sG), s(sG)))
            a("s_mul_i32 %s, %s, %d" % (s(sT1), s(sG), self.NP))
            a("s_sub_u32 %s, %s, %s" % (s(sJM), s(sB), s(sT1)))
        a("s_lshl_b32 %s, %s, 2" % (s(sT1), s(sJM)))
        a("s_add_u32 %s, %s, %s" % (s(sT1), s(sT1), s(sW)))
        if c.dyn:
            a("s_mul_i32 %s, %s, %d" % (s(sOFF), s(sT1), c.sblk * c.nq * 1024))
            a("s_lshl_b32 %s, %s, 22" % (s(sT2), s(sG)))
            self.srd(R_K, P_K, "0x400000", s(sT2))
            self.srd(R_V, P_V, "0x400000", s(sT2))
            self.srd(R_K2, P_K, "0", s(sT2))
            self.srd(R_V2, P_V, "0", s(sT2))
            for i in range(c.nq):
                self.kv_load(40 + 4 * i, R_K, i)
            a("s_add_u32 %s, %s, 16" % (s(sX1), s(sG)))
            self.mask64(sMSK, 0xFF00FF00)
            a("s_waitcnt vmcnt(%d)" % (c.nq + 4))
            return
        a("s_mul_i32 %s, %s, %d" % (s(sT2), s(sT1), self.QB))
        a("s_min_u32 %s, %s, %d" % (s(sT3), s(sT1), self.QX))
        a("s_add_u32 %s, %s, %s" % (s(sT2), s(sT2), s(sT3)))
        a("s_lshl_b32 %s, %s, 10" % (s(sT2), s(sT2)))
        a("s_lshl_b32 %s, %s, 22" % (s(sT3), s(sG)))
        a("s_add_u32 %s, %s, %s" % (s(sT2), s(sT2), s(sT3)))
        ksz = (self.QB + 1) * 1024
        self.srd(R_K, P_K, str(ksz), s(sT2))
        self.srd(R_V, P_V, str(ksz), s(sT2))
        a("s_cmp_lt_u32 %s, %d" % (s(sT1), self.QX))
        a("s_cselect_b32 %s, %d, 0" % (s(sT3), ksz))
        a("s_cselect_b32 %s, 0, 0xff800000" % s(sBIAS))
        self.srd(R_K2, P_K, s(sT3), s(sT2))
        self.srd(R_V2, P_V, s(sT3), s(sT2))
        a("s_mov_b32 %s, %d" % (s(sT1), (self.QB - 1) * 1024))
        a("buffer_load_dwordx4 %s, %s, %s, %s offen %s" % (v(104, 4), v(vO16), s(R_K, 4), s(sT1), c.nt))
        a("buffer_load_dwordx4 %s, %s, %s, %s offen offset:1024 %s" % (v(108, 4), v(vO16), s(R_K2, 4), s(sT1), c.nt))
        a("s_mov_b32 %s, 0" % s(sOFF))
        for i in range(c.nq):
            self.kv_load(40 + 4 * i, R_K, i)
        a("s_add_u32 %s, %s, 16" % (s(sX1), s(sG)))
        self.mask64(sMSK, 0xFF00FF00)
        a("s_waitcnt vmcnt(%d)" % (c.nq + 6))

    def kv_load(self, reg, srd, i, off=None):
        a, c = self.a, self.c
        off = sOFF if off is None else off
        if i < 4:
            so = s(off)
        else:
            if i % 4 == 0:
                a("s_add_u32 %s, %s, %d" % (s(sT4), s(off), 4096 * (i // 4)))
            so = s(sT4)
        o = " offset:%d" % (1024 * (i % 4)) if i % 4 else ""
        a("buffer_load_dwordx4 %s, %s, %s, %s offen%s %s" % (v(reg, 4), v(vO16), s(srd, 4), so, o, c.nt))

    def a_pre(self):
        a, c = self.a, self.c
        self.srd(R_K, P_V, "0")
        self.srd(R_UV, P_UV, "4194304")
        self.srd(R_V2, P_V, "0")
        a("s_mul_i32 %s, s2, %d" % (s(sT2), self.KEYS * 1024))
        self.srd(R_C, P_C, str(self.KEYS * 1024), s(sT2))
        a("s_waitcnt vmcnt(4)")

    def q_phase(self):
        a, c = self.a, self.c
        self.stamp(1)
        a("v_and_b32 %s, 1, %s" % (v(vA0), v(vL)))
        a("v_lshlrev_b32 %s, 4, %s" % (v(vA0), v(vA0)))
        a("v_mov_b32 %s, 0xffff" % v(vA1))
        a("v_lshlrev_b32 %s, %s, %s" % (v(vA1), v(vA0), v(vA1)))
        for i in range(4):
            self.mask64(sMS2, 0x03030303 << (2 * i))
            a("v_cndmask_b32 %s, 0, %s, %s" % (v(vM[i]), v(vA1), s(sMS2, 2)))
        for t in range(9):
            a("v_lshl_or_b32 %s, %s, 16, %s" % (v(204 + t), v(204 + t), v(204 + t)))
        for t in range(9):
            self.delta_mfma(222, v(168 + 4 * t, 4), 204 + t, 214 + 4 * (t & 1), t == 0)
        a("v_lshrrev_b32 %s, 4, %s" % (v(vA0), v(vL)))
        a("v_and_b32 %s, 1, %s" % (v(vA1), v(vA0)))
        a("v_lshlrev_b32 %s, 10, %s" % (v(vA1), v(vA1)))
        a("v_lshrrev_b32 %s, 1, %s" % (v(vA0), v(vA0)))
        a("v_lshlrev_b32 %s, 2, %s" % (v(vA0), v(vA0)))
        a("v_add_u32 %s, %s, %s" % (v(vA0), v(vA0), v(vA1)))
        a("v_and_b32 %s, 7, %s" % (v(vA1), v(vL)))
        a("v_lshlrev_b32 %s, 5, %s" % (v(vA1), v(vA1)))
        a("s_lshl_b32 %s, %s, 3" % (s(sT1), s(sW)))
        a("s_add_u32 %s, %s, %d" % (s(sT1), s(sT1), LQ))
        a("v_add3_u32 %s, %s, %s, %s" % (v(vA0), v(vA0), v(vA1), s(sT1)))
        self.mask64(sMS2, 0x00FF00FF, 0xFF00FF00)
        a("s_mov_b64 exec, %s" % s(sMS2, 2))
        for r in range(4):
            a("ds_write_b32 %s, %s offset:%d" % (v(vA0), v(222 + r), 256 * r))
        a("s_mov_b64 exec, -1")
        a("s_waitcnt lgkmcnt(0)")
        a("s_add_u32 %s, %s, 0x%x" % (s(sTAG), s(sTAG), EPOCH_STEP))
        a("s_barrier")
        skip = self.lab("qpub")
        a("s_cmp_lg_u32 %s, 0" % s(sW))
        a("s_cbranch_scc1 %s" % skip)
        a("v_lshlrev_b32 %s, 5, %s" % (v(vA0), v(vL)))
        a("v_add_u32 %s, %d, %s" % (v(vA0), LQ, v(vA0)))
        a("ds_read_b128 %s, %s" % (v(226, 4), v(vA0)))
        a("ds_read_b128 %s, %s offset:16" % (v(230, 4), v(vA0)))
        a("v_bfe_u32 %s, %s, 1, 2" % (v(vA1), v(vL)))
        a("v_lshlrev_b32 %s, 10, %s" % (v(vA1), v(vA1)))
        a("v_lshrrev_b32 %s, 3, %s" % (v(vA2), v(vL)))
        a("v_lshlrev_b32 %s, 4, %s" % (v(vA2), v(vA2)))
        a("v_add_u32 %s, %s, %s" % (v(vA1), v(vA1), v(vA2)))
        a("v_and_b32 %s, 1, %s" % (v(vA2), v(vL)))
        a("v_lshlrev_b32 %s, 3, %s" % (v(vA2), v(vA2)))
        a("v_add_u32 %s, %s, %s" % (v(vA1), v(vA1), v(vA2)))
        a("s_lshr_b32 %s, %s, 3" % (s(sT1), s(sQT)))
        a("s_lshl_b32 %s, %s, 12" % (s(sT1), s(sT1)))
        a("s_bfe_u32 %s, %s, 0x10002" % (s(sT2), s(sQT)))
        a("s_lshl_b32 %s, %s, 9" % (s(sT2), s(sT2)))
        a("s_add_u32 %s, %s, %s" % (s(sT1), s(sT1), s(sT2)))
        a("s_and_b32 %s, %s, 1" % (s(sT2), s(sQT)))
        a("s_lshl_b32 %s, %s, 8" % (s(sT2), s(sT2)))
        a("s_add_u32 %s, %s, %s" % (s(sT1), s(sT1), s(sT2)))
        a("s_bfe_u32 %s, %s, 0x10001" % (s(sT2), s(sQT)))
        a("s_lshl_b32 %s, %s, 7" % (s(sT2), s(sT2)))
        a("s_add_u32 %s, %s, %s" % (s(sT1), s(sT1), s(sT2)))
        a("s_add_u32 %s, %s, 0x%x" % (s(sT1), s(sT1), WS_X1))
        a("s_waitcnt lgkmcnt(0)")
        a("v_add_f32 v226, v226, v227")
        a("v_add_f32 v228, v228, v229")
        a("v_add_f32 v230, v230, v231")
        a("v_add_f32 v232, v232, v233")
        a("v_add_f32 v226, v226, v228")
        a("v_add_f32 v230, v230, v232")
        a("v_add_f32 v226, v226, v230")
        a("v_mul_f32 v226, %s, v226" % f32(C_SCALE))
        a("v_mov_b32 v227, %s" % s(sTAG))
        a("buffer_store_dwordx2 v[226:227], %s, %s, %s offen sc0 sc1" % (v(vA1), s(R_WS, 4), s(sT1)))
        a.label(skip)
        self.stamp(2)

    def x1_issue(self, base, soff):
        self.a("buffer_load_dwordx4 %s, %s, %s, %s offen sc1" % (v(base, 4), v(vO16), s(R_WS, 4), s(soff)))

    def x1_pack(self, bases):
        a = self.a
        a("s_lshl_b32 %s, %s, 2" % (s(sT1), s(sW)))
        a("s_add_u32 %s, %s, %d" % (s(sT1), s(sT1), LX))
        a("v_add_u32 %s, %s, %s" % (v(vA0), s(sT1), v(vO16)))
        for b in bases:
            a("v_mov_b32 %s, %s" % (v(b + 1), v(b)))
            a("v_mov_b32 %s, %s" % (v(b + 3), v(b + 2)))
        for b in bases:
            a("v_permlane16_swap_b32 %s, %s" % (v(b), v(b + 1)))
            a("v_permlane16_swap_b32 %s, %s" % (v(b + 2), v(b + 3)))
        for b in bases:
            a("v_add_f32 %s, %s, %s" % (v(b), v(b), v(b + 1)))
            a("v_add_f32 %s, %s, %s" % (v(b + 2), v(b + 2), v(b + 3)))
        for b in bases:
            a("v_cvt_pk_bf16_f32 %s, %s, %s" % (v(b), v(b), v(b + 2)))
        for i, b in enumerate(bases):
            a("ds_write_b32 %s, %s offset:%d" % (v(vA0), v(b), 1024 * i))
        a("v_add_u32 %s, %d, %s" % (v(vA0), LX, v(vO16)))
        a("s_waitcnt lgkmcnt(0)")
        a("s_barrier")

    def x1_select(self, region, tmp, mask, dst0, dst1=None):
        a = self.a
        a("ds_read_b128 %s, %s offset:%d" % (v(tmp, 4), v(vA0), 1024 * region))
        a("s_waitcnt lgkmcnt(0)")
        for k in range(4):
            a("v_mov_b32 %s, %s" % (v(tmp + 4 + k), v(tmp + k)))
        for k in range(4):
            a("v_permlane32_swap_b32 %s, %s" % (v(tmp + k), v(tmp + 4 + k)))
        for k in range(4):
            a("v_cndmask_b32 %s, %s, %s, %s" % (v(dst0 + k), v(tmp + k), v(tmp + 4 + k), s(mask, 2)))
            if dst1 is not None:
                a("v_cndmask_b32 %s, %s, %s, %s" % (v(dst1 + k), v(tmp + 4 + k), v(tmp + k), s(mask, 2)))

    def uk_slice(self):
        a = self.a
        S, quad = UKS, UKQ
        a("s_bitcmp1_b32 %s, 3" % s(sUS))
        a("s_cselect_b64 %s, -1, 0" % s(sMS2, 2))
        self.x1_select(0, 242, sMS2, QU)
        for j in range(4):
            for t in range(4):
                a("v_dot2_f32_bf16 %s, %s, %s, %s" % (v(S + t), v(UKW + 4 * t + j), v(QU + j), "0" if j == 0 else v(S + t)))
        for m in ("row_ror:8", "quad_perm:[1,0,3,2]", "quad_perm:[2,3,0,1]", "row_half_mirror"):
            for t in range(4):
                a("v_add_f32_dpp %s, %s, %s %s row_mask:0xf bank_mask:0xf" % (v(S + t), v(S + t), v(S + t), m))
        a("v_cvt_pk_bf16_f32 %s, %s, %s" % (v(quad), v(S), v(S + 1)))
        a("v_cvt_pk_bf16_f32 %s, %s, %s" % (v(quad + 2), v(S + 2), v(S + 3)))
        a("v_mov_b32 %s, %s" % (v(quad + 1), s(sTAG)))
        a("v_mov_b32 %s, %s" % (v(quad + 3), s(sTAG)))
        a("s_lshl_b32 %s, %s, 8" % (s(sT1), s(sUS)))
        a("s_lshl_b32 %s, %s, 6" % (s(sT2), s(sW)))
        a("s_add_u32 %s, %s, %s" % (s(sT1), s(sT1), s(sT2)))
        a("s_add_u32 %s, %s, 0x%x" % (s(sT1), s(sT1), WS_X2))
        self.mask64(sMS2, 0x00010001)
        a("s_mov_b64 exec, %s" % s(sMS2, 2))
        a("buffer_store_dwordx4 %s, %s, %s, %s offen sc0 sc1" % (v(quad, 4), v(vL), s(R_WS, 4), s(sT1)))
        a("s_mov_b64 exec, -1")

    def q_gather(self):
        a, c = self.a, self.c
        assert c.nq <= 4
        a("s_lshr_b32 %s, %s, 4" % (s(sT5), s(sUS)))
        a("s_lshl_b32 %s, %s, 12" % (s(sT5), s(sT5)))
        a("s_lshl_b32 %s, %s, 10" % (s(sT1), s(sW)))
        a("s_add_u32 %s, %s, 0x%x" % (s(sT1), s(sT1), WS_X1))
        a("s_add_u32 %s, %s, %s" % (s(sT5), s(sT5), s(sT1)))
        a("s_cmp_lt_u32 s2, %d" % self.NA)
        a("s_cbranch_scc1 L_a_main")
        a("s_lshl_b32 %s, %s, 12" % (s(sX1), s(sX1)))
        a("s_add_u32 %s, %s, %s" % (s(sX1), s(sX1), s(sT1)))
        self.tail_setup()
        ne = 16 - c.td - c.td2
        self.tail_loads(0, min(c.t0, ne) if ne < 16 else c.t0)
        if not c.dyn:
            a("s_mov_b32 %s, %d" % (s(sT1), (self.QB - 1) * 1024))
            a("buffer_load_dwordx4 %s, %s, %s, %s offen %s" % (v(112, 4), v(vO16), s(R_V, 4), s(sT1), c.nt))
            a("buffer_load_dwordx4 %s, %s, %s, %s offen offset:1024 %s" % (v(116, 4), v(vO16), s(R_V2, 4), s(sT1), c.nt))
        for i in range(c.nq):
            self.kv_load(72 + 4 * i, R_V, i)

        def issue():
            self.x1_issue(X1A, sT5)
            self.x1_issue(X1A + 4, sX1)

        def check():
            self.tagcheck(242, [X1A + 1, X1A + 3, X1A + 5, X1A + 7])
            a("v_cmp_ne_u32 vcc, 0, v242")

        self.poll("x1", issue, check)
        self.stamp(11)
        self.x1_pack([X1A, X1A + 4])
        self.uk_slice()
        self.stamp(10)
        if ne < 16:
            self.tail_loads(min(c.t0, ne), ne)
            self.tail_loads(16, 20)
        else:
            self.tail_loads(c.t0, 20)
        if c.dyn:
            a("s_mul_i32 %s, %s, %d" % (s(sB2), s(sG), c.cstride))
            a("s_add_u32 %s, %s, 0x%x" % (s(sB2), s(sB2), WS_CNT))
            a("v_mov_b32 v134, 0")
            if c.g1:
                a("s_lshl_b32 %s, %s, 2" % (s(sT1), s(sJM)))
                a("s_add_u32 %s, %s, %s" % (s(sT1), s(sT1), s(sW)))
                a("s_sub_u32 %s, %s, %d" % (s(sT1), s(sT1), 4 * self.NP))
                a("v_mov_b32 %s, %s" % (v(vAT), s(sT1)))
            else:
                self.grab()
        self.x1_select(1, 242, sMSK, 32, 36)
        self.stamp(3)

    def b_block(self, nq, kreg, vreg, kwait, vwait, knext, vnext, masked_last=False):
        a = self.a
        SA, SB, O, M, L = 16, 24, 10, 14, 15
        for i in range(nq):
            a("s_waitcnt vmcnt(%d)" % kwait(i))
            k = kreg + 4 * i
            for j in range(4):
                a("v_dot2_f32_bf16 %s, %s, %s, %s" % (v(SA + i), v(k + j), v(32 + j), "0" if j == 0 else v(SA + i)))
                a("v_dot2_f32_bf16 %s, %s, %s, %s" % (v(SB + i), v(k + j), v(36 + j), "0" if j == 0 else v(SB + i)))
            knext(i)
        for i in range(nq):
            a("v_add_f32_dpp %s, %s, %s row_ror:8 row_mask:0xf bank_mask:0xf" % (v(SA + i), v(SB + i), v(SA + i)))
        for m in ("quad_perm:[1,0,3,2]", "quad_perm:[2,3,0,1]", "row_half_mirror"):
            for i in range(nq):
                a("v_add_f32_dpp %s, %s, %s %s row_mask:0xf bank_mask:0xf" % (v(SA + i), v(SA + i), v(SA + i), m))
        if masked_last:
            a("v_add_f32 %s, %s, %s" % (v(SA + nq - 1), s(sBIAS), v(SA + nq - 1)))
        BM, T, AL = 130, 131, 132
        a("v_max_f32 %s, %s, %s" % (v(BM), v(SA), v(SA + 1)))
        i = 2
        while i < nq:
            if i + 1 < nq:
                a("v_max3_f32 %s, %s, %s, %s" % (v(BM), v(BM), v(SA + i), v(SA + i + 1)))
                i += 2
            else:
                a("v_max_f32 %s, %s, %s" % (v(BM), v(BM), v(SA + i)))
                i += 1
        self.allsum_g(BM, T, "v_max_f32")
        a("v_max_f32 %s, %s, %s" % (v(BM), v(BM), v(M)))
        a("v_sub_f32 %s, %s, %s" % (v(AL), v(M), v(BM)))
        for i in range(nq):
            a("v_sub_f32 %s, %s, %s" % (v(SA + i), v(SA + i), v(BM)))
        a("v_exp_f32 %s, %s" % (v(AL), v(AL)))
        for i in range(nq):
            a("v_exp_f32 %s, %s" % (v(SA + i), v(SA + i)))
        a("v_mov_b32 %s, %s" % (v(M), v(BM)))
        a("v_mul_f32 %s, %s, %s" % (v(L), v(L), v(AL)))
        for r in range(4):
            a("v_mul_f32 %s, %s, %s" % (v(O + r), v(O + r), v(AL)))
        for i in range(nq):
            a("v_cvt_pk_bf16_f32 %s, %s, %s" % (v(SB + i), v(SA + i), v(SA + i)))
        for i in range(nq):
            a("v_add_f32 %s, %s, %s" % (v(L), v(L), v(SA + i)))
        for i in range(nq):
            bt = 122 + 4 * (i & 1)
            for j in range(4):
                a("v_and_b32 %s, %s, %s" % (v(bt + j), v(vM[j]), v(SB + i)))
            a("s_waitcnt vmcnt(%d)" % vwait(i))
            a("v_mfma_f32_16x16x32_bf16 %s, %s, %s, %s" % (v(O, 4), v(vreg + 4 * i, 4), v(bt, 4), v(O, 4)))
            vnext(i)

    def tail_setup(self):
        a, c = self.a, self.c
        a("s_and_b32 %s, %s, 1" % (s(sT1), s(sW)))
        a("s_lshl_b32 %s, %s, 1" % (s(sT2), s(sG)))
        a("s_add_u32 %s, %s, %s" % (s(sT1), s(sT1), s(sT2)))
        a("s_mul_i32 %s, %s, %d" % (s(sT1), s(sT1), 128 * 1152))
        a("s_lshl_b32 %s, %s, 7" % (s(sT2), s(sJM)))
        a("s_add_u32 %s, %s, %s" % (s(sTW), s(sT1), s(sT2)))
        a("s_cmp_ge_u32 %s, 2" % s(sW))
        a("s_cselect_b32 %s, %s, %s" % (s(R_TW), s(P_WOA), s(P_WOB)))
        a("s_cselect_b32 %s, %s, %s" % (s(R_TW + 1), s(P_WOA + 1), s(P_WOB + 1)))
        a("s_cmp_lt_u32 %s, 9" % s(sJM))
        a("s_cselect_b32 %s, 4718592, 0" % s(R_TW + 2))
        a("s_cselect_b32 %s, 1152, 0" % s(sT3))
        a("s_mov_b32 %s, 0x20000" % s(R_TW + 3))
        self.srd(R_G, P_G, s(sT3))
        a("s_mov_b32 %s, %s" % (s(R_X + 2), s(sT3)))
        a("v_lshrrev_b32 v250, 3, %s" % v(vL))
        a("v_mul_u32_u24 v250, 1152, v250")
        a("v_and_b32 %s, 7, %s" % (v(vA1), v(vL)))
        a("v_lshlrev_b32 %s, 4, %s" % (v(vA1), v(vA1)))
        a("v_add_u32 v250, v250, %s" % v(vA1))

    def tail_loads(self, n0, n1):
        a, c = self.a, self.c
        for t in range(n0, n1):
            if t < 16:
                a("buffer_load_dwordx4 %s, v250, %s, %s offen %s" % (v(140 + 4 * t, 4), s(R_TW, 4), s(sTW), c.nt))
                if t < 15:
                    a("s_add_u32 %s, %s, 9216" % (s(sTW), s(sTW)))
            else:
                i = t - 16
                o = " offset:1024" if i & 1 else ""
                a("buffer_load_dwordx4 %s, %s, %s, 0 offen%s" % (v(204 + 4 * i, 4), v(vO16), s(R_X if i < 2 else R_G, 4), o))

    def grab(self):
        a = self.a
        a("v_mov_b32 %s, 1" % v(vAT))
        a("s_mov_b64 exec, 1")
        if self.c.diag == 1:
            for _ in range(2):
                a("buffer_atomic_add v134, v134, %s, %s offen sc1" % (s(R_WS, 4), s(sB2)))
        a("buffer_atomic_add %s, v134, %s, %s offen sc0 sc1" % (v(vAT), s(R_WS, 4), s(sB2)))
        a("s_mov_b64 exec, -1")

    def b_main_dyn(self):
        a, c = self.a, self.c
        nq, S = c.nq, c.sblk
        assert 4096 % nq == 0
        nblk = 4096 // nq
        nstat = S * 4 * self.NP
        for r in range(4):
            a("v_mov_b32 %s, 0" % v(10 + r))
        a("v_mov_b32 v14, 0xff800000")
        a("v_mov_b32 v15, 0")
        self.stamp(4)
        loop = self.lab("b_loop")
        a("s_movk_i32 %s, %d" % (s(sIT), S - 1))
        a.label(loop)
        a("s_add_u32 %s, %s, %d" % (s(sT5), s(sOFF), nq * 1024))
        self.b_block(nq, 40, 72, lambda i: 2 * nq - 1, lambda i: 2 * nq - 1,
                     lambda i: self.kv_load(40 + 4 * i, R_K, i, sT5),
                     lambda i: self.kv_load(72 + 4 * i, R_V, i, sT5))
        a("s_mov_b32 %s, %s" % (s(sOFF), s(sT5)))
        if c.bstamp:
            self.stamp_it(0, 1)
        a("s_sub_u32 %s, %s, 1" % (s(sIT), s(sIT)))
        a("s_cmp_lg_u32 %s, 0" % s(sIT))
        a("s_cbranch_scc1 %s" % loop)
        self.stamp(14)
        if c.gearly:
            self.gate()
        dyn, last = self.lab("b_dyn"), self.lab("b_last")
        a.label(dyn)
        a("s_waitcnt vmcnt(%d)" % (2 * nq - 1))
        a("v_readfirstlane_b32 %s, %s" % (s(sT5), v(vAT)))
        if c.g1:
            a("s_add_u32 %s, %s, %d" % (s(sT5), s(sT5), 4 * self.NP))
        a("s_cmp_ge_u32 %s, %d" % (s(sT5), nblk - nstat))
        a("s_cbranch_scc1 %s" % last)
        if c.gk:
            fin = self.lab("b_fin")
            a("s_cmp_ge_u32 %s, %d" % (s(sT5), nblk - nstat - c.gk))
            a("s_cbranch_scc1 %s" % fin)
        self.grab()
        a("s_add_u32 %s, %s, %d" % (s(sT5), s(sT5), nstat))
        a("s_mul_i32 %s, %s, %d" % (s(sT5), s(sT5), nq * 1024))
        xa = 2 if c.diag == 1 else 0
        self.b_block(nq, 40, 72, lambda i: 2 * nq + xa if i == 0 else 2 * nq + xa, lambda i: 2 * nq + xa,
                     lambda i: self.kv_load(40 + 4 * i, R_K, i, sT5),
                     lambda i: self.kv_load(72 + 4 * i, R_V, i, sT5))
        if c.debug:
            a("s_add_u32 %s, %s, 1" % (s(sIT), s(sIT)))
        a("s_branch %s" % dyn)
        if c.gk:
            a.label(fin)
            a("s_add_u32 %s, %s, %d" % (s(sT5), s(sT5), nstat))
            a("s_mul_i32 %s, %s, %d" % (s(sT5), s(sT5), nq * 1024))
            self.b_block(nq, 40, 72, lambda i: 2 * nq - 1, lambda i: 2 * nq - 1,
                         lambda i: self.kv_load(40 + 4 * i, R_K, i, sT5),
                         lambda i: self.kv_load(72 + 4 * i, R_V, i, sT5))
            if c.debug:
                a("s_add_u32 %s, %s, 1" % (s(sIT), s(sIT)))
        a.label(last)
        self.stamp(5)
        if c.debug:
            a("v_writelane_b32 %s, %s, 15" % (v(vSTAMP), s(sIT)))
        ne = 16 - c.td - c.td2
        cnt = [c.td // 8 + (1 if j < c.td % 8 else 0) for j in range(8)]
        if c.tdv:
            cnt = [0] * 4 + [c.td // 4 + (1 if j < c.td % 4 else 0) for j in range(4)]
        assert nq == 4 or c.td == 0
        pos = [ne + sum(cnt[:j]) for j in range(9)]
        self.b_block(nq, 40, 72, lambda i: 2 * nq - 1 - i + sum(cnt[:i]),
                     lambda i: nq - 1 - i + sum(cnt[:nq + i]),
                     lambda i: self.tail_loads(pos[i], pos[i + 1]),
                     lambda i: self.tail_loads(pos[nq + i], pos[nq + i + 1]))
        self.stamp(6)
        if not c.gearly:
            self.gate()
        self.b_epilogue()

    def b_main(self):
        a, c = self.a, self.c
        if c.dyn:
            return self.b_main_dyn()
        nq = c.nq
        assert (self.QB - 1) % nq == 0
        nb = (self.QB - 1) // nq
        for r in range(4):
            a("v_mov_b32 %s, 0" % v(10 + r))
        a("v_mov_b32 v14, 0xff800000")
        a("v_mov_b32 v15, 0")
        self.b_block(2, 104, 112, lambda i: 63, lambda i: 63, lambda i: None, lambda i: None,
                     masked_last=True)
        self.stamp(4)
        loop = self.lab("b_loop")
        a("s_movk_i32 %s, %d" % (s(sIT), nb - 1))
        a.label(loop)
        a("s_add_u32 %s, %s, %d" % (s(sT5), s(sOFF), nq * 1024))
        self.b_block(nq, 40, 72, lambda i: 2 * nq - 1, lambda i: 2 * nq - 1,
                     lambda i: self.kv_load(40 + 4 * i, R_K, i, sT5),
                     lambda i: self.kv_load(72 + 4 * i, R_V, i, sT5))
        a("s_mov_b32 %s, %s" % (s(sOFF), s(sT5)))
        if c.bstamp:
            self.stamp_it(0, 1)
        a("s_sub_u32 %s, %s, 1" % (s(sIT), s(sIT)))
        a("s_cmp_lg_u32 %s, 0" % s(sIT))
        a("s_cbranch_scc1 %s" % loop)
        self.stamp(5)
        self.b_block(nq, 40, 72, lambda i: 2 * nq - 1 - i, lambda i: nq - 1 - i,
                     lambda i: None, lambda i: None)
        self.stamp(6)
        self.gate()
        self.b_epilogue()

    def gate(self):
        a = self.a
        G, X, Wt = 220, 204, 212
        a("v_dot2_f32_bf16 %s, %s, %s, 0" % (v(G), v(X), v(Wt)))
        for j in range(1, 8):
            a("v_dot2_f32_bf16 %s, %s, %s, %s" % (v(G), v(X + j), v(Wt + j), v(G)))
        self.allsum_row(G)
        self.allsum_g(G, 221)
        a("v_mul_f32 %s, %s, %s" % (v(G), f32(-LOG2E), v(G)))
        a("v_exp_f32 %s, %s" % (v(G), v(G)))
        a("v_add_f32 %s, 1.0, %s" % (v(G), v(G)))
        a("v_rcp_f32 %s, %s" % (v(G), v(G)))

    def b_epilogue(self):
        a, c = self.a, self.c
        O, M, L = 10, 14, 15
        self.allsum_g(L, 130)
        a("v_bfe_u32 %s, %s, 3, 1" % (v(vA0), v(vL)))
        a("v_lshlrev_b32 %s, 5, %s" % (v(vA2), v(vA0)))
        a("v_lshlrev_b32 %s, 11, %s" % (v(vA0), v(vA0)))
        a("v_lshrrev_b32 %s, 4, %s" % (v(vA1), v(vL)))
        a("v_lshlrev_b32 %s, 9, %s" % (v(vA1), v(vA1)))
        a("v_add_u32 %s, %s, %s" % (v(vA0), v(vA0), v(vA1)))
        a("v_and_b32 %s, 7, %s" % (v(vA1), v(vL)))
        a("v_lshlrev_b32 %s, 4, %s" % (v(vA1), v(vA1)))
        a("s_lshl_b32 %s, %s, 2" % (s(sT1), s(sW)))
        a("s_add_u32 %s, %s, %d" % (s(sT2), s(sT1), LO))
        a("v_add3_u32 %s, %s, %s, %s" % (v(vA0), v(vA0), v(vA1), s(sT2)))
        a("s_add_u32 %s, %s, %d" % (s(sT2), s(sT1), LML))
        a("v_add_u32 %s, %s, %s" % (v(vA2), s(sT2), v(vA2)))
        for r in range(4):
            a("ds_write_b32 %s, %s offset:%d" % (v(vA0), v(O + r), 128 * r))
        a("ds_write_b32 %s, %s" % (v(vA2), v(M)))
        a("ds_write_b32 %s, %s offset:16" % (v(vA2), v(L)))
        a("s_waitcnt lgkmcnt(0)")
        a("s_barrier")
        skip = self.lab("b_pub")
        a("s_cmp_ge_u32 %s, 2" % s(sW))
        a("s_cbranch_scc1 %s" % skip)
        a("s_lshl_b32 %s, %s, 11" % (s(sT1), s(sW)))
        a("s_add_u32 %s, %s, %d" % (s(sT1), s(sT1), LO))
        a("v_lshlrev_b32 %s, 5, %s" % (v(vA0), v(vL)))
        a("v_add_u32 %s, %s, %s" % (v(vA0), s(sT1), v(vA0)))
        a("s_lshl_b32 %s, %s, 5" % (s(sT1), s(sW)))
        a("s_add_u32 %s, %s, %d" % (s(sT1), s(sT1), LML))
        a("v_mov_b32 %s, %s" % (v(vA1), s(sT1)))
        a("ds_read_b128 v[40:43], %s" % v(vA1))
        a("ds_read_b128 v[44:47], %s offset:16" % v(vA1))
        a("ds_read_b128 v[48:51], %s" % v(vA0))
        a("ds_read_b128 v[52:55], %s offset:16" % v(vA0))
        a("s_lshl_b32 %s, %s, %d" % (s(sT1), s(sB), 11 - c.x4c))
        a("s_lshl_b32 %s, %s, %d" % (s(sT2), s(sW), 10 - c.x4c))
        a("s_add_u32 %s, %s, %s" % (s(sT1), s(sT1), s(sT2)))
        a("s_add_u32 %s, %s, 0x%x" % (s(sT1), s(sT1), WS_X4B))
        a("s_lshl_b32 %s, %s, 1" % (s(sT2), s(sB)))
        a("s_add_u32 %s, %s, %s" % (s(sT2), s(sT2), s(sW)))
        a("s_lshl_b32 %s, %s, 7" % (s(sT2), s(sT2)))
        a("s_add_u32 %s, %s, 0x%x" % (s(sT2), s(sT2), WS_X4L))
        a("s_waitcnt lgkmcnt(2)")
        a("v_max3_f32 v56, v40, v41, v42")
        a("v_max_f32 v56, v56, v43")
        for i in range(4):
            a("v_sub_f32 %s, %s, v56" % (v(40 + i), v(40 + i)))
        for i in range(4):
            a("v_exp_f32 %s, %s" % (v(40 + i), v(40 + i)))
        a("v_mul_f32 v57, v40, v44")
        for i in range(1, 4):
            a("v_fmac_f32 v57, %s, %s" % (v(40 + i), v(44 + i)))
        a("s_waitcnt lgkmcnt(0)")
        a("v_mul_f32 v58, v40, v48")
        a("v_mul_f32 v60, v40, v52")
        for i in range(1, 4):
            a("v_fmac_f32 v58, %s, %s" % (v(40 + i), v(48 + i)))
            a("v_fmac_f32 v60, %s, %s" % (v(40 + i), v(52 + i)))
        a("v_rcp_f32 v62, v57")
        a("v_log_f32 v63, v57")
        a("v_mov_b32 v59, %s" % s(sTAG))
        a("v_mov_b32 v61, %s" % s(sTAG))
        a("v_mul_f32 v58, v58, v62")
        a("v_mul_f32 v60, v60, v62")
        a("v_add_f32 v64, v56, v63")
        a("v_mov_b32 v65, %s" % s(sTAG))
        if c.x4c:
            a("v_cvt_pk_bf16_f32 v58, v58, v60")
            a("v_lshlrev_b32 %s, 3, %s" % (v(vA1), v(vL)))
            a("buffer_store_dwordx2 v[58:59], %s, %s, %s offen sc0 sc1" % (v(vA1), s(R_WS, 4), s(sT1)))
        else:
            a("buffer_store_dwordx4 v[58:61], %s, %s, %s offen sc0 sc1" % (v(vO16), s(R_WS, 4), s(sT1)))
        a("v_mov_b32 %s, 0" % v(vA0))
        a("s_mov_b64 exec, 1")
        a("buffer_store_dwordx2 v[64:65], %s, %s, %s offen sc0 sc1" % (v(vA0), s(R_WS, 4), s(sT2)))
        a("s_mov_b64 exec, -1")
        a.label(skip)
        self.stamp(7)
        a("s_cmp_lt_u32 %s, 9" % s(sJM))
        a("s_cbranch_scc1 L_tail")
        a("s_cmp_lg_u32 %s, 9" % s(sJM))
        a("s_cbranch_scc1 L_done")
        a("s_cmp_ge_u32 %s, 9" % s(sG))
        a("s_cbranch_scc1 L_done")
        a("s_cmp_lg_u32 %s, 0" % s(sW))
        a("s_cbranch_scc1 L_done")
        self.final()
        a.label("L_done")
        self.end()

    def final(self):
        a, c = self.a, self.c
        a("s_lshl_b32 %s, %s, 13" % (s(sT1), s(sG)))
        a("s_add_u32 %s, %s, 0x%x" % (s(sX1), s(sT1), WS_X5))
        a("v_and_b32 %s, 31, %s" % (v(vA0), v(vL)))
        a("v_lshlrev_b32 %s, 4, %s" % (v(vA0), v(vA0)))
        a("v_lshrrev_b32 %s, 5, %s" % (v(vA1), v(vL)))
        a("v_lshlrev_b32 %s, 9, %s" % (v(vA1), v(vA1)))
        a("v_add_u32 %s, %s, %s" % (v(vA0), v(vA0), v(vA1)))
        self.srd(R_OUT, P_OUT, "1152")

        def issue():
            for i in range(8):
                if i == 4:
                    a("s_add_u32 %s, %s, 4096" % (s(sT2), s(sX1)))
                a("buffer_load_dwordx4 %s, %s, %s, %s offen offset:%d sc1" % (
                    v(40 + 4 * i, 4), v(vA0), s(R_WS, 4), s(sX1 if i < 4 else sT2), 1024 * (i % 4)))

        def check():
            self.tagcheck(72, [40 + 4 * i + j for i in range(8) for j in (1, 3)])
            a("v_cmp_ne_u32 vcc, 0, v72")

        self.poll("x5", issue, check)
        self.stamp(12)
        for j in (0, 2):
            for i in (0, 2, 4, 6):
                a("v_add_f32 %s, %s, %s" % (v(40 + 4 * i + j), v(40 + 4 * i + j), v(44 + 4 * i + j)))
        for j in (0, 2):
            a("v_add_f32 %s, %s, %s" % (v(40 + j), v(40 + j), v(48 + j)))
            a("v_add_f32 %s, %s, %s" % (v(56 + j), v(56 + j), v(64 + j)))
        for j in (0, 2):
            a("v_add_f32 %s, %s, %s" % (v(40 + j), v(40 + j), v(56 + j)))
        a("v_mov_b32 v44, v40")
        a("v_mov_b32 v45, v42")
        a("v_permlane32_swap_b32 v40, v44")
        a("v_permlane32_swap_b32 v42, v45")
        a("v_add_f32 v40, v40, v44")
        a("v_add_f32 v42, v42, v45")
        a("v_cvt_pk_bf16_f32 v40, v40, v42")
        a("v_lshlrev_b32 %s, 2, %s" % (v(vA0), v(vL)))
        a("s_lshl_b32 %s, %s, 7" % (s(sT1), s(sG)))
        a("s_mov_b32 exec_hi, 0")
        a("buffer_store_dword v40, %s, %s, %s offen" % (v(vA0), s(R_OUT, 4), s(sT1)))
        done = self.lab("fin")
        a("s_cmp_lg_u32 %s, 0" % s(sG))
        a("s_cbranch_scc1 %s" % done)
        a("v_mov_b32 v41, %s" % s(sTAG))
        a("v_mov_b32 %s, %d" % (v(vA0), WS_EPOCH))
        a("s_mov_b64 exec, 1")
        a("buffer_store_dword v41, %s, %s, 0 offen sc0 sc1" % (v(vA0), s(R_WS, 4)))
        if c.elapsed:
            a("s_memrealtime %s" % s(sST, 2))
            a("s_waitcnt lgkmcnt(0)")
            a("s_sub_u32 %s, %s, s38" % (s(sT1), s(sST)))
            a("v_mov_b32 v41, %s" % s(sT1))
            a("v_mov_b32 %s, 0" % v(vA0))
            self.srd(R_OUT, 34, "256")
            a("buffer_store_dword v41, %s, %s, 0 offen" % (v(vA0), s(R_OUT, 4)))
        a.label(done)
        a("s_mov_b64 exec, -1")
        self.stamp(13)

    def reduce_wu8(self, acc, lds, dst):
        a = self.a
        a("v_lshrrev_b32 %s, 4, %s" % (v(vA0), v(vL)))
        a("v_and_b32 %s, 1, %s" % (v(vA1), v(vA0)))
        a("v_lshlrev_b32 %s, 10, %s" % (v(vA1), v(vA1)))
        a("v_lshrrev_b32 %s, 1, %s" % (v(vA0), v(vA0)))
        a("v_lshlrev_b32 %s, 2, %s" % (v(vA0), v(vA0)))
        a("v_add_u32 %s, %s, %s" % (v(vA0), v(vA0), v(vA1)))
        a("v_and_b32 %s, 7, %s" % (v(vA1), v(vL)))
        a("v_lshlrev_b32 %s, 5, %s" % (v(vA1), v(vA1)))
        a("s_lshl_b32 %s, %s, 3" % (s(sT1), s(sW)))
        a("s_add_u32 %s, %s, %d" % (s(sT1), s(sT1), lds))
        a("v_add3_u32 %s, %s, %s, %s" % (v(vA0), v(vA0), v(vA1), s(sT1)))
        self.mask64(sMS2, 0x00FF00FF, 0xFF00FF00)
        a("s_mov_b64 exec, %s" % s(sMS2, 2))
        for r in range(4):
            a("ds_write_b32 %s, %s offset:%d" % (v(vA0), v(acc + r), 256 * r))
        a("s_mov_b64 exec, -1")
        a("s_waitcnt lgkmcnt(0)")
        a("s_barrier")

    def tail_b_compact(self, G, join2):
        a, c = self.a, self.c
        NP = self.NP
        assert NP % 2 == 0
        NL = NP // 2
        a("s_mul_i32 %s, %s, %d" % (s(sX1), s(sG), NP * 1024))
        a("s_lshl_b32 %s, %s, 9" % (s(sT1), s(sT3)))
        a("s_add_u32 %s, %s, %s" % (s(sX1), s(sX1), s(sT1)))
        a("s_add_u32 %s, %s, 0x%x" % (s(sX1), s(sX1), WS_X4B))
        a("s_mul_i32 %s, %s, %d" % (s(sT5), s(sG), NP * 256))
        a("s_lshl_b32 %s, %s, 7" % (s(sT1), s(sT3)))
        a("s_add_u32 %s, %s, %s" % (s(sT5), s(sT5), s(sT1)))
        a("s_add_u32 %s, %s, 0x%x" % (s(sT5), s(sT5), WS_X4L))
        a("v_and_b32 %s, 15, %s" % (v(vA1), v(vL)))
        a("v_min_u32 %s, %d, %s" % (v(vA1), NL - 1, v(vA1)))
        a("v_lshlrev_b32 %s, 9, %s" % (v(vA1), v(vA1)))
        a("v_lshrrev_b32 %s, 5, %s" % (v(vA0), v(vL)))
        a("v_lshl_add_u32 %s, %s, 8, %s" % (v(vA1), v(vA0), v(vA1)))
        a("v_and_b32 %s, 31, %s" % (v(vA2), v(vL)))
        a("v_lshlrev_b32 %s, 4, %s" % (v(vA2), v(vA2)))
        a("v_lshl_add_u32 %s, %s, 10, %s" % (v(vA0), v(vA0), v(vA2)))

        def issue():
            a("buffer_load_dwordx2 v[96:97], %s, %s, %s offen sc1" % (v(vA1), s(R_WS, 4), s(sT5)))
            a("s_mov_b32 %s, %s" % (s(sT2), s(sX1)))
            for i in range(NL):
                o = " offset:2048" if i & 1 else ""
                a("buffer_load_dwordx4 %s, %s, %s, %s offen%s sc1" % (v(40 + 4 * i, 4), v(vA0), s(R_WS, 4), s(sT2), o))
                if i & 1 and i < NL - 1:
                    a("s_add_u32 %s, %s, 4096" % (s(sT2), s(sT2)))

        def check():
            self.tagcheck(98, [97] + [40 + 4 * i + j for i in range(NL) for j in (1, 3)])
            a("v_cmp_ne_u32 vcc, 0, v98")

        self.poll("x4c", issue, check)
        self.stamp(8)
        a("v_mov_b32 v98, v96")
        self.allsum_row(98, "v_max_f32")
        a("v_mov_b32 v99, v98")
        a("v_permlane32_swap_b32 v98, v99")
        a("v_max_f32 v98, v98, v99")
        a("v_sub_f32 v96, v96, v98")
        a("v_exp_f32 v96, v96")
        self.mask64(sMS2, ((1 << NL) - 1) * 0x10001)
        a("v_cndmask_b32 v96, 0, v96, %s" % s(sMS2, 2))
        a("v_mov_b32 v98, v96")
        self.allsum_row(98)
        a("v_mov_b32 v99, v98")
        a("v_permlane32_swap_b32 v98, v99")
        a("v_add_f32 v98, v98, v99")
        a("v_rcp_f32 v98, v98")
        for i in range(NL):
            for k in range(2):
                q = 40 + 4 * i + 2 * k
                a("v_and_b32 %s, 0xffff0000, %s" % (v(q + 1), v(q)))
                a("v_lshlrev_b32 %s, 16, %s" % (v(q), v(q)))
        a("v_mul_f32 v96, v96, v98")
        for i in range(NL):
            for k in range(4):
                op = "v_mul_f32_dpp" if i == 0 else "v_fmac_f32_dpp"
                a("%s %s, v96, %s row_newbcast:%d row_mask:0xf bank_mask:0xf" % (op, v(100 + k), v(40 + 4 * i + k), i))
        for k in range(4):
            a("v_mov_b32 %s, %s" % (v(104 + k), v(100 + k)))
        for k in range(4):
            a("v_permlane32_swap_b32 %s, %s" % (v(100 + k), v(104 + k)))
        for k in range(4):
            a("v_add_f32 %s, %s, %s" % (v(100 + k), v(100 + k), v(104 + k)))
        for k in range(4):
            a("v_cvt_pk_bf16_f32 %s, %s, %s" % (v(100 + k), v(100 + k), v(100 + k)))
        a("s_lshl_b32 %s, %s, 9" % (s(sT1), s(sW)))
        a("s_add_u32 %s, %s, %d" % (s(sT1), s(sT1), LT))
        a("v_add_u32 %s, %s, %s" % (v(vA0), s(sT1), v(vA2)))
        a("ds_write_b128 %s, v[100:103]" % v(vA0))
        a("s_branch %s" % join2)

    def tail(self):
        a, c = self.a, self.c
        a.label("L_tail")
        self.tail_loads(16 - c.td2, 16)
        G = 220
        isa, join, join2 = self.lab("t_a"), self.lab("t_j"), self.lab("t_k")
        a("s_and_b32 %s, %s, 1" % (s(sT3), s(sW)))
        a("s_cmp_ge_u32 %s, 2" % s(sW))
        a("s_cbranch_scc1 %s" % isa)
        a("v_sub_f32 %s, 1.0, %s" % (v(G), v(G)))
        NP = self.NP
        if c.x4c:
            self.tail_b_compact(G, join2)
        a("s_mul_i32 %s, %s, %d" % (s(sX1), s(sG), NP * 2048))
        a("s_lshl_b32 %s, %s, 10" % (s(sT1), s(sT3)))
        a("s_add_u32 %s, %s, %s" % (s(sX1), s(sX1), s(sT1)))
        a("s_add_u32 %s, %s, 0x%x" % (s(sX1), s(sX1), WS_X4B))
        a("s_mul_i32 %s, %s, %d" % (s(sT5), s(sG), NP * 256))
        a("s_lshl_b32 %s, %s, 7" % (s(sT1), s(sT3)))
        a("s_add_u32 %s, %s, %s" % (s(sT5), s(sT5), s(sT1)))
        a("s_add_u32 %s, %s, 0x%x" % (s(sT5), s(sT5), WS_X4L))
        a("v_and_b32 %s, 15, %s" % (v(vA1), v(vL)))
        a("v_min_u32 %s, %d, %s" % (v(vA1), NP - 1, v(vA1)))
        a("v_lshlrev_b32 %s, 8, %s" % (v(vA1), v(vA1)))

        def issue():
            a("buffer_load_dwordx2 v[96:97], %s, %s, %s offen sc1" % (v(vA1), s(R_WS, 4), s(sT5)))
            a("s_mov_b32 %s, %s" % (s(sT2), s(sX1)))
            for i in range(NP):
                o = " offset:2048" if i & 1 else ""
                a("buffer_load_dwordx4 %s, %s, %s, %s offen%s sc1" % (v(40 + 4 * i, 4), v(vO16), s(R_WS, 4), s(sT2), o))
                if i & 1 and i < NP - 1:
                    a("s_add_u32 %s, %s, 4096" % (s(sT2), s(sT2)))

        def check():
            self.tagcheck(98, [97] + [40 + 4 * i + j for i in range(NP) for j in (1, 3)])
            a("v_cmp_ne_u32 vcc, 0, v98")

        if c.lfirst:
            def issue_l():
                a("buffer_load_dwordx2 v[96:97], %s, %s, %s offen sc1" % (v(vA1), s(R_WS, 4), s(sT5)))

            def check_l():
                self.tagcheck(98, [97])
                a("v_cmp_ne_u32 vcc, 0, v98")

            self.poll("x4l", issue_l, check_l)
        self.poll("x4b", issue, check)
        self.stamp(8)
        a("v_mov_b32 v98, v96")
        self.allsum_row(98, "v_max_f32")
        a("v_sub_f32 v96, v96, v98")
        a("v_exp_f32 v96, v96")
        self.mask64(sMS2, ((1 << NP) - 1) * 0x10001)
        a("v_cndmask_b32 v96, 0, v96, %s" % s(sMS2, 2))
        a("v_mov_b32 v98, v96")
        self.allsum_row(98)
        a("v_rcp_f32 v98, v98")
        a("v_mul_f32 v96, v96, v98")
        for i in range(NP):
            a("v_readlane_b32 %s, v96, %d" % (s(8 + i), i))
        a("v_mul_f32 v100, %s, v40" % s(8))
        a("v_mul_f32 v101, %s, v42" % s(8))
        for i in range(1, NP):
            a("v_fmac_f32 v100, %s, %s" % (s(8 + i), v(40 + 4 * i)))
            a("v_fmac_f32 v101, %s, %s" % (s(8 + i), v(42 + 4 * i)))
        a("s_branch %s" % join)
        a.label(isa)
        a("s_lshl_b32 %s, %s, 1" % (s(sX1), s(sG)))
        a("s_add_u32 %s, %s, %s" % (s(sX1), s(sX1), s(sT3)))
        NH = self.NH
        a("s_lshl_b32 %s, %s, %d" % (s(sX1), s(sX1), 9 + NH))
        a("s_add_u32 %s, %s, 0x%x" % (s(sX1), s(sX1), WS_X4A))

        def issue_a():
            for h in range(NH):
                o = " offset:1024" if h else ""
                a("buffer_load_dwordx4 %s, %s, %s, %s offen%s sc1" % (v(40 + 4 * h, 4), v(vO16), s(R_WS, 4), s(sX1), o))

        def check_a():
            self.tagcheck(98, [41 + 4 * h + j for h in range(NH) for j in (0, 2)])
            a("v_cmp_ne_u32 vcc, 0, v98")

        self.poll("x4a", issue_a, check_a)
        self.stamp(8)
        if NH == 1:
            a("v_mov_b32 v100, v40")
            a("v_mov_b32 v101, v42")
        else:
            a("v_add_f32 v100, v40, v44")
            a("v_add_f32 v101, v42, v46")
        a.label(join)
        self.dump(0, 100)
        self.dump(1, 101)
        self.dump(2, G)
        a("v_cvt_pk_bf16_f32 v100, v100, v100")
        a("v_cvt_pk_bf16_f32 v101, v101, v101")
        a("s_lshl_b32 %s, %s, 9" % (s(sT1), s(sW)))
        a("s_add_u32 %s, %s, %d" % (s(sT1), s(sT1), LT))
        a("v_lshlrev_b32 %s, 3, %s" % (v(vA0), v(vL)))
        a("v_add_u32 %s, %s, %s" % (v(vA0), s(sT1), v(vA0)))
        a("ds_write_b64 %s, v[100:101]" % v(vA0))
        a.label(join2)
        a("v_lshrrev_b32 %s, 3, %s" % (v(vA1), v(vL)))
        a("v_lshlrev_b32 %s, 2, %s" % (v(vA1), v(vA1)))
        a("v_add_u32 %s, %s, %s" % (v(vA1), s(sT1), v(vA1)))
        for t in range(0, 16, 2):
            a("ds_read2_b32 %s, %s offset0:%d offset1:%d" % (v(40 + t, 2), v(vA1), 8 * t, 8 * t + 8))
        for t in range(16):
            if t % 2 == 0:
                a("s_waitcnt lgkmcnt(%d)" % (7 - t // 2))
            self.delta_mfma(10, v(140 + 4 * t, 4), 40 + t, 122 + 4 * (t & 1), t == 0)
        for r in range(4):
            self.dump(3 + r, 10 + r)
        self.dump(7, 140)
        for r in range(4):
            a("v_mul_f32 %s, %s, %s" % (v(10 + r), v(10 + r), v(G)))
        self.reduce_wu8(10, LR, 0)
        a("s_cmp_lg_u32 %s, 0" % s(sW))
        a("s_cbranch_scc1 L_tail_done")
        a("v_lshlrev_b32 %s, 5, %s" % (v(vA0), v(vL)))
        a("v_add_u32 %s, %d, %s" % (v(vA0), LR, v(vA0)))
        a("ds_read_b128 v[40:43], %s" % v(vA0))
        a("ds_read_b128 v[44:47], %s offset:16" % v(vA0))
        a("s_lshl_b32 %s, %s, 4" % (s(sT1), s(sJM)))
        a("s_add_u32 %s, %s, %s" % (s(sT1), s(sT1), s(sG)))
        a("s_lshl_b32 %s, %s, 9" % (s(sT1), s(sT1)))
        a("s_add_u32 %s, %s, 0x%x" % (s(sT1), s(sT1), WS_X5))
        a("v_lshlrev_b32 %s, 3, %s" % (v(vA1), v(vL)))
        a("s_waitcnt lgkmcnt(0)")
        a("v_add_f32 v40, v40, v41")
        a("v_add_f32 v42, v42, v43")
        a("v_add_f32 v44, v44, v45")
        a("v_add_f32 v46, v46, v47")
        a("v_add_f32 v40, v40, v42")
        a("v_add_f32 v44, v44, v46")
        a("v_add_f32 v40, v40, v44")
        a("v_mov_b32 v41, %s" % s(sTAG))
        a("buffer_store_dwordx2 v[40:41], %s, %s, %s offen sc0 sc1" % (v(vA1), s(R_WS, 4), s(sT1)))
        a.label("L_tail_done")
        self.stamp(9)
        self.end()

    def dma_rows(self, rows):
        a, c = self.a, self.c
        sDS, sDB = sT5, sT4
        grp = None
        for i in rows:
            if i // 4 != grp:
                grp = i // 4
                if grp == 0:
                    a("s_mov_b32 m0, %s" % s(sDB))
                    so = sDS
                else:
                    a("s_add_u32 %s, %s, 4096" % (s(sT1), s(sDB)))
                    a("s_add_u32 %s, %s, 4096" % (s(sT2), s(sDS)))
                    a("s_mov_b32 m0, %s" % s(sT1))
                    so = sT2
            o = " offset:%d" % (1024 * (i % 4)) if i % 4 else ""
            a("buffer_load_dwordx4 %s, %s, %s offen%s %s lds" % (v(222 + i), s(R_C, 4), s(so), o, c.nt))

    def dma_next(self):
        a = self.a
        sDS, sDB, sDX = sT5, sT4, sT3
        a("s_add_u32 %s, %s, 0x8000" % (s(sDS), s(sDS)))
        a("s_xor_b32 %s, %s, %s" % (s(sDB), s(sDB), s(sDX)))
        a("s_xor_b32 %s, %s, 0x18000" % (s(sDX), s(sDX)))

    def uv_loads(self, t0, t1):
        a, c = self.a, self.c
        for t in range(t0, t1):
            a("buffer_load_dwordx4 %s, v250, %s, %s offen %s" % (ar(128 + 4 * t, 4), s(R_UV, 4), s(sB), c.nt))
            if t < 32 // self.NH - 1:
                a("s_add_u32 %s, %s, 0x8000" % (s(sB), s(sB)))

    def a_main(self):
        a, c = self.a, self.c
        a.label("L_a_main")
        sDS, sDB, sDX = sT5, sT4, sT3
        na, nb_, nc = [int(x) for x in c.dsplit.split(",")]
        assert na + nb_ + nc == 8
        rowsA, rowsB, rowsC = list(range(na)), list(range(na, na + nb_)), list(range(na + nb_, 8))
        a("s_mov_b32 %s, %s" % (s(sX1), s(sT5)))
        for k in range(8):
            a("v_xor_b32 %s, %d, %s" % (v(222 + k), 32 * k, v(vO16)))
        a("s_lshl_b32 %s, %s, 13" % (s(sDB), s(sW)))
        a("s_mov_b32 %s, %s" % (s(sDS), s(sDB)))
        a("s_mov_b32 %s, 0x8000" % s(sDX))
        self.dma_rows(range(8))

        def issue_q():
            self.x1_issue(X1A, sX1)

        def check_q():
            self.tagcheck(242, [X1A + 1, X1A + 3])
            a("v_cmp_ne_u32 vcc, 0, v242")

        self.poll("x1a", issue_q, check_q)
        self.stamp(3)
        self.x1_pack([X1A])
        self.uk_slice()
        self.stamp(4)
        self.dma_next()
        self.dma_rows(range(8))
        a("v_lshrrev_b32 %s, 4, %s" % (v(vA0), v(vL)))
        a("v_lshlrev_b32 %s, 13, %s" % (v(vA0), v(vA0)))
        a("v_and_b32 %s, 15, %s" % (v(vA1), v(vL)))
        a("v_lshlrev_b32 v250, 4, %s" % v(vA1))
        a("v_add_u32 v250, %s, v250" % v(vA0))
        if self.NH == 1:
            a("s_lshl_b32 %s, %s, 20" % (s(sB), s(sW)))
            a("s_lshl_b32 %s, s2, 8" % s(sT2))
        else:
            a("s_and_b32 %s, s2, 1" % s(sT2))
            a("s_lshl_b32 %s, %s, 2" % (s(sT2), s(sT2)))
            a("s_add_u32 %s, %s, %s" % (s(sB), s(sT2), s(sW)))
            a("s_lshl_b32 %s, %s, 19" % (s(sB), s(sB)))
            a("s_lshr_b32 %s, s2, 1" % s(sT2))
            a("s_lshl_b32 %s, %s, 8" % (s(sT2), s(sT2)))
        a("s_add_u32 %s, %s, %s" % (s(sB), s(sB), s(sT2)))
        a("s_lshl_b32 %s, %s, 14" % (s(sX1), s(sW)))
        a("s_add_u32 %s, %s, 0x%x" % (s(sX1), s(sX1), WS_X2))

        def issue():
            a("s_mov_b32 %s, %s" % (s(sOFF), s(sX1)))
            for i in range(16):
                o = " offset:%d" % (1024 * (i % 4)) if i % 4 else ""
                a("buffer_load_dwordx4 %s, %s, %s, %s offen%s sc1" % (v(40 + 4 * i, 4), v(vO16), s(R_WS, 4), s(sOFF), o))
                if i % 4 == 3 and i < 15:
                    a("s_add_u32 %s, %s, 4096" % (s(sOFF), s(sOFF)))

        def check():
            self.tagcheck(104, [40 + 4 * i + j for i in range(16) for j in (1, 3)])
            a("v_cmp_ne_u32 vcc, 0, v104")

        self.poll("x2", issue, check)
        self.stamp(5)
        self.dma_next()
        self.dma_rows(rowsA + rowsB)
        self.uv_loads(0, min(c.uv0, 32 // self.NH))
        a("v_lshrrev_b32 %s, 1, %s" % (v(vA0), v(vL)))
        a("v_lshlrev_b32 %s, 4, %s" % (v(vA0), v(vA0)))
        a("v_and_b32 %s, 1, %s" % (v(vA1), v(vL)))
        a("v_lshlrev_b32 %s, 3, %s" % (v(vA1), v(vA1)))
        a("s_lshl_b32 %s, %s, 13" % (s(sT1), s(sW)))
        a("s_add_u32 %s, %s, %d" % (s(sT1), s(sT1), LQA))
        a("v_add_u32 %s, %s, %s" % (v(vA0), v(vA0), v(vA1)))
        for hq in range(8):
            a("v_xor_b32 %s, %d, %s" % (v(104 + hq), 32 * hq, v(vA0)))
            a("v_add_u32 %s, %s, %s" % (v(104 + hq), s(sT1), v(104 + hq)))
        for i in range(16):
            a("v_mov_b32 %s, %s" % (v(41 + 4 * i), v(42 + 4 * i)))
        for i in range(16):
            hq, half = i >> 1, i & 1
            a("ds_write_b64 %s, %s offset:%d" % (v(104 + hq), v(40 + 4 * i, 2), hq * 1024 + half * 512))
        AQ, AT = 210, 214
        a("v_and_b32 %s, 15, %s" % (v(vA0), v(vL)))
        a("v_lshlrev_b32 %s, 10, %s" % (v(vA1), v(vA0)))
        a("v_and_b32 %s, 7, %s" % (v(vA0), v(vA0)))
        a("v_lshlrev_b32 %s, 5, %s" % (v(vA0), v(vA0)))
        a("v_lshrrev_b32 %s, 4, %s" % (v(vA2), v(vL)))
        a("v_lshlrev_b32 %s, 4, %s" % (v(vA2), v(vA2)))
        for b in range(4):
            a("v_add_u32 %s, %d, %s" % (v(AQ + b), 64 * b, v(vA2)))
            a("v_xor_b32 %s, %s, %s" % (v(AQ + b), v(AQ + b), v(vA0)))
            a("v_add_u32 %s, %s, %s" % (v(AQ + b), v(AQ + b), v(vA1)))
        a("s_waitcnt lgkmcnt(0)")
        a("s_barrier")
        a("s_lshr_b32 %s, %s, 1" % (s(sT1), s(sW)))
        a("s_lshl_b32 %s, %s, 14" % (s(sT1), s(sT1)))
        a("s_add_u32 %s, %s, %d" % (s(sT1), s(sT1), LQA))
        for b in range(4):
            a("v_add_u32 %s, %s, %s" % (v(112 + b), s(sT1), v(AQ + b)))
        for ks in range(16):
            a("ds_read_b128 %s, %s offset:%d" % (ar(4 * ks, 4), v(112 + (ks & 3)), (ks >> 2) * 256))
        a("s_and_b32 %s, %s, 1" % (s(sT1), s(sW)))
        a("s_lshl_b32 %s, %s, 14" % (s(sT1), s(sT1)))
        for b in range(4):
            a("v_add_u32 %s, %s, %s" % (v(AQ + b), s(sT1), v(AQ + b)))
        a("v_lshrrev_b32 %s, 4, %s" % (v(vA0), v(vL)))
        a("v_lshlrev_b32 %s, 2, %s" % (v(vA0), v(vA0)))
        a("v_bfe_u32 %s, %s, 2, 2" % (v(vA1), v(vL)))
        a("v_add_u32 %s, %s, %s" % (v(vA0), v(vA0), v(vA1)))
        a("v_and_b32 %s, 7, %s" % (v(vA1), v(vA0)))
        a("v_lshlrev_b32 %s, 5, %s" % (v(vA1), v(vA1)))
        a("v_lshlrev_b32 %s, 10, %s" % (v(vA0), v(vA0)))
        a("v_and_b32 %s, 3, %s" % (v(vA2), v(vL)))
        a("v_lshlrev_b32 %s, 3, %s" % (v(vA2), v(vA2)))
        a("s_lshl_b32 %s, %s, 8" % (s(sT1), s(sW)))
        a("v_add3_u32 %s, %s, %s, %s" % (v(vA0), v(vA0), v(vA2), s(sT1)))
        for ct in range(8):
            a("v_xor_b32 %s, %d, %s" % (v(AT + ct), 32 * ct, v(vA1)))
            a("v_add_u32 %s, %s, %s" % (v(AT + ct), v(AT + ct), v(vA0)))
        AMW, AMR, APW, APR = 230, 231, 232, 233
        a("v_and_b32 %s, 15, %s" % (v(vA0), v(vL)))
        a("v_lshlrev_b32 %s, 4, %s" % (v(vA0), v(vA0)))
        a("v_add_u32 %s, %d, %s" % (v(AMR), LMX, v(vA0)))
        a("s_lshr_b32 %s, %s, 1" % (s(sT1), s(sW)))
        a("s_and_b32 %s, %s, 1" % (s(sT2), s(sW)))
        a("s_lshl_b32 %s, %s, 3" % (s(sOFF), s(sT1)))
        a("s_lshl_b32 %s, %s, 2" % (s(sX1), s(sT2)))
        a("s_add_u32 %s, %s, %s" % (s(sOFF), s(sOFF), s(sX1)))
        a("v_add_u32 %s, %s, %s" % (v(AMW), s(sOFF), v(AMR)))
        a("v_add_u32 %s, %d, %s" % (v(APR), LP, v(vO16)))
        a("s_lshl_b32 %s, %s, 10" % (s(sOFF), s(sT1)))
        a("s_lshl_b32 %s, %s, 3" % (s(sX1), s(sT2)))
        a("s_add_u32 %s, %s, %s" % (s(sOFF), s(sOFF), s(sX1)))
        a("v_add_u32 %s, %s, %s" % (v(APW), s(sOFF), v(APR)))
        a("s_cmp_ge_u32 %s, 2" % s(sW))
        a("s_cselect_b64 %s, -1, 0" % s(sMSK, 2))
        ACC, OP, S8, M0, L0, AL, PO = 40, 104, 168, 176, 178, 180, 182
        for i in range(64):
            a("v_mov_b32 %s, 0" % v(ACC + i))
        a("v_mov_b32 %s, 0xff800000" % v(M0))
        a("v_mov_b32 %s, 0xff800000" % v(M0 + 1))
        a("v_mov_b32 %s, 0" % v(L0))
        a("s_waitcnt lgkmcnt(0)")
        a("s_barrier")
        self.stamp(6)
        a("s_mov_b32 %s, 0" % s(sIT))
        a("s_mov_b32 %s, 0x8000" % s(sOFF))
        loop = self.lab("a_loop")
        a.label(loop)
        self.stamp_it(0, 3)
        for ks in range(16):
            a("ds_read_b128 %s, %s offset:%d" % (v(OP + 4 * ks, 4), v(AQ + (ks & 3)), (ks >> 2) * 256))
        cpos = {(4 + 4 * i): r for i, r in enumerate(rowsC)}
        for ks in range(16):
            a("s_waitcnt lgkmcnt(%d)" % (15 - ks))
            acc = S8 + 4 * (ks & 1)
            a("v_mfma_f32_16x16x32_bf16 %s, %s, %s, %s" % (
                v(acc, 4), v(OP + 4 * ks, 4), ar(4 * ks, 4), "0" if ks < 2 else v(acc, 4)))
            if ks in cpos:
                self.dma_rows([cpos[ks]])
        T0 = 198
        for r in range(4):
            a("v_add_f32 %s, %s, %s" % (v(S8 + r), v(S8 + r), v(S8 + 4 + r)))
        a("v_max3_f32 %s, %s, %s, %s" % (v(T0), v(S8), v(S8 + 1), v(S8 + 2)))
        a("v_max_f32 %s, %s, %s" % (v(T0), v(T0), v(S8 + 3)))
        self.allsum_g(T0, T0 + 1, "v_max_f32")
        a("ds_write_b32 %s, %s" % (v(AMW), v(T0)))
        a("s_waitcnt lgkmcnt(0)")
        a("s_barrier")
        a("ds_read_b128 %s, %s" % (v(T0, 4), v(AMR)))
        self.dma_next()
        a("s_cmp_ge_u32 %s, %d" % (s(sIT), self.NIT - 3))
        a("s_cselect_b32 %s, 0, %d" % (s(R_C + 2), self.KEYS * 1024))
        self.dma_rows(rowsA)
        a("s_waitcnt lgkmcnt(0)")
        a("v_max3_f32 %s, %s, %s, %s" % (v(T0), v(T0), v(T0 + 1), v(M0)))
        a("v_max3_f32 %s, %s, %s, %s" % (v(T0 + 2), v(T0 + 2), v(T0 + 3), v(M0 + 1)))
        a("v_cndmask_b32 %s, %s, %s, %s" % (v(T0 + 1), v(T0), v(T0 + 2), s(sMSK, 2)))
        a("v_sub_f32 %s, %s, %s" % (v(AL), v(M0), v(T0)))
        a("v_sub_f32 %s, %s, %s" % (v(AL + 1), v(M0 + 1), v(T0 + 2)))
        for r in range(4):
            a("v_sub_f32 %s, %s, %s" % (v(S8 + r), v(S8 + r), v(T0 + 1)))
        a("v_exp_f32 %s, %s" % (v(AL), v(AL)))
        a("v_exp_f32 %s, %s" % (v(AL + 1), v(AL + 1)))
        for r in range(4):
            a("v_exp_f32 %s, %s" % (v(S8 + r), v(S8 + r)))
        a("v_mov_b32 %s, %s" % (v(M0), v(T0)))
        a("v_mov_b32 %s, %s" % (v(M0 + 1), v(T0 + 2)))
        a("v_cvt_pk_bf16_f32 %s, %s, %s" % (v(T0), v(S8), v(S8 + 1)))
        a("v_cvt_pk_bf16_f32 %s, %s, %s" % (v(T0 + 1), v(S8 + 2), v(S8 + 3)))
        a("ds_write_b64 %s, %s" % (v(APW), v(T0, 2)))
        a("v_cndmask_b32 %s, %s, %s, %s" % (v(T0 + 2), v(AL), v(AL + 1), s(sMSK, 2)))
        a("v_add_f32 %s, %s, %s" % (v(S8), v(S8), v(S8 + 1)))
        a("v_add_f32 %s, %s, %s" % (v(S8 + 2), v(S8 + 2), v(S8 + 3)))
        a("v_add_f32 %s, %s, %s" % (v(S8), v(S8), v(S8 + 2)))
        a("v_fma_f32 %s, %s, %s, %s" % (v(L0), v(L0), v(T0 + 2), v(S8)))

        def rescale(ct):
            for ht in range(2):
                sel = "op_sel_hi:[1,0]" if ht == 0 else "op_sel:[0,1] op_sel_hi:[1,1]"
                for h in range(2):
                    x = ACC + 8 * ct + 4 * ht + 2 * h
                    a("v_pk_mul_f32 %s, %s, %s %s" % (v(x, 2), v(x, 2), v(AL, 2), sel))
        rescale(0)
        nowait = self.lab("a_nw")
        a("s_cmp_eq_u32 %s, 0" % s(sIT))
        a("s_cbranch_scc1 %s" % nowait)
        a("s_waitcnt vmcnt(%d)" % (na + 8))
        a.label(nowait)
        a("s_waitcnt lgkmcnt(0)")
        a("s_barrier")
        self.stamp_it(1, 3)
        for ht in range(2):
            a("ds_read_b128 %s, %s offset:%d" % (v(PO + 4 * ht, 4), v(APR), ht * 1024))

        def tr_reads(ct):
            for hf in range(2):
                a("ds_read_b64_tr_b16 %s, %s offset:%d" % (v(OP + 4 * ct + 2 * hf, 2), v(AT + ct), 16384 * hf))
        for ct in range(6):
            tr_reads(ct)
        issued = 6
        bpos = {(1 + 2 * i): r for i, r in enumerate(rowsB)}
        for ct in range(8):
            if ct < 7:
                rescale(ct + 1)
            a("s_waitcnt lgkmcnt(%d)" % (2 * (issued - ct - 1)))
            for ht in range(2):
                x = ACC + 8 * ct + 4 * ht
                a("v_mfma_f32_16x16x32_bf16 %s, %s, %s, %s" % (
                    v(x, 4), v(OP + 4 * ct, 4), v(PO + 4 * ht, 4), v(x, 4)))
            if issued < 8:
                tr_reads(issued)
                issued += 1
            if ct in bpos:
                self.dma_rows([bpos[ct]])
        for b in range(4):
            a("v_xor_b32 %s, %s, %s" % (v(AQ + b), s(sOFF), v(AQ + b)))
        for ct in range(8):
            a("v_xor_b32 %s, %s, %s" % (v(AT + ct), s(sOFF), v(AT + ct)))
        a("s_xor_b32 %s, %s, 0x18000" % (s(sOFF), s(sOFF)))
        self.stamp_it(2, 3)
        a("s_add_u32 %s, %s, 1" % (s(sIT), s(sIT)))
        a("s_cmp_lt_u32 %s, %d" % (s(sIT), self.NIT))
        a("s_cbranch_scc1 %s" % loop)
        self.stamp(7)
        self.a_finish(ACC, OP, M0, L0)

    def a_finish_u(self, ACC, OP, M0, L0):
        a, c = self.a, self.c
        assert self.NH == 2
        NT = 16
        a("v_and_b32 %s, 15, %s" % (v(vA1), v(vL)))
        a("v_lshlrev_b32 %s, 16, %s" % (v(vA0), v(vA1)))
        a("v_lshrrev_b32 %s, 4, %s" % (v(vA2), v(vL)))
        a("v_lshlrev_b32 %s, 4, %s" % (v(vA2), v(vA2)))
        a("v_add_u32 %s, %s, %s" % (v(vA0), v(vA0), v(vA2)))
        a("s_lshl_b32 %s, s2, 10" % s(sT1))
        a("s_lshl_b32 %s, %s, 8" % (s(sT2), s(sW)))
        a("s_add_u32 %s, %s, %s" % (s(sT1), s(sT1), s(sT2)))
        a("s_add_u32 %s, %s, 0x%x" % (s(sT1), s(sT1), WS_X3))
        a("s_add_u32 %s, %s, 0x100000" % (s(sT2), s(sT1)))
        n = 0
        for q in range(4):
            for ht in range(2):
                r = OP + 4 * n
                for k in range(2):
                    x = ACC + 8 * (2 * q + k) + 4 * ht
                    a("v_cvt_pk_bf16_f32 %s, %s, %s" % (v(r + 2 * k), v(x), v(x + 1)))
                    a("v_cvt_pk_bf16_f32 %s, %s, %s" % (v(r + 2 * k + 1), v(x + 2), v(x + 3)))
                o = " offset:%d" % (64 * q) if q else ""
                a("buffer_store_dwordx4 %s, %s, %s, %s offen%s sc0 sc1" % (
                    v(r, 4), v(vA0), s(R_WS, 4), s(sT2 if ht else sT1), o))
                n += 1
        self.stamp(12)
        u0 = min(c.uv0, NT)
        self.uv_loads(u0, NT)
        self.allsum_g(L0, 198)
        a("v_cndmask_b32 v204, %s, %s, %s" % (v(M0), v(M0 + 1), s(sMSK, 2)))
        a("v_mov_b32 v205, %s" % s(sTAG))
        a("v_mov_b32 v206, %s" % v(L0))
        a("v_mov_b32 v207, %s" % s(sTAG))
        a("v_lshlrev_b32 %s, 11, %s" % (v(vA1), v(vA1)))
        a("s_lshr_b32 %s, %s, 1" % (s(sT1), s(sW)))
        a("s_lshl_b32 %s, %s, 15" % (s(sT1), s(sT1)))
        a("s_and_b32 %s, %s, 1" % (s(sT2), s(sW)))
        a("s_lshl_b32 %s, %s, 4" % (s(sT2), s(sT2)))
        a("s_add_u32 %s, %s, %s" % (s(sT1), s(sT1), s(sT2)))
        a("s_lshl_b32 %s, s2, 5" % s(sT2))
        a("s_add_u32 %s, %s, %s" % (s(sT1), s(sT1), s(sT2)))
        a("s_add_u32 %s, %s, 0x%x" % (s(sT1), s(sT1), WS_ML))
        a("s_waitcnt vmcnt(%d)" % (NT - u0))
        a("s_barrier")
        a("s_mov_b64 exec, 0xffff")
        a("buffer_store_dwordx4 v[204:207], %s, %s, %s offen sc0 sc1" % (v(vA1), s(R_WS, 4), s(sT1)))
        if c.mlw == 2:
            a("s_mov_b32 %s, 0x%x" % (s(sT2), WS_HINT))
            a("v_lshlrev_b32 v219, 8, %s" % v(vL))
            a("v_mov_b32 v218, 1")
            a("s_mov_b64 exec, 0xff")
            a("buffer_atomic_add v218, v219, %s, %s offen sc1" % (s(R_WS, 4), s(sT2)))
        a("s_mov_b64 exec, -1")
        self.stamp(8)
        a("s_lshr_b32 %s, s2, 1" % s(sB))
        a("s_lshl_b32 %s, %s, 11" % (s(sX1), s(sB)))
        a("s_add_u32 %s, %s, 0x%x" % (s(sX1), s(sX1), WS_ML))
        MR = [200, 210]

        def issue():
            for h in range(2):
                o = " offset:1024" if h else ""
                a("buffer_load_dwordx4 %s, %s, %s, %s offen%s sc1" % (v(MR[h], 4), v(vO16), s(R_WS, 4), s(sX1), o))

        def check():
            self.tagcheck(204, [m + j for m in MR for j in (1, 3)])
            a("v_cmp_ne_u32 vcc, 0, v204")

        a("v_lshrrev_b32 %s, 3, %s" % (v(vA0), v(vL)))
        a("v_lshlrev_b32 %s, 10, %s" % (v(vA1), v(vA0)))
        a("v_and_b32 %s, 7, %s" % (v(vA2), v(vL)))
        a("v_lshlrev_b32 v208, 4, %s" % v(vA2))
        a("v_add_u32 v208, %s, v208" % v(vA1))
        a("v_lshlrev_b32 v209, 3, %s" % v(vA0))
        def x3_loads():
            a("s_lshl_b32 %s, %s, 16" % (s(sT4), s(sB)))
            a("s_lshl_b32 %s, %s, 7" % (s(sT2), s(sW)))
            a("s_add_u32 %s, %s, %s" % (s(sT4), s(sT4), s(sT2)))
            a("s_and_b32 %s, s2, 1" % s(sT2))
            a("s_lshl_b32 %s, %s, 9" % (s(sT2), s(sT2)))
            a("s_add_u32 %s, %s, %s" % (s(sT4), s(sT4), s(sT2)))
            a("s_add_u32 %s, %s, 0x%x" % (s(sT4), s(sT4), WS_X3))
            for i in range(8):
                a("buffer_load_dwordx4 %s, v208, %s, %s offen sc1" % (v(40 + 4 * i, 4), s(R_WS, 4), s(sT4)))
                if i < 7:
                    a("s_add_u32 %s, %s, 8192" % (s(sT4), s(sT4)))

        if c.mlw == 2:
            go = self.lab("ml_go")
            a("s_cmp_lg_u32 %s, 0" % s(sW))
            a("s_cbranch_scc1 %s" % go)
            a("s_and_b32 %s, s2, 7" % s(sT2))
            a("s_lshl_b32 %s, %s, 8" % (s(sT2), s(sT2)))
            a("s_add_u32 %s, %s, 0x%x" % (s(sT2), s(sT2), WS_HINT))
            a("s_mov_b64 exec, 1")

            def issue_h():
                a("buffer_load_dword v220, v219, %s, %s offen sc1" % (s(R_WS, 4), s(sT2)))

            def check_h():
                a("v_cmp_ne_u32 vcc, 0x100, v220")

            self.poll("hint", issue_h, check_h)
            a("s_mov_b64 exec, -1")
            a.label(go)
            a("s_barrier")
            self.poll("ml", issue, check, between=x3_loads, first_wait=8)
        elif c.mlw:
            lead, go = self.lab("ml_lead"), self.lab("ml_go")
            a("s_cmp_eq_u32 %s, 0" % s(sW))
            a("s_cbranch_scc1 %s" % lead)
            a("s_barrier")
            self.poll("mlf", issue, check)
            a("s_branch %s" % go)
            a.label(lead)
            self.poll("ml", issue, check)
            a("s_barrier")
            a.label(go)
        else:
            self.poll("ml", issue, check)
        self.stamp(9)
        if c.mlw != 2:
            x3_loads()
        a("v_max_f32 v204, v200, v210")
        self.allsum_row(204, "v_max_f32")
        self.allsum_g(204, 205, "v_max_f32")
        for m in MR:
            a("v_sub_f32 %s, %s, v204" % (v(m), v(m)))
        for m in MR:
            a("v_exp_f32 %s, %s" % (v(m), v(m)))
        a("v_mul_f32 v204, v200, v202")
        a("v_fmac_f32 v204, v210, v212")
        self.allsum_row(204)
        self.allsum_g(204, 205)
        a("v_rcp_f32 v204, v204")
        for m in MR:
            a("v_mul_f32 %s, %s, v204" % (v(m), v(m)))
        for i in range(8):
            a("v_add_u32 %s, %d, v209" % (v(168 + i), (64 * i) & 255))
        for i in range(8):
            a("ds_bpermute_b32 %s, %s, %s" % (v(168 + i), v(168 + i), v(MR[i >> 2])))
        a("s_waitcnt lgkmcnt(0)")
        for i in range(8):
            q, wt = 40 + 4 * i, 168 + i
            tb = 112 + 8 * (i & 1)
            a("s_waitcnt vmcnt(%d)" % (7 - i))
            for d in range(4):
                a("v_lshlrev_b32 %s, 16, %s" % (v(tb + 2 * d), v(q + d)))
                a("v_and_b32 %s, 0xffff0000, %s" % (v(tb + 2 * d + 1), v(q + d)))
            sel = "op_sel_hi:[1,0,1]" if wt % 2 == 0 else "op_sel:[0,1,0] op_sel_hi:[1,1,1]"
            wp = v(wt & ~1, 2)
            for d in range(4):
                if i == 0:
                    a("v_pk_mul_f32 %s, %s, %s op_sel_hi:[1,0]" % (v(104 + 2 * d, 2), v(tb + 2 * d, 2), wp))
                else:
                    a("v_pk_fma_f32 %s, %s, %s, %s %s" % (v(104 + 2 * d, 2), v(tb + 2 * d, 2), wp, v(104 + 2 * d, 2), sel))
        self.stamp(11)
        for r in range(8):
            a("v_add_f32_dpp %s, %s, %s row_ror:8 row_mask:0xf bank_mask:0xf" % (v(104 + r), v(104 + r), v(104 + r)))
        for swap in ("v_permlane16_swap_b32", "v_permlane32_swap_b32"):
            for r in range(8):
                a("v_mov_b32 %s, %s" % (v(112 + r), v(104 + r)))
            for r in range(8):
                a("%s %s, %s" % (swap, v(104 + r), v(112 + r)))
            for r in range(8):
                a("v_add_f32 %s, %s, %s" % (v(104 + r), v(104 + r), v(112 + r)))
        for r in range(8):
            a("v_cvt_pk_bf16_f32 %s, %s, %s" % (v(104 + r), v(104 + r), v(104 + r)))
        a("s_lshl_b32 %s, %s, 9" % (s(sT1), s(sW)))
        a("s_add_u32 %s, %s, %d" % (s(sT1), s(sT1), LT))
        a("v_lshrrev_b32 %s, 2, %s" % (v(vA0), v(vA2)))
        a("v_lshlrev_b32 %s, 7, %s" % (v(vA0), v(vA0)))
        a("v_and_b32 %s, 3, %s" % (v(vA2), v(vA2)))
        a("v_lshlrev_b32 %s, 4, %s" % (v(vA2), v(vA2)))
        a("v_add3_u32 %s, %s, %s, %s" % (v(vA0), v(vA0), v(vA2), s(sT1)))
        a("ds_write_b128 %s, v[104:107]" % v(vA0))
        a("ds_write_b128 %s, v[108:111] offset:64" % v(vA0))
        self.a_gemv()

    def a_finish(self, ACC, OP, M0, L0):
        a, c = self.a, self.c
        if c.x3u:
            return self.a_finish_u(ACC, OP, M0, L0)
        a("v_and_b32 %s, 15, %s" % (v(vA1), v(vL)))
        NH = self.NH
        HS = 15 + NH
        a("v_lshlrev_b32 %s, %d, %s" % (v(vA0), HS, v(vA1)))
        a("v_lshrrev_b32 %s, 4, %s" % (v(vA2), v(vL)))
        a("v_lshlrev_b32 %s, 4, %s" % (v(vA2), v(vA2)))
        a("v_add_u32 %s, %s, %s" % (v(vA0), v(vA0), v(vA2)))
        a("s_lshl_b32 %s, s2, 11" % s(sT1))
        a("s_lshl_b32 %s, %s, 9" % (s(sT2), s(sW)))
        a("s_add_u32 %s, %s, %s" % (s(sT1), s(sT1), s(sT2)))
        a("s_add_u32 %s, %s, 0x%x" % (s(sT1), s(sT1), WS_X3))
        a("s_add_u32 %s, %s, 0x%x" % (s(sT2), s(sT1), 16 << HS))
        for i in range(8):
            a("v_mov_b32 %s, %s" % (v(OP + 2 * i + 1), s(sTAG)))
        n = 0
        for ct in range(8):
            for ht in range(2):
                x, q = ACC + 8 * ct + 4 * ht, OP + 4 * (n & 3)
                a("v_cvt_pk_bf16_f32 %s, %s, %s" % (v(q), v(x), v(x + 1)))
                a("v_cvt_pk_bf16_f32 %s, %s, %s" % (v(q + 2), v(x + 2), v(x + 3)))
                o = " offset:%d" % (64 * ct) if ct else ""
                a("buffer_store_dwordx4 %s, %s, %s, %s offen%s sc0 sc1" % (
                    v(q, 4), v(vA0), s(R_WS, 4), s(sT2 if ht else sT1), o))
                n += 1
        self.stamp(12)
        self.allsum_g(L0, 198)
        a("v_cndmask_b32 v204, %s, %s, %s" % (v(M0), v(M0 + 1), s(sMSK, 2)))
        a("v_mov_b32 v205, %s" % s(sTAG))
        a("v_mov_b32 v206, %s" % v(L0))
        a("v_mov_b32 v207, %s" % s(sTAG))
        a("v_lshlrev_b32 %s, %d, %s" % (v(vA1), 9 + NH, v(vA1)))
        a("s_lshr_b32 %s, %s, 1" % (s(sT1), s(sW)))
        a("s_lshl_b32 %s, %s, %d" % (s(sT1), s(sT1), 13 + NH))
        a("s_and_b32 %s, %s, 1" % (s(sT2), s(sW)))
        a("s_lshl_b32 %s, %s, 4" % (s(sT2), s(sT2)))
        a("s_add_u32 %s, %s, %s" % (s(sT1), s(sT1), s(sT2)))
        a("s_lshl_b32 %s, s2, 5" % s(sT2))
        a("s_add_u32 %s, %s, %s" % (s(sT1), s(sT1), s(sT2)))
        a("s_add_u32 %s, %s, 0x%x" % (s(sT1), s(sT1), WS_ML))
        a("s_mov_b64 exec, 0xffff")
        a("buffer_store_dwordx4 v[204:207], %s, %s, %s offen sc0 sc1" % (v(vA1), s(R_WS, 4), s(sT1)))
        a("s_mov_b64 exec, -1")
        NT = 32 // NH
        self.uv_loads(min(c.uv0, NT), NT)
        self.stamp(8)
        a("s_lshr_b32 %s, s2, %d" % (s(sB), NH - 1))
        a("s_lshl_b32 %s, %s, %d" % (s(sX1), s(sB), 9 + NH))
        a("s_add_u32 %s, %s, 0x%x" % (s(sX1), s(sX1), WS_ML))
        MR = [200, 210][:NH]

        def issue():
            for h in range(NH):
                o = " offset:1024" if h else ""
                a("buffer_load_dwordx4 %s, %s, %s, %s offen%s sc1" % (v(MR[h], 4), v(vO16), s(R_WS, 4), s(sX1), o))

        def check():
            self.tagcheck(204, [m + j for m in MR for j in (1, 3)])
            a("v_cmp_ne_u32 vcc, 0, v204")

        self.poll("ml", issue, check)
        self.stamp(9)
        SP = 2 * NH
        LS = 6 - NH
        a("v_lshrrev_b32 %s, %d, %s" % (v(vA0), LS, v(vL)))
        a("v_lshlrev_b32 %s, 11, %s" % (v(vA1), v(vA0)))
        a("v_and_b32 %s, %d, %s" % (v(vA2), (1 << LS) - 1, v(vL)))
        a("v_lshlrev_b32 %s, 4, %s" % (v(vA2), v(vA2)))
        a("v_add_u32 v208, %s, %s" % (v(vA1), v(vA2)))
        a("v_lshlrev_b32 v209, 3, %s" % v(vA0))
        a("s_lshl_b32 %s, %s, %d" % (s(sX1), s(sB), HS))
        a("s_lshl_b32 %s, %s, %d" % (s(sT2), s(sW), 10 - NH))
        a("s_add_u32 %s, %s, %s" % (s(sX1), s(sX1), s(sT2)))
        if NH == 2:
            a("s_and_b32 %s, s2, 1" % s(sT2))
            a("s_lshl_b32 %s, %s, 10" % (s(sT2), s(sT2)))
            a("s_add_u32 %s, %s, %s" % (s(sX1), s(sX1), s(sT2)))
        a("s_add_u32 %s, %s, 0x%x" % (s(sX1), s(sX1), WS_X3))

        def issue3():
            a("s_mov_b32 %s, %s" % (s(sT1), s(sX1)))
            for i in range(16):
                a("buffer_load_dwordx4 %s, v208, %s, %s offen sc1" % (v(40 + 4 * i, 4), s(R_WS, 4), s(sT1)))
                if i < 15:
                    a("s_add_u32 %s, %s, %d" % (s(sT1), s(sT1), 2048 * SP))

        def check3():
            self.tagcheck(204, [40 + 4 * i + j for i in range(16) for j in (1, 3)])
            a("v_cmp_ne_u32 vcc, 0, v204")

        def weights():
            if NH == 1:
                a("v_mov_b32 v204, v200")
            else:
                a("v_max_f32 v204, v200, v210")
            self.allsum_row(204, "v_max_f32")
            self.allsum_g(204, 205, "v_max_f32")
            for m in MR:
                a("v_sub_f32 %s, %s, v204" % (v(m), v(m)))
            for m in MR:
                a("v_exp_f32 %s, %s" % (v(m), v(m)))
            a("v_mul_f32 v204, v200, v202")
            if NH == 2:
                a("v_fmac_f32 v204, v210, v212")
            self.allsum_row(204)
            self.allsum_g(204, 205)
            a("v_rcp_f32 v204, v204")
            for m in MR:
                a("v_mul_f32 %s, %s, v204" % (v(m), v(m)))
            for i in range(16):
                a("v_add_u32 %s, %d, v209" % (v(168 + i), (8 * SP * i) & 255))
            for i in range(16):
                a("ds_bpermute_b32 %s, %s, %s" % (v(168 + i), v(168 + i), v(MR[(SP * i) >> 5])))

        self.poll("x3", issue3, check3, between=weights, first_wait=0)
        self.stamp(11)
        a("s_waitcnt lgkmcnt(0)")
        for i in range(16):
            q, wt = 40 + 4 * i, 168 + i
            for h in range(2):
                lo, hi = 112 + 4 * (i & 1) + 2 * h, 113 + 4 * (i & 1) + 2 * h
                a("v_lshlrev_b32 %s, 16, %s" % (v(lo), v(q + 2 * h)))
                a("v_and_b32 %s, 0xffff0000, %s" % (v(hi), v(q + 2 * h)))
            for h in range(2):
                lo = 112 + 4 * (i & 1) + 2 * h
                sel = "op_sel_hi:[1,0,1]" if wt % 2 == 0 else "op_sel:[0,1,0] op_sel_hi:[1,1,1]"
                wp = v(wt & ~1, 2)
                if i == 0:
                    a("v_pk_mul_f32 %s, %s, %s op_sel_hi:[1,0]" % (v(104 + 2 * h, 2), v(lo, 2), wp))
                else:
                    a("v_pk_fma_f32 %s, %s, %s, %s %s" % (v(104 + 2 * h, 2), v(lo, 2), wp, v(104 + 2 * h, 2), sel))
        for swap in ["v_permlane32_swap_b32"] + (["v_permlane16_swap_b32"] if NH == 2 else []):
            for r in range(4):
                a("v_mov_b32 %s, %s" % (v(108 + r), v(104 + r)))
            for r in range(4):
                a("%s %s, %s" % (swap, v(104 + r), v(108 + r)))
            for r in range(4):
                a("v_add_f32 %s, %s, %s" % (v(104 + r), v(104 + r), v(108 + r)))
        for r in range(4):
            a("v_cvt_pk_bf16_f32 %s, %s, %s" % (v(104 + r), v(104 + r), v(104 + r)))
        a("s_lshl_b32 %s, %s, 9" % (s(sT1), s(sW)))
        a("s_add_u32 %s, %s, %d" % (s(sT1), s(sT1), LT))
        a("v_add_u32 %s, %s, %s" % (v(vA0), s(sT1), v(vA2)))
        a("ds_write_b128 %s, v[104:107]" % v(vA0))
        self.a_gemv()

    def a_gemv(self):
        a, c = self.a, self.c
        NT = 32 // self.NH
        a("v_lshrrev_b32 %s, 4, %s" % (v(vA1), v(vL)))
        a("v_lshlrev_b32 %s, 2, %s" % (v(vA1), v(vA1)))
        a("v_add_u32 %s, %s, %s" % (v(vA1), s(sT1), v(vA1)))
        for t in range(0, NT, 2):
            a("ds_read2_b32 %s, %s offset0:%d offset1:%d" % (v(40 + t, 2), v(vA1), 4 * t, 4 * t + 4))
        for t in range(NT):
            if t % 2 == 0:
                a("s_waitcnt lgkmcnt(%d)" % (NT // 2 - 1 - t // 2))
            self.delta_mfma(108, ar(128 + 4 * t, 4), 40 + t, 112 + 4 * (t & 1), t == 0)
        a("v_lshrrev_b32 %s, 4, %s" % (v(vA0), v(vL)))
        a("v_lshlrev_b32 %s, 9, %s" % (v(vA0), v(vA0)))
        a("v_and_b32 %s, 7, %s" % (v(vA1), v(vL)))
        a("v_lshlrev_b32 %s, 4, %s" % (v(vA1), v(vA1)))
        a("s_lshl_b32 %s, %s, 2" % (s(sT1), s(sW)))
        a("s_add_u32 %s, %s, %d" % (s(sT1), s(sT1), LR))
        a("v_add3_u32 %s, %s, %s, %s" % (v(vA0), v(vA0), v(vA1), s(sT1)))
        for r in range(4):
            a("ds_write_b32 %s, %s offset:%d" % (v(vA0), v(108 + r), 128 * r))
        a("s_waitcnt lgkmcnt(0)")
        a("s_barrier")
        a("s_cmp_ge_u32 %s, 2" % s(sW))
        a("s_cbranch_scc1 L_a_done")
        a("s_lshl_b32 %s, %s, 10" % (s(sT1), s(sW)))
        a("s_add_u32 %s, %s, %d" % (s(sT1), s(sT1), LR))
        a("v_add_u32 %s, %s, %s" % (v(vA0), s(sT1), v(vO16)))
        a("ds_read_b128 v[40:43], %s" % v(vA0))
        a("s_lshl_b32 %s, s2, 10" % s(sT1))
        a("s_lshl_b32 %s, %s, 9" % (s(sT2), s(sW)))
        a("s_add_u32 %s, %s, %s" % (s(sT1), s(sT1), s(sT2)))
        a("s_add_u32 %s, %s, 0x%x" % (s(sT1), s(sT1), WS_X4A))
        a("v_lshlrev_b32 %s, 3, %s" % (v(vA1), v(vL)))
        a("s_waitcnt lgkmcnt(0)")
        a("v_add_f32 v40, v40, v41")
        a("v_add_f32 v42, v42, v43")
        a("v_add_f32 v40, v40, v42")
        a("v_mov_b32 v41, %s" % s(sTAG))
        a("buffer_store_dwordx2 v[40:41], %s, %s, %s offen sc0 sc1" % (v(vA1), s(R_WS, 4), s(sT1)))
        a.label("L_a_done")
        self.stamp(10)
        self.end()

    def build(self):
        a = self.a
        self.prologue()
        self.q_phase()
        self.q_gather()
        self.b_main()
        self.tail()
        self.a_main()
        a.label("L_exit")
        a("s_endpgm")
        a.label("L_codeend")
        body = a.finalize()
        head = open(os.path.join(os.path.dirname(os.path.abspath(__file__)), "header.txt")).read()
        head = head.replace("@LDS@", str(LDS_BYTES))
        if self.c.xnt & 1:
            body = body.replace(" sc0 sc1\n", " sc0 sc1 nt\n")
        if self.c.xnt & 2:
            body = body.replace(" sc1\n", " sc1 nt\n").replace(" sc0 sc1 nt\n", " sc0 sc1\n" if not self.c.xnt & 1 else " sc0 sc1 nt\n")
        return head + body + FOOTER


FOOTER = """.section .rodata,"a"
.p2align 6
.amdhsa_kernel %s_kernel
  .amdhsa_next_free_vgpr 512
  .amdhsa_next_free_sgpr 102
  .amdhsa_accum_offset 256
  .amdhsa_group_segment_fixed_size 0
  .amdhsa_kernarg_size 120
  .amdhsa_user_sgpr_count 2
  .amdhsa_user_sgpr_kernarg_segment_ptr 1
  .amdhsa_system_sgpr_workgroup_id_x 1
.end_amdhsa_kernel
""" % NAME


def main():
    p = argparse.ArgumentParser()
    p.add_argument("-o", default="cdna_kernels/%s.s" % NAME)
    p.add_argument("--nq", type=int, default=8)
    p.add_argument("--nt", default="nt")
    p.add_argument("--debug", action="store_true")
    p.add_argument("--na", type=int, default=64)
    p.add_argument("--uv0", type=int, default=16)
    p.add_argument("--t0", type=int, default=20)
    p.add_argument("--bstamp", action="store_true")
    p.add_argument("--xnt", type=int, default=0)
    p.add_argument("--lfirst", type=int, default=1)
    p.add_argument("--local", type=int, default=1)
    p.add_argument("--dyn", type=int, default=1)
    p.add_argument("--diag", type=int, default=0)
    p.add_argument("--g1", type=int, default=0)
    p.add_argument("--gk", type=int, default=0)
    p.add_argument("--cstride", type=lambda x: int(x, 0), default=256)
    p.add_argument("--td", type=int, default=0)
    p.add_argument("--td2", type=int, default=0)
    p.add_argument("--gearly", type=int, default=0)
    p.add_argument("--tdv", type=int, default=0)
    p.add_argument("--x4c", type=int, default=0)
    p.add_argument("--mlw", type=int, default=0)
    p.add_argument("--x3u", type=int, default=1)
    p.add_argument("--sblk", type=int, default=16)
    p.add_argument("--dsplit", default="2,3,3")
    p.add_argument("--elapsed", action="store_true")
    p.add_argument("--no-prefetch", dest="prefetch", action="store_false")
    p.add_argument("--spin", type=lambda x: int(x, 0), default=0x2000)
    cfg = p.parse_args()
    text = Gen(cfg).build()
    open(cfg.o, "w").write(text)
    print("wrote", cfg.o, len(text), "bytes")


if __name__ == "__main__":
    main()
```

```python
import argparse
import math
import struct
import sys
import os

sys.path.insert(0, os.path.dirname(os.path.abspath(__file__)))
from asmlib import Asm

NAME = "gated_mix__compressed_kv_cla__gqa_block_cached__decode"


def f32(x):
    return "0x%08x" % struct.unpack("<I", struct.pack("<f", x))[0]


LOG2E = math.log2(math.e)
C_SCALE = LOG2E / math.sqrt(128.0)

WS_EPOCH = 0
WS_CNT = 0x8000
WS_HINT = 0x9000
WS_X1 = 0x10000
WS_X2 = 0x30000
WS_ML = 0x40000
WS_X4A = 0x50000
WS_X4B = 0x60000
WS_X4L = 0xD0000
WS_X5 = 0xE0000
WS_X3 = 0x100000
WS_DBG = 0x500000
WS_SIZE = 0x800000
EPOCH_STEP = 0x9E3779B1

LU = 131072
LQ = LU
LQA = LU
LMX = LU
LP = LU + 1024
LL = LU + 8192
LT = LU + 9216
LR = LU + 12288
LO = LU + 16384
LML = LU + 20480
LX = LU + 4096
LDS_BYTES = 163840

sID, sT, sW, sTAG, sT1, sT2 = 2, 3, 4, 5, 6, 7
P_X, P_C, P_WQA, P_UK, P_UV, P_WOA = 8, 10, 12, 14, 16, 18
P_K, P_V, P_WQB, P_WOB, P_G, P_OUT, P_WS = 22, 24, 26, 28, 30, 32, 36
R_CODE, R_X, R_QW, R_WS = 40, 44, 48, 52
R_K, R_V, R_K2, R_V2, R_TW, R_G, R_OUT = 56, 60, 64, 68, 72, 76, 80
R_C, R_UV = 60, 64
R_UK = 40
sG, sJM, sB, sHH = 84, 85, 86, 84
sOFF, sCNT, sIT, sBIAS = 87, 88, 89, 90
sX1, sT3, sTW = 91, 92, 93
sMSK = 94
sMS2 = 96
sT4, sT5 = 98, 99
sST = 100
sB2 = 20
sQT, sUS = 3, 21

vL, vO16 = 1, 6
vM = [2, 3, 4, 5]
vA0, vA1, vA2 = 7, 8, 9
vSTAMP, vDUMMY = 254, 255
vAT = 133
UKW, X1A, QU, UKS, UKQ = 56, 88, 16, 20, 24


def v(a, n=1):
    return "v%d" % a if n == 1 else "v[%d:%d]" % (a, a + n - 1)


def ar(a, n=1):
    return "a%d" % a if n == 1 else "a[%d:%d]" % (a, a + n - 1)


def s(a, n=1):
    return "s%d" % a if n == 1 else "s[%d:%d]" % (a, a + n - 1)


class Gen:
    def __init__(self, cfg):
        self.c = cfg
        self.a = Asm()
        self.uid = 0
        self.nstamp = 0
        self.NA = cfg.na
        self.NP = (256 - self.NA) // 16
        self.QB = 4096 // (4 * self.NP)
        self.QX = 4096 - self.QB * 4 * self.NP
        self.MAGIC = {14: 4682, 12: 5462}[self.NP]
        self.KEYS = 16384 // self.NA
        self.NIT = self.KEYS // 32
        self.NH = self.NA // 32

    def lab(self, base):
        self.uid += 1
        return "L_%s_%d" % (base, self.uid)

    def srd(self, r, ptr, size, off=None):
        a = self.a
        if off is None:
            a("s_mov_b32 %s, %s" % (s(r), s(ptr)))
            a("s_mov_b32 %s, %s" % (s(r + 1), s(ptr + 1)))
        else:
            a("s_add_u32 %s, %s, %s" % (s(r), s(ptr), off))
            a("s_addc_u32 %s, %s, 0" % (s(r + 1), s(ptr + 1)))
        a("s_mov_b32 %s, %s" % (s(r + 2), size))
        a("s_mov_b32 %s, 0x20000" % s(r + 3))

    def stamp(self, idx):
        if not self.c.debug:
            return
        a = self.a
        a("s_memrealtime %s" % s(sST, 2))
        a("s_waitcnt lgkmcnt(0)")
        a("v_writelane_b32 %s, %s, %d" % (v(vSTAMP), s(sST), idx))

    def stamp_it(self, phase, nph=5):
        if not self.c.debug:
            return
        a = self.a
        a("s_memrealtime %s" % s(sST, 2))
        a("s_mul_i32 s38, %s, %d" % (s(sIT), nph))
        a("s_add_u32 s38, s38, %d" % (16 + phase))
        a("s_waitcnt lgkmcnt(0)")
        a("s_mov_b32 m0, s38")
        a("v_writelane_b32 %s, %s, m0" % (v(vSTAMP), s(sST)))

    def dump_stamps(self):
        if not self.c.debug:
            return
        a = self.a
        a("s_lshl_b32 %s, %s, 2" % (s(sT1), s(sID)))
        a("s_add_u32 %s, %s, %s" % (s(sT1), s(sT1), s(sW)))
        a("s_lshl_b32 %s, %s, 8" % (s(sT1), s(sT1)))
        a("s_add_u32 %s, %s, 0x%x" % (s(sT1), s(sT1), WS_DBG))
        a("v_lshlrev_b32 %s, 2, %s" % (v(vA0), v(vL)))
        a("buffer_store_dword %s, %s, %s, %s offen" % (v(vSTAMP), v(vA0), s(R_WS, 4), s(sT1)))

    def dump(self, slot, reg):
        if not self.c.debug:
            return
        a = self.a
        a("s_lshl_b32 %s, %s, 2" % (s(sST), s(sID)))
        a("s_add_u32 %s, %s, %s" % (s(sST), s(sST), s(sW)))
        a("s_lshl_b32 %s, %s, 11" % (s(sST), s(sST)))
        a("s_add_u32 %s, %s, 0x%x" % (s(sST), s(sST), WS_DBG + 0x40000 + slot * 256))
        a("v_lshlrev_b32 v253, 2, %s" % v(vL))
        a("buffer_store_dword %s, v253, %s, %s offen" % (v(reg), s(R_WS, 4), s(sST)))

    def end(self):
        self.dump_stamps()
        self.a("s_endpgm")

    def mask64(self, reg, lo, hi=None):
        hi = lo if hi is None else hi
        self.a("s_mov_b32 %s, 0x%x" % (s(reg), lo))
        self.a("s_mov_b32 %s, 0x%x" % (s(reg + 1), hi))

    def tagcheck(self, acc, tags, first=True):
        a = self.a
        for i, t in enumerate(tags):
            if i == 0 and first:
                a("v_xor_b32 %s, %s, %s" % (v(acc), s(sTAG), v(t)))
            else:
                a("v_bitop3_b32 %s, %s, %s, %s bitop3:0xf6" % (v(acc), v(acc), v(t), s(sTAG)))

    def poll(self, name, issue, check, nwait="0", between=None, first_wait=None):
        a = self.a
        retry, ok = self.lab(name + "_retry"), self.lab(name + "_ok")
        a("s_movk_i32 %s, 0x%x" % (s(sCNT), self.c.spin))
        if between is not None:
            issue()
            between()
            a("s_waitcnt vmcnt(%d)" % first_wait)
            check()
            a("s_cbranch_vccz %s" % ok)
        a.label(retry)
        issue()
        a("s_waitcnt vmcnt(0)")
        check()
        a("s_cbranch_vccz %s" % ok)
        a("s_sub_u32 %s, %s, 1" % (s(sCNT), s(sCNT)))
        a("s_cbranch_scc0 %s" % retry)
        a.label(ok)

    def allsum_g(self, x, t, op="v_add_f32"):
        a = self.a
        a("v_mov_b32 %s, %s" % (v(t), v(x)))
        a("v_permlane16_swap_b32 %s, %s" % (v(x), v(t)))
        a("%s %s, %s, %s" % (op, v(x), v(x), v(t)))
        a("v_mov_b32 %s, %s" % (v(t), v(x)))
        a("v_permlane32_swap_b32 %s, %s" % (v(x), v(t)))
        a("%s %s, %s, %s" % (op, v(x), v(x), v(t)))

    def allsum_row(self, x, op="v_add_f32"):
        a = self.a
        o = op + "_dpp"
        for m in ("row_ror:8", "quad_perm:[1,0,3,2]", "quad_perm:[2,3,0,1]", "row_half_mirror"):
            a("%s %s, %s, %s %s row_mask:0xf bank_mask:0xf" % (o, v(x), v(x), v(x), m))

    def delta_mfma(self, acc, adata, dup, btmp, first):
        a = self.a
        for i in range(4):
            a("v_and_b32 %s, %s, %s" % (v(btmp + i), v(vM[i]), v(dup)))
        a("v_mfma_f32_16x16x32_bf16 %s, %s, %s, %s" % (v(acc, 4), adata, v(btmp, 4),
                                                      "0" if first else v(acc, 4)))

    def prologue(self):
        a, c = self.a, self.c
        a("s_cmp_ge_u32 s2, 0x100")
        a("s_cbranch_scc1 L_exit")
        if c.elapsed:
            a("s_memrealtime s[38:39]")
        a("s_load_dwordx16 s[8:23], s[0:1], 0x0")
        a("s_load_dwordx8 s[24:31], s[0:1], 0x40")
        a("s_load_dwordx4 s[32:35], s[0:1], 0x60")
        a("s_load_dwordx2 s[36:37], s[0:1], 0x70")
        if c.prefetch:
            a("s_getpc_b64 %s" % s(R_CODE, 2))
            a.label("L_pc")
            a("s_mov_b32 %s, L_codeend-L_pc" % s(R_CODE + 2))
            a("s_mov_b32 %s, 0x20000" % s(R_CODE + 3))
            a("s_lshr_b32 %s, s2, 6" % s(sT))
            a("s_lshl_b32 %s, %s, 14" % (s(sT), s(sT)))
            a("v_lshlrev_b32 %s, 6, v0" % v(vA0))
            a("v_add_u32 %s, %s, %s" % (v(vA0), s(sT), v(vA0)))
            a("buffer_load_dword %s, %s, %s, 0 offen" % (v(vDUMMY), v(vA0), s(R_CODE, 4)))
        a("v_and_b32 %s, 63, v0" % v(vL))
        a("v_lshrrev_b32 %s, 6, v0" % v(vA1))
        a("v_lshlrev_b32 %s, 4, %s" % (v(vO16), v(vL)))
        a("v_readfirstlane_b32 %s, %s" % (s(sW), v(vA1)))
        if c.debug:
            a("v_mov_b32 %s, 0" % v(vSTAMP))
        if c.local:
            a("s_lshr_b32 %s, s2, 3" % s(sT1))
            a("s_and_b32 %s, %s, 16" % (s(sQT), s(sT1)))
            a("s_lshl_b32 %s, %s, 3" % (s(sQT), s(sQT)))
            a("s_and_b32 %s, %s, 15" % (s(sT1), s(sT1)))
            a("s_add_u32 %s, %s, %s" % (s(sQT), s(sQT), s(sT1)))
            a("s_and_b32 %s, s2, 7" % s(sT1))
            a("s_lshl_b32 %s, %s, 4" % (s(sT1), s(sT1)))
            a("s_add_u32 %s, %s, %s" % (s(sQT), s(sQT), s(sT1)))
        else:
            a("s_mov_b32 %s, s2" % s(sQT))
        a("s_and_b32 %s, %s, 1" % (s(sT1), s(sQT)))
        a("s_mul_i32 %s, %s, 288" % (s(sT1), s(sT1)))
        a("s_mul_i32 %s, %s, 72" % (s(sT2), s(sW)))
        a("s_add_u32 %s, %s, %s" % (s(sT1), s(sT1), s(sT2)))
        a("v_lshrrev_b32 %s, 3, %s" % (v(vA1), v(vL)))
        a("v_add_u32 %s, %s, %s" % (v(vA0), s(sT1), v(vA1)))
        a("v_lshlrev_b32 %s, 1, %s" % (v(vA0), v(vA0)))
        a("v_and_b32 %s, 7, %s" % (v(vA2), v(vL)))
        a("v_lshlrev_b32 %s, 4, %s" % (v(vA2), v(vA2)))
        a("v_lshlrev_b32 %s, 13, %s" % (v(vA1), v(vA1)))
        a("v_add_u32 %s, %s, %s" % (v(vA1), v(vA1), v(vA2)))
        a("s_lshl_b32 %s, %s, 13" % (s(sOFF), s(sT1)))
        a("s_lshr_b32 %s, %s, 1" % (s(sT2), s(sQT)))
        a("s_and_b32 %s, %s, 63" % (s(sT2), s(sT2)))
        a("s_lshl_b32 %s, %s, 7" % (s(sT2), s(sT2)))
        a("s_add_u32 %s, %s, %s" % (s(sOFF), s(sOFF), s(sT2)))
        a("s_waitcnt lgkmcnt(0)")
        a("s_load_dword %s, %s, 0x%x" % (s(sTAG), s(P_WS, 2), WS_EPOCH))
        self.srd(R_X, P_X, "1152")
        if c.dyn:
            self.srd(R_WS, P_WS, "0x%x" % WS_SIZE)
            noinit = self.lab("cnt")
            a("s_and_b32 %s, %s, 0x87" % (s(sT1), s(sQT)))
            a("s_lshl_b32 %s, %s, 8" % (s(sT2), s(sW)))
            a("s_or_b32 %s, %s, %s" % (s(sT1), s(sT1), s(sT2)))
            a("s_cmp_lg_u32 %s, 0x80" % s(sT1))
            a("s_cbranch_scc1 %s" % noinit)
            a("s_bfe_u32 %s, %s, 0x40003" % (s(sT1), s(sQT)))
            a("s_mul_i32 %s, %s, %d" % (s(sT1), s(sT1), c.cstride))
            a("s_add_u32 %s, %s, 0x%x" % (s(sT1), s(sT1), WS_CNT))
            a("v_mov_b32 %s, 0" % v(vA2))
            a("s_mov_b64 exec, 1")
            a("buffer_store_dword %s, %s, %s, %s offen sc0 sc1" % (v(vA2), v(vA2), s(R_WS, 4), s(sT1)))
            a("s_mov_b64 exec, -1")
            a.label(noinit)
            if c.mlw == 2:
                nohint = self.lab("hint")
                a("s_lshl_b32 %s, %s, 8" % (s(sT1), s(sW)))
                a("s_or_b32 %s, %s, %s" % (s(sT1), s(sT1), s(sQT)))
                a("s_cmp_lg_u32 %s, 0" % s(sT1))
                a("s_cbranch_scc1 %s" % nohint)
                a("s_mov_b32 %s, 0x%x" % (s(sT1), WS_HINT))
                a("v_lshlrev_b32 v10, 8, %s" % v(vL))
                a("v_mov_b32 v11, 0")
                a("s_mov_b64 exec, 0xff")
                a("buffer_store_dword v11, v10, %s, %s offen sc0 sc1" % (s(R_WS, 4), s(sT1)))
                a("s_mov_b64 exec, -1")
                a.label(nohint)
        if c.local:
            a("s_and_b32 %s, s2, 7" % s(sT1))
            a("s_lshl_b32 %s, %s, 5" % (s(sT1), s(sT1)))
            a("s_lshr_b32 %s, s2, 3" % s(sUS))
            a("s_add_u32 %s, %s, %s" % (s(sUS), s(sUS), s(sT1)))
        else:
            a("s_mov_b32 %s, s2" % s(sUS))
        a("s_cmp_ge_u32 %s, 0x80" % s(sQT))
        a("s_cselect_b32 %s, %s, %s" % (s(R_QW), s(P_WQB), s(P_WQA)))
        a("s_cselect_b32 %s, %s, %s" % (s(R_QW + 1), s(P_WQB + 1), s(P_WQA + 1)))
        a("s_mov_b32 %s, 4718592" % s(R_QW + 2))
        a("s_mov_b32 %s, 0x20000" % s(R_QW + 3))
        for t in range(9):
            a("buffer_load_ushort %s, %s, %s, 0 offen offset:%d" % (v(204 + t), v(vA0), s(R_X, 4), 16 * t))
        for t in range(9):
            a("buffer_load_dwordx4 %s, %s, %s, %s offen %s" % (v(168 + 4 * t, 4), v(vA1), s(R_QW, 4), s(sOFF), c.nt))
            if t < 8:
                a("s_add_u32 %s, %s, 0x10000" % (s(sOFF), s(sOFF)))
        self.srd(R_UK, P_UK, "4194304")
        a("v_lshrrev_b32 %s, 4, %s" % (v(vA0), v(vL)))
        a("v_lshlrev_b32 %s, 15, %s" % (v(vA0), v(vA0)))
        a("v_and_b32 %s, 15, %s" % (v(vA2), v(vL)))
        a("v_lshlrev_b32 %s, 4, %s" % (v(vA2), v(vA2)))
        a("v_add_u32 %s, %s, %s" % (v(vA0), v(vA0), v(vA2)))
        a("s_and_b32 %s, %s, 7" % (s(sT1), s(sUS)))
        a("s_lshl_b32 %s, %s, 2" % (s(sT1), s(sT1)))
        a("s_add_u32 %s, %s, %s" % (s(sT1), s(sT1), s(sW)))
        a("s_lshl_b32 %s, %s, 17" % (s(sT1), s(sT1)))
        a("s_lshr_b32 %s, %s, 3" % (s(sT2), s(sUS)))
        a("s_lshl_b32 %s, %s, 8" % (s(sT2), s(sT2)))
        a("s_add_u32 %s, %s, %s" % (s(sT1), s(sT1), s(sT2)))
        for t in range(4):
            a("buffer_load_dwordx4 %s, %s, %s, %s offen %s" % (v(UKW + 4 * t, 4), v(vA0), s(R_UK, 4), s(sT1), c.nt))
            if t < 3:
                a("s_add_u32 %s, %s, 0x2000" % (s(sT1), s(sT1)))
        if not c.dyn:
            self.srd(R_WS, P_WS, "0x%x" % WS_SIZE)
        self.stamp(0)
        a("s_cmp_lt_u32 s2, %d" % self.NA)
        a("s_cbranch_scc1 L_a_pre")
        self.b_pre()
        a("s_branch L_q")
        a.label("L_a_pre")
        self.a_pre()
        a.label("L_q")

    def b_pre(self):
        a, c = self.a, self.c
        a("s_sub_u32 %s, s2, %d" % (s(sB), self.NA))
        if c.local:
            a("s_lshr_b32 %s, %s, 3" % (s(sJM), s(sB)))
            a("s_and_b32 %s, s2, 7" % s(sG))
            a("s_lshl_b32 %s, %s, 1" % (s(sG), s(sG)))
            a("s_cmp_ge_u32 %s, %d" % (s(sJM), self.NP))
            a("s_cselect_b32 %s, %d, 0" % (s(sT1), self.NP))
            a("s_addc_u32 %s, %s, 0" % (s(sG), s(sG)))
            a("s_sub_u32 %s, %s, %s" % (s(sJM), s(sJM), s(sT1)))
            a("s_mul_i32 %s, %s, %d" % (s(sB), s(sG), self.NP))
            a("s_add_u32 %s, %s, %s" % (s(sB), s(sB), s(sJM)))
        else:
            a("s_mul_i32 %s, %s, %d" % (s(sG), s(sB), self.MAGIC))
            a("s_lshr_b32 %s, %s, 16" % (s(sG), s(sG)))
            a("s_mul_i32 %s, %s, %d" % (s(sT1), s(sG), self.NP))
            a("s_sub_u32 %s, %s, %s" % (s(sJM), s(sB), s(sT1)))
        a("s_lshl_b32 %s, %s, 2" % (s(sT1), s(sJM)))
        a("s_add_u32 %s, %s, %s" % (s(sT1), s(sT1), s(sW)))
        if c.dyn:
            a("s_mul_i32 %s, %s, %d" % (s(sOFF), s(sT1), c.sblk * c.nq * 1024))
            a("s_lshl_b32 %s, %s, 22" % (s(sT2), s(sG)))
            self.srd(R_K, P_K, "0x400000", s(sT2))
            self.srd(R_V, P_V, "0x400000", s(sT2))
            self.srd(R_K2, P_K, "0", s(sT2))
            self.srd(R_V2, P_V, "0", s(sT2))
            for i in range(c.nq):
                self.kv_load(40 + 4 * i, R_K, i)
            a("s_add_u32 %s, %s, 16" % (s(sX1), s(sG)))
            self.mask64(sMSK, 0xFF00FF00)
            a("s_waitcnt vmcnt(%d)" % (c.nq + 4))
            return
        a("s_mul_i32 %s, %s, %d" % (s(sT2), s(sT1), self.QB))
        a("s_min_u32 %s, %s, %d" % (s(sT3), s(sT1), self.QX))
        a("s_add_u32 %s, %s, %s" % (s(sT2), s(sT2), s(sT3)))
        a("s_lshl_b32 %s, %s, 10" % (s(sT2), s(sT2)))
        a("s_lshl_b32 %s, %s, 22" % (s(sT3), s(sG)))
        a("s_add_u32 %s, %s, %s" % (s(sT2), s(sT2), s(sT3)))
        ksz = (self.QB + 1) * 1024
        self.srd(R_K, P_K, str(ksz), s(sT2))
        self.srd(R_V, P_V, str(ksz), s(sT2))
        a("s_cmp_lt_u32 %s, %d" % (s(sT1), self.QX))
        a("s_cselect_b32 %s, %d, 0" % (s(sT3), ksz))
        a("s_cselect_b32 %s, 0, 0xff800000" % s(sBIAS))
        self.srd(R_K2, P_K, s(sT3), s(sT2))
        self.srd(R_V2, P_V, s(sT3), s(sT2))
        a("s_mov_b32 %s, %d" % (s(sT1), (self.QB - 1) * 1024))
        a("buffer_load_dwordx4 %s, %s, %s, %s offen %s" % (v(104, 4), v(vO16), s(R_K, 4), s(sT1), c.nt))
        a("buffer_load_dwordx4 %s, %s, %s, %s offen offset:1024 %s" % (v(108, 4), v(vO16), s(R_K2, 4), s(sT1), c.nt))
        a("s_mov_b32 %s, 0" % s(sOFF))
        for i in range(c.nq):
            self.kv_load(40 + 4 * i, R_K, i)
        a("s_add_u32 %s, %s, 16" % (s(sX1), s(sG)))
        self.mask64(sMSK, 0xFF00FF00)
        a("s_waitcnt vmcnt(%d)" % (c.nq + 6))

    def kv_load(self, reg, srd, i, off=None):
        a, c = self.a, self.c
        off = sOFF if off is None else off
        if i < 4:
            so = s(off)
        else:
            if i % 4 == 0:
                a("s_add_u32 %s, %s, %d" % (s(sT4), s(off), 4096 * (i // 4)))
            so = s(sT4)
        o = " offset:%d" % (1024 * (i % 4)) if i % 4 else ""
        a("buffer_load_dwordx4 %s, %s, %s, %s offen%s %s" % (v(reg, 4), v(vO16), s(srd, 4), so, o, c.nt))

    def a_pre(self):
        a, c = self.a, self.c
        self.srd(R_K, P_V, "0")
        self.srd(R_UV, P_UV, "4194304")
        self.srd(R_V2, P_V, "0")
        a("s_mul_i32 %s, s2, %d" % (s(sT2), self.KEYS * 1024))
        self.srd(R_C, P_C, str(self.KEYS * 1024), s(sT2))
        a("s_waitcnt vmcnt(4)")

    def q_phase(self):
        a, c = self.a, self.c
        self.stamp(1)
        a("v_and_b32 %s, 1, %s" % (v(vA0), v(vL)))
        a("v_lshlrev_b32 %s, 4, %s" % (v(vA0), v(vA0)))
        a("v_mov_b32 %s, 0xffff" % v(vA1))
        a("v_lshlrev_b32 %s, %s, %s" % (v(vA1), v(vA0), v(vA1)))
        for i in range(4):
            self.mask64(sMS2, 0x03030303 << (2 * i))
            a("v_cndmask_b32 %s, 0, %s, %s" % (v(vM[i]), v(vA1), s(sMS2, 2)))
        for t in range(9):
            a("v_lshl_or_b32 %s, %s, 16, %s" % (v(204 + t), v(204 + t), v(204 + t)))
        for t in range(9):
            self.delta_mfma(222, v(168 + 4 * t, 4), 204 + t, 214 + 4 * (t & 1), t == 0)
        a("v_lshrrev_b32 %s, 4, %s" % (v(vA0), v(vL)))
        a("v_and_b32 %s, 1, %s" % (v(vA1), v(vA0)))
        a("v_lshlrev_b32 %s, 10, %s" % (v(vA1), v(vA1)))
        a("v_lshrrev_b32 %s, 1, %s" % (v(vA0), v(vA0)))
        a("v_lshlrev_b32 %s, 2, %s" % (v(vA0), v(vA0)))
        a("v_add_u32 %s, %s, %s" % (v(vA0), v(vA0), v(vA1)))
        a("v_and_b32 %s, 7, %s" % (v(vA1), v(vL)))
        a("v_lshlrev_b32 %s, 5, %s" % (v(vA1), v(vA1)))
        a("s_lshl_b32 %s, %s, 3" % (s(sT1), s(sW)))
        a("s_add_u32 %s, %s, %d" % (s(sT1), s(sT1), LQ))
        a("v_add3_u32 %s, %s, %s, %s" % (v(vA0), v(vA0), v(vA1), s(sT1)))
        self.mask64(sMS2, 0x00FF00FF, 0xFF00FF00)
        a("s_mov_b64 exec, %s" % s(sMS2, 2))
        for r in range(4):
            a("ds_write_b32 %s, %s offset:%d" % (v(vA0), v(222 + r), 256 * r))
        a("s_mov_b64 exec, -1")
        a("s_waitcnt lgkmcnt(0)")
        a("s_add_u32 %s, %s, 0x%x" % (s(sTAG), s(sTAG), EPOCH_STEP))
        a("s_barrier")
        skip = self.lab("qpub")
        a("s_cmp_lg_u32 %s, 0" % s(sW))
        a("s_cbranch_scc1 %s" % skip)
        a("v_lshlrev_b32 %s, 5, %s" % (v(vA0), v(vL)))
        a("v_add_u32 %s, %d, %s" % (v(vA0), LQ, v(vA0)))
        a("ds_read_b128 %s, %s" % (v(226, 4), v(vA0)))
        a("ds_read_b128 %s, %s offset:16" % (v(230, 4), v(vA0)))
        a("v_bfe_u32 %s, %s, 1, 2" % (v(vA1), v(vL)))
        a("v_lshlrev_b32 %s, 10, %s" % (v(vA1), v(vA1)))
        a("v_lshrrev_b32 %s, 3, %s" % (v(vA2), v(vL)))
        a("v_lshlrev_b32 %s, 4, %s" % (v(vA2), v(vA2)))
        a("v_add_u32 %s, %s, %s" % (v(vA1), v(vA1), v(vA2)))
        a("v_and_b32 %s, 1, %s" % (v(vA2), v(vL)))
        a("v_lshlrev_b32 %s, 3, %s" % (v(vA2), v(vA2)))
        a("v_add_u32 %s, %s, %s" % (v(vA1), v(vA1), v(vA2)))
        a("s_lshr_b32 %s, %s, 3" % (s(sT1), s(sQT)))
        a("s_lshl_b32 %s, %s, 12" % (s(sT1), s(sT1)))
        a("s_bfe_u32 %s, %s, 0x10002" % (s(sT2), s(sQT)))
        a("s_lshl_b32 %s, %s, 9" % (s(sT2), s(sT2)))
        a("s_add_u32 %s, %s, %s" % (s(sT1), s(sT1), s(sT2)))
        a("s_and_b32 %s, %s, 1" % (s(sT2), s(sQT)))
        a("s_lshl_b32 %s, %s, 8" % (s(sT2), s(sT2)))
        a("s_add_u32 %s, %s, %s" % (s(sT1), s(sT1), s(sT2)))
        a("s_bfe_u32 %s, %s, 0x10001" % (s(sT2), s(sQT)))
        a("s_lshl_b32 %s, %s, 7" % (s(sT2), s(sT2)))
        a("s_add_u32 %s, %s, %s" % (s(sT1), s(sT1), s(sT2)))
        a("s_add_u32 %s, %s, 0x%x" % (s(sT1), s(sT1), WS_X1))
        a("s_waitcnt lgkmcnt(0)")
        a("v_add_f32 v226, v226, v227")
        a("v_add_f32 v228, v228, v229")
        a("v_add_f32 v230, v230, v231")
        a("v_add_f32 v232, v232, v233")
        a("v_add_f32 v226, v226, v228")
        a("v_add_f32 v230, v230, v232")
        a("v_add_f32 v226, v226, v230")
        a("v_mul_f32 v226, %s, v226" % f32(C_SCALE))
        a("v_mov_b32 v227, %s" % s(sTAG))
        a("buffer_store_dwordx2 v[226:227], %s, %s, %s offen sc0 sc1" % (v(vA1), s(R_WS, 4), s(sT1)))
        a.label(skip)
        self.stamp(2)

    def x1_issue(self, base, soff):
        self.a("buffer_load_dwordx4 %s, %s, %s, %s offen sc1" % (v(base, 4), v(vO16), s(R_WS, 4), s(soff)))

    def x1_pack(self, bases):
        a = self.a
        a("s_lshl_b32 %s, %s, 2" % (s(sT1), s(sW)))
        a("s_add_u32 %s, %s, %d" % (s(sT1), s(sT1), LX))
        a("v_add_u32 %s, %s, %s" % (v(vA0), s(sT1), v(vO16)))
        for b in bases:
            a("v_mov_b32 %s, %s" % (v(b + 1), v(b)))
            a("v_mov_b32 %s, %s" % (v(b + 3), v(b + 2)))
        for b in bases:
            a("v_permlane16_swap_b32 %s, %s" % (v(b), v(b + 1)))
            a("v_permlane16_swap_b32 %s, %s" % (v(b + 2), v(b + 3)))
        for b in bases:
            a("v_add_f32 %s, %s, %s" % (v(b), v(b), v(b + 1)))
            a("v_add_f32 %s, %s, %s" % (v(b + 2), v(b + 2), v(b + 3)))
        for b in bases:
            a("v_cvt_pk_bf16_f32 %s, %s, %s" % (v(b), v(b), v(b + 2)))
        for i, b in enumerate(bases):
            a("ds_write_b32 %s, %s offset:%d" % (v(vA0), v(b), 1024 * i))
        a("v_add_u32 %s, %d, %s" % (v(vA0), LX, v(vO16)))
        a("s_waitcnt lgkmcnt(0)")
        a("s_barrier")

    def x1_select(self, region, tmp, mask, dst0, dst1=None):
        a = self.a
        a("ds_read_b128 %s, %s offset:%d" % (v(tmp, 4), v(vA0), 1024 * region))
        a("s_waitcnt lgkmcnt(0)")
        for k in range(4):
            a("v_mov_b32 %s, %s" % (v(tmp + 4 + k), v(tmp + k)))
        for k in range(4):
            a("v_permlane32_swap_b32 %s, %s" % (v(tmp + k), v(tmp + 4 + k)))
        for k in range(4):
            a("v_cndmask_b32 %s, %s, %s, %s" % (v(dst0 + k), v(tmp + k), v(tmp + 4 + k), s(mask, 2)))
            if dst1 is not None:
                a("v_cndmask_b32 %s, %s, %s, %s" % (v(dst1 + k), v(tmp + 4 + k), v(tmp + k), s(mask, 2)))

    def uk_slice(self):
        a = self.a
        S, quad = UKS, UKQ
        a("s_bitcmp1_b32 %s, 3" % s(sUS))
        a("s_cselect_b64 %s, -1, 0" % s(sMS2, 2))
        self.x1_select(0, 242, sMS2, QU)
        for j in range(4):
            for t in range(4):
                a("v_dot2_f32_bf16 %s, %s, %s, %s" % (v(S + t), v(UKW + 4 * t + j), v(QU + j), "0" if j == 0 else v(S + t)))
        for m in ("row_ror:8", "quad_perm:[1,0,3,2]", "quad_perm:[2,3,0,1]", "row_half_mirror"):
            for t in range(4):
                a("v_add_f32_dpp %s, %s, %s %s row_mask:0xf bank_mask:0xf" % (v(S + t), v(S + t), v(S + t), m))
        a("v_cvt_pk_bf16_f32 %s, %s, %s" % (v(quad), v(S), v(S + 1)))
        a("v_cvt_pk_bf16_f32 %s, %s, %s" % (v(quad + 2), v(S + 2), v(S + 3)))
        a("v_mov_b32 %s, %s" % (v(quad + 1), s(sTAG)))
        a("v_mov_b32 %s, %s" % (v(quad + 3), s(sTAG)))
        a("s_lshl_b32 %s, %s, 8" % (s(sT1), s(sUS)))
        a("s_lshl_b32 %s, %s, 6" % (s(sT2), s(sW)))
        a("s_add_u32 %s, %s, %s" % (s(sT1), s(sT1), s(sT2)))
        a("s_add_u32 %s, %s, 0x%x" % (s(sT1), s(sT1), WS_X2))
        self.mask64(sMS2, 0x00010001)
        a("s_mov_b64 exec, %s" % s(sMS2, 2))
        a("buffer_store_dwordx4 %s, %s, %s, %s offen sc0 sc1" % (v(quad, 4), v(vL), s(R_WS, 4), s(sT1)))
        a("s_mov_b64 exec, -1")

    def q_gather(self):
        a, c = self.a, self.c
        assert c.nq <= 4
        a("s_lshr_b32 %s, %s, 4" % (s(sT5), s(sUS)))
        a("s_lshl_b32 %s, %s, 12" % (s(sT5), s(sT5)))
        a("s_lshl_b32 %s, %s, 10" % (s(sT1), s(sW)))
        a("s_add_u32 %s, %s, 0x%x" % (s(sT1), s(sT1), WS_X1))
        a("s_add_u32 %s, %s, %s" % (s(sT5), s(sT5), s(sT1)))
        a("s_cmp_lt_u32 s2, %d" % self.NA)
        a("s_cbranch_scc1 L_a_main")
        a("s_lshl_b32 %s, %s, 12" % (s(sX1), s(sX1)))
        a("s_add_u32 %s, %s, %s" % (s(sX1), s(sX1), s(sT1)))
        self.tail_setup()
        ne = 16 - c.td - c.td2
        self.tail_loads(0, min(c.t0, ne) if ne < 16 else c.t0)
        if not c.dyn:
            a("s_mov_b32 %s, %d" % (s(sT1), (self.QB - 1) * 1024))
            a("buffer_load_dwordx4 %s, %s, %s, %s offen %s" % (v(112, 4), v(vO16), s(R_V, 4), s(sT1), c.nt))
            a("buffer_load_dwordx4 %s, %s, %s, %s offen offset:1024 %s" % (v(116, 4), v(vO16), s(R_V2, 4), s(sT1), c.nt))
        for i in range(c.nq):
            self.kv_load(72 + 4 * i, R_V, i)

        def issue():
            self.x1_issue(X1A, sT5)
            self.x1_issue(X1A + 4, sX1)

        def check():
            self.tagcheck(242, [X1A + 1, X1A + 3, X1A + 5, X1A + 7])
            a("v_cmp_ne_u32 vcc, 0, v242")

        self.poll("x1", issue, check)
        self.stamp(11)
        if c.pre2:
            assert c.dyn and c.g1 and c.td + c.td2 >= 8 and c.nq == 4
            a("s_add_u32 %s, %s, %d" % (s(sT5), s(sOFF), c.nq * 1024))
            for i in range(c.nq):
                self.kv_load(172 + 4 * i, R_K, i, sT5)
            for i in range(c.nq):
                self.kv_load(188 + 4 * i, R_V, i, sT5)
        self.x1_pack([X1A, X1A + 4])
        self.uk_slice()
        self.stamp(10)
        if ne < 16:
            self.tail_loads(min(c.t0, ne), ne)
            self.tail_loads(16, 20)
        else:
            self.tail_loads(c.t0, 20)
        if c.dyn:
            a("s_mul_i32 %s, %s, %d" % (s(sB2), s(sG), c.cstride))
            a("s_add_u32 %s, %s, 0x%x" % (s(sB2), s(sB2), WS_CNT))
            a("v_mov_b32 v134, 0")
            if c.g1:
                a("s_lshl_b32 %s, %s, 2" % (s(sT1), s(sJM)))
                a("s_add_u32 %s, %s, %s" % (s(sT1), s(sT1), s(sW)))
                a("s_sub_u32 %s, %s, %d" % (s(sT1), s(sT1), 4 * self.NP))
                a("v_mov_b32 %s, %s" % (v(vAT), s(sT1)))
            else:
                self.grab()
        self.x1_select(1, 242, sMSK, 32, 36)
        self.stamp(3)

    def b_block(self, nq, kreg, vreg, kwait, vwait, knext, vnext, masked_last=False):
        a = self.a
        SA, SB, O, M, L = 16, 24, 10, 14, 15
        for i in range(nq):
            a("s_waitcnt vmcnt(%d)" % kwait(i))
            k = kreg + 4 * i
            for j in range(4):
                a("v_dot2_f32_bf16 %s, %s, %s, %s" % (v(SA + i), v(k + j), v(32 + j), "0" if j == 0 else v(SA + i)))
                a("v_dot2_f32_bf16 %s, %s, %s, %s" % (v(SB + i), v(k + j), v(36 + j), "0" if j == 0 else v(SB + i)))
            knext(i)
        for i in range(nq):
            a("v_add_f32_dpp %s, %s, %s row_ror:8 row_mask:0xf bank_mask:0xf" % (v(SA + i), v(SB + i), v(SA + i)))
        for m in ("quad_perm:[1,0,3,2]", "quad_perm:[2,3,0,1]", "row_half_mirror"):
            for i in range(nq):
                a("v_add_f32_dpp %s, %s, %s %s row_mask:0xf bank_mask:0xf" % (v(SA + i), v(SA + i), v(SA + i), m))
        if masked_last:
            a("v_add_f32 %s, %s, %s" % (v(SA + nq - 1), s(sBIAS), v(SA + nq - 1)))
        BM, T, AL = 130, 131, 132
        a("v_max_f32 %s, %s, %s" % (v(BM), v(SA), v(SA + 1)))
        i = 2
        while i < nq:
            if i + 1 < nq:
                a("v_max3_f32 %s, %s, %s, %s" % (v(BM), v(BM), v(SA + i), v(SA + i + 1)))
                i += 2
            else:
                a("v_max_f32 %s, %s, %s" % (v(BM), v(BM), v(SA + i)))
                i += 1
        self.allsum_g(BM, T, "v_max_f32")
        a("v_max_f32 %s, %s, %s" % (v(BM), v(BM), v(M)))
        a("v_sub_f32 %s, %s, %s" % (v(AL), v(M), v(BM)))
        for i in range(nq):
            a("v_sub_f32 %s, %s, %s" % (v(SA + i), v(SA + i), v(BM)))
        a("v_exp_f32 %s, %s" % (v(AL), v(AL)))
        for i in range(nq):
            a("v_exp_f32 %s, %s" % (v(SA + i), v(SA + i)))
        a("v_mov_b32 %s, %s" % (v(M), v(BM)))
        a("v_mul_f32 %s, %s, %s" % (v(L), v(L), v(AL)))
        for r in range(4):
            a("v_mul_f32 %s, %s, %s" % (v(O + r), v(O + r), v(AL)))
        for i in range(nq):
            a("v_cvt_pk_bf16_f32 %s, %s, %s" % (v(SB + i), v(SA + i), v(SA + i)))
        for i in range(nq):
            a("v_add_f32 %s, %s, %s" % (v(L), v(L), v(SA + i)))
        for i in range(nq):
            bt = 122 + 4 * (i & 1)
            for j in range(4):
                a("v_and_b32 %s, %s, %s" % (v(bt + j), v(vM[j]), v(SB + i)))
            a("s_waitcnt vmcnt(%d)" % vwait(i))
            a("v_mfma_f32_16x16x32_bf16 %s, %s, %s, %s" % (v(O, 4), v(vreg + 4 * i, 4), v(bt, 4), v(O, 4)))
            vnext(i)

    def tail_setup(self):
        a, c = self.a, self.c
        a("s_and_b32 %s, %s, 1" % (s(sT1), s(sW)))
        a("s_lshl_b32 %s, %s, 1" % (s(sT2), s(sG)))
        a("s_add_u32 %s, %s, %s" % (s(sT1), s(sT1), s(sT2)))
        a("s_mul_i32 %s, %s, %d" % (s(sT1), s(sT1), 128 * 1152))
        a("s_lshl_b32 %s, %s, 7" % (s(sT2), s(sJM)))
        a("s_add_u32 %s, %s, %s" % (s(sTW), s(sT1), s(sT2)))
        a("s_cmp_ge_u32 %s, 2" % s(sW))
        a("s_cselect_b32 %s, %s, %s" % (s(R_TW), s(P_WOA), s(P_WOB)))
        a("s_cselect_b32 %s, %s, %s" % (s(R_TW + 1), s(P_WOA + 1), s(P_WOB + 1)))
        a("s_cmp_lt_u32 %s, 9" % s(sJM))
        a("s_cselect_b32 %s, 4718592, 0" % s(R_TW + 2))
        a("s_cselect_b32 %s, 1152, 0" % s(sT3))
        a("s_mov_b32 %s, 0x20000" % s(R_TW + 3))
        self.srd(R_G, P_G, s(sT3))
        a("s_mov_b32 %s, %s" % (s(R_X + 2), s(sT3)))
        a("v_lshrrev_b32 v250, 3, %s" % v(vL))
        a("v_mul_u32_u24 v250, 1152, v250")
        a("v_and_b32 %s, 7, %s" % (v(vA1), v(vL)))
        a("v_lshlrev_b32 %s, 4, %s" % (v(vA1), v(vA1)))
        a("v_add_u32 v250, v250, %s" % v(vA1))

    def tail_loads(self, n0, n1):
        a, c = self.a, self.c
        for t in range(n0, n1):
            if t < 16:
                a("buffer_load_dwordx4 %s, v250, %s, %s offen %s" % (v(140 + 4 * t, 4), s(R_TW, 4), s(sTW), c.nt))
                if t < 15:
                    a("s_add_u32 %s, %s, 9216" % (s(sTW), s(sTW)))
            else:
                i = t - 16
                o = " offset:1024" if i & 1 else ""
                a("buffer_load_dwordx4 %s, %s, %s, 0 offen%s" % (v(204 + 4 * i, 4), v(vO16), s(R_X if i < 2 else R_G, 4), o))

    def grab(self):
        a = self.a
        a("v_mov_b32 %s, 1" % v(vAT))
        a("s_mov_b64 exec, 1")
        if self.c.diag == 1:
            for _ in range(2):
                a("buffer_atomic_add v134, v134, %s, %s offen sc1" % (s(R_WS, 4), s(sB2)))
        a("buffer_atomic_add %s, v134, %s, %s offen sc0 sc1" % (v(vAT), s(R_WS, 4), s(sB2)))
        a("s_mov_b64 exec, -1")

    def b_main_dyn(self):
        a, c = self.a, self.c
        nq, S = c.nq, c.sblk
        assert 4096 % nq == 0
        nblk = 4096 // nq
        nstat = S * 4 * self.NP
        for r in range(4):
            a("v_mov_b32 %s, 0" % v(10 + r))
        a("v_mov_b32 v14, 0xff800000")
        a("v_mov_b32 v15, 0")
        self.stamp(4)
        loop = self.lab("b_loop")
        if c.pre2:
            a("s_add_u32 %s, %s, %d" % (s(sT5), s(sOFF), 2 * nq * 1024))
            self.b_block(nq, 40, 72, lambda i: 63, lambda i: 63,
                         lambda i: self.kv_load(40 + 4 * i, R_K, i, sT5),
                         lambda i: self.kv_load(72 + 4 * i, R_V, i, sT5))
            ne0 = 16 - c.td - c.td2
            ex = 1 + (ne0 - min(c.t0, ne0)) + 4
            self.b_block(nq, 172, 188, lambda i: 4 * nq - 1 - i + ex, lambda i: 3 * nq - 1 - i + ex,
                         lambda i: None, lambda i: None)
            a("s_mov_b32 %s, %s" % (s(sOFF), s(sT5)))
        a("s_movk_i32 %s, %d" % (s(sIT), S - 1 - (2 if c.pre2 else 0)))
        a.label(loop)
        a("s_add_u32 %s, %s, %d" % (s(sT5), s(sOFF), nq * 1024))
        self.b_block(nq, 40, 72, lambda i: 2 * nq - 1, lambda i: 2 * nq - 1,
                     lambda i: self.kv_load(40 + 4 * i, R_K, i, sT5),
                     lambda i: self.kv_load(72 + 4 * i, R_V, i, sT5))
        a("s_mov_b32 %s, %s" % (s(sOFF), s(sT5)))
        if c.bstamp:
            self.stamp_it(0, 1)
        a("s_sub_u32 %s, %s, 1" % (s(sIT), s(sIT)))
        a("s_cmp_lg_u32 %s, 0" % s(sIT))
        a("s_cbranch_scc1 %s" % loop)
        self.stamp(14)
        if c.gearly:
            self.gate()
        dyn, last = self.lab("b_dyn"), self.lab("b_last")
        a.label(dyn)
        a("s_waitcnt vmcnt(%d)" % (2 * nq - 1))
        a("v_readfirstlane_b32 %s, %s" % (s(sT5), v(vAT)))
        if c.g1:
            a("s_add_u32 %s, %s, %d" % (s(sT5), s(sT5), 4 * self.NP))
        a("s_cmp_ge_u32 %s, %d" % (s(sT5), nblk - nstat))
        a("s_cbranch_scc1 %s" % last)
        if c.gk:
            fin = self.lab("b_fin")
            a("s_cmp_ge_u32 %s, %d" % (s(sT5), nblk - nstat - c.gk))
            a("s_cbranch_scc1 %s" % fin)
        self.grab()
        a("s_add_u32 %s, %s, %d" % (s(sT5), s(sT5), nstat))
        a("s_mul_i32 %s, %s, %d" % (s(sT5), s(sT5), nq * 1024))
        xa = 2 if c.diag == 1 else 0
        self.b_block(nq, 40, 72, lambda i: 2 * nq + xa if i == 0 else 2 * nq + xa, lambda i: 2 * nq + xa,
                     lambda i: self.kv_load(40 + 4 * i, R_K, i, sT5),
                     lambda i: self.kv_load(72 + 4 * i, R_V, i, sT5))
        if c.debug:
            a("s_add_u32 %s, %s, 1" % (s(sIT), s(sIT)))
        a("s_branch %s" % dyn)
        if c.gk:
            a.label(fin)
            a("s_add_u32 %s, %s, %d" % (s(sT5), s(sT5), nstat))
            a("s_mul_i32 %s, %s, %d" % (s(sT5), s(sT5), nq * 1024))
            self.b_block(nq, 40, 72, lambda i: 2 * nq - 1, lambda i: 2 * nq - 1,
                         lambda i: self.kv_load(40 + 4 * i, R_K, i, sT5),
                         lambda i: self.kv_load(72 + 4 * i, R_V, i, sT5))
            if c.debug:
                a("s_add_u32 %s, %s, 1" % (s(sIT), s(sIT)))
        a.label(last)
        self.stamp(5)
        if c.debug:
            a("v_writelane_b32 %s, %s, 15" % (v(vSTAMP), s(sIT)))
        ne = 16 - c.td - c.td2
        cnt = [c.td // 8 + (1 if j < c.td % 8 else 0) for j in range(8)]
        if c.tdv:
            cnt = [0] * 4 + [c.td // 4 + (1 if j < c.td % 4 else 0) for j in range(4)]
        assert nq == 4 or c.td == 0
        pos = [ne + sum(cnt[:j]) for j in range(9)]
        self.b_block(nq, 40, 72, lambda i: 2 * nq - 1 - i + sum(cnt[:i]),
                     lambda i: nq - 1 - i + sum(cnt[:nq + i]),
                     lambda i: self.tail_loads(pos[i], pos[i + 1]),
                     lambda i: self.tail_loads(pos[nq + i], pos[nq + i + 1]))
        self.stamp(6)
        if not c.gearly:
            self.gate()
        self.b_epilogue()

    def b_main(self):
        a, c = self.a, self.c
        if c.dyn:
            return self.b_main_dyn()
        nq = c.nq
        assert (self.QB - 1) % nq == 0
        nb = (self.QB - 1) // nq
        for r in range(4):
            a("v_mov_b32 %s, 0" % v(10 + r))
        a("v_mov_b32 v14, 0xff800000")
        a("v_mov_b32 v15, 0")
        self.b_block(2, 104, 112, lambda i: 63, lambda i: 63, lambda i: None, lambda i: None,
                     masked_last=True)
        self.stamp(4)
        loop = self.lab("b_loop")
        a("s_movk_i32 %s, %d" % (s(sIT), nb - 1))
        a.label(loop)
        a("s_add_u32 %s, %s, %d" % (s(sT5), s(sOFF), nq * 1024))
        self.b_block(nq, 40, 72, lambda i: 2 * nq - 1, lambda i: 2 * nq - 1,
                     lambda i: self.kv_load(40 + 4 * i, R_K, i, sT5),
                     lambda i: self.kv_load(72 + 4 * i, R_V, i, sT5))
        a("s_mov_b32 %s, %s" % (s(sOFF), s(sT5)))
        if c.bstamp:
            self.stamp_it(0, 1)
        a("s_sub_u32 %s, %s, 1" % (s(sIT), s(sIT)))
        a("s_cmp_lg_u32 %s, 0" % s(sIT))
        a("s_cbranch_scc1 %s" % loop)
        self.stamp(5)
        self.b_block(nq, 40, 72, lambda i: 2 * nq - 1 - i, lambda i: nq - 1 - i,
                     lambda i: None, lambda i: None)
        self.stamp(6)
        self.gate()
        self.b_epilogue()

    def gate(self):
        a = self.a
        G, X, Wt = 220, 204, 212
        a("v_dot2_f32_bf16 %s, %s, %s, 0" % (v(G), v(X), v(Wt)))
        for j in range(1, 8):
            a("v_dot2_f32_bf16 %s, %s, %s, %s" % (v(G), v(X + j), v(Wt + j), v(G)))
        self.allsum_row(G)
        self.allsum_g(G, 221)
        a("v_mul_f32 %s, %s, %s" % (v(G), f32(-LOG2E), v(G)))
        a("v_exp_f32 %s, %s" % (v(G), v(G)))
        a("v_add_f32 %s, 1.0, %s" % (v(G), v(G)))
        a("v_rcp_f32 %s, %s" % (v(G), v(G)))

    def b_epilogue(self):
        a, c = self.a, self.c
        O, M, L = 10, 14, 15
        self.allsum_g(L, 130)
        a("v_bfe_u32 %s, %s, 3, 1" % (v(vA0), v(vL)))
        a("v_lshlrev_b32 %s, 5, %s" % (v(vA2), v(vA0)))
        a("v_lshlrev_b32 %s, 11, %s" % (v(vA0), v(vA0)))
        a("v_lshrrev_b32 %s, 4, %s" % (v(vA1), v(vL)))
        a("v_lshlrev_b32 %s, 9, %s" % (v(vA1), v(vA1)))
        a("v_add_u32 %s, %s, %s" % (v(vA0), v(vA0), v(vA1)))
        a("v_and_b32 %s, 7, %s" % (v(vA1), v(vL)))
        a("v_lshlrev_b32 %s, 4, %s" % (v(vA1), v(vA1)))
        a("s_lshl_b32 %s, %s, 2" % (s(sT1), s(sW)))
        a("s_add_u32 %s, %s, %d" % (s(sT2), s(sT1), LO))
        a("v_add3_u32 %s, %s, %s, %s" % (v(vA0), v(vA0), v(vA1), s(sT2)))
        a("s_add_u32 %s, %s, %d" % (s(sT2), s(sT1), LML))
        a("v_add_u32 %s, %s, %s" % (v(vA2), s(sT2), v(vA2)))
        for r in range(4):
            a("ds_write_b32 %s, %s offset:%d" % (v(vA0), v(O + r), 128 * r))
        a("ds_write_b32 %s, %s" % (v(vA2), v(M)))
        a("ds_write_b32 %s, %s offset:16" % (v(vA2), v(L)))
        a("s_waitcnt lgkmcnt(0)")
        a("s_barrier")
        skip = self.lab("b_pub")
        a("s_cmp_ge_u32 %s, 2" % s(sW))
        a("s_cbranch_scc1 %s" % skip)
        a("s_lshl_b32 %s, %s, 11" % (s(sT1), s(sW)))
        a("s_add_u32 %s, %s, %d" % (s(sT1), s(sT1), LO))
        a("v_lshlrev_b32 %s, 5, %s" % (v(vA0), v(vL)))
        a("v_add_u32 %s, %s, %s" % (v(vA0), s(sT1), v(vA0)))
        a("s_lshl_b32 %s, %s, 5" % (s(sT1), s(sW)))
        a("s_add_u32 %s, %s, %d" % (s(sT1), s(sT1), LML))
        a("v_mov_b32 %s, %s" % (v(vA1), s(sT1)))
        a("ds_read_b128 v[40:43], %s" % v(vA1))
        a("ds_read_b128 v[44:47], %s offset:16" % v(vA1))
        a("ds_read_b128 v[48:51], %s" % v(vA0))
        a("ds_read_b128 v[52:55], %s offset:16" % v(vA0))
        a("s_lshl_b32 %s, %s, %d" % (s(sT1), s(sB), 11 - c.x4c))
        a("s_lshl_b32 %s, %s, %d" % (s(sT2), s(sW), 10 - c.x4c))
        a("s_add_u32 %s, %s, %s" % (s(sT1), s(sT1), s(sT2)))
        a("s_add_u32 %s, %s, 0x%x" % (s(sT1), s(sT1), WS_X4B))
        a("s_lshl_b32 %s, %s, 1" % (s(sT2), s(sB)))
        a("s_add_u32 %s, %s, %s" % (s(sT2), s(sT2), s(sW)))
        a("s_lshl_b32 %s, %s, 7" % (s(sT2), s(sT2)))
        a("s_add_u32 %s, %s, 0x%x" % (s(sT2), s(sT2), WS_X4L))
        a("s_waitcnt lgkmcnt(2)")
        a("v_max3_f32 v56, v40, v41, v42")
        a("v_max_f32 v56, v56, v43")
        for i in range(4):
            a("v_sub_f32 %s, %s, v56" % (v(40 + i), v(40 + i)))
        for i in range(4):
            a("v_exp_f32 %s, %s" % (v(40 + i), v(40 + i)))
        a("v_mul_f32 v57, v40, v44")
        for i in range(1, 4):
            a("v_fmac_f32 v57, %s, %s" % (v(40 + i), v(44 + i)))
        a("s_waitcnt lgkmcnt(0)")
        a("v_mul_f32 v58, v40, v48")
        a("v_mul_f32 v60, v40, v52")
        for i in range(1, 4):
            a("v_fmac_f32 v58, %s, %s" % (v(40 + i), v(48 + i)))
            a("v_fmac_f32 v60, %s, %s" % (v(40 + i), v(52 + i)))
        a("v_rcp_f32 v62, v57")
        a("v_log_f32 v63, v57")
        a("v_mov_b32 v59, %s" % s(sTAG))
        a("v_mov_b32 v61, %s" % s(sTAG))
        a("v_mul_f32 v58, v58, v62")
        a("v_mul_f32 v60, v60, v62")
        a("v_add_f32 v64, v56, v63")
        a("v_mov_b32 v65, %s" % s(sTAG))
        if c.x4c:
            a("v_cvt_pk_bf16_f32 v58, v58, v60")
            a("v_lshlrev_b32 %s, 3, %s" % (v(vA1), v(vL)))
            a("buffer_store_dwordx2 v[58:59], %s, %s, %s offen sc0 sc1" % (v(vA1), s(R_WS, 4), s(sT1)))
        else:
            a("buffer_store_dwordx4 v[58:61], %s, %s, %s offen sc0 sc1" % (v(vO16), s(R_WS, 4), s(sT1)))
        a("v_mov_b32 %s, 0" % v(vA0))
        a("s_mov_b64 exec, 1")
        a("buffer_store_dwordx2 v[64:65], %s, %s, %s offen sc0 sc1" % (v(vA0), s(R_WS, 4), s(sT2)))
        a("s_mov_b64 exec, -1")
        a.label(skip)
        self.stamp(7)
        a("s_cmp_lt_u32 %s, 9" % s(sJM))
        a("s_cbranch_scc1 L_tail")
        a("s_cmp_lg_u32 %s, 9" % s(sJM))
        a("s_cbranch_scc1 L_done")
        a("s_cmp_ge_u32 %s, 9" % s(sG))
        a("s_cbranch_scc1 L_done")
        a("s_cmp_lg_u32 %s, 0" % s(sW))
        a("s_cbranch_scc1 L_done")
        self.final()
        a.label("L_done")
        self.end()

    def final(self):
        a, c = self.a, self.c
        a("s_lshl_b32 %s, %s, 13" % (s(sT1), s(sG)))
        a("s_add_u32 %s, %s, 0x%x" % (s(sX1), s(sT1), WS_X5))
        a("v_and_b32 %s, 31, %s" % (v(vA0), v(vL)))
        a("v_lshlrev_b32 %s, 4, %s" % (v(vA0), v(vA0)))
        a("v_lshrrev_b32 %s, 5, %s" % (v(vA1), v(vL)))
        a("v_lshlrev_b32 %s, 9, %s" % (v(vA1), v(vA1)))
        a("v_add_u32 %s, %s, %s" % (v(vA0), v(vA0), v(vA1)))
        self.srd(R_OUT, P_OUT, "1152")

        def issue():
            for i in range(8):
                if i == 4:
                    a("s_add_u32 %s, %s, 4096" % (s(sT2), s(sX1)))
                a("buffer_load_dwordx4 %s, %s, %s, %s offen offset:%d sc1" % (
                    v(40 + 4 * i, 4), v(vA0), s(R_WS, 4), s(sX1 if i < 4 else sT2), 1024 * (i % 4)))

        def check():
            self.tagcheck(72, [40 + 4 * i + j for i in range(8) for j in (1, 3)])
            a("v_cmp_ne_u32 vcc, 0, v72")

        self.poll("x5", issue, check)
        self.stamp(12)
        for j in (0, 2):
            for i in (0, 2, 4, 6):
                a("v_add_f32 %s, %s, %s" % (v(40 + 4 * i + j), v(40 + 4 * i + j), v(44 + 4 * i + j)))
        for j in (0, 2):
            a("v_add_f32 %s, %s, %s" % (v(40 + j), v(40 + j), v(48 + j)))
            a("v_add_f32 %s, %s, %s" % (v(56 + j), v(56 + j), v(64 + j)))
        for j in (0, 2):
            a("v_add_f32 %s, %s, %s" % (v(40 + j), v(40 + j), v(56 + j)))
        a("v_mov_b32 v44, v40")
        a("v_mov_b32 v45, v42")
        a("v_permlane32_swap_b32 v40, v44")
        a("v_permlane32_swap_b32 v42, v45")
        a("v_add_f32 v40, v40, v44")
        a("v_add_f32 v42, v42, v45")
        a("v_cvt_pk_bf16_f32 v40, v40, v42")
        a("v_lshlrev_b32 %s, 2, %s" % (v(vA0), v(vL)))
        a("s_lshl_b32 %s, %s, 7" % (s(sT1), s(sG)))
        a("s_mov_b32 exec_hi, 0")
        a("buffer_store_dword v40, %s, %s, %s offen" % (v(vA0), s(R_OUT, 4), s(sT1)))
        done = self.lab("fin")
        a("s_cmp_lg_u32 %s, 0" % s(sG))
        a("s_cbranch_scc1 %s" % done)
        a("v_mov_b32 v41, %s" % s(sTAG))
        a("v_mov_b32 %s, %d" % (v(vA0), WS_EPOCH))
        a("s_mov_b64 exec, 1")
        a("buffer_store_dword v41, %s, %s, 0 offen sc0 sc1" % (v(vA0), s(R_WS, 4)))
        if c.elapsed:
            a("s_memrealtime %s" % s(sST, 2))
            a("s_waitcnt lgkmcnt(0)")
            a("s_sub_u32 %s, %s, s38" % (s(sT1), s(sST)))
            a("v_mov_b32 v41, %s" % s(sT1))
            a("v_mov_b32 %s, 0" % v(vA0))
            self.srd(R_OUT, 34, "256")
            a("buffer_store_dword v41, %s, %s, 0 offen" % (v(vA0), s(R_OUT, 4)))
        a.label(done)
        a("s_mov_b64 exec, -1")
        self.stamp(13)

    def reduce_wu8(self, acc, lds, dst):
        a = self.a
        a("v_lshrrev_b32 %s, 4, %s" % (v(vA0), v(vL)))
        a("v_and_b32 %s, 1, %s" % (v(vA1), v(vA0)))
        a("v_lshlrev_b32 %s, 10, %s" % (v(vA1), v(vA1)))
        a("v_lshrrev_b32 %s, 1, %s" % (v(vA0), v(vA0)))
        a("v_lshlrev_b32 %s, 2, %s" % (v(vA0), v(vA0)))
        a("v_add_u32 %s, %s, %s" % (v(vA0), v(vA0), v(vA1)))
        a("v_and_b32 %s, 7, %s" % (v(vA1), v(vL)))
        a("v_lshlrev_b32 %s, 5, %s" % (v(vA1), v(vA1)))
        a("s_lshl_b32 %s, %s, 3" % (s(sT1), s(sW)))
        a("s_add_u32 %s, %s, %d" % (s(sT1), s(sT1), lds))
        a("v_add3_u32 %s, %s, %s, %s" % (v(vA0), v(vA0), v(vA1), s(sT1)))
        self.mask64(sMS2, 0x00FF00FF, 0xFF00FF00)
        a("s_mov_b64 exec, %s" % s(sMS2, 2))
        for r in range(4):
            a("ds_write_b32 %s, %s offset:%d" % (v(vA0), v(acc + r), 256 * r))
        a("s_mov_b64 exec, -1")
        a("s_waitcnt lgkmcnt(0)")
        a("s_barrier")

    def tail_b_compact(self, G, join2):
        a, c = self.a, self.c
        NP = self.NP
        assert NP % 2 == 0
        NL = NP // 2
        a("s_mul_i32 %s, %s, %d" % (s(sX1), s(sG), NP * 1024))
        a("s_lshl_b32 %s, %s, 9" % (s(sT1), s(sT3)))
        a("s_add_u32 %s, %s, %s" % (s(sX1), s(sX1), s(sT1)))
        a("s_add_u32 %s, %s, 0x%x" % (s(sX1), s(sX1), WS_X4B))
        a("s_mul_i32 %s, %s, %d" % (s(sT5), s(sG), NP * 256))
        a("s_lshl_b32 %s, %s, 7" % (s(sT1), s(sT3)))
        a("s_add_u32 %s, %s, %s" % (s(sT5), s(sT5), s(sT1)))
        a("s_add_u32 %s, %s, 0x%x" % (s(sT5), s(sT5), WS_X4L))
        a("v_and_b32 %s, 15, %s" % (v(vA1), v(vL)))
        a("v_min_u32 %s, %d, %s" % (v(vA1), NL - 1, v(vA1)))
        a("v_lshlrev_b32 %s, 9, %s" % (v(vA1), v(vA1)))
        a("v_lshrrev_b32 %s, 5, %s" % (v(vA0), v(vL)))
        a("v_lshl_add_u32 %s, %s, 8, %s" % (v(vA1), v(vA0), v(vA1)))
        a("v_and_b32 %s, 31, %s" % (v(vA2), v(vL)))
        a("v_lshlrev_b32 %s, 4, %s" % (v(vA2), v(vA2)))
        a("v_lshl_add_u32 %s, %s, 10, %s" % (v(vA0), v(vA0), v(vA2)))

        def issue():
            a("buffer_load_dwordx2 v[96:97], %s, %s, %s offen sc1" % (v(vA1), s(R_WS, 4), s(sT5)))
            a("s_mov_b32 %s, %s" % (s(sT2), s(sX1)))
            for i in range(NL):
                o = " offset:2048" if i & 1 else ""
                a("buffer_load_dwordx4 %s, %s, %s, %s offen%s sc1" % (v(40 + 4 * i, 4), v(vA0), s(R_WS, 4), s(sT2), o))
                if i & 1 and i < NL - 1:
                    a("s_add_u32 %s, %s, 4096" % (s(sT2), s(sT2)))

        def check():
            self.tagcheck(98, [97] + [40 + 4 * i + j for i in range(NL) for j in (1, 3)])
            a("v_cmp_ne_u32 vcc, 0, v98")

        self.poll("x4c", issue, check)
        self.stamp(8)
        a("v_mov_b32 v98, v96")
        self.allsum_row(98, "v_max_f32")
        a("v_mov_b32 v99, v98")
        a("v_permlane32_swap_b32 v98, v99")
        a("v_max_f32 v98, v98, v99")
        a("v_sub_f32 v96, v96, v98")
        a("v_exp_f32 v96, v96")
        self.mask64(sMS2, ((1 << NL) - 1) * 0x10001)
        a("v_cndmask_b32 v96, 0, v96, %s" % s(sMS2, 2))
        a("v_mov_b32 v98, v96")
        self.allsum_row(98)
        a("v_mov_b32 v99, v98")
        a("v_permlane32_swap_b32 v98, v99")
        a("v_add_f32 v98, v98, v99")
        a("v_rcp_f32 v98, v98")
        for i in range(NL):
            for k in range(2):
                q = 40 + 4 * i + 2 * k
                a("v_and_b32 %s, 0xffff0000, %s" % (v(q + 1), v(q)))
                a("v_lshlrev_b32 %s, 16, %s" % (v(q), v(q)))
        a("v_mul_f32 v96, v96, v98")
        for i in range(NL):
            for k in range(4):
                op = "v_mul_f32_dpp" if i == 0 else "v_fmac_f32_dpp"
                a("%s %s, v96, %s row_newbcast:%d row_mask:0xf bank_mask:0xf" % (op, v(100 + k), v(40 + 4 * i + k), i))
        for k in range(4):
            a("v_mov_b32 %s, %s" % (v(104 + k), v(100 + k)))
        for k in range(4):
            a("v_permlane32_swap_b32 %s, %s" % (v(100 + k), v(104 + k)))
        for k in range(4):
            a("v_add_f32 %s, %s, %s" % (v(100 + k), v(100 + k), v(104 + k)))
        for k in range(4):
            a("v_cvt_pk_bf16_f32 %s, %s, %s" % (v(100 + k), v(100 + k), v(100 + k)))
        a("s_lshl_b32 %s, %s, 9" % (s(sT1), s(sW)))
        a("s_add_u32 %s, %s, %d" % (s(sT1), s(sT1), LT))
        a("v_add_u32 %s, %s, %s" % (v(vA0), s(sT1), v(vA2)))
        a("ds_write_b128 %s, v[100:103]" % v(vA0))
        a("s_branch %s" % join2)

    def tail(self):
        a, c = self.a, self.c
        a.label("L_tail")
        self.tail_loads(16 - c.td2, 16)
        G = 220
        isa, join, join2 = self.lab("t_a"), self.lab("t_j"), self.lab("t_k")
        a("s_and_b32 %s, %s, 1" % (s(sT3), s(sW)))
        a("s_cmp_ge_u32 %s, 2" % s(sW))
        a("s_cbranch_scc1 %s" % isa)
        a("v_sub_f32 %s, 1.0, %s" % (v(G), v(G)))
        NP = self.NP
        if c.x4c:
            self.tail_b_compact(G, join2)
        else:
            self.tail_b_full(G, join)
        a.label(isa)
        self.tail_rest(G, join, join2)

    def tail_b_full(self, G, join):
        a, c = self.a, self.c
        NP = self.NP
        a("s_mul_i32 %s, %s, %d" % (s(sX1), s(sG), NP * 2048))
        a("s_lshl_b32 %s, %s, 10" % (s(sT1), s(sT3)))
        a("s_add_u32 %s, %s, %s" % (s(sX1), s(sX1), s(sT1)))
        a("s_add_u32 %s, %s, 0x%x" % (s(sX1), s(sX1), WS_X4B))
        a("s_mul_i32 %s, %s, %d" % (s(sT5), s(sG), NP * 256))
        a("s_lshl_b32 %s, %s, 7" % (s(sT1), s(sT3)))
        a("s_add_u32 %s, %s, %s" % (s(sT5), s(sT5), s(sT1)))
        a("s_add_u32 %s, %s, 0x%x" % (s(sT5), s(sT5), WS_X4L))
        a("v_and_b32 %s, 15, %s" % (v(vA1), v(vL)))
        a("v_min_u32 %s, %d, %s" % (v(vA1), NP - 1, v(vA1)))
        a("v_lshlrev_b32 %s, 8, %s" % (v(vA1), v(vA1)))

        def issue():
            a("buffer_load_dwordx2 v[96:97], %s, %s, %s offen sc1" % (v(vA1), s(R_WS, 4), s(sT5)))
            a("s_mov_b32 %s, %s" % (s(sT2), s(sX1)))
            for i in range(NP):
                o = " offset:2048" if i & 1 else ""
                a("buffer_load_dwordx4 %s, %s, %s, %s offen%s sc1" % (v(40 + 4 * i, 4), v(vO16), s(R_WS, 4), s(sT2), o))
                if i & 1 and i < NP - 1:
                    a("s_add_u32 %s, %s, 4096" % (s(sT2), s(sT2)))

        def check():
            self.tagcheck(98, [97] + [40 + 4 * i + j for i in range(NP) for j in (1, 3)])
            a("v_cmp_ne_u32 vcc, 0, v98")

        if c.lfirst:
            def issue_l():
                a("buffer_load_dwordx2 v[96:97], %s, %s, %s offen sc1" % (v(vA1), s(R_WS, 4), s(sT5)))

            def check_l():
                self.tagcheck(98, [97])
                a("v_cmp_ne_u32 vcc, 0, v98")

            self.poll("x4l", issue_l, check_l)
        self.poll("x4b", issue, check)
        self.stamp(8)
        a("v_mov_b32 v98, v96")
        self.allsum_row(98, "v_max_f32")
        a("v_sub_f32 v96, v96, v98")
        a("v_exp_f32 v96, v96")
        self.mask64(sMS2, ((1 << NP) - 1) * 0x10001)
        a("v_cndmask_b32 v96, 0, v96, %s" % s(sMS2, 2))
        a("v_mov_b32 v98, v96")
        self.allsum_row(98)
        a("v_rcp_f32 v98, v98")
        a("v_mul_f32 v96, v96, v98")
        for i in range(NP):
            a("v_readlane_b32 %s, v96, %d" % (s(8 + i), i))
        a("v_mul_f32 v100, %s, v40" % s(8))
        a("v_mul_f32 v101, %s, v42" % s(8))
        for i in range(1, NP):
            a("v_fmac_f32 v100, %s, %s" % (s(8 + i), v(40 + 4 * i)))
            a("v_fmac_f32 v101, %s, %s" % (s(8 + i), v(42 + 4 * i)))
        a("s_branch %s" % join)

    def tail_rest(self, G, join, join2):
        a, c = self.a, self.c
        a("s_lshl_b32 %s, %s, 1" % (s(sX1), s(sG)))
        a("s_add_u32 %s, %s, %s" % (s(sX1), s(sX1), s(sT3)))
        NH = self.NH
        a("s_lshl_b32 %s, %s, %d" % (s(sX1), s(sX1), 9 + NH))
        a("s_add_u32 %s, %s, 0x%x" % (s(sX1), s(sX1), WS_X4A))

        def issue_a():
            for h in range(NH):
                o = " offset:1024" if h else ""
                a("buffer_load_dwordx4 %s, %s, %s, %s offen%s sc1" % (v(40 + 4 * h, 4), v(vO16), s(R_WS, 4), s(sX1), o))

        def check_a():
            self.tagcheck(98, [41 + 4 * h + j for h in range(NH) for j in (0, 2)])
            a("v_cmp_ne_u32 vcc, 0, v98")

        self.poll("x4a", issue_a, check_a)
        self.stamp(8)
        if NH == 1:
            a("v_mov_b32 v100, v40")
            a("v_mov_b32 v101, v42")
        else:
            a("v_add_f32 v100, v40, v44")
            a("v_add_f32 v101, v42, v46")
        a.label(join)
        self.dump(0, 100)
        self.dump(1, 101)
        self.dump(2, G)
        a("v_cvt_pk_bf16_f32 v100, v100, v100")
        a("v_cvt_pk_bf16_f32 v101, v101, v101")
        a("s_lshl_b32 %s, %s, 9" % (s(sT1), s(sW)))
        a("s_add_u32 %s, %s, %d" % (s(sT1), s(sT1), LT))
        a("v_lshlrev_b32 %s, 3, %s" % (v(vA0), v(vL)))
        a("v_add_u32 %s, %s, %s" % (v(vA0), s(sT1), v(vA0)))
        a("ds_write_b64 %s, v[100:101]" % v(vA0))
        a.label(join2)
        a("v_lshrrev_b32 %s, 3, %s" % (v(vA1), v(vL)))
        a("v_lshlrev_b32 %s, 2, %s" % (v(vA1), v(vA1)))
        a("v_add_u32 %s, %s, %s" % (v(vA1), s(sT1), v(vA1)))
        for t in range(0, 16, 2):
            a("ds_read2_b32 %s, %s offset0:%d offset1:%d" % (v(40 + t, 2), v(vA1), 8 * t, 8 * t + 8))
        for t in range(16):
            if t % 2 == 0:
                a("s_waitcnt lgkmcnt(%d)" % (7 - t // 2))
            self.delta_mfma(10, v(140 + 4 * t, 4), 40 + t, 122 + 4 * (t & 1), t == 0)
        for r in range(4):
            self.dump(3 + r, 10 + r)
        self.dump(7, 140)
        for r in range(4):
            a("v_mul_f32 %s, %s, %s" % (v(10 + r), v(10 + r), v(G)))
        self.reduce_wu8(10, LR, 0)
        a("s_cmp_lg_u32 %s, 0" % s(sW))
        a("s_cbranch_scc1 L_tail_done")
        a("v_lshlrev_b32 %s, 5, %s" % (v(vA0), v(vL)))
        a("v_add_u32 %s, %d, %s" % (v(vA0), LR, v(vA0)))
        a("ds_read_b128 v[40:43], %s" % v(vA0))
        a("ds_read_b128 v[44:47], %s offset:16" % v(vA0))
        a("s_lshl_b32 %s, %s, 4" % (s(sT1), s(sJM)))
        a("s_add_u32 %s, %s, %s" % (s(sT1), s(sT1), s(sG)))
        a("s_lshl_b32 %s, %s, 9" % (s(sT1), s(sT1)))
        a("s_add_u32 %s, %s, 0x%x" % (s(sT1), s(sT1), WS_X5))
        a("v_lshlrev_b32 %s, 3, %s" % (v(vA1), v(vL)))
        a("s_waitcnt lgkmcnt(0)")
        a("v_add_f32 v40, v40, v41")
        a("v_add_f32 v42, v42, v43")
        a("v_add_f32 v44, v44, v45")
        a("v_add_f32 v46, v46, v47")
        a("v_add_f32 v40, v40, v42")
        a("v_add_f32 v44, v44, v46")
        a("v_add_f32 v40, v40, v44")
        a("v_mov_b32 v41, %s" % s(sTAG))
        a("buffer_store_dwordx2 v[40:41], %s, %s, %s offen sc0 sc1" % (v(vA1), s(R_WS, 4), s(sT1)))
        a.label("L_tail_done")
        self.stamp(9)
        self.end()

    def dma_rows(self, rows):
        a, c = self.a, self.c
        sDS, sDB = sT5, sT4
        grp = None
        for i in rows:
            if i // 4 != grp:
                grp = i // 4
                if grp == 0:
                    a("s_mov_b32 m0, %s" % s(sDB))
                    so = sDS
                else:
                    a("s_add_u32 %s, %s, 4096" % (s(sT1), s(sDB)))
                    a("s_add_u32 %s, %s, 4096" % (s(sT2), s(sDS)))
                    a("s_mov_b32 m0, %s" % s(sT1))
                    so = sT2
            o = " offset:%d" % (1024 * (i % 4)) if i % 4 else ""
            a("buffer_load_dwordx4 %s, %s, %s offen%s %s lds" % (v(222 + i), s(R_C, 4), s(so), o, c.nt))

    def dma_next(self):
        a = self.a
        sDS, sDB, sDX = sT5, sT4, sT3
        a("s_add_u32 %s, %s, 0x8000" % (s(sDS), s(sDS)))
        a("s_xor_b32 %s, %s, %s" % (s(sDB), s(sDB), s(sDX)))
        a("s_xor_b32 %s, %s, 0x18000" % (s(sDX), s(sDX)))

    def uv_loads(self, t0, t1):
        a, c = self.a, self.c
        for t in range(t0, t1):
            a("buffer_load_dwordx4 %s, v250, %s, %s offen %s" % (ar(128 + 4 * t, 4), s(R_UV, 4), s(sB), c.nt))
            if t < 32 // self.NH - 1:
                a("s_add_u32 %s, %s, 0x8000" % (s(sB), s(sB)))

    def uv_setup(self):
        a, c = self.a, self.c
        a("v_lshrrev_b32 %s, 4, %s" % (v(vA0), v(vL)))
        a("v_lshlrev_b32 %s, 13, %s" % (v(vA0), v(vA0)))
        a("v_and_b32 %s, 15, %s" % (v(vA1), v(vL)))
        a("v_lshlrev_b32 v250, 4, %s" % v(vA1))
        a("v_add_u32 v250, %s, v250" % v(vA0))
        if self.NH == 1:
            a("s_lshl_b32 %s, %s, 20" % (s(sB), s(sW)))
            a("s_lshl_b32 %s, s2, 8" % s(sT2))
        else:
            a("s_and_b32 %s, s2, 1" % s(sT2))
            a("s_lshl_b32 %s, %s, 2" % (s(sT2), s(sT2)))
            a("s_add_u32 %s, %s, %s" % (s(sB), s(sT2), s(sW)))
            a("s_lshl_b32 %s, %s, 19" % (s(sB), s(sB)))
            a("s_lshr_b32 %s, s2, 1" % s(sT2))
            a("s_lshl_b32 %s, %s, 8" % (s(sT2), s(sT2)))
        a("s_add_u32 %s, %s, %s" % (s(sB), s(sB), s(sT2)))

    def a_main(self):
        a, c = self.a, self.c
        a.label("L_a_main")
        sDS, sDB, sDX = sT5, sT4, sT3
        na, nb_, nc = [int(x) for x in c.dsplit.split(",")]
        assert na + nb_ + nc == 8
        rowsA, rowsB, rowsC = list(range(na)), list(range(na, na + nb_)), list(range(na + nb_, 8))
        a("s_mov_b32 %s, %s" % (s(sX1), s(sT5)))
        for k in range(8):
            a("v_xor_b32 %s, %d, %s" % (v(222 + k), 32 * k, v(vO16)))
        a("s_lshl_b32 %s, %s, 13" % (s(sDB), s(sW)))
        a("s_mov_b32 %s, %s" % (s(sDS), s(sDB)))
        a("s_mov_b32 %s, 0x8000" % s(sDX))
        self.dma_rows(range(8))
        if c.t1e:
            self.dma_next()
            self.dma_rows(range(8))
        if c.uve:
            self.uv_setup()
            self.uv_loads(0, min(c.uv0 - c.uv1, 32 // self.NH))

        def issue_q():
            self.x1_issue(X1A, sX1)

        def check_q():
            self.tagcheck(242, [X1A + 1, X1A + 3])
            a("v_cmp_ne_u32 vcc, 0, v242")

        self.poll("x1a", issue_q, check_q)
        self.stamp(3)
        self.x1_pack([X1A])
        self.uk_slice()
        self.stamp(4)
        if not c.t1e:
            self.dma_next()
            self.dma_rows(range(8))
        if c.uve and c.uv1:
            self.uv_loads(c.uv0 - c.uv1, c.uv0)
        if not c.uve:
            self.uv_setup()
        a("s_lshl_b32 %s, %s, 14" % (s(sX1), s(sW)))
        a("s_add_u32 %s, %s, 0x%x" % (s(sX1), s(sX1), WS_X2))

        def issue():
            a("s_mov_b32 %s, %s" % (s(sOFF), s(sX1)))
            for i in range(16):
                o = " offset:%d" % (1024 * (i % 4)) if i % 4 else ""
                a("buffer_load_dwordx4 %s, %s, %s, %s offen%s sc1" % (v(40 + 4 * i, 4), v(vO16), s(R_WS, 4), s(sOFF), o))
                if i % 4 == 3 and i < 15:
                    a("s_add_u32 %s, %s, 4096" % (s(sOFF), s(sOFF)))

        def check():
            self.tagcheck(104, [40 + 4 * i + j for i in range(16) for j in (1, 3)])
            a("v_cmp_ne_u32 vcc, 0, v104")

        self.poll("x2", issue, check)
        self.stamp(5)
        self.dma_next()
        self.dma_rows(rowsA + rowsB)
        if not c.uve:
            self.uv_loads(0, min(c.uv0, 32 // self.NH))
        a("v_lshrrev_b32 %s, 1, %s" % (v(vA0), v(vL)))
        a("v_lshlrev_b32 %s, 4, %s" % (v(vA0), v(vA0)))
        a("v_and_b32 %s, 1, %s" % (v(vA1), v(vL)))
        a("v_lshlrev_b32 %s, 3, %s" % (v(vA1), v(vA1)))
        a("s_lshl_b32 %s, %s, 13" % (s(sT1), s(sW)))
        a("s_add_u32 %s, %s, %d" % (s(sT1), s(sT1), LQA))
        a("v_add_u32 %s, %s, %s" % (v(vA0), v(vA0), v(vA1)))
        for hq in range(8):
            a("v_xor_b32 %s, %d, %s" % (v(104 + hq), 32 * hq, v(vA0)))
            a("v_add_u32 %s, %s, %s" % (v(104 + hq), s(sT1), v(104 + hq)))
        for i in range(16):
            a("v_mov_b32 %s, %s" % (v(41 + 4 * i), v(42 + 4 * i)))
        for i in range(16):
            hq, half = i >> 1, i & 1
            a("ds_write_b64 %s, %s offset:%d" % (v(104 + hq), v(40 + 4 * i, 2), hq * 1024 + half * 512))
        AQ, AT = 210, 214
        a("v_and_b32 %s, 15, %s" % (v(vA0), v(vL)))
        a("v_lshlrev_b32 %s, 10, %s" % (v(vA1), v(vA0)))
        a("v_and_b32 %s, 7, %s" % (v(vA0), v(vA0)))
        a("v_lshlrev_b32 %s, 5, %s" % (v(vA0), v(vA0)))
        a("v_lshrrev_b32 %s, 4, %s" % (v(vA2), v(vL)))
        a("v_lshlrev_b32 %s, 4, %s" % (v(vA2), v(vA2)))
        for b in range(4):
            a("v_add_u32 %s, %d, %s" % (v(AQ + b), 64 * b, v(vA2)))
            a("v_xor_b32 %s, %s, %s" % (v(AQ + b), v(AQ + b), v(vA0)))
            a("v_add_u32 %s, %s, %s" % (v(AQ + b), v(AQ + b), v(vA1)))
        a("s_waitcnt lgkmcnt(0)")
        a("s_barrier")
        a("s_lshr_b32 %s, %s, 1" % (s(sT1), s(sW)))
        a("s_lshl_b32 %s, %s, 14" % (s(sT1), s(sT1)))
        a("s_add_u32 %s, %s, %d" % (s(sT1), s(sT1), LQA))
        for b in range(4):
            a("v_add_u32 %s, %s, %s" % (v(112 + b), s(sT1), v(AQ + b)))
        for ks in range(16):
            a("ds_read_b128 %s, %s offset:%d" % (ar(4 * ks, 4), v(112 + (ks & 3)), (ks >> 2) * 256))
        a("s_and_b32 %s, %s, 1" % (s(sT1), s(sW)))
        a("s_lshl_b32 %s, %s, 14" % (s(sT1), s(sT1)))
        for b in range(4):
            a("v_add_u32 %s, %s, %s" % (v(AQ + b), s(sT1), v(AQ + b)))
        a("v_lshrrev_b32 %s, 4, %s" % (v(vA0), v(vL)))
        a("v_lshlrev_b32 %s, 2, %s" % (v(vA0), v(vA0)))
        a("v_bfe_u32 %s, %s, 2, 2" % (v(vA1), v(vL)))
        a("v_add_u32 %s, %s, %s" % (v(vA0), v(vA0), v(vA1)))
        a("v_and_b32 %s, 7, %s" % (v(vA1), v(vA0)))
        a("v_lshlrev_b32 %s, 5, %s" % (v(vA1), v(vA1)))
        a("v_lshlrev_b32 %s, 10, %s" % (v(vA0), v(vA0)))
        a("v_and_b32 %s, 3, %s" % (v(vA2), v(vL)))
        a("v_lshlrev_b32 %s, 3, %s" % (v(vA2), v(vA2)))
        a("s_lshl_b32 %s, %s, 8" % (s(sT1), s(sW)))
        a("v_add3_u32 %s, %s, %s, %s" % (v(vA0), v(vA0), v(vA2), s(sT1)))
        for ct in range(8):
            a("v_xor_b32 %s, %d, %s" % (v(AT + ct), 32 * ct, v(vA1)))
            a("v_add_u32 %s, %s, %s" % (v(AT + ct), v(AT + ct), v(vA0)))
        AMW, AMR, APW, APR = 230, 231, 232, 233
        a("v_and_b32 %s, 15, %s" % (v(vA0), v(vL)))
        a("v_lshlrev_b32 %s, 4, %s" % (v(vA0), v(vA0)))
        a("v_add_u32 %s, %d, %s" % (v(AMR), LMX, v(vA0)))
        a("s_lshr_b32 %s, %s, 1" % (s(sT1), s(sW)))
        a("s_and_b32 %s, %s, 1" % (s(sT2), s(sW)))
        a("s_lshl_b32 %s, %s, 3" % (s(sOFF), s(sT1)))
        a("s_lshl_b32 %s, %s, 2" % (s(sX1), s(sT2)))
        a("s_add_u32 %s, %s, %s" % (s(sOFF), s(sOFF), s(sX1)))
        a("v_add_u32 %s, %s, %s" % (v(AMW), s(sOFF), v(AMR)))
        a("v_add_u32 %s, %d, %s" % (v(APR), LP, v(vO16)))
        a("s_lshl_b32 %s, %s, 10" % (s(sOFF), s(sT1)))
        a("s_lshl_b32 %s, %s, 3" % (s(sX1), s(sT2)))
        a("s_add_u32 %s, %s, %s" % (s(sOFF), s(sOFF), s(sX1)))
        a("v_add_u32 %s, %s, %s" % (v(APW), s(sOFF), v(APR)))
        a("s_cmp_ge_u32 %s, 2" % s(sW))
        a("s_cselect_b64 %s, -1, 0" % s(sMSK, 2))
        ACC, OP, S8, M0, L0, AL, PO = 40, 104, 168, 176, 178, 180, 182
        for i in range(64):
            a("v_mov_b32 %s, 0" % v(ACC + i))
        a("v_mov_b32 %s, 0xff800000" % v(M0))
        a("v_mov_b32 %s, 0xff800000" % v(M0 + 1))
        a("v_mov_b32 %s, 0" % v(L0))
        a("s_waitcnt lgkmcnt(0)")
        a("s_barrier")
        self.stamp(6)
        a("s_mov_b32 %s, 0" % s(sIT))
        a("s_mov_b32 %s, 0x8000" % s(sOFF))
        loop = self.lab("a_loop")
        a.label(loop)
        self.stamp_it(0, 3)
        for ks in range(16):
            a("ds_read_b128 %s, %s offset:%d" % (v(OP + 4 * ks, 4), v(AQ + (ks & 3)), (ks >> 2) * 256))
        cpos = {(4 + 4 * i): r for i, r in enumerate(rowsC)}
        for ks in range(16):
            a("s_waitcnt lgkmcnt(%d)" % (15 - ks))
            acc = S8 + 4 * (ks & 1)
            a("v_mfma_f32_16x16x32_bf16 %s, %s, %s, %s" % (
                v(acc, 4), v(OP + 4 * ks, 4), ar(4 * ks, 4), "0" if ks < 2 else v(acc, 4)))
            if ks in cpos:
                self.dma_rows([cpos[ks]])
        T0 = 198
        for r in range(4):
            a("v_add_f32 %s, %s, %s" % (v(S8 + r), v(S8 + r), v(S8 + 4 + r)))
        a("v_max3_f32 %s, %s, %s, %s" % (v(T0), v(S8), v(S8 + 1), v(S8 + 2)))
        a("v_max_f32 %s, %s, %s" % (v(T0), v(T0), v(S8 + 3)))
        self.allsum_g(T0, T0 + 1, "v_max_f32")
        a("ds_write_b32 %s, %s" % (v(AMW), v(T0)))
        a("s_waitcnt lgkmcnt(0)")
        a("s_barrier")
        a("ds_read_b128 %s, %s" % (v(T0, 4), v(AMR)))
        self.dma_next()
        a("s_cmp_ge_u32 %s, %d" % (s(sIT), self.NIT - 3))
        a("s_cselect_b32 %s, 0, %d" % (s(R_C + 2), self.KEYS * 1024))
        self.dma_rows(rowsA)
        a("s_waitcnt lgkmcnt(0)")
        a("v_max3_f32 %s, %s, %s, %s" % (v(T0), v(T0), v(T0 + 1), v(M0)))
        a("v_max3_f32 %s, %s, %s, %s" % (v(T0 + 2), v(T0 + 2), v(T0 + 3), v(M0 + 1)))
        a("v_cndmask_b32 %s, %s, %s, %s" % (v(T0 + 1), v(T0), v(T0 + 2), s(sMSK, 2)))
        a("v_sub_f32 %s, %s, %s" % (v(AL), v(M0), v(T0)))
        a("v_sub_f32 %s, %s, %s" % (v(AL + 1), v(M0 + 1), v(T0 + 2)))
        for r in range(4):
            a("v_sub_f32 %s, %s, %s" % (v(S8 + r), v(S8 + r), v(T0 + 1)))
        a("v_exp_f32 %s, %s" % (v(AL), v(AL)))
        a("v_exp_f32 %s, %s" % (v(AL + 1), v(AL + 1)))
        for r in range(4):
            a("v_exp_f32 %s, %s" % (v(S8 + r), v(S8 + r)))
        a("v_mov_b32 %s, %s" % (v(M0), v(T0)))
        a("v_mov_b32 %s, %s" % (v(M0 + 1), v(T0 + 2)))
        a("v_cvt_pk_bf16_f32 %s, %s, %s" % (v(T0), v(S8), v(S8 + 1)))
        a("v_cvt_pk_bf16_f32 %s, %s, %s" % (v(T0 + 1), v(S8 + 2), v(S8 + 3)))
        a("ds_write_b64 %s, %s" % (v(APW), v(T0, 2)))
        a("v_cndmask_b32 %s, %s, %s, %s" % (v(T0 + 2), v(AL), v(AL + 1), s(sMSK, 2)))
        a("v_add_f32 %s, %s, %s" % (v(S8), v(S8), v(S8 + 1)))
        a("v_add_f32 %s, %s, %s" % (v(S8 + 2), v(S8 + 2), v(S8 + 3)))
        a("v_add_f32 %s, %s, %s" % (v(S8), v(S8), v(S8 + 2)))
        a("v_fma_f32 %s, %s, %s, %s" % (v(L0), v(L0), v(T0 + 2), v(S8)))

        def rescale(ct):
            for ht in range(2):
                sel = "op_sel_hi:[1,0]" if ht == 0 else "op_sel:[0,1] op_sel_hi:[1,1]"
                for h in range(2):
                    x = ACC + 8 * ct + 4 * ht + 2 * h
                    a("v_pk_mul_f32 %s, %s, %s %s" % (v(x, 2), v(x, 2), v(AL, 2), sel))
        rescale(0)
        nowait = self.lab("a_nw")
        a("s_cmp_eq_u32 %s, 0" % s(sIT))
        a("s_cbranch_scc1 %s" % nowait)
        a("s_waitcnt vmcnt(%d)" % (na + 8))
        a.label(nowait)
        a("s_waitcnt lgkmcnt(0)")
        a("s_barrier")
        self.stamp_it(1, 3)
        for ht in range(2):
            a("ds_read_b128 %s, %s offset:%d" % (v(PO + 4 * ht, 4), v(APR), ht * 1024))

        def tr_reads(ct):
            for hf in range(2):
                a("ds_read_b64_tr_b16 %s, %s offset:%d" % (v(OP + 4 * ct + 2 * hf, 2), v(AT + ct), 16384 * hf))
        for ct in range(6):
            tr_reads(ct)
        issued = 6
        bpos = {(1 + 2 * i): r for i, r in enumerate(rowsB)}
        for ct in range(8):
            if ct < 7:
                rescale(ct + 1)
            a("s_waitcnt lgkmcnt(%d)" % (2 * (issued - ct - 1)))
            for ht in range(2):
                x = ACC + 8 * ct + 4 * ht
                a("v_mfma_f32_16x16x32_bf16 %s, %s, %s, %s" % (
                    v(x, 4), v(OP + 4 * ct, 4), v(PO + 4 * ht, 4), v(x, 4)))
            if issued < 8:
                tr_reads(issued)
                issued += 1
            if ct in bpos:
                self.dma_rows([bpos[ct]])
        for b in range(4):
            a("v_xor_b32 %s, %s, %s" % (v(AQ + b), s(sOFF), v(AQ + b)))
        for ct in range(8):
            a("v_xor_b32 %s, %s, %s" % (v(AT + ct), s(sOFF), v(AT + ct)))
        a("s_xor_b32 %s, %s, 0x18000" % (s(sOFF), s(sOFF)))
        self.stamp_it(2, 3)
        a("s_add_u32 %s, %s, 1" % (s(sIT), s(sIT)))
        a("s_cmp_lt_u32 %s, %d" % (s(sIT), self.NIT))
        a("s_cbranch_scc1 %s" % loop)
        self.stamp(7)
        self.a_finish(ACC, OP, M0, L0)

    def a_finish_u(self, ACC, OP, M0, L0):
        a, c = self.a, self.c
        assert self.NH == 2
        NT = 16
        a("v_and_b32 %s, 15, %s" % (v(vA1), v(vL)))
        a("v_lshlrev_b32 %s, 16, %s" % (v(vA0), v(vA1)))
        a("v_lshrrev_b32 %s, 4, %s" % (v(vA2), v(vL)))
        a("v_lshlrev_b32 %s, 4, %s" % (v(vA2), v(vA2)))
        a("v_add_u32 %s, %s, %s" % (v(vA0), v(vA0), v(vA2)))
        a("s_lshl_b32 %s, s2, 10" % s(sT1))
        a("s_lshl_b32 %s, %s, 8" % (s(sT2), s(sW)))
        a("s_add_u32 %s, %s, %s" % (s(sT1), s(sT1), s(sT2)))
        a("s_add_u32 %s, %s, 0x%x" % (s(sT1), s(sT1), WS_X3))
        a("s_add_u32 %s, %s, 0x100000" % (s(sT2), s(sT1)))
        n = 0
        for q in range(4):
            for ht in range(2):
                r = OP + 4 * n
                for k in range(2):
                    x = ACC + 8 * (2 * q + k) + 4 * ht
                    a("v_cvt_pk_bf16_f32 %s, %s, %s" % (v(r + 2 * k), v(x), v(x + 1)))
                    a("v_cvt_pk_bf16_f32 %s, %s, %s" % (v(r + 2 * k + 1), v(x + 2), v(x + 3)))
                o = " offset:%d" % (64 * q) if q else ""
                a("buffer_store_dwordx4 %s, %s, %s, %s offen%s sc0 sc1" % (
                    v(r, 4), v(vA0), s(R_WS, 4), s(sT2 if ht else sT1), o))
                n += 1
        self.stamp(12)
        u0 = min(c.uv0, NT)
        self.uv_loads(u0, NT)
        self.allsum_g(L0, 198)
        a("v_cndmask_b32 v204, %s, %s, %s" % (v(M0), v(M0 + 1), s(sMSK, 2)))
        a("v_mov_b32 v205, %s" % s(sTAG))
        a("v_mov_b32 v206, %s" % v(L0))
        a("v_mov_b32 v207, %s" % s(sTAG))
        a("v_lshlrev_b32 %s, 11, %s" % (v(vA1), v(vA1)))
        a("s_lshr_b32 %s, %s, 1" % (s(sT1), s(sW)))
        a("s_lshl_b32 %s, %s, 15" % (s(sT1), s(sT1)))
        a("s_and_b32 %s, %s, 1" % (s(sT2), s(sW)))
        a("s_lshl_b32 %s, %s, 4" % (s(sT2), s(sT2)))
        a("s_add_u32 %s, %s, %s" % (s(sT1), s(sT1), s(sT2)))
        a("s_lshl_b32 %s, s2, 5" % s(sT2))
        a("s_add_u32 %s, %s, %s" % (s(sT1), s(sT1), s(sT2)))
        a("s_add_u32 %s, %s, 0x%x" % (s(sT1), s(sT1), WS_ML))
        a("s_waitcnt vmcnt(%d)" % (NT - u0))
        a("s_barrier")
        a("s_mov_b64 exec, 0xffff")
        a("buffer_store_dwordx4 v[204:207], %s, %s, %s offen sc0 sc1" % (v(vA1), s(R_WS, 4), s(sT1)))
        if c.mlw == 2:
            a("s_mov_b32 %s, 0x%x" % (s(sT2), WS_HINT))
            a("v_lshlrev_b32 v219, 8, %s" % v(vL))
            a("v_mov_b32 v218, 1")
            a("s_mov_b64 exec, 0xff")
            a("buffer_atomic_add v218, v219, %s, %s offen sc1" % (s(R_WS, 4), s(sT2)))
        a("s_mov_b64 exec, -1")
        self.stamp(8)
        a("s_lshr_b32 %s, s2, 1" % s(sB))
        a("s_lshl_b32 %s, %s, 11" % (s(sX1), s(sB)))
        a("s_add_u32 %s, %s, 0x%x" % (s(sX1), s(sX1), WS_ML))
        MR = [200, 210]

        def issue():
            for h in range(2):
                o = " offset:1024" if h else ""
                a("buffer_load_dwordx4 %s, %s, %s, %s offen%s sc1" % (v(MR[h], 4), v(vO16), s(R_WS, 4), s(sX1), o))

        def check():
            self.tagcheck(204, [m + j for m in MR for j in (1, 3)])
            a("v_cmp_ne_u32 vcc, 0, v204")

        a("v_lshrrev_b32 %s, 3, %s" % (v(vA0), v(vL)))
        a("v_lshlrev_b32 %s, 10, %s" % (v(vA1), v(vA0)))
        a("v_and_b32 %s, 7, %s" % (v(vA2), v(vL)))
        a("v_lshlrev_b32 v208, 4, %s" % v(vA2))
        a("v_add_u32 v208, %s, v208" % v(vA1))
        a("v_lshlrev_b32 v209, 3, %s" % v(vA0))
        def x3_loads():
            a("s_lshl_b32 %s, %s, 16" % (s(sT4), s(sB)))
            a("s_lshl_b32 %s, %s, 7" % (s(sT2), s(sW)))
            a("s_add_u32 %s, %s, %s" % (s(sT4), s(sT4), s(sT2)))
            a("s_and_b32 %s, s2, 1" % s(sT2))
            a("s_lshl_b32 %s, %s, 9" % (s(sT2), s(sT2)))
            a("s_add_u32 %s, %s, %s" % (s(sT4), s(sT4), s(sT2)))
            a("s_add_u32 %s, %s, 0x%x" % (s(sT4), s(sT4), WS_X3))
            for i in range(8):
                a("buffer_load_dwordx4 %s, v208, %s, %s offen sc1" % (v(40 + 4 * i, 4), s(R_WS, 4), s(sT4)))
                if i < 7:
                    a("s_add_u32 %s, %s, 8192" % (s(sT4), s(sT4)))

        if c.mlw == 2:
            go = self.lab("ml_go")
            a("s_cmp_lg_u32 %s, 0" % s(sW))
            a("s_cbranch_scc1 %s" % go)
            a("s_and_b32 %s, s2, 7" % s(sT2))
            a("s_lshl_b32 %s, %s, 8" % (s(sT2), s(sT2)))
            a("s_add_u32 %s, %s, 0x%x" % (s(sT2), s(sT2), WS_HINT))
            a("s_mov_b64 exec, 1")

            def issue_h():
                a("buffer_load_dword v220, v219, %s, %s offen sc1" % (s(R_WS, 4), s(sT2)))

            def check_h():
                a("v_cmp_ne_u32 vcc, 0x100, v220")

            self.poll("hint", issue_h, check_h)
            a("s_mov_b64 exec, -1")
            a.label(go)
            a("s_barrier")
            self.poll("ml", issue, check, between=x3_loads, first_wait=8)
        elif c.mlw:
            lead, go = self.lab("ml_lead"), self.lab("ml_go")
            a("s_cmp_eq_u32 %s, 0" % s(sW))
            a("s_cbranch_scc1 %s" % lead)
            a("s_barrier")
            self.poll("mlf", issue, check)
            a("s_branch %s" % go)
            a.label(lead)
            self.poll("ml", issue, check)
            a("s_barrier")
            a.label(go)
        else:
            self.poll("ml", issue, check)
        self.stamp(9)
        if c.mlw != 2:
            x3_loads()
        a("v_max_f32 v204, v200, v210")
        self.allsum_row(204, "v_max_f32")
        self.allsum_g(204, 205, "v_max_f32")
        for m in MR:
            a("v_sub_f32 %s, %s, v204" % (v(m), v(m)))
        for m in MR:
            a("v_exp_f32 %s, %s" % (v(m), v(m)))
        a("v_mul_f32 v204, v200, v202")
        a("v_fmac_f32 v204, v210, v212")
        self.allsum_row(204)
        self.allsum_g(204, 205)
        a("v_rcp_f32 v204, v204")
        for m in MR:
            a("v_mul_f32 %s, %s, v204" % (v(m), v(m)))
        for i in range(8):
            a("v_add_u32 %s, %d, v209" % (v(168 + i), (64 * i) & 255))
        for i in range(8):
            a("ds_bpermute_b32 %s, %s, %s" % (v(168 + i), v(168 + i), v(MR[i >> 2])))
        a("s_waitcnt lgkmcnt(0)")
        for i in range(8):
            q, wt = 40 + 4 * i, 168 + i
            tb = 112 + 8 * (i & 1)
            a("s_waitcnt vmcnt(%d)" % (7 - i))
            for d in range(4):
                a("v_lshlrev_b32 %s, 16, %s" % (v(tb + 2 * d), v(q + d)))
                a("v_and_b32 %s, 0xffff0000, %s" % (v(tb + 2 * d + 1), v(q + d)))
            sel = "op_sel_hi:[1,0,1]" if wt % 2 == 0 else "op_sel:[0,1,0] op_sel_hi:[1,1,1]"
            wp = v(wt & ~1, 2)
            for d in range(4):
                if i == 0:
                    a("v_pk_mul_f32 %s, %s, %s op_sel_hi:[1,0]" % (v(104 + 2 * d, 2), v(tb + 2 * d, 2), wp))
                else:
                    a("v_pk_fma_f32 %s, %s, %s, %s %s" % (v(104 + 2 * d, 2), v(tb + 2 * d, 2), wp, v(104 + 2 * d, 2), sel))
        self.stamp(11)
        for r in range(8):
            a("v_add_f32_dpp %s, %s, %s row_ror:8 row_mask:0xf bank_mask:0xf" % (v(104 + r), v(104 + r), v(104 + r)))
        for swap in ("v_permlane16_swap_b32", "v_permlane32_swap_b32"):
            for r in range(8):
                a("v_mov_b32 %s, %s" % (v(112 + r), v(104 + r)))
            for r in range(8):
                a("%s %s, %s" % (swap, v(104 + r), v(112 + r)))
            for r in range(8):
                a("v_add_f32 %s, %s, %s" % (v(104 + r), v(104 + r), v(112 + r)))
        for r in range(8):
            a("v_cvt_pk_bf16_f32 %s, %s, %s" % (v(104 + r), v(104 + r), v(104 + r)))
        a("s_lshl_b32 %s, %s, 9" % (s(sT1), s(sW)))
        a("s_add_u32 %s, %s, %d" % (s(sT1), s(sT1), LT))
        a("v_lshrrev_b32 %s, 2, %s" % (v(vA0), v(vA2)))
        a("v_lshlrev_b32 %s, 7, %s" % (v(vA0), v(vA0)))
        a("v_and_b32 %s, 3, %s" % (v(vA2), v(vA2)))
        a("v_lshlrev_b32 %s, 4, %s" % (v(vA2), v(vA2)))
        a("v_add3_u32 %s, %s, %s, %s" % (v(vA0), v(vA0), v(vA2), s(sT1)))
        a("ds_write_b128 %s, v[104:107]" % v(vA0))
        a("ds_write_b128 %s, v[108:111] offset:64" % v(vA0))
        self.a_gemv()

    def a_finish(self, ACC, OP, M0, L0):
        a, c = self.a, self.c
        if c.x3u:
            return self.a_finish_u(ACC, OP, M0, L0)
        a("v_and_b32 %s, 15, %s" % (v(vA1), v(vL)))
        NH = self.NH
        HS = 15 + NH
        a("v_lshlrev_b32 %s, %d, %s" % (v(vA0), HS, v(vA1)))
        a("v_lshrrev_b32 %s, 4, %s" % (v(vA2), v(vL)))
        a("v_lshlrev_b32 %s, 4, %s" % (v(vA2), v(vA2)))
        a("v_add_u32 %s, %s, %s" % (v(vA0), v(vA0), v(vA2)))
        a("s_lshl_b32 %s, s2, 11" % s(sT1))
        a("s_lshl_b32 %s, %s, 9" % (s(sT2), s(sW)))
        a("s_add_u32 %s, %s, %s" % (s(sT1), s(sT1), s(sT2)))
        a("s_add_u32 %s, %s, 0x%x" % (s(sT1), s(sT1), WS_X3))
        a("s_add_u32 %s, %s, 0x%x" % (s(sT2), s(sT1), 16 << HS))
        for i in range(8):
            a("v_mov_b32 %s, %s" % (v(OP + 2 * i + 1), s(sTAG)))
        n = 0
        for ct in range(8):
            for ht in range(2):
                x, q = ACC + 8 * ct + 4 * ht, OP + 4 * (n & 3)
                a("v_cvt_pk_bf16_f32 %s, %s, %s" % (v(q), v(x), v(x + 1)))
                a("v_cvt_pk_bf16_f32 %s, %s, %s" % (v(q + 2), v(x + 2), v(x + 3)))
                o = " offset:%d" % (64 * ct) if ct else ""
                a("buffer_store_dwordx4 %s, %s, %s, %s offen%s sc0 sc1" % (
                    v(q, 4), v(vA0), s(R_WS, 4), s(sT2 if ht else sT1), o))
                n += 1
        self.stamp(12)
        self.allsum_g(L0, 198)
        a("v_cndmask_b32 v204, %s, %s, %s" % (v(M0), v(M0 + 1), s(sMSK, 2)))
        a("v_mov_b32 v205, %s" % s(sTAG))
        a("v_mov_b32 v206, %s" % v(L0))
        a("v_mov_b32 v207, %s" % s(sTAG))
        a("v_lshlrev_b32 %s, %d, %s" % (v(vA1), 9 + NH, v(vA1)))
        a("s_lshr_b32 %s, %s, 1" % (s(sT1), s(sW)))
        a("s_lshl_b32 %s, %s, %d" % (s(sT1), s(sT1), 13 + NH))
        a("s_and_b32 %s, %s, 1" % (s(sT2), s(sW)))
        a("s_lshl_b32 %s, %s, 4" % (s(sT2), s(sT2)))
        a("s_add_u32 %s, %s, %s" % (s(sT1), s(sT1), s(sT2)))
        a("s_lshl_b32 %s, s2, 5" % s(sT2))
        a("s_add_u32 %s, %s, %s" % (s(sT1), s(sT1), s(sT2)))
        a("s_add_u32 %s, %s, 0x%x" % (s(sT1), s(sT1), WS_ML))
        a("s_mov_b64 exec, 0xffff")
        a("buffer_store_dwordx4 v[204:207], %s, %s, %s offen sc0 sc1" % (v(vA1), s(R_WS, 4), s(sT1)))
        a("s_mov_b64 exec, -1")
        NT = 32 // NH
        self.uv_loads(min(c.uv0, NT), NT)
        self.stamp(8)
        a("s_lshr_b32 %s, s2, %d" % (s(sB), NH - 1))
        a("s_lshl_b32 %s, %s, %d" % (s(sX1), s(sB), 9 + NH))
        a("s_add_u32 %s, %s, 0x%x" % (s(sX1), s(sX1), WS_ML))
        MR = [200, 210][:NH]

        def issue():
            for h in range(NH):
                o = " offset:1024" if h else ""
                a("buffer_load_dwordx4 %s, %s, %s, %s offen%s sc1" % (v(MR[h], 4), v(vO16), s(R_WS, 4), s(sX1), o))

        def check():
            self.tagcheck(204, [m + j for m in MR for j in (1, 3)])
            a("v_cmp_ne_u32 vcc, 0, v204")

        self.poll("ml", issue, check)
        self.stamp(9)
        SP = 2 * NH
        LS = 6 - NH
        a("v_lshrrev_b32 %s, %d, %s" % (v(vA0), LS, v(vL)))
        a("v_lshlrev_b32 %s, 11, %s" % (v(vA1), v(vA0)))
        a("v_and_b32 %s, %d, %s" % (v(vA2), (1 << LS) - 1, v(vL)))
        a("v_lshlrev_b32 %s, 4, %s" % (v(vA2), v(vA2)))
        a("v_add_u32 v208, %s, %s" % (v(vA1), v(vA2)))
        a("v_lshlrev_b32 v209, 3, %s" % v(vA0))
        a("s_lshl_b32 %s, %s, %d" % (s(sX1), s(sB), HS))
        a("s_lshl_b32 %s, %s, %d" % (s(sT2), s(sW), 10 - NH))
        a("s_add_u32 %s, %s, %s" % (s(sX1), s(sX1), s(sT2)))
        if NH == 2:
            a("s_and_b32 %s, s2, 1" % s(sT2))
            a("s_lshl_b32 %s, %s, 10" % (s(sT2), s(sT2)))
            a("s_add_u32 %s, %s, %s" % (s(sX1), s(sX1), s(sT2)))
        a("s_add_u32 %s, %s, 0x%x" % (s(sX1), s(sX1), WS_X3))

        def issue3():
            a("s_mov_b32 %s, %s" % (s(sT1), s(sX1)))
            for i in range(16):
                a("buffer_load_dwordx4 %s, v208, %s, %s offen sc1" % (v(40 + 4 * i, 4), s(R_WS, 4), s(sT1)))
                if i < 15:
                    a("s_add_u32 %s, %s, %d" % (s(sT1), s(sT1), 2048 * SP))

        def check3():
            self.tagcheck(204, [40 + 4 * i + j for i in range(16) for j in (1, 3)])
            a("v_cmp_ne_u32 vcc, 0, v204")

        def weights():
            if NH == 1:
                a("v_mov_b32 v204, v200")
            else:
                a("v_max_f32 v204, v200, v210")
            self.allsum_row(204, "v_max_f32")
            self.allsum_g(204, 205, "v_max_f32")
            for m in MR:
                a("v_sub_f32 %s, %s, v204" % (v(m), v(m)))
            for m in MR:
                a("v_exp_f32 %s, %s" % (v(m), v(m)))
            a("v_mul_f32 v204, v200, v202")
            if NH == 2:
                a("v_fmac_f32 v204, v210, v212")
            self.allsum_row(204)
            self.allsum_g(204, 205)
            a("v_rcp_f32 v204, v204")
            for m in MR:
                a("v_mul_f32 %s, %s, v204" % (v(m), v(m)))
            for i in range(16):
                a("v_add_u32 %s, %d, v209" % (v(168 + i), (8 * SP * i) & 255))
            for i in range(16):
                a("ds_bpermute_b32 %s, %s, %s" % (v(168 + i), v(168 + i), v(MR[(SP * i) >> 5])))

        self.poll("x3", issue3, check3, between=weights, first_wait=0)
        self.stamp(11)
        a("s_waitcnt lgkmcnt(0)")
        for i in range(16):
            q, wt = 40 + 4 * i, 168 + i
            for h in range(2):
                lo, hi = 112 + 4 * (i & 1) + 2 * h, 113 + 4 * (i & 1) + 2 * h
                a("v_lshlrev_b32 %s, 16, %s" % (v(lo), v(q + 2 * h)))
                a("v_and_b32 %s, 0xffff0000, %s" % (v(hi), v(q + 2 * h)))
            for h in range(2):
                lo = 112 + 4 * (i & 1) + 2 * h
                sel = "op_sel_hi:[1,0,1]" if wt % 2 == 0 else "op_sel:[0,1,0] op_sel_hi:[1,1,1]"
                wp = v(wt & ~1, 2)
                if i == 0:
                    a("v_pk_mul_f32 %s, %s, %s op_sel_hi:[1,0]" % (v(104 + 2 * h, 2), v(lo, 2), wp))
                else:
                    a("v_pk_fma_f32 %s, %s, %s, %s %s" % (v(104 + 2 * h, 2), v(lo, 2), wp, v(104 + 2 * h, 2), sel))
        for swap in ["v_permlane32_swap_b32"] + (["v_permlane16_swap_b32"] if NH == 2 else []):
            for r in range(4):
                a("v_mov_b32 %s, %s" % (v(108 + r), v(104 + r)))
            for r in range(4):
                a("%s %s, %s" % (swap, v(104 + r), v(108 + r)))
            for r in range(4):
                a("v_add_f32 %s, %s, %s" % (v(104 + r), v(104 + r), v(108 + r)))
        for r in range(4):
            a("v_cvt_pk_bf16_f32 %s, %s, %s" % (v(104 + r), v(104 + r), v(104 + r)))
        a("s_lshl_b32 %s, %s, 9" % (s(sT1), s(sW)))
        a("s_add_u32 %s, %s, %d" % (s(sT1), s(sT1), LT))
        a("v_add_u32 %s, %s, %s" % (v(vA0), s(sT1), v(vA2)))
        a("ds_write_b128 %s, v[104:107]" % v(vA0))
        self.a_gemv()

    def a_gemv(self):
        a, c = self.a, self.c
        NT = 32 // self.NH
        a("v_lshrrev_b32 %s, 4, %s" % (v(vA1), v(vL)))
        a("v_lshlrev_b32 %s, 2, %s" % (v(vA1), v(vA1)))
        a("v_add_u32 %s, %s, %s" % (v(vA1), s(sT1), v(vA1)))
        for t in range(0, NT, 2):
            a("ds_read2_b32 %s, %s offset0:%d offset1:%d" % (v(40 + t, 2), v(vA1), 4 * t, 4 * t + 4))
        for t in range(NT):
            if t % 2 == 0:
                a("s_waitcnt lgkmcnt(%d)" % (NT // 2 - 1 - t // 2))
            self.delta_mfma(108, ar(128 + 4 * t, 4), 40 + t, 112 + 4 * (t & 1), t == 0)
        a("v_lshrrev_b32 %s, 4, %s" % (v(vA0), v(vL)))
        a("v_lshlrev_b32 %s, 9, %s" % (v(vA0), v(vA0)))
        a("v_and_b32 %s, 7, %s" % (v(vA1), v(vL)))
        a("v_lshlrev_b32 %s, 4, %s" % (v(vA1), v(vA1)))
        a("s_lshl_b32 %s, %s, 2" % (s(sT1), s(sW)))
        a("s_add_u32 %s, %s, %d" % (s(sT1), s(sT1), LR))
        a("v_add3_u32 %s, %s, %s, %s" % (v(vA0), v(vA0), v(vA1), s(sT1)))
        for r in range(4):
            a("ds_write_b32 %s, %s offset:%d" % (v(vA0), v(108 + r), 128 * r))
        a("s_waitcnt lgkmcnt(0)")
        a("s_barrier")
        a("s_cmp_ge_u32 %s, 2" % s(sW))
        a("s_cbranch_scc1 L_a_done")
        a("s_lshl_b32 %s, %s, 10" % (s(sT1), s(sW)))
        a("s_add_u32 %s, %s, %d" % (s(sT1), s(sT1), LR))
        a("v_add_u32 %s, %s, %s" % (v(vA0), s(sT1), v(vO16)))
        a("ds_read_b128 v[40:43], %s" % v(vA0))
        a("s_lshl_b32 %s, s2, 10" % s(sT1))
        a("s_lshl_b32 %s, %s, 9" % (s(sT2), s(sW)))
        a("s_add_u32 %s, %s, %s" % (s(sT1), s(sT1), s(sT2)))
        a("s_add_u32 %s, %s, 0x%x" % (s(sT1), s(sT1), WS_X4A))
        a("v_lshlrev_b32 %s, 3, %s" % (v(vA1), v(vL)))
        a("s_waitcnt lgkmcnt(0)")
        a("v_add_f32 v40, v40, v41")
        a("v_add_f32 v42, v42, v43")
        a("v_add_f32 v40, v40, v42")
        a("v_mov_b32 v41, %s" % s(sTAG))
        a("buffer_store_dwordx2 v[40:41], %s, %s, %s offen sc0 sc1" % (v(vA1), s(R_WS, 4), s(sT1)))
        a.label("L_a_done")
        self.stamp(10)
        self.end()

    def build(self):
        a = self.a
        self.prologue()
        self.q_phase()
        self.q_gather()
        self.b_main()
        self.tail()
        self.a_main()
        a.label("L_exit")
        a("s_endpgm")
        a.label("L_codeend")
        body = a.finalize()
        head = open(os.path.join(os.path.dirname(os.path.abspath(__file__)), "header.txt")).read()
        head = head.replace("@LDS@", str(LDS_BYTES))
        if self.c.xnt & 1:
            body = body.replace(" sc0 sc1\n", " sc0 sc1 nt\n")
        if self.c.xnt & 2:
            body = body.replace(" sc1\n", " sc1 nt\n").replace(" sc0 sc1 nt\n", " sc0 sc1\n" if not self.c.xnt & 1 else " sc0 sc1 nt\n")
        return head + body + FOOTER


FOOTER = """.section .rodata,"a"
.p2align 6
.amdhsa_kernel %s_kernel
  .amdhsa_next_free_vgpr 512
  .amdhsa_next_free_sgpr 102
  .amdhsa_accum_offset 256
  .amdhsa_group_segment_fixed_size 0
  .amdhsa_kernarg_size 120
  .amdhsa_user_sgpr_count 2
  .amdhsa_user_sgpr_kernarg_segment_ptr 1
  .amdhsa_system_sgpr_workgroup_id_x 1
.end_amdhsa_kernel
""" % NAME


def main():
    p = argparse.ArgumentParser()
    p.add_argument("-o", default="cdna_kernels/%s.s" % NAME)
    p.add_argument("--nq", type=int, default=8)
    p.add_argument("--nt", default="nt")
    p.add_argument("--debug", action="store_true")
    p.add_argument("--na", type=int, default=64)
    p.add_argument("--uv0", type=int, default=16)
    p.add_argument("--t0", type=int, default=20)
    p.add_argument("--bstamp", action="store_true")
    p.add_argument("--xnt", type=int, default=0)
    p.add_argument("--lfirst", type=int, default=1)
    p.add_argument("--local", type=int, default=1)
    p.add_argument("--dyn", type=int, default=1)
    p.add_argument("--diag", type=int, default=0)
    p.add_argument("--g1", type=int, default=0)
    p.add_argument("--gk", type=int, default=0)
    p.add_argument("--cstride", type=lambda x: int(x, 0), default=256)
    p.add_argument("--td", type=int, default=0)
    p.add_argument("--td2", type=int, default=0)
    p.add_argument("--gearly", type=int, default=0)
    p.add_argument("--tdv", type=int, default=0)
    p.add_argument("--x4c", type=int, default=0)
    p.add_argument("--pre2", type=int, default=0)
    p.add_argument("--uve", type=int, default=0)
    p.add_argument("--t1e", type=int, default=0)
    p.add_argument("--uv1", type=int, default=0)
    p.add_argument("--mlw", type=int, default=0)
    p.add_argument("--x3u", type=int, default=1)
    p.add_argument("--sblk", type=int, default=16)
    p.add_argument("--dsplit", default="2,3,3")
    p.add_argument("--elapsed", action="store_true")
    p.add_argument("--no-prefetch", dest="prefetch", action="store_false")
    p.add_argument("--spin", type=lambda x: int(x, 0), default=0x2000)
    cfg = p.parse_args()
    text = Gen(cfg).build()
    open(cfg.o, "w").write(text)
    print("wrote", cfg.o, len(text), "bytes")


if __name__ == "__main__":
    main()
```

```python
import argparse
import math
import struct
import sys
import os

sys.path.insert(0, os.path.dirname(os.path.abspath(__file__)))
from asmlib import Asm

NAME = "gated_mix__compressed_kv_cla__gqa_block_cached__decode"


def f32(x):
    return "0x%08x" % struct.unpack("<I", struct.pack("<f", x))[0]


LOG2E = math.log2(math.e)
C_SCALE = LOG2E / math.sqrt(128.0)

WS_EPOCH = 0
WS_CNT = 0x8000
WS_HINT = 0x9000
WS_X1 = 0x10000
WS_X2 = 0x30000
WS_ML = 0x40000
WS_X4A = 0x50000
WS_X4B = 0x60000
WS_X4L = 0xD0000
WS_X5 = 0xE0000
WS_X3 = 0x100000
WS_DBG = 0x500000
WS_SIZE = 0x800000
EPOCH_STEP = 0x9E3779B1

LU = 131072
LQ = LU
LQA = LU
LMX = LU
LP = LU + 1024
LL = LU + 8192
LT = LU + 9216
LR = LU + 12288
LO = LU + 16384
LML = LU + 20480
LX = LU + 4096
LDS_BYTES = 163840

sID, sT, sW, sTAG, sT1, sT2 = 2, 3, 4, 5, 6, 7
P_X, P_C, P_WQA, P_UK, P_UV, P_WOA = 8, 10, 12, 14, 16, 18
P_K, P_V, P_WQB, P_WOB, P_G, P_OUT, P_WS = 22, 24, 26, 28, 30, 32, 36
R_CODE, R_X, R_QW, R_WS = 40, 44, 48, 52
R_K, R_V, R_K2, R_V2, R_TW, R_G, R_OUT = 56, 60, 64, 68, 72, 76, 80
R_C, R_UV = 60, 64
R_UK = 40
sG, sJM, sB, sHH = 84, 85, 86, 84
sOFF, sCNT, sIT, sBIAS = 87, 88, 89, 90
sX1, sT3, sTW = 91, 92, 93
sMSK = 94
sMS2 = 96
sT4, sT5 = 98, 99
sST = 100
sB2 = 20
sQT, sUS = 3, 21

vL, vO16 = 1, 6
vM = [2, 3, 4, 5]
vA0, vA1, vA2 = 7, 8, 9
vSTAMP, vDUMMY = 254, 255
vAT = 133
UKW, X1A, QU, UKS, UKQ = 56, 88, 16, 20, 24


def v(a, n=1):
    return "v%d" % a if n == 1 else "v[%d:%d]" % (a, a + n - 1)


def ar(a, n=1):
    return "a%d" % a if n == 1 else "a[%d:%d]" % (a, a + n - 1)


def s(a, n=1):
    return "s%d" % a if n == 1 else "s[%d:%d]" % (a, a + n - 1)


class Gen:
    def __init__(self, cfg):
        self.c = cfg
        self.a = Asm()
        self.uid = 0
        self.nstamp = 0
        self.NA = cfg.na
        self.NP = (256 - self.NA) // 16
        self.QB = 4096 // (4 * self.NP)
        self.QX = 4096 - self.QB * 4 * self.NP
        self.MAGIC = {14: 4682, 12: 5462}[self.NP]
        self.KEYS = 16384 // self.NA
        self.NIT = self.KEYS // 32
        self.NH = self.NA // 32

    def lab(self, base):
        self.uid += 1
        return "L_%s_%d" % (base, self.uid)

    def srd(self, r, ptr, size, off=None):
        a = self.a
        if off is None:
            a("s_mov_b32 %s, %s" % (s(r), s(ptr)))
            a("s_mov_b32 %s, %s" % (s(r + 1), s(ptr + 1)))
        else:
            a("s_add_u32 %s, %s, %s" % (s(r), s(ptr), off))
            a("s_addc_u32 %s, %s, 0" % (s(r + 1), s(ptr + 1)))
        a("s_mov_b32 %s, %s" % (s(r + 2), size))
        a("s_mov_b32 %s, 0x20000" % s(r + 3))

    def stamp(self, idx):
        if not self.c.debug:
            return
        a = self.a
        a("s_memrealtime %s" % s(sST, 2))
        a("s_waitcnt lgkmcnt(0)")
        a("v_writelane_b32 %s, %s, %d" % (v(vSTAMP), s(sST), idx))

    def stamp_it(self, phase, nph=5):
        if not self.c.debug:
            return
        a = self.a
        a("s_memrealtime %s" % s(sST, 2))
        a("s_mul_i32 s38, %s, %d" % (s(sIT), nph))
        a("s_add_u32 s38, s38, %d" % (16 + phase))
        a("s_waitcnt lgkmcnt(0)")
        a("s_mov_b32 m0, s38")
        a("v_writelane_b32 %s, %s, m0" % (v(vSTAMP), s(sST)))

    def dump_stamps(self):
        if not self.c.debug:
            return
        a = self.a
        a("s_lshl_b32 %s, %s, 2" % (s(sT1), s(sID)))
        a("s_add_u32 %s, %s, %s" % (s(sT1), s(sT1), s(sW)))
        a("s_lshl_b32 %s, %s, 8" % (s(sT1), s(sT1)))
        a("s_add_u32 %s, %s, 0x%x" % (s(sT1), s(sT1), WS_DBG))
        a("v_lshlrev_b32 %s, 2, %s" % (v(vA0), v(vL)))
        a("buffer_store_dword %s, %s, %s, %s offen" % (v(vSTAMP), v(vA0), s(R_WS, 4), s(sT1)))

    def dump(self, slot, reg):
        if not self.c.debug:
            return
        a = self.a
        a("s_lshl_b32 %s, %s, 2" % (s(sST), s(sID)))
        a("s_add_u32 %s, %s, %s" % (s(sST), s(sST), s(sW)))
        a("s_lshl_b32 %s, %s, 11" % (s(sST), s(sST)))
        a("s_add_u32 %s, %s, 0x%x" % (s(sST), s(sST), WS_DBG + 0x40000 + slot * 256))
        a("v_lshlrev_b32 v253, 2, %s" % v(vL))
        a("buffer_store_dword %s, v253, %s, %s offen" % (v(reg), s(R_WS, 4), s(sST)))

    def end(self):
        self.dump_stamps()
        self.a("s_endpgm")

    def mask64(self, reg, lo, hi=None):
        hi = lo if hi is None else hi
        self.a("s_mov_b32 %s, 0x%x" % (s(reg), lo))
        self.a("s_mov_b32 %s, 0x%x" % (s(reg + 1), hi))

    def tagcheck(self, acc, tags, first=True):
        a = self.a
        for i, t in enumerate(tags):
            if i == 0 and first:
                a("v_xor_b32 %s, %s, %s" % (v(acc), s(sTAG), v(t)))
            else:
                a("v_bitop3_b32 %s, %s, %s, %s bitop3:0xf6" % (v(acc), v(acc), v(t), s(sTAG)))

    def poll(self, name, issue, check, nwait="0", between=None, first_wait=None):
        a = self.a
        retry, ok = self.lab(name + "_retry"), self.lab(name + "_ok")
        a("s_movk_i32 %s, 0x%x" % (s(sCNT), self.c.spin))
        if between is not None:
            issue()
            between()
            a("s_waitcnt vmcnt(%d)" % first_wait)
            check()
            a("s_cbranch_vccz %s" % ok)
        a.label(retry)
        issue()
        a("s_waitcnt vmcnt(0)")
        check()
        a("s_cbranch_vccz %s" % ok)
        a("s_sub_u32 %s, %s, 1" % (s(sCNT), s(sCNT)))
        a("s_cbranch_scc0 %s" % retry)
        a.label(ok)

    def allsum_g(self, x, t, op="v_add_f32"):
        a = self.a
        a("v_mov_b32 %s, %s" % (v(t), v(x)))
        a("v_permlane16_swap_b32 %s, %s" % (v(x), v(t)))
        a("%s %s, %s, %s" % (op, v(x), v(x), v(t)))
        a("v_mov_b32 %s, %s" % (v(t), v(x)))
        a("v_permlane32_swap_b32 %s, %s" % (v(x), v(t)))
        a("%s %s, %s, %s" % (op, v(x), v(x), v(t)))

    def allsum_row(self, x, op="v_add_f32"):
        a = self.a
        o = op + "_dpp"
        for m in ("row_ror:8", "quad_perm:[1,0,3,2]", "quad_perm:[2,3,0,1]", "row_half_mirror"):
            a("%s %s, %s, %s %s row_mask:0xf bank_mask:0xf" % (o, v(x), v(x), v(x), m))

    def delta_mfma(self, acc, adata, dup, btmp, first):
        a = self.a
        for i in range(4):
            a("v_and_b32 %s, %s, %s" % (v(btmp + i), v(vM[i]), v(dup)))
        a("v_mfma_f32_16x16x32_bf16 %s, %s, %s, %s" % (v(acc, 4), adata, v(btmp, 4),
                                                      "0" if first else v(acc, 4)))

    def prologue(self):
        a, c = self.a, self.c
        a("s_cmp_ge_u32 s2, 0x100")
        a("s_cbranch_scc1 L_exit")
        if c.elapsed:
            a("s_memrealtime s[38:39]")
        a("s_load_dwordx16 s[8:23], s[0:1], 0x0")
        a("s_load_dwordx8 s[24:31], s[0:1], 0x40")
        a("s_load_dwordx4 s[32:35], s[0:1], 0x60")
        a("s_load_dwordx2 s[36:37], s[0:1], 0x70")
        if c.prefetch:
            a("s_getpc_b64 %s" % s(R_CODE, 2))
            a.label("L_pc")
            a("s_mov_b32 %s, L_codeend-L_pc" % s(R_CODE + 2))
            a("s_mov_b32 %s, 0x20000" % s(R_CODE + 3))
            a("s_lshr_b32 %s, s2, 6" % s(sT))
            a("s_lshl_b32 %s, %s, 14" % (s(sT), s(sT)))
            a("v_lshlrev_b32 %s, 6, v0" % v(vA0))
            a("v_add_u32 %s, %s, %s" % (v(vA0), s(sT), v(vA0)))
            a("buffer_load_dword %s, %s, %s, 0 offen" % (v(vDUMMY), v(vA0), s(R_CODE, 4)))
        a("v_and_b32 %s, 63, v0" % v(vL))
        a("v_lshrrev_b32 %s, 6, v0" % v(vA1))
        a("v_lshlrev_b32 %s, 4, %s" % (v(vO16), v(vL)))
        a("v_readfirstlane_b32 %s, %s" % (s(sW), v(vA1)))
        if c.debug:
            a("v_mov_b32 %s, 0" % v(vSTAMP))
        if c.local:
            a("s_lshr_b32 %s, s2, 3" % s(sT1))
            a("s_and_b32 %s, %s, 16" % (s(sQT), s(sT1)))
            a("s_lshl_b32 %s, %s, 3" % (s(sQT), s(sQT)))
            a("s_and_b32 %s, %s, 15" % (s(sT1), s(sT1)))
            a("s_add_u32 %s, %s, %s" % (s(sQT), s(sQT), s(sT1)))
            a("s_and_b32 %s, s2, 7" % s(sT1))
            a("s_lshl_b32 %s, %s, 4" % (s(sT1), s(sT1)))
            a("s_add_u32 %s, %s, %s" % (s(sQT), s(sQT), s(sT1)))
        else:
            a("s_mov_b32 %s, s2" % s(sQT))
        a("s_and_b32 %s, %s, 1" % (s(sT1), s(sQT)))
        a("s_mul_i32 %s, %s, 288" % (s(sT1), s(sT1)))
        a("s_mul_i32 %s, %s, 72" % (s(sT2), s(sW)))
        a("s_add_u32 %s, %s, %s" % (s(sT1), s(sT1), s(sT2)))
        a("v_lshrrev_b32 %s, 3, %s" % (v(vA1), v(vL)))
        a("v_add_u32 %s, %s, %s" % (v(vA0), s(sT1), v(vA1)))
        a("v_lshlrev_b32 %s, 1, %s" % (v(vA0), v(vA0)))
        a("v_and_b32 %s, 7, %s" % (v(vA2), v(vL)))
        a("v_lshlrev_b32 %s, 4, %s" % (v(vA2), v(vA2)))
        a("v_lshlrev_b32 %s, 13, %s" % (v(vA1), v(vA1)))
        a("v_add_u32 %s, %s, %s" % (v(vA1), v(vA1), v(vA2)))
        a("s_lshl_b32 %s, %s, 13" % (s(sOFF), s(sT1)))
        a("s_lshr_b32 %s, %s, 1" % (s(sT2), s(sQT)))
        a("s_and_b32 %s, %s, 63" % (s(sT2), s(sT2)))
        a("s_lshl_b32 %s, %s, 7" % (s(sT2), s(sT2)))
        a("s_add_u32 %s, %s, %s" % (s(sOFF), s(sOFF), s(sT2)))
        a("s_waitcnt lgkmcnt(0)")
        a("s_load_dword %s, %s, 0x%x" % (s(sTAG), s(P_WS, 2), WS_EPOCH))
        self.srd(R_X, P_X, "1152")
        if c.dyn:
            self.srd(R_WS, P_WS, "0x%x" % WS_SIZE)
            noinit = self.lab("cnt")
            a("s_and_b32 %s, %s, 0x87" % (s(sT1), s(sQT)))
            a("s_lshl_b32 %s, %s, 8" % (s(sT2), s(sW)))
            a("s_or_b32 %s, %s, %s" % (s(sT1), s(sT1), s(sT2)))
            a("s_cmp_lg_u32 %s, 0x80" % s(sT1))
            a("s_cbranch_scc1 %s" % noinit)
            a("s_bfe_u32 %s, %s, 0x40003" % (s(sT1), s(sQT)))
            a("s_mul_i32 %s, %s, %d" % (s(sT1), s(sT1), c.cstride))
            a("s_add_u32 %s, %s, 0x%x" % (s(sT1), s(sT1), WS_CNT))
            a("v_mov_b32 %s, 0" % v(vA2))
            a("s_mov_b64 exec, 1")
            a("buffer_store_dword %s, %s, %s, %s offen sc0 sc1" % (v(vA2), v(vA2), s(R_WS, 4), s(sT1)))
            a("s_mov_b64 exec, -1")
            a.label(noinit)
            if c.mlw == 2:
                nohint = self.lab("hint")
                a("s_lshl_b32 %s, %s, 8" % (s(sT1), s(sW)))
                a("s_or_b32 %s, %s, %s" % (s(sT1), s(sT1), s(sQT)))
                a("s_cmp_lg_u32 %s, 0" % s(sT1))
                a("s_cbranch_scc1 %s" % nohint)
                a("s_mov_b32 %s, 0x%x" % (s(sT1), WS_HINT))
                a("v_lshlrev_b32 v10, 8, %s" % v(vL))
                a("v_mov_b32 v11, 0")
                a("s_mov_b64 exec, 0xff")
                a("buffer_store_dword v11, v10, %s, %s offen sc0 sc1" % (s(R_WS, 4), s(sT1)))
                a("s_mov_b64 exec, -1")
                a.label(nohint)
        if c.local:
            a("s_and_b32 %s, s2, 7" % s(sT1))
            a("s_lshl_b32 %s, %s, 5" % (s(sT1), s(sT1)))
            a("s_lshr_b32 %s, s2, 3" % s(sUS))
            a("s_add_u32 %s, %s, %s" % (s(sUS), s(sUS), s(sT1)))
        else:
            a("s_mov_b32 %s, s2" % s(sUS))
        a("s_cmp_ge_u32 %s, 0x80" % s(sQT))
        a("s_cselect_b32 %s, %s, %s" % (s(R_QW), s(P_WQB), s(P_WQA)))
        a("s_cselect_b32 %s, %s, %s" % (s(R_QW + 1), s(P_WQB + 1), s(P_WQA + 1)))
        a("s_mov_b32 %s, 4718592" % s(R_QW + 2))
        a("s_mov_b32 %s, 0x20000" % s(R_QW + 3))
        for t in range(9):
            a("buffer_load_ushort %s, %s, %s, 0 offen offset:%d" % (v(204 + t), v(vA0), s(R_X, 4), 16 * t))
        for t in range(9):
            a("buffer_load_dwordx4 %s, %s, %s, %s offen %s" % (v(168 + 4 * t, 4), v(vA1), s(R_QW, 4), s(sOFF), c.nt))
            if t < 8:
                a("s_add_u32 %s, %s, 0x10000" % (s(sOFF), s(sOFF)))
        self.srd(R_UK, P_UK, "4194304")
        a("v_lshrrev_b32 %s, 4, %s" % (v(vA0), v(vL)))
        a("v_lshlrev_b32 %s, 15, %s" % (v(vA0), v(vA0)))
        a("v_and_b32 %s, 15, %s" % (v(vA2), v(vL)))
        a("v_lshlrev_b32 %s, 4, %s" % (v(vA2), v(vA2)))
        a("v_add_u32 %s, %s, %s" % (v(vA0), v(vA0), v(vA2)))
        a("s_and_b32 %s, %s, 7" % (s(sT1), s(sUS)))
        a("s_lshl_b32 %s, %s, 2" % (s(sT1), s(sT1)))
        a("s_add_u32 %s, %s, %s" % (s(sT1), s(sT1), s(sW)))
        a("s_lshl_b32 %s, %s, 17" % (s(sT1), s(sT1)))
        a("s_lshr_b32 %s, %s, 3" % (s(sT2), s(sUS)))
        a("s_lshl_b32 %s, %s, 8" % (s(sT2), s(sT2)))
        a("s_add_u32 %s, %s, %s" % (s(sT1), s(sT1), s(sT2)))
        for t in range(4):
            a("buffer_load_dwordx4 %s, %s, %s, %s offen %s" % (v(UKW + 4 * t, 4), v(vA0), s(R_UK, 4), s(sT1), c.nt))
            if t < 3:
                a("s_add_u32 %s, %s, 0x2000" % (s(sT1), s(sT1)))
        if not c.dyn:
            self.srd(R_WS, P_WS, "0x%x" % WS_SIZE)
        self.stamp(0)
        a("s_cmp_lt_u32 s2, %d" % self.NA)
        a("s_cbranch_scc1 L_a_pre")
        self.b_pre()
        a("s_branch L_q")
        a.label("L_a_pre")
        self.a_pre()
        a.label("L_q")

    def b_pre(self):
        a, c = self.a, self.c
        a("s_sub_u32 %s, s2, %d" % (s(sB), self.NA))
        if c.local:
            a("s_lshr_b32 %s, %s, 3" % (s(sJM), s(sB)))
            a("s_and_b32 %s, s2, 7" % s(sG))
            a("s_lshl_b32 %s, %s, 1" % (s(sG), s(sG)))
            a("s_cmp_ge_u32 %s, %d" % (s(sJM), self.NP))
            a("s_cselect_b32 %s, %d, 0" % (s(sT1), self.NP))
            a("s_addc_u32 %s, %s, 0" % (s(sG), s(sG)))
            a("s_sub_u32 %s, %s, %s" % (s(sJM), s(sJM), s(sT1)))
            a("s_mul_i32 %s, %s, %d" % (s(sB), s(sG), self.NP))
            a("s_add_u32 %s, %s, %s" % (s(sB), s(sB), s(sJM)))
        else:
            a("s_mul_i32 %s, %s, %d" % (s(sG), s(sB), self.MAGIC))
            a("s_lshr_b32 %s, %s, 16" % (s(sG), s(sG)))
            a("s_mul_i32 %s, %s, %d" % (s(sT1), s(sG), self.NP))
            a("s_sub_u32 %s, %s, %s" % (s(sJM), s(sB), s(sT1)))
        a("s_lshl_b32 %s, %s, 2" % (s(sT1), s(sJM)))
        a("s_add_u32 %s, %s, %s" % (s(sT1), s(sT1), s(sW)))
        if c.dyn:
            a("s_mul_i32 %s, %s, %d" % (s(sOFF), s(sT1), c.sblk * c.nq * 1024))
            a("s_lshl_b32 %s, %s, 22" % (s(sT2), s(sG)))
            self.srd(R_K, P_K, "0x400000", s(sT2))
            self.srd(R_V, P_V, "0x400000", s(sT2))
            self.srd(R_K2, P_K, "0", s(sT2))
            self.srd(R_V2, P_V, "0", s(sT2))
            for i in range(c.nq):
                self.kv_load(40 + 4 * i, R_K, i)
            a("s_add_u32 %s, %s, 16" % (s(sX1), s(sG)))
            self.mask64(sMSK, 0xFF00FF00)
            a("s_waitcnt vmcnt(%d)" % (c.nq + 4))
            return
        a("s_mul_i32 %s, %s, %d" % (s(sT2), s(sT1), self.QB))
        a("s_min_u32 %s, %s, %d" % (s(sT3), s(sT1), self.QX))
        a("s_add_u32 %s, %s, %s" % (s(sT2), s(sT2), s(sT3)))
        a("s_lshl_b32 %s, %s, 10" % (s(sT2), s(sT2)))
        a("s_lshl_b32 %s, %s, 22" % (s(sT3), s(sG)))
        a("s_add_u32 %s, %s, %s" % (s(sT2), s(sT2), s(sT3)))
        ksz = (self.QB + 1) * 1024
        self.srd(R_K, P_K, str(ksz), s(sT2))
        self.srd(R_V, P_V, str(ksz), s(sT2))
        a("s_cmp_lt_u32 %s, %d" % (s(sT1), self.QX))
        a("s_cselect_b32 %s, %d, 0" % (s(sT3), ksz))
        a("s_cselect_b32 %s, 0, 0xff800000" % s(sBIAS))
        self.srd(R_K2, P_K, s(sT3), s(sT2))
        self.srd(R_V2, P_V, s(sT3), s(sT2))
        a("s_mov_b32 %s, %d" % (s(sT1), (self.QB - 1) * 1024))
        a("buffer_load_dwordx4 %s, %s, %s, %s offen %s" % (v(104, 4), v(vO16), s(R_K, 4), s(sT1), c.nt))
        a("buffer_load_dwordx4 %s, %s, %s, %s offen offset:1024 %s" % (v(108, 4), v(vO16), s(R_K2, 4), s(sT1), c.nt))
        a("s_mov_b32 %s, 0" % s(sOFF))
        for i in range(c.nq):
            self.kv_load(40 + 4 * i, R_K, i)
        a("s_add_u32 %s, %s, 16" % (s(sX1), s(sG)))
        self.mask64(sMSK, 0xFF00FF00)
        a("s_waitcnt vmcnt(%d)" % (c.nq + 6))

    def kv_load(self, reg, srd, i, off=None):
        a, c = self.a, self.c
        off = sOFF if off is None else off
        if i < 4:
            so = s(off)
        else:
            if i % 4 == 0:
                a("s_add_u32 %s, %s, %d" % (s(sT4), s(off), 4096 * (i // 4)))
            so = s(sT4)
        o = " offset:%d" % (1024 * (i % 4)) if i % 4 else ""
        a("buffer_load_dwordx4 %s, %s, %s, %s offen%s %s" % (v(reg, 4), v(vO16), s(srd, 4), so, o, c.nt))

    def a_pre(self):
        a, c = self.a, self.c
        self.srd(R_K, P_V, "0")
        self.srd(R_UV, P_UV, "4194304")
        self.srd(R_V2, P_V, "0")
        a("s_mul_i32 %s, s2, %d" % (s(sT2), self.KEYS * 1024))
        self.srd(R_C, P_C, str(self.KEYS * 1024), s(sT2))
        a("s_waitcnt vmcnt(4)")

    def q_phase(self):
        a, c = self.a, self.c
        self.stamp(1)
        a("v_and_b32 %s, 1, %s" % (v(vA0), v(vL)))
        a("v_lshlrev_b32 %s, 4, %s" % (v(vA0), v(vA0)))
        a("v_mov_b32 %s, 0xffff" % v(vA1))
        a("v_lshlrev_b32 %s, %s, %s" % (v(vA1), v(vA0), v(vA1)))
        for i in range(4):
            self.mask64(sMS2, 0x03030303 << (2 * i))
            a("v_cndmask_b32 %s, 0, %s, %s" % (v(vM[i]), v(vA1), s(sMS2, 2)))
        for t in range(9):
            a("v_lshl_or_b32 %s, %s, 16, %s" % (v(204 + t), v(204 + t), v(204 + t)))
        for t in range(9):
            self.delta_mfma(222, v(168 + 4 * t, 4), 204 + t, 214 + 4 * (t & 1), t == 0)
        a("v_lshrrev_b32 %s, 4, %s" % (v(vA0), v(vL)))
        a("v_and_b32 %s, 1, %s" % (v(vA1), v(vA0)))
        a("v_lshlrev_b32 %s, 10, %s" % (v(vA1), v(vA1)))
        a("v_lshrrev_b32 %s, 1, %s" % (v(vA0), v(vA0)))
        a("v_lshlrev_b32 %s, 2, %s" % (v(vA0), v(vA0)))
        a("v_add_u32 %s, %s, %s" % (v(vA0), v(vA0), v(vA1)))
        a("v_and_b32 %s, 7, %s" % (v(vA1), v(vL)))
        a("v_lshlrev_b32 %s, 5, %s" % (v(vA1), v(vA1)))
        a("s_lshl_b32 %s, %s, 3" % (s(sT1), s(sW)))
        a("s_add_u32 %s, %s, %d" % (s(sT1), s(sT1), LQ))
        a("v_add3_u32 %s, %s, %s, %s" % (v(vA0), v(vA0), v(vA1), s(sT1)))
        self.mask64(sMS2, 0x00FF00FF, 0xFF00FF00)
        a("s_mov_b64 exec, %s" % s(sMS2, 2))
        for r in range(4):
            a("ds_write_b32 %s, %s offset:%d" % (v(vA0), v(222 + r), 256 * r))
        a("s_mov_b64 exec, -1")
        a("s_waitcnt lgkmcnt(0)")
        a("s_add_u32 %s, %s, 0x%x" % (s(sTAG), s(sTAG), EPOCH_STEP))
        a("s_barrier")
        skip = self.lab("qpub")
        a("s_cmp_lg_u32 %s, 0" % s(sW))
        a("s_cbranch_scc1 %s" % skip)
        a("v_lshlrev_b32 %s, 5, %s" % (v(vA0), v(vL)))
        a("v_add_u32 %s, %d, %s" % (v(vA0), LQ, v(vA0)))
        a("ds_read_b128 %s, %s" % (v(226, 4), v(vA0)))
        a("ds_read_b128 %s, %s offset:16" % (v(230, 4), v(vA0)))
        a("v_bfe_u32 %s, %s, 1, 2" % (v(vA1), v(vL)))
        a("v_lshlrev_b32 %s, 10, %s" % (v(vA1), v(vA1)))
        a("v_lshrrev_b32 %s, 3, %s" % (v(vA2), v(vL)))
        a("v_lshlrev_b32 %s, 4, %s" % (v(vA2), v(vA2)))
        a("v_add_u32 %s, %s, %s" % (v(vA1), v(vA1), v(vA2)))
        a("v_and_b32 %s, 1, %s" % (v(vA2), v(vL)))
        a("v_lshlrev_b32 %s, 3, %s" % (v(vA2), v(vA2)))
        a("v_add_u32 %s, %s, %s" % (v(vA1), v(vA1), v(vA2)))
        a("s_lshr_b32 %s, %s, 3" % (s(sT1), s(sQT)))
        a("s_lshl_b32 %s, %s, 12" % (s(sT1), s(sT1)))
        a("s_bfe_u32 %s, %s, 0x10002" % (s(sT2), s(sQT)))
        a("s_lshl_b32 %s, %s, 9" % (s(sT2), s(sT2)))
        a("s_add_u32 %s, %s, %s" % (s(sT1), s(sT1), s(sT2)))
        a("s_and_b32 %s, %s, 1" % (s(sT2), s(sQT)))
        a("s_lshl_b32 %s, %s, 8" % (s(sT2), s(sT2)))
        a("s_add_u32 %s, %s, %s" % (s(sT1), s(sT1), s(sT2)))
        a("s_bfe_u32 %s, %s, 0x10001" % (s(sT2), s(sQT)))
        a("s_lshl_b32 %s, %s, 7" % (s(sT2), s(sT2)))
        a("s_add_u32 %s, %s, %s" % (s(sT1), s(sT1), s(sT2)))
        a("s_add_u32 %s, %s, 0x%x" % (s(sT1), s(sT1), WS_X1))
        a("s_waitcnt lgkmcnt(0)")
        a("v_add_f32 v226, v226, v227")
        a("v_add_f32 v228, v228, v229")
        a("v_add_f32 v230, v230, v231")
        a("v_add_f32 v232, v232, v233")
        a("v_add_f32 v226, v226, v228")
        a("v_add_f32 v230, v230, v232")
        a("v_add_f32 v226, v226, v230")
        a("v_mul_f32 v226, %s, v226" % f32(C_SCALE))
        a("v_mov_b32 v227, %s" % s(sTAG))
        a("buffer_store_dwordx2 v[226:227], %s, %s, %s offen sc0 sc1" % (v(vA1), s(R_WS, 4), s(sT1)))
        a.label(skip)
        self.stamp(2)

    def x1_issue(self, base, soff):
        self.a("buffer_load_dwordx4 %s, %s, %s, %s offen sc1" % (v(base, 4), v(vO16), s(R_WS, 4), s(soff)))

    def x1_pack(self, bases):
        a = self.a
        a("s_lshl_b32 %s, %s, 2" % (s(sT1), s(sW)))
        a("s_add_u32 %s, %s, %d" % (s(sT1), s(sT1), LX))
        a("v_add_u32 %s, %s, %s" % (v(vA0), s(sT1), v(vO16)))
        for b in bases:
            a("v_mov_b32 %s, %s" % (v(b + 1), v(b)))
            a("v_mov_b32 %s, %s" % (v(b + 3), v(b + 2)))
        for b in bases:
            a("v_permlane16_swap_b32 %s, %s" % (v(b), v(b + 1)))
            a("v_permlane16_swap_b32 %s, %s" % (v(b + 2), v(b + 3)))
        for b in bases:
            a("v_add_f32 %s, %s, %s" % (v(b), v(b), v(b + 1)))
            a("v_add_f32 %s, %s, %s" % (v(b + 2), v(b + 2), v(b + 3)))
        for b in bases:
            a("v_cvt_pk_bf16_f32 %s, %s, %s" % (v(b), v(b), v(b + 2)))
        for i, b in enumerate(bases):
            a("ds_write_b32 %s, %s offset:%d" % (v(vA0), v(b), 1024 * i))
        a("v_add_u32 %s, %d, %s" % (v(vA0), LX, v(vO16)))
        a("s_waitcnt lgkmcnt(0)")
        a("s_barrier")

    def x1_select(self, region, tmp, mask, dst0, dst1=None):
        a = self.a
        a("ds_read_b128 %s, %s offset:%d" % (v(tmp, 4), v(vA0), 1024 * region))
        a("s_waitcnt lgkmcnt(0)")
        for k in range(4):
            a("v_mov_b32 %s, %s" % (v(tmp + 4 + k), v(tmp + k)))
        for k in range(4):
            a("v_permlane32_swap_b32 %s, %s" % (v(tmp + k), v(tmp + 4 + k)))
        for k in range(4):
            a("v_cndmask_b32 %s, %s, %s, %s" % (v(dst0 + k), v(tmp + k), v(tmp + 4 + k), s(mask, 2)))
            if dst1 is not None:
                a("v_cndmask_b32 %s, %s, %s, %s" % (v(dst1 + k), v(tmp + 4 + k), v(tmp + k), s(mask, 2)))

    def uk_slice(self):
        a = self.a
        S, quad = UKS, UKQ
        a("s_bitcmp1_b32 %s, 3" % s(sUS))
        a("s_cselect_b64 %s, -1, 0" % s(sMS2, 2))
        self.x1_select(0, 242, sMS2, QU)
        for j in range(4):
            for t in range(4):
                a("v_dot2_f32_bf16 %s, %s, %s, %s" % (v(S + t), v(UKW + 4 * t + j), v(QU + j), "0" if j == 0 else v(S + t)))
        for m in ("row_ror:8", "quad_perm:[1,0,3,2]", "quad_perm:[2,3,0,1]", "row_half_mirror"):
            for t in range(4):
                a("v_add_f32_dpp %s, %s, %s %s row_mask:0xf bank_mask:0xf" % (v(S + t), v(S + t), v(S + t), m))
        a("v_cvt_pk_bf16_f32 %s, %s, %s" % (v(quad), v(S), v(S + 1)))
        a("v_cvt_pk_bf16_f32 %s, %s, %s" % (v(quad + 2), v(S + 2), v(S + 3)))
        a("v_mov_b32 %s, %s" % (v(quad + 1), s(sTAG)))
        a("v_mov_b32 %s, %s" % (v(quad + 3), s(sTAG)))
        a("s_lshl_b32 %s, %s, 8" % (s(sT1), s(sUS)))
        a("s_lshl_b32 %s, %s, 6" % (s(sT2), s(sW)))
        a("s_add_u32 %s, %s, %s" % (s(sT1), s(sT1), s(sT2)))
        a("s_add_u32 %s, %s, 0x%x" % (s(sT1), s(sT1), WS_X2))
        self.mask64(sMS2, 0x00010001)
        a("s_mov_b64 exec, %s" % s(sMS2, 2))
        a("buffer_store_dwordx4 %s, %s, %s, %s offen sc0 sc1" % (v(quad, 4), v(vL), s(R_WS, 4), s(sT1)))
        a("s_mov_b64 exec, -1")

    def q_gather(self):
        a, c = self.a, self.c
        assert c.nq <= 4
        a("s_lshr_b32 %s, %s, 4" % (s(sT5), s(sUS)))
        a("s_lshl_b32 %s, %s, 12" % (s(sT5), s(sT5)))
        a("s_lshl_b32 %s, %s, 10" % (s(sT1), s(sW)))
        a("s_add_u32 %s, %s, 0x%x" % (s(sT1), s(sT1), WS_X1))
        a("s_add_u32 %s, %s, %s" % (s(sT5), s(sT5), s(sT1)))
        a("s_cmp_lt_u32 s2, %d" % self.NA)
        a("s_cbranch_scc1 L_a_main")
        a("s_lshl_b32 %s, %s, 12" % (s(sX1), s(sX1)))
        a("s_add_u32 %s, %s, %s" % (s(sX1), s(sX1), s(sT1)))
        self.tail_setup()
        ne = 16 - c.td - c.td2
        self.tail_loads(0, min(c.t0, ne) if ne < 16 else c.t0)
        if not c.dyn:
            a("s_mov_b32 %s, %d" % (s(sT1), (self.QB - 1) * 1024))
            a("buffer_load_dwordx4 %s, %s, %s, %s offen %s" % (v(112, 4), v(vO16), s(R_V, 4), s(sT1), c.nt))
            a("buffer_load_dwordx4 %s, %s, %s, %s offen offset:1024 %s" % (v(116, 4), v(vO16), s(R_V2, 4), s(sT1), c.nt))
        for i in range(c.nq):
            self.kv_load(72 + 4 * i, R_V, i)
        if c.pre2 == 2:
            assert c.td + c.td2 == 16
            a("s_add_u32 %s, %s, %d" % (s(sT2), s(sOFF), c.nq * 1024))
            for i in range(c.nq):
                self.kv_load(140 + 4 * i, R_K, i, sT2)
            for i in range(c.nq):
                self.kv_load(156 + 4 * i, R_V, i, sT2)

        def issue():
            self.x1_issue(X1A, sT5)
            self.x1_issue(X1A + 4, sX1)

        def check():
            self.tagcheck(242, [X1A + 1, X1A + 3, X1A + 5, X1A + 7])
            a("v_cmp_ne_u32 vcc, 0, v242")

        self.poll("x1", issue, check)
        self.stamp(11)
        if c.pre2:
            assert c.dyn and c.g1 and c.td + c.td2 >= 8 and c.nq == 4
            a("s_add_u32 %s, %s, %d" % (s(sT5), s(sOFF), c.pre2 * c.nq * 1024))
            for i in range(c.nq):
                self.kv_load(172 + 4 * i, R_K, i, sT5)
            for i in range(c.nq):
                self.kv_load(188 + 4 * i, R_V, i, sT5)
        self.x1_pack([X1A, X1A + 4])
        self.uk_slice()
        self.stamp(10)
        if ne < 16:
            self.tail_loads(min(c.t0, ne), ne)
            self.tail_loads(16, 20)
        else:
            self.tail_loads(c.t0, 20)
        if c.dyn:
            a("s_mul_i32 %s, %s, %d" % (s(sB2), s(sG), c.cstride))
            a("s_add_u32 %s, %s, 0x%x" % (s(sB2), s(sB2), WS_CNT))
            a("v_mov_b32 v134, 0")
            if c.g1:
                a("s_lshl_b32 %s, %s, 2" % (s(sT1), s(sJM)))
                a("s_add_u32 %s, %s, %s" % (s(sT1), s(sT1), s(sW)))
                a("s_sub_u32 %s, %s, %d" % (s(sT1), s(sT1), 4 * self.NP))
                a("v_mov_b32 %s, %s" % (v(vAT), s(sT1)))
            else:
                self.grab()
        self.x1_select(1, 242, sMSK, 32, 36)
        self.stamp(3)

    def b_block(self, nq, kreg, vreg, kwait, vwait, knext, vnext, masked_last=False):
        a = self.a
        SA, SB, O, M, L = 16, 24, 10, 14, 15
        for i in range(nq):
            a("s_waitcnt vmcnt(%d)" % kwait(i))
            k = kreg + 4 * i
            for j in range(4):
                a("v_dot2_f32_bf16 %s, %s, %s, %s" % (v(SA + i), v(k + j), v(32 + j), "0" if j == 0 else v(SA + i)))
                a("v_dot2_f32_bf16 %s, %s, %s, %s" % (v(SB + i), v(k + j), v(36 + j), "0" if j == 0 else v(SB + i)))
            knext(i)
        for i in range(nq):
            a("v_add_f32_dpp %s, %s, %s row_ror:8 row_mask:0xf bank_mask:0xf" % (v(SA + i), v(SB + i), v(SA + i)))
        for m in ("quad_perm:[1,0,3,2]", "quad_perm:[2,3,0,1]", "row_half_mirror"):
            for i in range(nq):
                a("v_add_f32_dpp %s, %s, %s %s row_mask:0xf bank_mask:0xf" % (v(SA + i), v(SA + i), v(SA + i), m))
        if masked_last:
            a("v_add_f32 %s, %s, %s" % (v(SA + nq - 1), s(sBIAS), v(SA + nq - 1)))
        BM, T, AL = 130, 131, 132
        a("v_max_f32 %s, %s, %s" % (v(BM), v(SA), v(SA + 1)))
        i = 2
        while i < nq:
            if i + 1 < nq:
                a("v_max3_f32 %s, %s, %s, %s" % (v(BM), v(BM), v(SA + i), v(SA + i + 1)))
                i += 2
            else:
                a("v_max_f32 %s, %s, %s" % (v(BM), v(BM), v(SA + i)))
                i += 1
        self.allsum_g(BM, T, "v_max_f32")
        a("v_max_f32 %s, %s, %s" % (v(BM), v(BM), v(M)))
        a("v_sub_f32 %s, %s, %s" % (v(AL), v(M), v(BM)))
        for i in range(nq):
            a("v_sub_f32 %s, %s, %s" % (v(SA + i), v(SA + i), v(BM)))
        a("v_exp_f32 %s, %s" % (v(AL), v(AL)))
        for i in range(nq):
            a("v_exp_f32 %s, %s" % (v(SA + i), v(SA + i)))
        a("v_mov_b32 %s, %s" % (v(M), v(BM)))
        a("v_mul_f32 %s, %s, %s" % (v(L), v(L), v(AL)))
        for r in range(4):
            a("v_mul_f32 %s, %s, %s" % (v(O + r), v(O + r), v(AL)))
        for i in range(nq):
            a("v_cvt_pk_bf16_f32 %s, %s, %s" % (v(SB + i), v(SA + i), v(SA + i)))
        for i in range(nq):
            a("v_add_f32 %s, %s, %s" % (v(L), v(L), v(SA + i)))
        for i in range(nq):
            bt = 122 + 4 * (i & 1)
            for j in range(4):
                a("v_and_b32 %s, %s, %s" % (v(bt + j), v(vM[j]), v(SB + i)))
            a("s_waitcnt vmcnt(%d)" % vwait(i))
            a("v_mfma_f32_16x16x32_bf16 %s, %s, %s, %s" % (v(O, 4), v(vreg + 4 * i, 4), v(bt, 4), v(O, 4)))
            vnext(i)

    def tail_setup(self):
        a, c = self.a, self.c
        a("s_and_b32 %s, %s, 1" % (s(sT1), s(sW)))
        a("s_lshl_b32 %s, %s, 1" % (s(sT2), s(sG)))
        a("s_add_u32 %s, %s, %s" % (s(sT1), s(sT1), s(sT2)))
        a("s_mul_i32 %s, %s, %d" % (s(sT1), s(sT1), 128 * 1152))
        a("s_lshl_b32 %s, %s, 7" % (s(sT2), s(sJM)))
        a("s_add_u32 %s, %s, %s" % (s(sTW), s(sT1), s(sT2)))
        a("s_cmp_ge_u32 %s, 2" % s(sW))
        a("s_cselect_b32 %s, %s, %s" % (s(R_TW), s(P_WOA), s(P_WOB)))
        a("s_cselect_b32 %s, %s, %s" % (s(R_TW + 1), s(P_WOA + 1), s(P_WOB + 1)))
        a("s_cmp_lt_u32 %s, 9" % s(sJM))
        a("s_cselect_b32 %s, 4718592, 0" % s(R_TW + 2))
        a("s_cselect_b32 %s, 1152, 0" % s(sT3))
        a("s_mov_b32 %s, 0x20000" % s(R_TW + 3))
        self.srd(R_G, P_G, s(sT3))
        a("s_mov_b32 %s, %s" % (s(R_X + 2), s(sT3)))
        a("v_lshrrev_b32 v250, 3, %s" % v(vL))
        a("v_mul_u32_u24 v250, 1152, v250")
        a("v_and_b32 %s, 7, %s" % (v(vA1), v(vL)))
        a("v_lshlrev_b32 %s, 4, %s" % (v(vA1), v(vA1)))
        a("v_add_u32 v250, v250, %s" % v(vA1))

    def tail_loads(self, n0, n1):
        a, c = self.a, self.c
        for t in range(n0, n1):
            if t < 16:
                a("buffer_load_dwordx4 %s, v250, %s, %s offen %s" % (v(140 + 4 * t, 4), s(R_TW, 4), s(sTW), c.nt))
                if t < 15:
                    a("s_add_u32 %s, %s, 9216" % (s(sTW), s(sTW)))
            else:
                i = t - 16
                o = " offset:1024" if i & 1 else ""
                a("buffer_load_dwordx4 %s, %s, %s, 0 offen%s" % (v(204 + 4 * i, 4), v(vO16), s(R_X if i < 2 else R_G, 4), o))

    def grab(self):
        a = self.a
        a("v_mov_b32 %s, 1" % v(vAT))
        a("s_mov_b64 exec, 1")
        if self.c.diag == 1:
            for _ in range(2):
                a("buffer_atomic_add v134, v134, %s, %s offen sc1" % (s(R_WS, 4), s(sB2)))
        a("buffer_atomic_add %s, v134, %s, %s offen sc0 sc1" % (v(vAT), s(R_WS, 4), s(sB2)))
        a("s_mov_b64 exec, -1")

    def b_main_dyn(self):
        a, c = self.a, self.c
        nq, S = c.nq, c.sblk
        assert 4096 % nq == 0
        nblk = 4096 // nq
        nstat = S * 4 * self.NP
        for r in range(4):
            a("v_mov_b32 %s, 0" % v(10 + r))
        a("v_mov_b32 v14, 0xff800000")
        a("v_mov_b32 v15, 0")
        self.stamp(4)
        loop = self.lab("b_loop")
        if c.pre2:
            a("s_add_u32 %s, %s, %d" % (s(sT5), s(sOFF), (c.pre2 + 1) * nq * 1024))
            self.b_block(nq, 40, 72, lambda i: 63, lambda i: 63,
                         lambda i: self.kv_load(40 + 4 * i, R_K, i, sT5),
                         lambda i: self.kv_load(72 + 4 * i, R_V, i, sT5))
            if c.pre2 == 2:
                self.b_block(nq, 140, 156, lambda i: 63, lambda i: 63, lambda i: None, lambda i: None)
            ne0 = 16 - c.td - c.td2
            ex = 1 + (ne0 - min(c.t0, ne0)) + 4
            self.b_block(nq, 172, 188, lambda i: 4 * nq - 1 - i + ex, lambda i: 3 * nq - 1 - i + ex,
                         lambda i: None, lambda i: None)
            a("s_mov_b32 %s, %s" % (s(sOFF), s(sT5)))
        a("s_movk_i32 %s, %d" % (s(sIT), S - 1 - (c.pre2 + 1 if c.pre2 else 0)))
        a.label(loop)
        a("s_add_u32 %s, %s, %d" % (s(sT5), s(sOFF), nq * 1024))
        self.b_block(nq, 40, 72, lambda i: 2 * nq - 1, lambda i: 2 * nq - 1,
                     lambda i: self.kv_load(40 + 4 * i, R_K, i, sT5),
                     lambda i: self.kv_load(72 + 4 * i, R_V, i, sT5))
        a("s_mov_b32 %s, %s" % (s(sOFF), s(sT5)))
        if c.bstamp:
            self.stamp_it(0, 1)
        a("s_sub_u32 %s, %s, 1" % (s(sIT), s(sIT)))
        a("s_cmp_lg_u32 %s, 0" % s(sIT))
        a("s_cbranch_scc1 %s" % loop)
        self.stamp(14)
        if c.gearly:
            self.gate()
        dyn, last = self.lab("b_dyn"), self.lab("b_last")
        a.label(dyn)
        a("s_waitcnt vmcnt(%d)" % (2 * nq - 1))
        a("v_readfirstlane_b32 %s, %s" % (s(sT5), v(vAT)))
        if c.g1:
            a("s_add_u32 %s, %s, %d" % (s(sT5), s(sT5), 4 * self.NP))
        a("s_cmp_ge_u32 %s, %d" % (s(sT5), nblk - nstat))
        a("s_cbranch_scc1 %s" % last)
        if c.gk:
            fin = self.lab("b_fin")
            a("s_cmp_ge_u32 %s, %d" % (s(sT5), nblk - nstat - c.gk))
            a("s_cbranch_scc1 %s" % fin)
        self.grab()
        a("s_add_u32 %s, %s, %d" % (s(sT5), s(sT5), nstat))
        a("s_mul_i32 %s, %s, %d" % (s(sT5), s(sT5), nq * 1024))
        xa = 2 if c.diag == 1 else 0
        self.b_block(nq, 40, 72, lambda i: 2 * nq + xa if i == 0 else 2 * nq + xa, lambda i: 2 * nq + xa,
                     lambda i: self.kv_load(40 + 4 * i, R_K, i, sT5),
                     lambda i: self.kv_load(72 + 4 * i, R_V, i, sT5))
        if c.debug:
            a("s_add_u32 %s, %s, 1" % (s(sIT), s(sIT)))
        a("s_branch %s" % dyn)
        if c.gk:
            a.label(fin)
            a("s_add_u32 %s, %s, %d" % (s(sT5), s(sT5), nstat))
            a("s_mul_i32 %s, %s, %d" % (s(sT5), s(sT5), nq * 1024))
            self.b_block(nq, 40, 72, lambda i: 2 * nq - 1, lambda i: 2 * nq - 1,
                         lambda i: self.kv_load(40 + 4 * i, R_K, i, sT5),
                         lambda i: self.kv_load(72 + 4 * i, R_V, i, sT5))
            if c.debug:
                a("s_add_u32 %s, %s, 1" % (s(sIT), s(sIT)))
        a.label(last)
        self.stamp(5)
        if c.debug:
            a("v_writelane_b32 %s, %s, 15" % (v(vSTAMP), s(sIT)))
        ne = 16 - c.td - c.td2
        cnt = [c.td // 8 + (1 if j < c.td % 8 else 0) for j in range(8)]
        if c.tdv:
            cnt = [0] * 4 + [c.td // 4 + (1 if j < c.td % 4 else 0) for j in range(4)]
        assert nq == 4 or c.td == 0
        pos = [ne + sum(cnt[:j]) for j in range(9)]
        self.b_block(nq, 40, 72, lambda i: 2 * nq - 1 - i + sum(cnt[:i]),
                     lambda i: nq - 1 - i + sum(cnt[:nq + i]),
                     lambda i: self.tail_loads(pos[i], pos[i + 1]),
                     lambda i: self.tail_loads(pos[nq + i], pos[nq + i + 1]))
        self.stamp(6)
        if not c.gearly:
            self.gate()
        self.b_epilogue()

    def b_main(self):
        a, c = self.a, self.c
        if c.dyn:
            return self.b_main_dyn()
        nq = c.nq
        assert (self.QB - 1) % nq == 0
        nb = (self.QB - 1) // nq
        for r in range(4):
            a("v_mov_b32 %s, 0" % v(10 + r))
        a("v_mov_b32 v14, 0xff800000")
        a("v_mov_b32 v15, 0")
        self.b_block(2, 104, 112, lambda i: 63, lambda i: 63, lambda i: None, lambda i: None,
                     masked_last=True)
        self.stamp(4)
        loop = self.lab("b_loop")
        a("s_movk_i32 %s, %d" % (s(sIT), nb - 1))
        a.label(loop)
        a("s_add_u32 %s, %s, %d" % (s(sT5), s(sOFF), nq * 1024))
        self.b_block(nq, 40, 72, lambda i: 2 * nq - 1, lambda i: 2 * nq - 1,
                     lambda i: self.kv_load(40 + 4 * i, R_K, i, sT5),
                     lambda i: self.kv_load(72 + 4 * i, R_V, i, sT5))
        a("s_mov_b32 %s, %s" % (s(sOFF), s(sT5)))
        if c.bstamp:
            self.stamp_it(0, 1)
        a("s_sub_u32 %s, %s, 1" % (s(sIT), s(sIT)))
        a("s_cmp_lg_u32 %s, 0" % s(sIT))
        a("s_cbranch_scc1 %s" % loop)
        self.stamp(5)
        self.b_block(nq, 40, 72, lambda i: 2 * nq - 1 - i, lambda i: nq - 1 - i,
                     lambda i: None, lambda i: None)
        self.stamp(6)
        self.gate()
        self.b_epilogue()

    def gate(self):
        a = self.a
        G, X, Wt = 220, 204, 212
        a("v_dot2_f32_bf16 %s, %s, %s, 0" % (v(G), v(X), v(Wt)))
        for j in range(1, 8):
            a("v_dot2_f32_bf16 %s, %s, %s, %s" % (v(G), v(X + j), v(Wt + j), v(G)))
        self.allsum_row(G)
        self.allsum_g(G, 221)
        a("v_mul_f32 %s, %s, %s" % (v(G), f32(-LOG2E), v(G)))
        a("v_exp_f32 %s, %s" % (v(G), v(G)))
        a("v_add_f32 %s, 1.0, %s" % (v(G), v(G)))
        a("v_rcp_f32 %s, %s" % (v(G), v(G)))

    def b_epilogue(self):
        a, c = self.a, self.c
        O, M, L = 10, 14, 15
        self.allsum_g(L, 130)
        a("v_bfe_u32 %s, %s, 3, 1" % (v(vA0), v(vL)))
        a("v_lshlrev_b32 %s, 5, %s" % (v(vA2), v(vA0)))
        a("v_lshlrev_b32 %s, 11, %s" % (v(vA0), v(vA0)))
        a("v_lshrrev_b32 %s, 4, %s" % (v(vA1), v(vL)))
        a("v_lshlrev_b32 %s, 9, %s" % (v(vA1), v(vA1)))
        a("v_add_u32 %s, %s, %s" % (v(vA0), v(vA0), v(vA1)))
        a("v_and_b32 %s, 7, %s" % (v(vA1), v(vL)))
        a("v_lshlrev_b32 %s, 4, %s" % (v(vA1), v(vA1)))
        a("s_lshl_b32 %s, %s, 2" % (s(sT1), s(sW)))
        a("s_add_u32 %s, %s, %d" % (s(sT2), s(sT1), LO))
        a("v_add3_u32 %s, %s, %s, %s" % (v(vA0), v(vA0), v(vA1), s(sT2)))
        a("s_add_u32 %s, %s, %d" % (s(sT2), s(sT1), LML))
        a("v_add_u32 %s, %s, %s" % (v(vA2), s(sT2), v(vA2)))
        for r in range(4):
            a("ds_write_b32 %s, %s offset:%d" % (v(vA0), v(O + r), 128 * r))
        a("ds_write_b32 %s, %s" % (v(vA2), v(M)))
        a("ds_write_b32 %s, %s offset:16" % (v(vA2), v(L)))
        a("s_waitcnt lgkmcnt(0)")
        a("s_barrier")
        skip = self.lab("b_pub")
        a("s_cmp_ge_u32 %s, 2" % s(sW))
        a("s_cbranch_scc1 %s" % skip)
        a("s_lshl_b32 %s, %s, 11" % (s(sT1), s(sW)))
        a("s_add_u32 %s, %s, %d" % (s(sT1), s(sT1), LO))
        a("v_lshlrev_b32 %s, 5, %s" % (v(vA0), v(vL)))
        a("v_add_u32 %s, %s, %s" % (v(vA0), s(sT1), v(vA0)))
        a("s_lshl_b32 %s, %s, 5" % (s(sT1), s(sW)))
        a("s_add_u32 %s, %s, %d" % (s(sT1), s(sT1), LML))
        a("v_mov_b32 %s, %s" % (v(vA1), s(sT1)))
        a("ds_read_b128 v[40:43], %s" % v(vA1))
        a("ds_read_b128 v[44:47], %s offset:16" % v(vA1))
        a("ds_read_b128 v[48:51], %s" % v(vA0))
        a("ds_read_b128 v[52:55], %s offset:16" % v(vA0))
        a("s_lshl_b32 %s, %s, %d" % (s(sT1), s(sB), 11 - c.x4c))
        a("s_lshl_b32 %s, %s, %d" % (s(sT2), s(sW), 10 - c.x4c))
        a("s_add_u32 %s, %s, %s" % (s(sT1), s(sT1), s(sT2)))
        a("s_add_u32 %s, %s, 0x%x" % (s(sT1), s(sT1), WS_X4B))
        a("s_lshl_b32 %s, %s, 1" % (s(sT2), s(sB)))
        a("s_add_u32 %s, %s, %s" % (s(sT2), s(sT2), s(sW)))
        a("s_lshl_b32 %s, %s, 7" % (s(sT2), s(sT2)))
        a("s_add_u32 %s, %s, 0x%x" % (s(sT2), s(sT2), WS_X4L))
        a("s_waitcnt lgkmcnt(2)")
        a("v_max3_f32 v56, v40, v41, v42")
        a("v_max_f32 v56, v56, v43")
        for i in range(4):
            a("v_sub_f32 %s, %s, v56" % (v(40 + i), v(40 + i)))
        for i in range(4):
            a("v_exp_f32 %s, %s" % (v(40 + i), v(40 + i)))
        a("v_mul_f32 v57, v40, v44")
        for i in range(1, 4):
            a("v_fmac_f32 v57, %s, %s" % (v(40 + i), v(44 + i)))
        a("s_waitcnt lgkmcnt(0)")
        a("v_mul_f32 v58, v40, v48")
        a("v_mul_f32 v60, v40, v52")
        for i in range(1, 4):
            a("v_fmac_f32 v58, %s, %s" % (v(40 + i), v(48 + i)))
            a("v_fmac_f32 v60, %s, %s" % (v(40 + i), v(52 + i)))
        a("v_rcp_f32 v62, v57")
        a("v_log_f32 v63, v57")
        a("v_mov_b32 v59, %s" % s(sTAG))
        a("v_mov_b32 v61, %s" % s(sTAG))
        a("v_mul_f32 v58, v58, v62")
        a("v_mul_f32 v60, v60, v62")
        a("v_add_f32 v64, v56, v63")
        a("v_mov_b32 v65, %s" % s(sTAG))
        if c.x4c:
            a("v_cvt_pk_bf16_f32 v58, v58, v60")
            a("v_lshlrev_b32 %s, 3, %s" % (v(vA1), v(vL)))
            a("buffer_store_dwordx2 v[58:59], %s, %s, %s offen sc0 sc1" % (v(vA1), s(R_WS, 4), s(sT1)))
        else:
            a("buffer_store_dwordx4 v[58:61], %s, %s, %s offen sc0 sc1" % (v(vO16), s(R_WS, 4), s(sT1)))
        a("v_mov_b32 %s, 0" % v(vA0))
        a("s_mov_b64 exec, 1")
        a("buffer_store_dwordx2 v[64:65], %s, %s, %s offen sc0 sc1" % (v(vA0), s(R_WS, 4), s(sT2)))
        a("s_mov_b64 exec, -1")
        a.label(skip)
        self.stamp(7)
        a("s_cmp_lt_u32 %s, 9" % s(sJM))
        a("s_cbranch_scc1 L_tail")
        a("s_cmp_lg_u32 %s, 9" % s(sJM))
        a("s_cbranch_scc1 L_done")
        a("s_cmp_ge_u32 %s, 9" % s(sG))
        a("s_cbranch_scc1 L_done")
        a("s_cmp_lg_u32 %s, 0" % s(sW))
        a("s_cbranch_scc1 L_done")
        self.final()
        a.label("L_done")
        self.end()

    def final(self):
        a, c = self.a, self.c
        a("s_lshl_b32 %s, %s, 13" % (s(sT1), s(sG)))
        a("s_add_u32 %s, %s, 0x%x" % (s(sX1), s(sT1), WS_X5))
        a("v_and_b32 %s, 31, %s" % (v(vA0), v(vL)))
        a("v_lshlrev_b32 %s, 4, %s" % (v(vA0), v(vA0)))
        a("v_lshrrev_b32 %s, 5, %s" % (v(vA1), v(vL)))
        a("v_lshlrev_b32 %s, 9, %s" % (v(vA1), v(vA1)))
        a("v_add_u32 %s, %s, %s" % (v(vA0), v(vA0), v(vA1)))
        self.srd(R_OUT, P_OUT, "1152")

        def issue():
            for i in range(8):
                if i == 4:
                    a("s_add_u32 %s, %s, 4096" % (s(sT2), s(sX1)))
                a("buffer_load_dwordx4 %s, %s, %s, %s offen offset:%d sc1" % (
                    v(40 + 4 * i, 4), v(vA0), s(R_WS, 4), s(sX1 if i < 4 else sT2), 1024 * (i % 4)))

        def check():
            self.tagcheck(72, [40 + 4 * i + j for i in range(8) for j in (1, 3)])
            a("v_cmp_ne_u32 vcc, 0, v72")

        self.poll("x5", issue, check)
        self.stamp(12)
        for j in (0, 2):
            for i in (0, 2, 4, 6):
                a("v_add_f32 %s, %s, %s" % (v(40 + 4 * i + j), v(40 + 4 * i + j), v(44 + 4 * i + j)))
        for j in (0, 2):
            a("v_add_f32 %s, %s, %s" % (v(40 + j), v(40 + j), v(48 + j)))
            a("v_add_f32 %s, %s, %s" % (v(56 + j), v(56 + j), v(64 + j)))
        for j in (0, 2):
            a("v_add_f32 %s, %s, %s" % (v(40 + j), v(40 + j), v(56 + j)))
        a("v_mov_b32 v44, v40")
        a("v_mov_b32 v45, v42")
        a("v_permlane32_swap_b32 v40, v44")
        a("v_permlane32_swap_b32 v42, v45")
        a("v_add_f32 v40, v40, v44")
        a("v_add_f32 v42, v42, v45")
        a("v_cvt_pk_bf16_f32 v40, v40, v42")
        a("v_lshlrev_b32 %s, 2, %s" % (v(vA0), v(vL)))
        a("s_lshl_b32 %s, %s, 7" % (s(sT1), s(sG)))
        a("s_mov_b32 exec_hi, 0")
        a("buffer_store_dword v40, %s, %s, %s offen" % (v(vA0), s(R_OUT, 4), s(sT1)))
        done = self.lab("fin")
        a("s_cmp_lg_u32 %s, 0" % s(sG))
        a("s_cbranch_scc1 %s" % done)
        a("v_mov_b32 v41, %s" % s(sTAG))
        a("v_mov_b32 %s, %d" % (v(vA0), WS_EPOCH))
        a("s_mov_b64 exec, 1")
        a("buffer_store_dword v41, %s, %s, 0 offen sc0 sc1" % (v(vA0), s(R_WS, 4)))
        if c.elapsed:
            a("s_memrealtime %s" % s(sST, 2))
            a("s_waitcnt lgkmcnt(0)")
            a("s_sub_u32 %s, %s, s38" % (s(sT1), s(sST)))
            a("v_mov_b32 v41, %s" % s(sT1))
            a("v_mov_b32 %s, 0" % v(vA0))
            self.srd(R_OUT, 34, "256")
            a("buffer_store_dword v41, %s, %s, 0 offen" % (v(vA0), s(R_OUT, 4)))
        a.label(done)
        a("s_mov_b64 exec, -1")
        self.stamp(13)

    def reduce_wu8(self, acc, lds, dst):
        a = self.a
        a("v_lshrrev_b32 %s, 4, %s" % (v(vA0), v(vL)))
        a("v_and_b32 %s, 1, %s" % (v(vA1), v(vA0)))
        a("v_lshlrev_b32 %s, 10, %s" % (v(vA1), v(vA1)))
        a("v_lshrrev_b32 %s, 1, %s" % (v(vA0), v(vA0)))
        a("v_lshlrev_b32 %s, 2, %s" % (v(vA0), v(vA0)))
        a("v_add_u32 %s, %s, %s" % (v(vA0), v(vA0), v(vA1)))
        a("v_and_b32 %s, 7, %s" % (v(vA1), v(vL)))
        a("v_lshlrev_b32 %s, 5, %s" % (v(vA1), v(vA1)))
        a("s_lshl_b32 %s, %s, 3" % (s(sT1), s(sW)))
        a("s_add_u32 %s, %s, %d" % (s(sT1), s(sT1), lds))
        a("v_add3_u32 %s, %s, %s, %s" % (v(vA0), v(vA0), v(vA1), s(sT1)))
        self.mask64(sMS2, 0x00FF00FF, 0xFF00FF00)
        a("s_mov_b64 exec, %s" % s(sMS2, 2))
        for r in range(4):
            a("ds_write_b32 %s, %s offset:%d" % (v(vA0), v(acc + r), 256 * r))
        a("s_mov_b64 exec, -1")
        a("s_waitcnt lgkmcnt(0)")
        a("s_barrier")

    def tail_b_compact(self, G, join2):
        a, c = self.a, self.c
        NP = self.NP
        assert NP % 2 == 0
        NL = NP // 2
        a("s_mul_i32 %s, %s, %d" % (s(sX1), s(sG), NP * 1024))
        a("s_lshl_b32 %s, %s, 9" % (s(sT1), s(sT3)))
        a("s_add_u32 %s, %s, %s" % (s(sX1), s(sX1), s(sT1)))
        a("s_add_u32 %s, %s, 0x%x" % (s(sX1), s(sX1), WS_X4B))
        a("s_mul_i32 %s, %s, %d" % (s(sT5), s(sG), NP * 256))
        a("s_lshl_b32 %s, %s, 7" % (s(sT1), s(sT3)))
        a("s_add_u32 %s, %s, %s" % (s(sT5), s(sT5), s(sT1)))
        a("s_add_u32 %s, %s, 0x%x" % (s(sT5), s(sT5), WS_X4L))
        a("v_and_b32 %s, 15, %s" % (v(vA1), v(vL)))
        a("v_min_u32 %s, %d, %s" % (v(vA1), NL - 1, v(vA1)))
        a("v_lshlrev_b32 %s, 9, %s" % (v(vA1), v(vA1)))
        a("v_lshrrev_b32 %s, 5, %s" % (v(vA0), v(vL)))
        a("v_lshl_add_u32 %s, %s, 8, %s" % (v(vA1), v(vA0), v(vA1)))
        a("v_and_b32 %s, 31, %s" % (v(vA2), v(vL)))
        a("v_lshlrev_b32 %s, 4, %s" % (v(vA2), v(vA2)))
        a("v_lshl_add_u32 %s, %s, 10, %s" % (v(vA0), v(vA0), v(vA2)))

        def issue():
            a("buffer_load_dwordx2 v[96:97], %s, %s, %s offen sc1" % (v(vA1), s(R_WS, 4), s(sT5)))
            a("s_mov_b32 %s, %s" % (s(sT2), s(sX1)))
            for i in range(NL):
                o = " offset:2048" if i & 1 else ""
                a("buffer_load_dwordx4 %s, %s, %s, %s offen%s sc1" % (v(40 + 4 * i, 4), v(vA0), s(R_WS, 4), s(sT2), o))
                if i & 1 and i < NL - 1:
                    a("s_add_u32 %s, %s, 4096" % (s(sT2), s(sT2)))

        def check():
            self.tagcheck(98, [97] + [40 + 4 * i + j for i in range(NL) for j in (1, 3)])
            a("v_cmp_ne_u32 vcc, 0, v98")

        if c.tdp and c.td2:
            self.poll("x4c", issue, check, between=lambda: self.tail_loads(16 - c.td2, 16), first_wait=c.td2)
        else:
            self.poll("x4c", issue, check)
        self.stamp(8)
        a("v_mov_b32 v98, v96")
        self.allsum_row(98, "v_max_f32")
        a("v_mov_b32 v99, v98")
        a("v_permlane32_swap_b32 v98, v99")
        a("v_max_f32 v98, v98, v99")
        a("v_sub_f32 v96, v96, v98")
        a("v_exp_f32 v96, v96")
        self.mask64(sMS2, ((1 << NL) - 1) * 0x10001)
        a("v_cndmask_b32 v96, 0, v96, %s" % s(sMS2, 2))
        a("v_mov_b32 v98, v96")
        self.allsum_row(98)
        a("v_mov_b32 v99, v98")
        a("v_permlane32_swap_b32 v98, v99")
        a("v_add_f32 v98, v98, v99")
        a("v_rcp_f32 v98, v98")
        for i in range(NL):
            for k in range(2):
                q = 40 + 4 * i + 2 * k
                a("v_and_b32 %s, 0xffff0000, %s" % (v(q + 1), v(q)))
                a("v_lshlrev_b32 %s, 16, %s" % (v(q), v(q)))
        a("v_mul_f32 v96, v96, v98")
        for i in range(NL):
            for k in range(4):
                op = "v_mul_f32_dpp" if i == 0 else "v_fmac_f32_dpp"
                a("%s %s, v96, %s row_newbcast:%d row_mask:0xf bank_mask:0xf" % (op, v(100 + k), v(40 + 4 * i + k), i))
        for k in range(4):
            a("v_mov_b32 %s, %s" % (v(104 + k), v(100 + k)))
        for k in range(4):
            a("v_permlane32_swap_b32 %s, %s" % (v(100 + k), v(104 + k)))
        for k in range(4):
            a("v_add_f32 %s, %s, %s" % (v(100 + k), v(100 + k), v(104 + k)))
        for k in range(4):
            a("v_cvt_pk_bf16_f32 %s, %s, %s" % (v(100 + k), v(100 + k), v(100 + k)))
        a("s_lshl_b32 %s, %s, 9" % (s(sT1), s(sW)))
        a("s_add_u32 %s, %s, %d" % (s(sT1), s(sT1), LT))
        a("v_add_u32 %s, %s, %s" % (v(vA0), s(sT1), v(vA2)))
        a("ds_write_b128 %s, v[100:103]" % v(vA0))
        a("s_branch %s" % join2)

    def tail(self):
        a, c = self.a, self.c
        a.label("L_tail")
        if not c.tdp:
            self.tail_loads(16 - c.td2, 16)
        G = 220
        isa, join, join2 = self.lab("t_a"), self.lab("t_j"), self.lab("t_k")
        a("s_and_b32 %s, %s, 1" % (s(sT3), s(sW)))
        a("s_cmp_ge_u32 %s, 2" % s(sW))
        a("s_cbranch_scc1 %s" % isa)
        a("v_sub_f32 %s, 1.0, %s" % (v(G), v(G)))
        NP = self.NP
        if c.x4c:
            self.tail_b_compact(G, join2)
        else:
            self.tail_b_full(G, join)
        a.label(isa)
        self.tail_rest(G, join, join2)

    def tail_b_full(self, G, join):
        a, c = self.a, self.c
        NP = self.NP
        a("s_mul_i32 %s, %s, %d" % (s(sX1), s(sG), NP * 2048))
        a("s_lshl_b32 %s, %s, 10" % (s(sT1), s(sT3)))
        a("s_add_u32 %s, %s, %s" % (s(sX1), s(sX1), s(sT1)))
        a("s_add_u32 %s, %s, 0x%x" % (s(sX1), s(sX1), WS_X4B))
        a("s_mul_i32 %s, %s, %d" % (s(sT5), s(sG), NP * 256))
        a("s_lshl_b32 %s, %s, 7" % (s(sT1), s(sT3)))
        a("s_add_u32 %s, %s, %s" % (s(sT5), s(sT5), s(sT1)))
        a("s_add_u32 %s, %s, 0x%x" % (s(sT5), s(sT5), WS_X4L))
        a("v_and_b32 %s, 15, %s" % (v(vA1), v(vL)))
        a("v_min_u32 %s, %d, %s" % (v(vA1), NP - 1, v(vA1)))
        a("v_lshlrev_b32 %s, 8, %s" % (v(vA1), v(vA1)))

        def issue():
            a("buffer_load_dwordx2 v[96:97], %s, %s, %s offen sc1" % (v(vA1), s(R_WS, 4), s(sT5)))
            a("s_mov_b32 %s, %s" % (s(sT2), s(sX1)))
            for i in range(NP):
                o = " offset:2048" if i & 1 else ""
                a("buffer_load_dwordx4 %s, %s, %s, %s offen%s sc1" % (v(40 + 4 * i, 4), v(vO16), s(R_WS, 4), s(sT2), o))
                if i & 1 and i < NP - 1:
                    a("s_add_u32 %s, %s, 4096" % (s(sT2), s(sT2)))

        def check():
            self.tagcheck(98, [97] + [40 + 4 * i + j for i in range(NP) for j in (1, 3)])
            a("v_cmp_ne_u32 vcc, 0, v98")

        if c.lfirst:
            def issue_l():
                a("buffer_load_dwordx2 v[96:97], %s, %s, %s offen sc1" % (v(vA1), s(R_WS, 4), s(sT5)))

            def check_l():
                self.tagcheck(98, [97])
                a("v_cmp_ne_u32 vcc, 0, v98")

            self.poll("x4l", issue_l, check_l)
        self.poll("x4b", issue, check)
        self.stamp(8)
        a("v_mov_b32 v98, v96")
        self.allsum_row(98, "v_max_f32")
        a("v_sub_f32 v96, v96, v98")
        a("v_exp_f32 v96, v96")
        self.mask64(sMS2, ((1 << NP) - 1) * 0x10001)
        a("v_cndmask_b32 v96, 0, v96, %s" % s(sMS2, 2))
        a("v_mov_b32 v98, v96")
        self.allsum_row(98)
        a("v_rcp_f32 v98, v98")
        a("v_mul_f32 v96, v96, v98")
        for i in range(NP):
            a("v_readlane_b32 %s, v96, %d" % (s(8 + i), i))
        a("v_mul_f32 v100, %s, v40" % s(8))
        a("v_mul_f32 v101, %s, v42" % s(8))
        for i in range(1, NP):
            a("v_fmac_f32 v100, %s, %s" % (s(8 + i), v(40 + 4 * i)))
            a("v_fmac_f32 v101, %s, %s" % (s(8 + i), v(42 + 4 * i)))
        a("s_branch %s" % join)

    def tail_rest(self, G, join, join2):
        a, c = self.a, self.c
        a("s_lshl_b32 %s, %s, 1" % (s(sX1), s(sG)))
        a("s_add_u32 %s, %s, %s" % (s(sX1), s(sX1), s(sT3)))
        NH = self.NH
        a("s_lshl_b32 %s, %s, %d" % (s(sX1), s(sX1), 9 + NH))
        a("s_add_u32 %s, %s, 0x%x" % (s(sX1), s(sX1), WS_X4A))

        def issue_a():
            for h in range(NH):
                o = " offset:1024" if h else ""
                a("buffer_load_dwordx4 %s, %s, %s, %s offen%s sc1" % (v(40 + 4 * h, 4), v(vO16), s(R_WS, 4), s(sX1), o))

        def check_a():
            self.tagcheck(98, [41 + 4 * h + j for h in range(NH) for j in (0, 2)])
            a("v_cmp_ne_u32 vcc, 0, v98")

        if c.tdp and c.td2:
            self.poll("x4a", issue_a, check_a, between=lambda: self.tail_loads(16 - c.td2, 16), first_wait=c.td2)
        else:
            self.poll("x4a", issue_a, check_a)
        self.stamp(8)
        if NH == 1:
            a("v_mov_b32 v100, v40")
            a("v_mov_b32 v101, v42")
        else:
            a("v_add_f32 v100, v40, v44")
            a("v_add_f32 v101, v42, v46")
        a.label(join)
        self.dump(0, 100)
        self.dump(1, 101)
        self.dump(2, G)
        a("v_cvt_pk_bf16_f32 v100, v100, v100")
        a("v_cvt_pk_bf16_f32 v101, v101, v101")
        a("s_lshl_b32 %s, %s, 9" % (s(sT1), s(sW)))
        a("s_add_u32 %s, %s, %d" % (s(sT1), s(sT1), LT))
        a("v_lshlrev_b32 %s, 3, %s" % (v(vA0), v(vL)))
        a("v_add_u32 %s, %s, %s" % (v(vA0), s(sT1), v(vA0)))
        a("ds_write_b64 %s, v[100:101]" % v(vA0))
        a.label(join2)
        a("v_lshrrev_b32 %s, 3, %s" % (v(vA1), v(vL)))
        a("v_lshlrev_b32 %s, 2, %s" % (v(vA1), v(vA1)))
        a("v_add_u32 %s, %s, %s" % (v(vA1), s(sT1), v(vA1)))
        for t in range(0, 16, 2):
            a("ds_read2_b32 %s, %s offset0:%d offset1:%d" % (v(40 + t, 2), v(vA1), 8 * t, 8 * t + 8))
        for t in range(16):
            if t % 2 == 0:
                a("s_waitcnt lgkmcnt(%d)" % (7 - t // 2))
            if c.tdp and t >= 16 - c.td2:
                a("s_waitcnt vmcnt(%d)" % (15 - t))
            self.delta_mfma(10, v(140 + 4 * t, 4), 40 + t, 122 + 4 * (t & 1), t == 0)
        for r in range(4):
            self.dump(3 + r, 10 + r)
        self.dump(7, 140)
        for r in range(4):
            a("v_mul_f32 %s, %s, %s" % (v(10 + r), v(10 + r), v(G)))
        self.reduce_wu8(10, LR, 0)
        a("s_cmp_lg_u32 %s, 0" % s(sW))
        a("s_cbranch_scc1 L_tail_done")
        a("v_lshlrev_b32 %s, 5, %s" % (v(vA0), v(vL)))
        a("v_add_u32 %s, %d, %s" % (v(vA0), LR, v(vA0)))
        a("ds_read_b128 v[40:43], %s" % v(vA0))
        a("ds_read_b128 v[44:47], %s offset:16" % v(vA0))
        a("s_lshl_b32 %s, %s, 4" % (s(sT1), s(sJM)))
        a("s_add_u32 %s, %s, %s" % (s(sT1), s(sT1), s(sG)))
        a("s_lshl_b32 %s, %s, 9" % (s(sT1), s(sT1)))
        a("s_add_u32 %s, %s, 0x%x" % (s(sT1), s(sT1), WS_X5))
        a("v_lshlrev_b32 %s, 3, %s" % (v(vA1), v(vL)))
        a("s_waitcnt lgkmcnt(0)")
        a("v_add_f32 v40, v40, v41")
        a("v_add_f32 v42, v42, v43")
        a("v_add_f32 v44, v44, v45")
        a("v_add_f32 v46, v46, v47")
        a("v_add_f32 v40, v40, v42")
        a("v_add_f32 v44, v44, v46")
        a("v_add_f32 v40, v40, v44")
        a("v_mov_b32 v41, %s" % s(sTAG))
        a("buffer_store_dwordx2 v[40:41], %s, %s, %s offen sc0 sc1" % (v(vA1), s(R_WS, 4), s(sT1)))
        a.label("L_tail_done")
        self.stamp(9)
        self.end()

    def dma_rows(self, rows):
        a, c = self.a, self.c
        sDS, sDB = sT5, sT4
        grp = None
        for i in rows:
            if i // 4 != grp:
                grp = i // 4
                if grp == 0:
                    a("s_mov_b32 m0, %s" % s(sDB))
                    so = sDS
                else:
                    a("s_add_u32 %s, %s, 4096" % (s(sT1), s(sDB)))
                    a("s_add_u32 %s, %s, 4096" % (s(sT2), s(sDS)))
                    a("s_mov_b32 m0, %s" % s(sT1))
                    so = sT2
            o = " offset:%d" % (1024 * (i % 4)) if i % 4 else ""
            a("buffer_load_dwordx4 %s, %s, %s offen%s %s lds" % (v(222 + i), s(R_C, 4), s(so), o, c.nt))

    def dma_next(self):
        a = self.a
        sDS, sDB, sDX = sT5, sT4, sT3
        a("s_add_u32 %s, %s, 0x8000" % (s(sDS), s(sDS)))
        a("s_xor_b32 %s, %s, %s" % (s(sDB), s(sDB), s(sDX)))
        a("s_xor_b32 %s, %s, 0x18000" % (s(sDX), s(sDX)))

    def uv_loads(self, t0, t1):
        a, c = self.a, self.c
        for t in range(t0, t1):
            a("buffer_load_dwordx4 %s, v250, %s, %s offen %s" % (ar(128 + 4 * t, 4), s(R_UV, 4), s(sB), c.nt))
            if t < 32 // self.NH - 1:
                a("s_add_u32 %s, %s, 0x8000" % (s(sB), s(sB)))

    def uv_setup(self):
        a, c = self.a, self.c
        a("v_lshrrev_b32 %s, 4, %s" % (v(vA0), v(vL)))
        a("v_lshlrev_b32 %s, 13, %s" % (v(vA0), v(vA0)))
        a("v_and_b32 %s, 15, %s" % (v(vA1), v(vL)))
        a("v_lshlrev_b32 v250, 4, %s" % v(vA1))
        a("v_add_u32 v250, %s, v250" % v(vA0))
        if self.NH == 1:
            a("s_lshl_b32 %s, %s, 20" % (s(sB), s(sW)))
            a("s_lshl_b32 %s, s2, 8" % s(sT2))
        else:
            a("s_and_b32 %s, s2, 1" % s(sT2))
            a("s_lshl_b32 %s, %s, 2" % (s(sT2), s(sT2)))
            a("s_add_u32 %s, %s, %s" % (s(sB), s(sT2), s(sW)))
            a("s_lshl_b32 %s, %s, 19" % (s(sB), s(sB)))
            a("s_lshr_b32 %s, s2, 1" % s(sT2))
            a("s_lshl_b32 %s, %s, 8" % (s(sT2), s(sT2)))
        a("s_add_u32 %s, %s, %s" % (s(sB), s(sB), s(sT2)))

    def a_main(self):
        a, c = self.a, self.c
        a.label("L_a_main")
        sDS, sDB, sDX = sT5, sT4, sT3
        na, nb_, nc = [int(x) for x in c.dsplit.split(",")]
        assert na + nb_ + nc == 8
        rowsA, rowsB, rowsC = list(range(na)), list(range(na, na + nb_)), list(range(na + nb_, 8))
        a("s_mov_b32 %s, %s" % (s(sX1), s(sT5)))
        for k in range(8):
            a("v_xor_b32 %s, %d, %s" % (v(222 + k), 32 * k, v(vO16)))
        a("s_lshl_b32 %s, %s, 13" % (s(sDB), s(sW)))
        a("s_mov_b32 %s, %s" % (s(sDS), s(sDB)))
        a("s_mov_b32 %s, 0x8000" % s(sDX))
        self.dma_rows(range(8))
        if c.t1e:
            self.dma_next()
            self.dma_rows(range(8))
        if c.uve:
            self.uv_setup()
            self.uv_loads(0, min(c.uv0 - c.uv1, 32 // self.NH))

        def issue_q():
            self.x1_issue(X1A, sX1)

        def check_q():
            self.tagcheck(242, [X1A + 1, X1A + 3])
            a("v_cmp_ne_u32 vcc, 0, v242")

        self.poll("x1a", issue_q, check_q)
        self.stamp(3)
        self.x1_pack([X1A])
        self.uk_slice()
        self.stamp(4)
        if not c.t1e:
            self.dma_next()
            self.dma_rows(range(8))
        if c.uve and c.uv1:
            self.uv_loads(c.uv0 - c.uv1, c.uv0)
        if not c.uve:
            self.uv_setup()
        a("s_lshl_b32 %s, %s, 14" % (s(sX1), s(sW)))
        a("s_add_u32 %s, %s, 0x%x" % (s(sX1), s(sX1), WS_X2))

        def issue():
            a("s_mov_b32 %s, %s" % (s(sOFF), s(sX1)))
            for i in range(16):
                o = " offset:%d" % (1024 * (i % 4)) if i % 4 else ""
                a("buffer_load_dwordx4 %s, %s, %s, %s offen%s sc1" % (v(40 + 4 * i, 4), v(vO16), s(R_WS, 4), s(sOFF), o))
                if i % 4 == 3 and i < 15:
                    a("s_add_u32 %s, %s, 4096" % (s(sOFF), s(sOFF)))

        def check():
            self.tagcheck(104, [40 + 4 * i + j for i in range(16) for j in (1, 3)])
            a("v_cmp_ne_u32 vcc, 0, v104")

        self.poll("x2", issue, check)
        self.stamp(5)
        self.dma_next()
        self.dma_rows(rowsA + rowsB)
        if not c.uve:
            self.uv_loads(0, min(c.uv0, 32 // self.NH))
        a("v_lshrrev_b32 %s, 1, %s" % (v(vA0), v(vL)))
        a("v_lshlrev_b32 %s, 4, %s" % (v(vA0), v(vA0)))
        a("v_and_b32 %s, 1, %s" % (v(vA1), v(vL)))
        a("v_lshlrev_b32 %s, 3, %s" % (v(vA1), v(vA1)))
        a("s_lshl_b32 %s, %s, 13" % (s(sT1), s(sW)))
        a("s_add_u32 %s, %s, %d" % (s(sT1), s(sT1), LQA))
        a("v_add_u32 %s, %s, %s" % (v(vA0), v(vA0), v(vA1)))
        for hq in range(8):
            a("v_xor_b32 %s, %d, %s" % (v(104 + hq), 32 * hq, v(vA0)))
            a("v_add_u32 %s, %s, %s" % (v(104 + hq), s(sT1), v(104 + hq)))
        for i in range(16):
            a("v_mov_b32 %s, %s" % (v(41 + 4 * i), v(42 + 4 * i)))
        for i in range(16):
            hq, half = i >> 1, i & 1
            a("ds_write_b64 %s, %s offset:%d" % (v(104 + hq), v(40 + 4 * i, 2), hq * 1024 + half * 512))
        AQ, AT = 210, 214
        a("v_and_b32 %s, 15, %s" % (v(vA0), v(vL)))
        a("v_lshlrev_b32 %s, 10, %s" % (v(vA1), v(vA0)))
        a("v_and_b32 %s, 7, %s" % (v(vA0), v(vA0)))
        a("v_lshlrev_b32 %s, 5, %s" % (v(vA0), v(vA0)))
        a("v_lshrrev_b32 %s, 4, %s" % (v(vA2), v(vL)))
        a("v_lshlrev_b32 %s, 4, %s" % (v(vA2), v(vA2)))
        for b in range(4):
            a("v_add_u32 %s, %d, %s" % (v(AQ + b), 64 * b, v(vA2)))
            a("v_xor_b32 %s, %s, %s" % (v(AQ + b), v(AQ + b), v(vA0)))
            a("v_add_u32 %s, %s, %s" % (v(AQ + b), v(AQ + b), v(vA1)))
        a("s_waitcnt lgkmcnt(0)")
        a("s_barrier")
        a("s_lshr_b32 %s, %s, 1" % (s(sT1), s(sW)))
        a("s_lshl_b32 %s, %s, 14" % (s(sT1), s(sT1)))
        a("s_add_u32 %s, %s, %d" % (s(sT1), s(sT1), LQA))
        for b in range(4):
            a("v_add_u32 %s, %s, %s" % (v(112 + b), s(sT1), v(AQ + b)))
        for ks in range(16):
            a("ds_read_b128 %s, %s offset:%d" % (ar(4 * ks, 4), v(112 + (ks & 3)), (ks >> 2) * 256))
        a("s_and_b32 %s, %s, 1" % (s(sT1), s(sW)))
        a("s_lshl_b32 %s, %s, 14" % (s(sT1), s(sT1)))
        for b in range(4):
            a("v_add_u32 %s, %s, %s" % (v(AQ + b), s(sT1), v(AQ + b)))
        a("v_lshrrev_b32 %s, 4, %s" % (v(vA0), v(vL)))
        a("v_lshlrev_b32 %s, 2, %s" % (v(vA0), v(vA0)))
        a("v_bfe_u32 %s, %s, 2, 2" % (v(vA1), v(vL)))
        a("v_add_u32 %s, %s, %s" % (v(vA0), v(vA0), v(vA1)))
        a("v_and_b32 %s, 7, %s" % (v(vA1), v(vA0)))
        a("v_lshlrev_b32 %s, 5, %s" % (v(vA1), v(vA1)))
        a("v_lshlrev_b32 %s, 10, %s" % (v(vA0), v(vA0)))
        a("v_and_b32 %s, 3, %s" % (v(vA2), v(vL)))
        a("v_lshlrev_b32 %s, 3, %s" % (v(vA2), v(vA2)))
        a("s_lshl_b32 %s, %s, 8" % (s(sT1), s(sW)))
        a("v_add3_u32 %s, %s, %s, %s" % (v(vA0), v(vA0), v(vA2), s(sT1)))
        for ct in range(8):
            a("v_xor_b32 %s, %d, %s" % (v(AT + ct), 32 * ct, v(vA1)))
            a("v_add_u32 %s, %s, %s" % (v(AT + ct), v(AT + ct), v(vA0)))
        AMW, AMR, APW, APR = 230, 231, 232, 233
        a("v_and_b32 %s, 15, %s" % (v(vA0), v(vL)))
        a("v_lshlrev_b32 %s, 4, %s" % (v(vA0), v(vA0)))
        a("v_add_u32 %s, %d, %s" % (v(AMR), LMX, v(vA0)))
        a("s_lshr_b32 %s, %s, 1" % (s(sT1), s(sW)))
        a("s_and_b32 %s, %s, 1" % (s(sT2), s(sW)))
        a("s_lshl_b32 %s, %s, 3" % (s(sOFF), s(sT1)))
        a("s_lshl_b32 %s, %s, 2" % (s(sX1), s(sT2)))
        a("s_add_u32 %s, %s, %s" % (s(sOFF), s(sOFF), s(sX1)))
        a("v_add_u32 %s, %s, %s" % (v(AMW), s(sOFF), v(AMR)))
        a("v_add_u32 %s, %d, %s" % (v(APR), LP, v(vO16)))
        a("s_lshl_b32 %s, %s, 10" % (s(sOFF), s(sT1)))
        a("s_lshl_b32 %s, %s, 3" % (s(sX1), s(sT2)))
        a("s_add_u32 %s, %s, %s" % (s(sOFF), s(sOFF), s(sX1)))
        a("v_add_u32 %s, %s, %s" % (v(APW), s(sOFF), v(APR)))
        a("s_cmp_ge_u32 %s, 2" % s(sW))
        a("s_cselect_b64 %s, -1, 0" % s(sMSK, 2))
        ACC, OP, S8, M0, L0, AL, PO = 40, 104, 168, 176, 178, 180, 182
        for i in range(64):
            a("v_mov_b32 %s, 0" % v(ACC + i))
        a("v_mov_b32 %s, 0xff800000" % v(M0))
        a("v_mov_b32 %s, 0xff800000" % v(M0 + 1))
        a("v_mov_b32 %s, 0" % v(L0))
        a("s_waitcnt lgkmcnt(0)")
        a("s_barrier")
        self.stamp(6)
        a("s_mov_b32 %s, 0" % s(sIT))
        a("s_mov_b32 %s, 0x8000" % s(sOFF))
        loop = self.lab("a_loop")
        a.label(loop)
        self.stamp_it(0, 3)
        for ks in range(16):
            a("ds_read_b128 %s, %s offset:%d" % (v(OP + 4 * ks, 4), v(AQ + (ks & 3)), (ks >> 2) * 256))
        cpos = {(4 + 4 * i): r for i, r in enumerate(rowsC)}
        for ks in range(16):
            a("s_waitcnt lgkmcnt(%d)" % (15 - ks))
            acc = S8 + 4 * (ks & 1)
            a("v_mfma_f32_16x16x32_bf16 %s, %s, %s, %s" % (
                v(acc, 4), v(OP + 4 * ks, 4), ar(4 * ks, 4), "0" if ks < 2 else v(acc, 4)))
            if ks in cpos:
                self.dma_rows([cpos[ks]])
        T0 = 198
        for r in range(4):
            a("v_add_f32 %s, %s, %s" % (v(S8 + r), v(S8 + r), v(S8 + 4 + r)))
        a("v_max3_f32 %s, %s, %s, %s" % (v(T0), v(S8), v(S8 + 1), v(S8 + 2)))
        a("v_max_f32 %s, %s, %s" % (v(T0), v(T0), v(S8 + 3)))
        self.allsum_g(T0, T0 + 1, "v_max_f32")
        a("ds_write_b32 %s, %s" % (v(AMW), v(T0)))
        a("s_waitcnt lgkmcnt(0)")
        a("s_barrier")
        a("ds_read_b128 %s, %s" % (v(T0, 4), v(AMR)))
        self.dma_next()
        a("s_cmp_ge_u32 %s, %d" % (s(sIT), self.NIT - 3))
        a("s_cselect_b32 %s, 0, %d" % (s(R_C + 2), self.KEYS * 1024))
        self.dma_rows(rowsA)
        a("s_waitcnt lgkmcnt(0)")
        a("v_max3_f32 %s, %s, %s, %s" % (v(T0), v(T0), v(T0 + 1), v(M0)))
        a("v_max3_f32 %s, %s, %s, %s" % (v(T0 + 2), v(T0 + 2), v(T0 + 3), v(M0 + 1)))
        a("v_cndmask_b32 %s, %s, %s, %s" % (v(T0 + 1), v(T0), v(T0 + 2), s(sMSK, 2)))
        a("v_sub_f32 %s, %s, %s" % (v(AL), v(M0), v(T0)))
        a("v_sub_f32 %s, %s, %s" % (v(AL + 1), v(M0 + 1), v(T0 + 2)))
        for r in range(4):
            a("v_sub_f32 %s, %s, %s" % (v(S8 + r), v(S8 + r), v(T0 + 1)))
        a("v_exp_f32 %s, %s" % (v(AL), v(AL)))
        a("v_exp_f32 %s, %s" % (v(AL + 1), v(AL + 1)))
        for r in range(4):
            a("v_exp_f32 %s, %s" % (v(S8 + r), v(S8 + r)))
        a("v_mov_b32 %s, %s" % (v(M0), v(T0)))
        a("v_mov_b32 %s, %s" % (v(M0 + 1), v(T0 + 2)))
        a("v_cvt_pk_bf16_f32 %s, %s, %s" % (v(T0), v(S8), v(S8 + 1)))
        a("v_cvt_pk_bf16_f32 %s, %s, %s" % (v(T0 + 1), v(S8 + 2), v(S8 + 3)))
        a("ds_write_b64 %s, %s" % (v(APW), v(T0, 2)))
        a("v_cndmask_b32 %s, %s, %s, %s" % (v(T0 + 2), v(AL), v(AL + 1), s(sMSK, 2)))
        a("v_add_f32 %s, %s, %s" % (v(S8), v(S8), v(S8 + 1)))
        a("v_add_f32 %s, %s, %s" % (v(S8 + 2), v(S8 + 2), v(S8 + 3)))
        a("v_add_f32 %s, %s, %s" % (v(S8), v(S8), v(S8 + 2)))
        a("v_fma_f32 %s, %s, %s, %s" % (v(L0), v(L0), v(T0 + 2), v(S8)))

        def rescale(ct):
            for ht in range(2):
                sel = "op_sel_hi:[1,0]" if ht == 0 else "op_sel:[0,1] op_sel_hi:[1,1]"
                for h in range(2):
                    x = ACC + 8 * ct + 4 * ht + 2 * h
                    a("v_pk_mul_f32 %s, %s, %s %s" % (v(x, 2), v(x, 2), v(AL, 2), sel))
        rescale(0)
        nowait = self.lab("a_nw")
        a("s_cmp_eq_u32 %s, 0" % s(sIT))
        a("s_cbranch_scc1 %s" % nowait)
        a("s_waitcnt vmcnt(%d)" % (na + 8))
        a.label(nowait)
        a("s_waitcnt lgkmcnt(0)")
        a("s_barrier")
        self.stamp_it(1, 3)
        for ht in range(2):
            a("ds_read_b128 %s, %s offset:%d" % (v(PO + 4 * ht, 4), v(APR), ht * 1024))

        def tr_reads(ct):
            for hf in range(2):
                a("ds_read_b64_tr_b16 %s, %s offset:%d" % (v(OP + 4 * ct + 2 * hf, 2), v(AT + ct), 16384 * hf))
        for ct in range(6):
            tr_reads(ct)
        issued = 6
        bpos = {(1 + 2 * i): r for i, r in enumerate(rowsB)}
        for ct in range(8):
            if ct < 7:
                rescale(ct + 1)
            a("s_waitcnt lgkmcnt(%d)" % (2 * (issued - ct - 1)))
            for ht in range(2):
                x = ACC + 8 * ct + 4 * ht
                a("v_mfma_f32_16x16x32_bf16 %s, %s, %s, %s" % (
                    v(x, 4), v(OP + 4 * ct, 4), v(PO + 4 * ht, 4), v(x, 4)))
            if issued < 8:
                tr_reads(issued)
                issued += 1
            if ct in bpos:
                self.dma_rows([bpos[ct]])
        for b in range(4):
            a("v_xor_b32 %s, %s, %s" % (v(AQ + b), s(sOFF), v(AQ + b)))
        for ct in range(8):
            a("v_xor_b32 %s, %s, %s" % (v(AT + ct), s(sOFF), v(AT + ct)))
        a("s_xor_b32 %s, %s, 0x18000" % (s(sOFF), s(sOFF)))
        self.stamp_it(2, 3)
        a("s_add_u32 %s, %s, 1" % (s(sIT), s(sIT)))
        a("s_cmp_lt_u32 %s, %d" % (s(sIT), self.NIT))
        a("s_cbranch_scc1 %s" % loop)
        self.stamp(7)
        self.a_finish(ACC, OP, M0, L0)

    def a_finish_u(self, ACC, OP, M0, L0):
        a, c = self.a, self.c
        assert self.NH == 2
        NT = 16
        a("v_and_b32 %s, 15, %s" % (v(vA1), v(vL)))
        a("v_lshlrev_b32 %s, 16, %s" % (v(vA0), v(vA1)))
        a("v_lshrrev_b32 %s, 4, %s" % (v(vA2), v(vL)))
        a("v_lshlrev_b32 %s, 4, %s" % (v(vA2), v(vA2)))
        a("v_add_u32 %s, %s, %s" % (v(vA0), v(vA0), v(vA2)))
        a("s_lshl_b32 %s, s2, 10" % s(sT1))
        a("s_lshl_b32 %s, %s, 8" % (s(sT2), s(sW)))
        a("s_add_u32 %s, %s, %s" % (s(sT1), s(sT1), s(sT2)))
        a("s_add_u32 %s, %s, 0x%x" % (s(sT1), s(sT1), WS_X3))
        a("s_add_u32 %s, %s, 0x100000" % (s(sT2), s(sT1)))
        n = 0
        for q in range(4):
            for ht in range(2):
                r = OP + 4 * n
                for k in range(2):
                    x = ACC + 8 * (2 * q + k) + 4 * ht
                    a("v_cvt_pk_bf16_f32 %s, %s, %s" % (v(r + 2 * k), v(x), v(x + 1)))
                    a("v_cvt_pk_bf16_f32 %s, %s, %s" % (v(r + 2 * k + 1), v(x + 2), v(x + 3)))
                o = " offset:%d" % (64 * q) if q else ""
                a("buffer_store_dwordx4 %s, %s, %s, %s offen%s sc0 sc1" % (
                    v(r, 4), v(vA0), s(R_WS, 4), s(sT2 if ht else sT1), o))
                n += 1
        self.stamp(12)
        u0 = min(c.uv0, NT)
        self.uv_loads(u0, NT)
        self.allsum_g(L0, 198)
        a("v_cndmask_b32 v204, %s, %s, %s" % (v(M0), v(M0 + 1), s(sMSK, 2)))
        a("v_mov_b32 v205, %s" % s(sTAG))
        a("v_mov_b32 v206, %s" % v(L0))
        a("v_mov_b32 v207, %s" % s(sTAG))
        a("v_lshlrev_b32 %s, 11, %s" % (v(vA1), v(vA1)))
        a("s_lshr_b32 %s, %s, 1" % (s(sT1), s(sW)))
        a("s_lshl_b32 %s, %s, 15" % (s(sT1), s(sT1)))
        a("s_and_b32 %s, %s, 1" % (s(sT2), s(sW)))
        a("s_lshl_b32 %s, %s, 4" % (s(sT2), s(sT2)))
        a("s_add_u32 %s, %s, %s" % (s(sT1), s(sT1), s(sT2)))
        a("s_lshl_b32 %s, s2, 5" % s(sT2))
        a("s_add_u32 %s, %s, %s" % (s(sT1), s(sT1), s(sT2)))
        a("s_add_u32 %s, %s, 0x%x" % (s(sT1), s(sT1), WS_ML))
        a("s_waitcnt vmcnt(%d)" % (NT - u0))
        a("s_barrier")
        a("s_mov_b64 exec, 0xffff")
        a("buffer_store_dwordx4 v[204:207], %s, %s, %s offen sc0 sc1" % (v(vA1), s(R_WS, 4), s(sT1)))
        if c.mlw == 2:
            a("s_mov_b32 %s, 0x%x" % (s(sT2), WS_HINT))
            a("v_lshlrev_b32 v219, 8, %s" % v(vL))
            a("v_mov_b32 v218, 1")
            a("s_mov_b64 exec, 0xff")
            a("buffer_atomic_add v218, v219, %s, %s offen sc1" % (s(R_WS, 4), s(sT2)))
        a("s_mov_b64 exec, -1")
        self.stamp(8)
        a("s_lshr_b32 %s, s2, 1" % s(sB))
        a("s_lshl_b32 %s, %s, 11" % (s(sX1), s(sB)))
        a("s_add_u32 %s, %s, 0x%x" % (s(sX1), s(sX1), WS_ML))
        MR = [200, 210]

        def issue():
            for h in range(2):
                o = " offset:1024" if h else ""
                a("buffer_load_dwordx4 %s, %s, %s, %s offen%s sc1" % (v(MR[h], 4), v(vO16), s(R_WS, 4), s(sX1), o))

        def check():
            self.tagcheck(204, [m + j for m in MR for j in (1, 3)])
            a("v_cmp_ne_u32 vcc, 0, v204")

        a("v_lshrrev_b32 %s, 3, %s" % (v(vA0), v(vL)))
        a("v_lshlrev_b32 %s, 10, %s" % (v(vA1), v(vA0)))
        a("v_and_b32 %s, 7, %s" % (v(vA2), v(vL)))
        a("v_lshlrev_b32 v208, 4, %s" % v(vA2))
        a("v_add_u32 v208, %s, v208" % v(vA1))
        a("v_lshlrev_b32 v209, 3, %s" % v(vA0))
        def x3_loads():
            a("s_lshl_b32 %s, %s, 16" % (s(sT4), s(sB)))
            a("s_lshl_b32 %s, %s, 7" % (s(sT2), s(sW)))
            a("s_add_u32 %s, %s, %s" % (s(sT4), s(sT4), s(sT2)))
            a("s_and_b32 %s, s2, 1" % s(sT2))
            a("s_lshl_b32 %s, %s, 9" % (s(sT2), s(sT2)))
            a("s_add_u32 %s, %s, %s" % (s(sT4), s(sT4), s(sT2)))
            a("s_add_u32 %s, %s, 0x%x" % (s(sT4), s(sT4), WS_X3))
            for i in range(8):
                a("buffer_load_dwordx4 %s, v208, %s, %s offen sc1" % (v(40 + 4 * i, 4), s(R_WS, 4), s(sT4)))
                if i < 7:
                    a("s_add_u32 %s, %s, 8192" % (s(sT4), s(sT4)))

        if c.mlw == 2:
            go = self.lab("ml_go")
            a("s_cmp_lg_u32 %s, 0" % s(sW))
            a("s_cbranch_scc1 %s" % go)
            a("s_and_b32 %s, s2, 7" % s(sT2))
            a("s_lshl_b32 %s, %s, 8" % (s(sT2), s(sT2)))
            a("s_add_u32 %s, %s, 0x%x" % (s(sT2), s(sT2), WS_HINT))
            a("s_mov_b64 exec, 1")

            def issue_h():
                a("buffer_load_dword v220, v219, %s, %s offen sc1" % (s(R_WS, 4), s(sT2)))

            def check_h():
                a("v_cmp_ne_u32 vcc, 0x100, v220")

            self.poll("hint", issue_h, check_h)
            a("s_mov_b64 exec, -1")
            a.label(go)
            a("s_barrier")
            self.poll("ml", issue, check, between=x3_loads, first_wait=8)
        elif c.mlw:
            lead, go = self.lab("ml_lead"), self.lab("ml_go")
            a("s_cmp_eq_u32 %s, 0" % s(sW))
            a("s_cbranch_scc1 %s" % lead)
            a("s_barrier")
            self.poll("mlf", issue, check)
            a("s_branch %s" % go)
            a.label(lead)
            self.poll("ml", issue, check)
            a("s_barrier")
            a.label(go)
        else:
            self.poll("ml", issue, check)
        self.stamp(9)
        if c.mlw != 2:
            x3_loads()
        a("v_max_f32 v204, v200, v210")
        self.allsum_row(204, "v_max_f32")
        self.allsum_g(204, 205, "v_max_f32")
        for m in MR:
            a("v_sub_f32 %s, %s, v204" % (v(m), v(m)))
        for m in MR:
            a("v_exp_f32 %s, %s" % (v(m), v(m)))
        a("v_mul_f32 v204, v200, v202")
        a("v_fmac_f32 v204, v210, v212")
        self.allsum_row(204)
        self.allsum_g(204, 205)
        a("v_rcp_f32 v204, v204")
        for m in MR:
            a("v_mul_f32 %s, %s, v204" % (v(m), v(m)))
        for i in range(8):
            a("v_add_u32 %s, %d, v209" % (v(168 + i), (64 * i) & 255))
        for i in range(8):
            a("ds_bpermute_b32 %s, %s, %s" % (v(168 + i), v(168 + i), v(MR[i >> 2])))
        a("s_waitcnt lgkmcnt(0)")
        for i in range(8):
            q, wt = 40 + 4 * i, 168 + i
            tb = 112 + 8 * (i & 1)
            a("s_waitcnt vmcnt(%d)" % (7 - i))
            for d in range(4):
                a("v_lshlrev_b32 %s, 16, %s" % (v(tb + 2 * d), v(q + d)))
                a("v_and_b32 %s, 0xffff0000, %s" % (v(tb + 2 * d + 1), v(q + d)))
            sel = "op_sel_hi:[1,0,1]" if wt % 2 == 0 else "op_sel:[0,1,0] op_sel_hi:[1,1,1]"
            wp = v(wt & ~1, 2)
            for d in range(4):
                if i == 0:
                    a("v_pk_mul_f32 %s, %s, %s op_sel_hi:[1,0]" % (v(104 + 2 * d, 2), v(tb + 2 * d, 2), wp))
                else:
                    a("v_pk_fma_f32 %s, %s, %s, %s %s" % (v(104 + 2 * d, 2), v(tb + 2 * d, 2), wp, v(104 + 2 * d, 2), sel))
        self.stamp(11)
        for r in range(8):
            a("v_add_f32_dpp %s, %s, %s row_ror:8 row_mask:0xf bank_mask:0xf" % (v(104 + r), v(104 + r), v(104 + r)))
        for swap in ("v_permlane16_swap_b32", "v_permlane32_swap_b32"):
            for r in range(8):
                a("v_mov_b32 %s, %s" % (v(112 + r), v(104 + r)))
            for r in range(8):
                a("%s %s, %s" % (swap, v(104 + r), v(112 + r)))
            for r in range(8):
                a("v_add_f32 %s, %s, %s" % (v(104 + r), v(104 + r), v(112 + r)))
        for r in range(8):
            a("v_cvt_pk_bf16_f32 %s, %s, %s" % (v(104 + r), v(104 + r), v(104 + r)))
        a("s_lshl_b32 %s, %s, 9" % (s(sT1), s(sW)))
        a("s_add_u32 %s, %s, %d" % (s(sT1), s(sT1), LT))
        a("v_lshrrev_b32 %s, 2, %s" % (v(vA0), v(vA2)))
        a("v_lshlrev_b32 %s, 7, %s" % (v(vA0), v(vA0)))
        a("v_and_b32 %s, 3, %s" % (v(vA2), v(vA2)))
        a("v_lshlrev_b32 %s, 4, %s" % (v(vA2), v(vA2)))
        a("v_add3_u32 %s, %s, %s, %s" % (v(vA0), v(vA0), v(vA2), s(sT1)))
        a("ds_write_b128 %s, v[104:107]" % v(vA0))
        a("ds_write_b128 %s, v[108:111] offset:64" % v(vA0))
        self.a_gemv()

    def a_finish(self, ACC, OP, M0, L0):
        a, c = self.a, self.c
        if c.x3u:
            return self.a_finish_u(ACC, OP, M0, L0)
        a("v_and_b32 %s, 15, %s" % (v(vA1), v(vL)))
        NH = self.NH
        HS = 15 + NH
        a("v_lshlrev_b32 %s, %d, %s" % (v(vA0), HS, v(vA1)))
        a("v_lshrrev_b32 %s, 4, %s" % (v(vA2), v(vL)))
        a("v_lshlrev_b32 %s, 4, %s" % (v(vA2), v(vA2)))
        a("v_add_u32 %s, %s, %s" % (v(vA0), v(vA0), v(vA2)))
        a("s_lshl_b32 %s, s2, 11" % s(sT1))
        a("s_lshl_b32 %s, %s, 9" % (s(sT2), s(sW)))
        a("s_add_u32 %s, %s, %s" % (s(sT1), s(sT1), s(sT2)))
        a("s_add_u32 %s, %s, 0x%x" % (s(sT1), s(sT1), WS_X3))
        a("s_add_u32 %s, %s, 0x%x" % (s(sT2), s(sT1), 16 << HS))
        for i in range(8):
            a("v_mov_b32 %s, %s" % (v(OP + 2 * i + 1), s(sTAG)))
        n = 0
        for ct in range(8):
            for ht in range(2):
                x, q = ACC + 8 * ct + 4 * ht, OP + 4 * (n & 3)
                a("v_cvt_pk_bf16_f32 %s, %s, %s" % (v(q), v(x), v(x + 1)))
                a("v_cvt_pk_bf16_f32 %s, %s, %s" % (v(q + 2), v(x + 2), v(x + 3)))
                o = " offset:%d" % (64 * ct) if ct else ""
                a("buffer_store_dwordx4 %s, %s, %s, %s offen%s sc0 sc1" % (
                    v(q, 4), v(vA0), s(R_WS, 4), s(sT2 if ht else sT1), o))
                n += 1
        self.stamp(12)
        self.allsum_g(L0, 198)
        a("v_cndmask_b32 v204, %s, %s, %s" % (v(M0), v(M0 + 1), s(sMSK, 2)))
        a("v_mov_b32 v205, %s" % s(sTAG))
        a("v_mov_b32 v206, %s" % v(L0))
        a("v_mov_b32 v207, %s" % s(sTAG))
        a("v_lshlrev_b32 %s, %d, %s" % (v(vA1), 9 + NH, v(vA1)))
        a("s_lshr_b32 %s, %s, 1" % (s(sT1), s(sW)))
        a("s_lshl_b32 %s, %s, %d" % (s(sT1), s(sT1), 13 + NH))
        a("s_and_b32 %s, %s, 1" % (s(sT2), s(sW)))
        a("s_lshl_b32 %s, %s, 4" % (s(sT2), s(sT2)))
        a("s_add_u32 %s, %s, %s" % (s(sT1), s(sT1), s(sT2)))
        a("s_lshl_b32 %s, s2, 5" % s(sT2))
        a("s_add_u32 %s, %s, %s" % (s(sT1), s(sT1), s(sT2)))
        a("s_add_u32 %s, %s, 0x%x" % (s(sT1), s(sT1), WS_ML))
        a("s_mov_b64 exec, 0xffff")
        a("buffer_store_dwordx4 v[204:207], %s, %s, %s offen sc0 sc1" % (v(vA1), s(R_WS, 4), s(sT1)))
        a("s_mov_b64 exec, -1")
        NT = 32 // NH
        self.uv_loads(min(c.uv0, NT), NT)
        self.stamp(8)
        a("s_lshr_b32 %s, s2, %d" % (s(sB), NH - 1))
        a("s_lshl_b32 %s, %s, %d" % (s(sX1), s(sB), 9 + NH))
        a("s_add_u32 %s, %s, 0x%x" % (s(sX1), s(sX1), WS_ML))
        MR = [200, 210][:NH]

        def issue():
            for h in range(NH):
                o = " offset:1024" if h else ""
                a("buffer_load_dwordx4 %s, %s, %s, %s offen%s sc1" % (v(MR[h], 4), v(vO16), s(R_WS, 4), s(sX1), o))

        def check():
            self.tagcheck(204, [m + j for m in MR for j in (1, 3)])
            a("v_cmp_ne_u32 vcc, 0, v204")

        self.poll("ml", issue, check)
        self.stamp(9)
        SP = 2 * NH
        LS = 6 - NH
        a("v_lshrrev_b32 %s, %d, %s" % (v(vA0), LS, v(vL)))
        a("v_lshlrev_b32 %s, 11, %s" % (v(vA1), v(vA0)))
        a("v_and_b32 %s, %d, %s" % (v(vA2), (1 << LS) - 1, v(vL)))
        a("v_lshlrev_b32 %s, 4, %s" % (v(vA2), v(vA2)))
        a("v_add_u32 v208, %s, %s" % (v(vA1), v(vA2)))
        a("v_lshlrev_b32 v209, 3, %s" % v(vA0))
        a("s_lshl_b32 %s, %s, %d" % (s(sX1), s(sB), HS))
        a("s_lshl_b32 %s, %s, %d" % (s(sT2), s(sW), 10 - NH))
        a("s_add_u32 %s, %s, %s" % (s(sX1), s(sX1), s(sT2)))
        if NH == 2:
            a("s_and_b32 %s, s2, 1" % s(sT2))
            a("s_lshl_b32 %s, %s, 10" % (s(sT2), s(sT2)))
            a("s_add_u32 %s, %s, %s" % (s(sX1), s(sX1), s(sT2)))
        a("s_add_u32 %s, %s, 0x%x" % (s(sX1), s(sX1), WS_X3))

        def issue3():
            a("s_mov_b32 %s, %s" % (s(sT1), s(sX1)))
            for i in range(16):
                a("buffer_load_dwordx4 %s, v208, %s, %s offen sc1" % (v(40 + 4 * i, 4), s(R_WS, 4), s(sT1)))
                if i < 15:
                    a("s_add_u32 %s, %s, %d" % (s(sT1), s(sT1), 2048 * SP))

        def check3():
            self.tagcheck(204, [40 + 4 * i + j for i in range(16) for j in (1, 3)])
            a("v_cmp_ne_u32 vcc, 0, v204")

        def weights():
            if NH == 1:
                a("v_mov_b32 v204, v200")
            else:
                a("v_max_f32 v204, v200, v210")
            self.allsum_row(204, "v_max_f32")
            self.allsum_g(204, 205, "v_max_f32")
            for m in MR:
                a("v_sub_f32 %s, %s, v204" % (v(m), v(m)))
            for m in MR:
                a("v_exp_f32 %s, %s" % (v(m), v(m)))
            a("v_mul_f32 v204, v200, v202")
            if NH == 2:
                a("v_fmac_f32 v204, v210, v212")
            self.allsum_row(204)
            self.allsum_g(204, 205)
            a("v_rcp_f32 v204, v204")
            for m in MR:
                a("v_mul_f32 %s, %s, v204" % (v(m), v(m)))
            for i in range(16):
                a("v_add_u32 %s, %d, v209" % (v(168 + i), (8 * SP * i) & 255))
            for i in range(16):
                a("ds_bpermute_b32 %s, %s, %s" % (v(168 + i), v(168 + i), v(MR[(SP * i) >> 5])))

        self.poll("x3", issue3, check3, between=weights, first_wait=0)
        self.stamp(11)
        a("s_waitcnt lgkmcnt(0)")
        for i in range(16):
            q, wt = 40 + 4 * i, 168 + i
            for h in range(2):
                lo, hi = 112 + 4 * (i & 1) + 2 * h, 113 + 4 * (i & 1) + 2 * h
                a("v_lshlrev_b32 %s, 16, %s" % (v(lo), v(q + 2 * h)))
                a("v_and_b32 %s, 0xffff0000, %s" % (v(hi), v(q + 2 * h)))
            for h in range(2):
                lo = 112 + 4 * (i & 1) + 2 * h
                sel = "op_sel_hi:[1,0,1]" if wt % 2 == 0 else "op_sel:[0,1,0] op_sel_hi:[1,1,1]"
                wp = v(wt & ~1, 2)
                if i == 0:
                    a("v_pk_mul_f32 %s, %s, %s op_sel_hi:[1,0]" % (v(104 + 2 * h, 2), v(lo, 2), wp))
                else:
                    a("v_pk_fma_f32 %s, %s, %s, %s %s" % (v(104 + 2 * h, 2), v(lo, 2), wp, v(104 + 2 * h, 2), sel))
        for swap in ["v_permlane32_swap_b32"] + (["v_permlane16_swap_b32"] if NH == 2 else []):
            for r in range(4):
                a("v_mov_b32 %s, %s" % (v(108 + r), v(104 + r)))
            for r in range(4):
                a("%s %s, %s" % (swap, v(104 + r), v(108 + r)))
            for r in range(4):
                a("v_add_f32 %s, %s, %s" % (v(104 + r), v(104 + r), v(108 + r)))
        for r in range(4):
            a("v_cvt_pk_bf16_f32 %s, %s, %s" % (v(104 + r), v(104 + r), v(104 + r)))
        a("s_lshl_b32 %s, %s, 9" % (s(sT1), s(sW)))
        a("s_add_u32 %s, %s, %d" % (s(sT1), s(sT1), LT))
        a("v_add_u32 %s, %s, %s" % (v(vA0), s(sT1), v(vA2)))
        a("ds_write_b128 %s, v[104:107]" % v(vA0))
        self.a_gemv()

    def a_gemv(self):
        a, c = self.a, self.c
        NT = 32 // self.NH
        a("v_lshrrev_b32 %s, 4, %s" % (v(vA1), v(vL)))
        a("v_lshlrev_b32 %s, 2, %s" % (v(vA1), v(vA1)))
        a("v_add_u32 %s, %s, %s" % (v(vA1), s(sT1), v(vA1)))
        for t in range(0, NT, 2):
            a("ds_read2_b32 %s, %s offset0:%d offset1:%d" % (v(40 + t, 2), v(vA1), 4 * t, 4 * t + 4))
        for t in range(NT):
            if t % 2 == 0:
                a("s_waitcnt lgkmcnt(%d)" % (NT // 2 - 1 - t // 2))
            self.delta_mfma(108, ar(128 + 4 * t, 4), 40 + t, 112 + 4 * (t & 1), t == 0)
        a("v_lshrrev_b32 %s, 4, %s" % (v(vA0), v(vL)))
        a("v_lshlrev_b32 %s, 9, %s" % (v(vA0), v(vA0)))
        a("v_and_b32 %s, 7, %s" % (v(vA1), v(vL)))
        a("v_lshlrev_b32 %s, 4, %s" % (v(vA1), v(vA1)))
        a("s_lshl_b32 %s, %s, 2" % (s(sT1), s(sW)))
        a("s_add_u32 %s, %s, %d" % (s(sT1), s(sT1), LR))
        a("v_add3_u32 %s, %s, %s, %s" % (v(vA0), v(vA0), v(vA1), s(sT1)))
        for r in range(4):
            a("ds_write_b32 %s, %s offset:%d" % (v(vA0), v(108 + r), 128 * r))
        a("s_waitcnt lgkmcnt(0)")
        a("s_barrier")
        a("s_cmp_ge_u32 %s, 2" % s(sW))
        a("s_cbranch_scc1 L_a_done")
        a("s_lshl_b32 %s, %s, 10" % (s(sT1), s(sW)))
        a("s_add_u32 %s, %s, %d" % (s(sT1), s(sT1), LR))
        a("v_add_u32 %s, %s, %s" % (v(vA0), s(sT1), v(vO16)))
        a("ds_read_b128 v[40:43], %s" % v(vA0))
        a("s_lshl_b32 %s, s2, 10" % s(sT1))
        a("s_lshl_b32 %s, %s, 9" % (s(sT2), s(sW)))
        a("s_add_u32 %s, %s, %s" % (s(sT1), s(sT1), s(sT2)))
        a("s_add_u32 %s, %s, 0x%x" % (s(sT1), s(sT1), WS_X4A))
        a("v_lshlrev_b32 %s, 3, %s" % (v(vA1), v(vL)))
        a("s_waitcnt lgkmcnt(0)")
        a("v_add_f32 v40, v40, v41")
        a("v_add_f32 v42, v42, v43")
        a("v_add_f32 v40, v40, v42")
        a("v_mov_b32 v41, %s" % s(sTAG))
        a("buffer_store_dwordx2 v[40:41], %s, %s, %s offen sc0 sc1" % (v(vA1), s(R_WS, 4), s(sT1)))
        a.label("L_a_done")
        self.stamp(10)
        self.end()

    def build(self):
        a = self.a
        self.prologue()
        self.q_phase()
        self.q_gather()
        self.b_main()
        self.tail()
        self.a_main()
        a.label("L_exit")
        a("s_endpgm")
        a.label("L_codeend")
        body = a.finalize()
        head = open(os.path.join(os.path.dirname(os.path.abspath(__file__)), "header.txt")).read()
        head = head.replace("@LDS@", str(LDS_BYTES))
        if self.c.xnt & 1:
            body = body.replace(" sc0 sc1\n", " sc0 sc1 nt\n")
        if self.c.xnt & 2:
            body = body.replace(" sc1\n", " sc1 nt\n").replace(" sc0 sc1 nt\n", " sc0 sc1\n" if not self.c.xnt & 1 else " sc0 sc1 nt\n")
        return head + body + FOOTER


FOOTER = """.section .rodata,"a"
.p2align 6
.amdhsa_kernel %s_kernel
  .amdhsa_next_free_vgpr 512
  .amdhsa_next_free_sgpr 102
  .amdhsa_accum_offset 256
  .amdhsa_group_segment_fixed_size 0
  .amdhsa_kernarg_size 120
  .amdhsa_user_sgpr_count 2
  .amdhsa_user_sgpr_kernarg_segment_ptr 1
  .amdhsa_system_sgpr_workgroup_id_x 1
.end_amdhsa_kernel
""" % NAME


def main():
    p = argparse.ArgumentParser()
    p.add_argument("-o", default="cdna_kernels/%s.s" % NAME)
    p.add_argument("--nq", type=int, default=8)
    p.add_argument("--nt", default="nt")
    p.add_argument("--debug", action="store_true")
    p.add_argument("--na", type=int, default=64)
    p.add_argument("--uv0", type=int, default=16)
    p.add_argument("--t0", type=int, default=20)
    p.add_argument("--bstamp", action="store_true")
    p.add_argument("--xnt", type=int, default=0)
    p.add_argument("--lfirst", type=int, default=1)
    p.add_argument("--local", type=int, default=1)
    p.add_argument("--dyn", type=int, default=1)
    p.add_argument("--diag", type=int, default=0)
    p.add_argument("--g1", type=int, default=0)
    p.add_argument("--gk", type=int, default=0)
    p.add_argument("--cstride", type=lambda x: int(x, 0), default=256)
    p.add_argument("--td", type=int, default=0)
    p.add_argument("--td2", type=int, default=0)
    p.add_argument("--gearly", type=int, default=0)
    p.add_argument("--tdv", type=int, default=0)
    p.add_argument("--x4c", type=int, default=0)
    p.add_argument("--pre2", type=int, default=0)
    p.add_argument("--uve", type=int, default=0)
    p.add_argument("--t1e", type=int, default=0)
    p.add_argument("--uv1", type=int, default=0)
    p.add_argument("--tdp", type=int, default=0)
    p.add_argument("--mlw", type=int, default=0)
    p.add_argument("--x3u", type=int, default=1)
    p.add_argument("--sblk", type=int, default=16)
    p.add_argument("--dsplit", default="2,3,3")
    p.add_argument("--elapsed", action="store_true")
    p.add_argument("--no-prefetch", dest="prefetch", action="store_false")
    p.add_argument("--spin", type=lambda x: int(x, 0), default=0x2000)
    cfg = p.parse_args()
    text = Gen(cfg).build()
    open(cfg.o, "w").write(text)
    print("wrote", cfg.o, len(text), "bytes")


if __name__ == "__main__":
    main()
```

```python
import argparse
import math
import struct
import sys
import os

sys.path.insert(0, os.path.dirname(os.path.abspath(__file__)))
from asmlib import Asm

NAME = "gated_mix__compressed_kv_cla__gqa_block_cached__decode"


def f32(x):
    return "0x%08x" % struct.unpack("<I", struct.pack("<f", x))[0]


LOG2E = math.log2(math.e)
C_SCALE = LOG2E / math.sqrt(128.0)

WS_EPOCH = 0
WS_CNT = 0x8000
WS_HINT = 0x9000
WS_X1 = 0x10000
WS_X2 = 0x30000
WS_ML = 0x40000
WS_X4A = 0x50000
WS_X4B = 0x60000
WS_X4L = 0xD0000
WS_X5 = 0xE0000
WS_X3 = 0x100000
WS_DBG = 0x500000
WS_SIZE = 0x800000
EPOCH_STEP = 0x9E3779B1

LU = 131072
LQ = LU
LQA = LU
LMX = LU
LP = LU + 1024
LL = LU + 8192
LT = LU + 9216
LR = LU + 12288
LO = LU + 16384
LML = LU + 20480
LX = LU + 4096
LDS_BYTES = 163840

sID, sT, sW, sTAG, sT1, sT2 = 2, 3, 4, 5, 6, 7
P_X, P_C, P_WQA, P_UK, P_UV, P_WOA = 8, 10, 12, 14, 16, 18
P_K, P_V, P_WQB, P_WOB, P_G, P_OUT, P_WS = 22, 24, 26, 28, 30, 32, 36
R_CODE, R_X, R_QW, R_WS = 40, 44, 48, 52
R_K, R_V, R_K2, R_V2, R_TW, R_G, R_OUT = 56, 60, 64, 68, 72, 76, 80
R_C, R_UV = 60, 64
R_UK = 40
sG, sJM, sB, sHH = 84, 85, 86, 84
sOFF, sCNT, sIT, sBIAS = 87, 88, 89, 90
sX1, sT3, sTW = 91, 92, 93
sMSK = 94
sMS2 = 96
sT4, sT5 = 98, 99
sST = 100
sB2 = 20
sQT, sUS = 3, 21

vL, vO16 = 1, 6
vM = [2, 3, 4, 5]
vA0, vA1, vA2 = 7, 8, 9
vSTAMP, vDUMMY = 254, 255
vAT = 133
UKW, X1A, QU, UKS, UKQ = 56, 88, 16, 20, 24


def v(a, n=1):
    return "v%d" % a if n == 1 else "v[%d:%d]" % (a, a + n - 1)


def ar(a, n=1):
    return "a%d" % a if n == 1 else "a[%d:%d]" % (a, a + n - 1)


def s(a, n=1):
    return "s%d" % a if n == 1 else "s[%d:%d]" % (a, a + n - 1)


class Gen:
    def __init__(self, cfg):
        self.c = cfg
        self.a = Asm()
        self.uid = 0
        self.nstamp = 0
        self.NA = cfg.na
        self.NP = (256 - self.NA) // 16
        self.QB = 4096 // (4 * self.NP)
        self.QX = 4096 - self.QB * 4 * self.NP
        self.MAGIC = {14: 4682, 12: 5462}[self.NP]
        self.KEYS = 16384 // self.NA
        self.NIT = self.KEYS // 32
        self.NH = self.NA // 32

    def lab(self, base):
        self.uid += 1
        return "L_%s_%d" % (base, self.uid)

    def srd(self, r, ptr, size, off=None):
        a = self.a
        if off is None:
            a("s_mov_b32 %s, %s" % (s(r), s(ptr)))
            a("s_mov_b32 %s, %s" % (s(r + 1), s(ptr + 1)))
        else:
            a("s_add_u32 %s, %s, %s" % (s(r), s(ptr), off))
            a("s_addc_u32 %s, %s, 0" % (s(r + 1), s(ptr + 1)))
        a("s_mov_b32 %s, %s" % (s(r + 2), size))
        a("s_mov_b32 %s, 0x20000" % s(r + 3))

    def stamp(self, idx):
        if not self.c.debug:
            return
        a = self.a
        a("s_memrealtime %s" % s(sST, 2))
        a("s_waitcnt lgkmcnt(0)")
        a("v_writelane_b32 %s, %s, %d" % (v(vSTAMP), s(sST), idx))

    def stamp_it(self, phase, nph=5):
        if not self.c.debug:
            return
        a = self.a
        a("s_memrealtime %s" % s(sST, 2))
        a("s_mul_i32 s38, %s, %d" % (s(sIT), nph))
        a("s_add_u32 s38, s38, %d" % (16 + phase))
        a("s_waitcnt lgkmcnt(0)")
        a("s_mov_b32 m0, s38")
        a("v_writelane_b32 %s, %s, m0" % (v(vSTAMP), s(sST)))

    def dump_stamps(self):
        if not self.c.debug:
            return
        a = self.a
        a("s_lshl_b32 %s, %s, 2" % (s(sT1), s(sID)))
        a("s_add_u32 %s, %s, %s" % (s(sT1), s(sT1), s(sW)))
        a("s_lshl_b32 %s, %s, 8" % (s(sT1), s(sT1)))
        a("s_add_u32 %s, %s, 0x%x" % (s(sT1), s(sT1), WS_DBG))
        a("v_lshlrev_b32 %s, 2, %s" % (v(vA0), v(vL)))
        a("buffer_store_dword %s, %s, %s, %s offen" % (v(vSTAMP), v(vA0), s(R_WS, 4), s(sT1)))

    def dump(self, slot, reg):
        if not self.c.debug:
            return
        a = self.a
        a("s_lshl_b32 %s, %s, 2" % (s(sST), s(sID)))
        a("s_add_u32 %s, %s, %s" % (s(sST), s(sST), s(sW)))
        a("s_lshl_b32 %s, %s, 11" % (s(sST), s(sST)))
        a("s_add_u32 %s, %s, 0x%x" % (s(sST), s(sST), WS_DBG + 0x40000 + slot * 256))
        a("v_lshlrev_b32 v253, 2, %s" % v(vL))
        a("buffer_store_dword %s, v253, %s, %s offen" % (v(reg), s(R_WS, 4), s(sST)))

    def end(self):
        self.dump_stamps()
        self.a("s_endpgm")

    def mask64(self, reg, lo, hi=None):
        hi = lo if hi is None else hi
        self.a("s_mov_b32 %s, 0x%x" % (s(reg), lo))
        self.a("s_mov_b32 %s, 0x%x" % (s(reg + 1), hi))

    def tagcheck(self, acc, tags, first=True):
        a = self.a
        for i, t in enumerate(tags):
            if i == 0 and first:
                a("v_xor_b32 %s, %s, %s" % (v(acc), s(sTAG), v(t)))
            else:
                a("v_bitop3_b32 %s, %s, %s, %s bitop3:0xf6" % (v(acc), v(acc), v(t), s(sTAG)))

    def poll(self, name, issue, check, nwait="0", between=None, first_wait=None):
        a = self.a
        retry, ok = self.lab(name + "_retry"), self.lab(name + "_ok")
        a("s_movk_i32 %s, 0x%x" % (s(sCNT), self.c.spin))
        if between is not None:
            issue()
            between()
            a("s_waitcnt vmcnt(%d)" % first_wait)
            check()
            a("s_cbranch_vccz %s" % ok)
        a.label(retry)
        issue()
        a("s_waitcnt vmcnt(0)")
        check()
        a("s_cbranch_vccz %s" % ok)
        a("s_sub_u32 %s, %s, 1" % (s(sCNT), s(sCNT)))
        a("s_cbranch_scc0 %s" % retry)
        a.label(ok)

    def allsum_g(self, x, t, op="v_add_f32"):
        a = self.a
        a("v_mov_b32 %s, %s" % (v(t), v(x)))
        a("v_permlane16_swap_b32 %s, %s" % (v(x), v(t)))
        a("%s %s, %s, %s" % (op, v(x), v(x), v(t)))
        a("v_mov_b32 %s, %s" % (v(t), v(x)))
        a("v_permlane32_swap_b32 %s, %s" % (v(x), v(t)))
        a("%s %s, %s, %s" % (op, v(x), v(x), v(t)))

    def allsum_row(self, x, op="v_add_f32"):
        a = self.a
        o = op + "_dpp"
        for m in ("row_ror:8", "quad_perm:[1,0,3,2]", "quad_perm:[2,3,0,1]", "row_half_mirror"):
            a("%s %s, %s, %s %s row_mask:0xf bank_mask:0xf" % (o, v(x), v(x), v(x), m))

    def delta_mfma(self, acc, adata, dup, btmp, first):
        a = self.a
        for i in range(4):
            a("v_and_b32 %s, %s, %s" % (v(btmp + i), v(vM[i]), v(dup)))
        a("v_mfma_f32_16x16x32_bf16 %s, %s, %s, %s" % (v(acc, 4), adata, v(btmp, 4),
                                                      "0" if first else v(acc, 4)))

    def prologue(self):
        a, c = self.a, self.c
        a("s_cmp_ge_u32 s2, 0x100")
        a("s_cbranch_scc1 L_exit")
        if c.elapsed:
            a("s_memrealtime s[38:39]")
        a("s_load_dwordx16 s[8:23], s[0:1], 0x0")
        a("s_load_dwordx8 s[24:31], s[0:1], 0x40")
        a("s_load_dwordx4 s[32:35], s[0:1], 0x60")
        a("s_load_dwordx2 s[36:37], s[0:1], 0x70")
        if c.prefetch:
            a("s_getpc_b64 %s" % s(R_CODE, 2))
            a.label("L_pc")
            a("s_mov_b32 %s, L_codeend-L_pc" % s(R_CODE + 2))
            a("s_mov_b32 %s, 0x20000" % s(R_CODE + 3))
            a("s_lshr_b32 %s, s2, 6" % s(sT))
            a("s_lshl_b32 %s, %s, 14" % (s(sT), s(sT)))
            a("v_lshlrev_b32 %s, 6, v0" % v(vA0))
            a("v_add_u32 %s, %s, %s" % (v(vA0), s(sT), v(vA0)))
            a("buffer_load_dword %s, %s, %s, 0 offen" % (v(vDUMMY), v(vA0), s(R_CODE, 4)))
        a("v_and_b32 %s, 63, v0" % v(vL))
        a("v_lshrrev_b32 %s, 6, v0" % v(vA1))
        a("v_lshlrev_b32 %s, 4, %s" % (v(vO16), v(vL)))
        a("v_readfirstlane_b32 %s, %s" % (s(sW), v(vA1)))
        if c.debug:
            a("v_mov_b32 %s, 0" % v(vSTAMP))
        if c.local:
            a("s_lshr_b32 %s, s2, 3" % s(sT1))
            a("s_and_b32 %s, %s, 16" % (s(sQT), s(sT1)))
            a("s_lshl_b32 %s, %s, 3" % (s(sQT), s(sQT)))
            a("s_and_b32 %s, %s, 15" % (s(sT1), s(sT1)))
            a("s_add_u32 %s, %s, %s" % (s(sQT), s(sQT), s(sT1)))
            a("s_and_b32 %s, s2, 7" % s(sT1))
            a("s_lshl_b32 %s, %s, 4" % (s(sT1), s(sT1)))
            a("s_add_u32 %s, %s, %s" % (s(sQT), s(sQT), s(sT1)))
        else:
            a("s_mov_b32 %s, s2" % s(sQT))
        a("s_and_b32 %s, %s, 1" % (s(sT1), s(sQT)))
        a("s_mul_i32 %s, %s, 288" % (s(sT1), s(sT1)))
        a("s_mul_i32 %s, %s, 72" % (s(sT2), s(sW)))
        a("s_add_u32 %s, %s, %s" % (s(sT1), s(sT1), s(sT2)))
        a("v_lshrrev_b32 %s, 3, %s" % (v(vA1), v(vL)))
        a("v_add_u32 %s, %s, %s" % (v(vA0), s(sT1), v(vA1)))
        a("v_lshlrev_b32 %s, 1, %s" % (v(vA0), v(vA0)))
        a("v_and_b32 %s, 7, %s" % (v(vA2), v(vL)))
        a("v_lshlrev_b32 %s, 4, %s" % (v(vA2), v(vA2)))
        a("v_lshlrev_b32 %s, 13, %s" % (v(vA1), v(vA1)))
        a("v_add_u32 %s, %s, %s" % (v(vA1), v(vA1), v(vA2)))
        a("s_lshl_b32 %s, %s, 13" % (s(sOFF), s(sT1)))
        a("s_lshr_b32 %s, %s, 1" % (s(sT2), s(sQT)))
        a("s_and_b32 %s, %s, 63" % (s(sT2), s(sT2)))
        a("s_lshl_b32 %s, %s, 7" % (s(sT2), s(sT2)))
        a("s_add_u32 %s, %s, %s" % (s(sOFF), s(sOFF), s(sT2)))
        a("s_waitcnt lgkmcnt(0)")
        a("s_load_dword %s, %s, 0x%x" % (s(sTAG), s(P_WS, 2), WS_EPOCH))
        self.srd(R_X, P_X, "1152")
        if c.dyn:
            self.srd(R_WS, P_WS, "0x%x" % WS_SIZE)
            noinit = self.lab("cnt")
            a("s_and_b32 %s, %s, 0x87" % (s(sT1), s(sQT)))
            a("s_lshl_b32 %s, %s, 8" % (s(sT2), s(sW)))
            a("s_or_b32 %s, %s, %s" % (s(sT1), s(sT1), s(sT2)))
            a("s_cmp_lg_u32 %s, 0x80" % s(sT1))
            a("s_cbranch_scc1 %s" % noinit)
            a("s_bfe_u32 %s, %s, 0x40003" % (s(sT1), s(sQT)))
            a("s_mul_i32 %s, %s, %d" % (s(sT1), s(sT1), c.cstride))
            a("s_add_u32 %s, %s, 0x%x" % (s(sT1), s(sT1), WS_CNT))
            a("v_mov_b32 %s, 0" % v(vA2))
            a("s_mov_b64 exec, 1")
            a("buffer_store_dword %s, %s, %s, %s offen sc0 sc1" % (v(vA2), v(vA2), s(R_WS, 4), s(sT1)))
            a("s_mov_b64 exec, -1")
            a.label(noinit)
            if c.mlw == 2:
                nohint = self.lab("hint")
                a("s_lshl_b32 %s, %s, 8" % (s(sT1), s(sW)))
                a("s_or_b32 %s, %s, %s" % (s(sT1), s(sT1), s(sQT)))
                a("s_cmp_lg_u32 %s, 0" % s(sT1))
                a("s_cbranch_scc1 %s" % nohint)
                a("s_mov_b32 %s, 0x%x" % (s(sT1), WS_HINT))
                a("v_lshlrev_b32 v10, 8, %s" % v(vL))
                a("v_mov_b32 v11, 0")
                a("s_mov_b64 exec, 0xff")
                a("buffer_store_dword v11, v10, %s, %s offen sc0 sc1" % (s(R_WS, 4), s(sT1)))
                a("s_mov_b64 exec, -1")
                a.label(nohint)
        if c.local:
            a("s_and_b32 %s, s2, 7" % s(sT1))
            a("s_lshl_b32 %s, %s, 5" % (s(sT1), s(sT1)))
            a("s_lshr_b32 %s, s2, 3" % s(sUS))
            a("s_add_u32 %s, %s, %s" % (s(sUS), s(sUS), s(sT1)))
        else:
            a("s_mov_b32 %s, s2" % s(sUS))
        a("s_cmp_ge_u32 %s, 0x80" % s(sQT))
        a("s_cselect_b32 %s, %s, %s" % (s(R_QW), s(P_WQB), s(P_WQA)))
        a("s_cselect_b32 %s, %s, %s" % (s(R_QW + 1), s(P_WQB + 1), s(P_WQA + 1)))
        a("s_mov_b32 %s, 4718592" % s(R_QW + 2))
        a("s_mov_b32 %s, 0x20000" % s(R_QW + 3))
        for t in range(9):
            a("buffer_load_ushort %s, %s, %s, 0 offen offset:%d" % (v(204 + t), v(vA0), s(R_X, 4), 16 * t))
        for t in range(9):
            a("buffer_load_dwordx4 %s, %s, %s, %s offen %s" % (v(168 + 4 * t, 4), v(vA1), s(R_QW, 4), s(sOFF), c.nt))
            if t < 8:
                a("s_add_u32 %s, %s, 0x10000" % (s(sOFF), s(sOFF)))
        self.srd(R_UK, P_UK, "4194304")
        a("v_lshrrev_b32 %s, 4, %s" % (v(vA0), v(vL)))
        a("v_lshlrev_b32 %s, 15, %s" % (v(vA0), v(vA0)))
        a("v_and_b32 %s, 15, %s" % (v(vA2), v(vL)))
        a("v_lshlrev_b32 %s, 4, %s" % (v(vA2), v(vA2)))
        a("v_add_u32 %s, %s, %s" % (v(vA0), v(vA0), v(vA2)))
        a("s_and_b32 %s, %s, 7" % (s(sT1), s(sUS)))
        a("s_lshl_b32 %s, %s, 2" % (s(sT1), s(sT1)))
        a("s_add_u32 %s, %s, %s" % (s(sT1), s(sT1), s(sW)))
        a("s_lshl_b32 %s, %s, 17" % (s(sT1), s(sT1)))
        a("s_lshr_b32 %s, %s, 3" % (s(sT2), s(sUS)))
        a("s_lshl_b32 %s, %s, 8" % (s(sT2), s(sT2)))
        a("s_add_u32 %s, %s, %s" % (s(sT1), s(sT1), s(sT2)))
        for t in range(4):
            a("buffer_load_dwordx4 %s, %s, %s, %s offen %s" % (v(UKW + 4 * t, 4), v(vA0), s(R_UK, 4), s(sT1), c.nt))
            if t < 3:
                a("s_add_u32 %s, %s, 0x2000" % (s(sT1), s(sT1)))
        if not c.dyn:
            self.srd(R_WS, P_WS, "0x%x" % WS_SIZE)
        self.stamp(0)
        a("s_cmp_lt_u32 s2, %d" % self.NA)
        a("s_cbranch_scc1 L_a_pre")
        self.b_pre()
        a("s_branch L_q")
        a.label("L_a_pre")
        self.a_pre()
        a.label("L_q")

    def b_pre(self):
        a, c = self.a, self.c
        a("s_sub_u32 %s, s2, %d" % (s(sB), self.NA))
        if c.local:
            a("s_lshr_b32 %s, %s, 3" % (s(sJM), s(sB)))
            a("s_and_b32 %s, s2, 7" % s(sG))
            a("s_lshl_b32 %s, %s, 1" % (s(sG), s(sG)))
            a("s_cmp_ge_u32 %s, %d" % (s(sJM), self.NP))
            a("s_cselect_b32 %s, %d, 0" % (s(sT1), self.NP))
            a("s_addc_u32 %s, %s, 0" % (s(sG), s(sG)))
            a("s_sub_u32 %s, %s, %s" % (s(sJM), s(sJM), s(sT1)))
            a("s_mul_i32 %s, %s, %d" % (s(sB), s(sG), self.NP))
            a("s_add_u32 %s, %s, %s" % (s(sB), s(sB), s(sJM)))
        else:
            a("s_mul_i32 %s, %s, %d" % (s(sG), s(sB), self.MAGIC))
            a("s_lshr_b32 %s, %s, 16" % (s(sG), s(sG)))
            a("s_mul_i32 %s, %s, %d" % (s(sT1), s(sG), self.NP))
            a("s_sub_u32 %s, %s, %s" % (s(sJM), s(sB), s(sT1)))
        a("s_lshl_b32 %s, %s, 2" % (s(sT1), s(sJM)))
        a("s_add_u32 %s, %s, %s" % (s(sT1), s(sT1), s(sW)))
        if c.dyn:
            a("s_mul_i32 %s, %s, %d" % (s(sOFF), s(sT1), c.sblk * c.nq * 1024))
            a("s_lshl_b32 %s, %s, 22" % (s(sT2), s(sG)))
            self.srd(R_K, P_K, "0x400000", s(sT2))
            self.srd(R_V, P_V, "0x400000", s(sT2))
            self.srd(R_K2, P_K, "0", s(sT2))
            self.srd(R_V2, P_V, "0", s(sT2))
            for i in range(c.nq):
                self.kv_load(40 + 4 * i, R_K, i)
            a("s_add_u32 %s, %s, 16" % (s(sX1), s(sG)))
            self.mask64(sMSK, 0xFF00FF00)
            a("s_waitcnt vmcnt(%d)" % (c.nq + 4))
            return
        a("s_mul_i32 %s, %s, %d" % (s(sT2), s(sT1), self.QB))
        a("s_min_u32 %s, %s, %d" % (s(sT3), s(sT1), self.QX))
        a("s_add_u32 %s, %s, %s" % (s(sT2), s(sT2), s(sT3)))
        a("s_lshl_b32 %s, %s, 10" % (s(sT2), s(sT2)))
        a("s_lshl_b32 %s, %s, 22" % (s(sT3), s(sG)))
        a("s_add_u32 %s, %s, %s" % (s(sT2), s(sT2), s(sT3)))
        ksz = (self.QB + 1) * 1024
        self.srd(R_K, P_K, str(ksz), s(sT2))
        self.srd(R_V, P_V, str(ksz), s(sT2))
        a("s_cmp_lt_u32 %s, %d" % (s(sT1), self.QX))
        a("s_cselect_b32 %s, %d, 0" % (s(sT3), ksz))
        a("s_cselect_b32 %s, 0, 0xff800000" % s(sBIAS))
        self.srd(R_K2, P_K, s(sT3), s(sT2))
        self.srd(R_V2, P_V, s(sT3), s(sT2))
        a("s_mov_b32 %s, %d" % (s(sT1), (self.QB - 1) * 1024))
        a("buffer_load_dwordx4 %s, %s, %s, %s offen %s" % (v(104, 4), v(vO16), s(R_K, 4), s(sT1), c.nt))
        a("buffer_load_dwordx4 %s, %s, %s, %s offen offset:1024 %s" % (v(108, 4), v(vO16), s(R_K2, 4), s(sT1), c.nt))
        a("s_mov_b32 %s, 0" % s(sOFF))
        for i in range(c.nq):
            self.kv_load(40 + 4 * i, R_K, i)
        a("s_add_u32 %s, %s, 16" % (s(sX1), s(sG)))
        self.mask64(sMSK, 0xFF00FF00)
        a("s_waitcnt vmcnt(%d)" % (c.nq + 6))

    def kv_load(self, reg, srd, i, off=None):
        a, c = self.a, self.c
        off = sOFF if off is None else off
        if i < 4:
            so = s(off)
        else:
            if i % 4 == 0:
                a("s_add_u32 %s, %s, %d" % (s(sT4), s(off), 4096 * (i // 4)))
            so = s(sT4)
        o = " offset:%d" % (1024 * (i % 4)) if i % 4 else ""
        a("buffer_load_dwordx4 %s, %s, %s, %s offen%s %s" % (v(reg, 4), v(vO16), s(srd, 4), so, o, c.nt))

    def a_pre(self):
        a, c = self.a, self.c
        self.srd(R_K, P_V, "0")
        self.srd(R_UV, P_UV, "4194304")
        self.srd(R_V2, P_V, "0")
        a("s_mul_i32 %s, s2, %d" % (s(sT2), self.KEYS * 1024))
        self.srd(R_C, P_C, str(self.KEYS * 1024), s(sT2))
        a("s_waitcnt vmcnt(4)")

    def q_phase(self):
        a, c = self.a, self.c
        self.stamp(1)
        a("v_and_b32 %s, 1, %s" % (v(vA0), v(vL)))
        a("v_lshlrev_b32 %s, 4, %s" % (v(vA0), v(vA0)))
        a("v_mov_b32 %s, 0xffff" % v(vA1))
        a("v_lshlrev_b32 %s, %s, %s" % (v(vA1), v(vA0), v(vA1)))
        for i in range(4):
            self.mask64(sMS2, 0x03030303 << (2 * i))
            a("v_cndmask_b32 %s, 0, %s, %s" % (v(vM[i]), v(vA1), s(sMS2, 2)))
        for t in range(9):
            a("v_lshl_or_b32 %s, %s, 16, %s" % (v(204 + t), v(204 + t), v(204 + t)))
        for t in range(9):
            self.delta_mfma(222, v(168 + 4 * t, 4), 204 + t, 214 + 4 * (t & 1), t == 0)
        a("v_lshrrev_b32 %s, 4, %s" % (v(vA0), v(vL)))
        a("v_and_b32 %s, 1, %s" % (v(vA1), v(vA0)))
        a("v_lshlrev_b32 %s, 10, %s" % (v(vA1), v(vA1)))
        a("v_lshrrev_b32 %s, 1, %s" % (v(vA0), v(vA0)))
        a("v_lshlrev_b32 %s, 2, %s" % (v(vA0), v(vA0)))
        a("v_add_u32 %s, %s, %s" % (v(vA0), v(vA0), v(vA1)))
        a("v_and_b32 %s, 7, %s" % (v(vA1), v(vL)))
        a("v_lshlrev_b32 %s, 5, %s" % (v(vA1), v(vA1)))
        a("s_lshl_b32 %s, %s, 3" % (s(sT1), s(sW)))
        a("s_add_u32 %s, %s, %d" % (s(sT1), s(sT1), LQ))
        a("v_add3_u32 %s, %s, %s, %s" % (v(vA0), v(vA0), v(vA1), s(sT1)))
        self.mask64(sMS2, 0x00FF00FF, 0xFF00FF00)
        a("s_mov_b64 exec, %s" % s(sMS2, 2))
        for r in range(4):
            a("ds_write_b32 %s, %s offset:%d" % (v(vA0), v(222 + r), 256 * r))
        a("s_mov_b64 exec, -1")
        a("s_waitcnt lgkmcnt(0)")
        a("s_add_u32 %s, %s, 0x%x" % (s(sTAG), s(sTAG), EPOCH_STEP))
        a("s_barrier")
        skip = self.lab("qpub")
        a("s_cmp_lg_u32 %s, 0" % s(sW))
        a("s_cbranch_scc1 %s" % skip)
        a("v_lshlrev_b32 %s, 5, %s" % (v(vA0), v(vL)))
        a("v_add_u32 %s, %d, %s" % (v(vA0), LQ, v(vA0)))
        a("ds_read_b128 %s, %s" % (v(226, 4), v(vA0)))
        a("ds_read_b128 %s, %s offset:16" % (v(230, 4), v(vA0)))
        a("v_bfe_u32 %s, %s, 1, 2" % (v(vA1), v(vL)))
        a("v_lshlrev_b32 %s, 10, %s" % (v(vA1), v(vA1)))
        a("v_lshrrev_b32 %s, 3, %s" % (v(vA2), v(vL)))
        a("v_lshlrev_b32 %s, 4, %s" % (v(vA2), v(vA2)))
        a("v_add_u32 %s, %s, %s" % (v(vA1), v(vA1), v(vA2)))
        a("v_and_b32 %s, 1, %s" % (v(vA2), v(vL)))
        a("v_lshlrev_b32 %s, 3, %s" % (v(vA2), v(vA2)))
        a("v_add_u32 %s, %s, %s" % (v(vA1), v(vA1), v(vA2)))
        a("s_lshr_b32 %s, %s, 3" % (s(sT1), s(sQT)))
        a("s_lshl_b32 %s, %s, 12" % (s(sT1), s(sT1)))
        a("s_bfe_u32 %s, %s, 0x10002" % (s(sT2), s(sQT)))
        a("s_lshl_b32 %s, %s, 9" % (s(sT2), s(sT2)))
        a("s_add_u32 %s, %s, %s" % (s(sT1), s(sT1), s(sT2)))
        a("s_and_b32 %s, %s, 1" % (s(sT2), s(sQT)))
        a("s_lshl_b32 %s, %s, 8" % (s(sT2), s(sT2)))
        a("s_add_u32 %s, %s, %s" % (s(sT1), s(sT1), s(sT2)))
        a("s_bfe_u32 %s, %s, 0x10001" % (s(sT2), s(sQT)))
        a("s_lshl_b32 %s, %s, 7" % (s(sT2), s(sT2)))
        a("s_add_u32 %s, %s, %s" % (s(sT1), s(sT1), s(sT2)))
        a("s_add_u32 %s, %s, 0x%x" % (s(sT1), s(sT1), WS_X1))
        a("s_waitcnt lgkmcnt(0)")
        a("v_add_f32 v226, v226, v227")
        a("v_add_f32 v228, v228, v229")
        a("v_add_f32 v230, v230, v231")
        a("v_add_f32 v232, v232, v233")
        a("v_add_f32 v226, v226, v228")
        a("v_add_f32 v230, v230, v232")
        a("v_add_f32 v226, v226, v230")
        a("v_mul_f32 v226, %s, v226" % f32(C_SCALE))
        a("v_mov_b32 v227, %s" % s(sTAG))
        a("buffer_store_dwordx2 v[226:227], %s, %s, %s offen sc0 sc1" % (v(vA1), s(R_WS, 4), s(sT1)))
        a.label(skip)
        self.stamp(2)

    def x1_issue(self, base, soff):
        self.a("buffer_load_dwordx4 %s, %s, %s, %s offen sc1" % (v(base, 4), v(vO16), s(R_WS, 4), s(soff)))

    def x1_pack(self, bases):
        a = self.a
        a("s_lshl_b32 %s, %s, 2" % (s(sT1), s(sW)))
        a("s_add_u32 %s, %s, %d" % (s(sT1), s(sT1), LX))
        a("v_add_u32 %s, %s, %s" % (v(vA0), s(sT1), v(vO16)))
        for b in bases:
            a("v_mov_b32 %s, %s" % (v(b + 1), v(b)))
            a("v_mov_b32 %s, %s" % (v(b + 3), v(b + 2)))
        for b in bases:
            a("v_permlane16_swap_b32 %s, %s" % (v(b), v(b + 1)))
            a("v_permlane16_swap_b32 %s, %s" % (v(b + 2), v(b + 3)))
        for b in bases:
            a("v_add_f32 %s, %s, %s" % (v(b), v(b), v(b + 1)))
            a("v_add_f32 %s, %s, %s" % (v(b + 2), v(b + 2), v(b + 3)))
        for b in bases:
            a("v_cvt_pk_bf16_f32 %s, %s, %s" % (v(b), v(b), v(b + 2)))
        for i, b in enumerate(bases):
            a("ds_write_b32 %s, %s offset:%d" % (v(vA0), v(b), 1024 * i))
        a("v_add_u32 %s, %d, %s" % (v(vA0), LX, v(vO16)))
        a("s_waitcnt lgkmcnt(0)")
        a("s_barrier")

    def x1_select(self, region, tmp, mask, dst0, dst1=None):
        a = self.a
        a("ds_read_b128 %s, %s offset:%d" % (v(tmp, 4), v(vA0), 1024 * region))
        a("s_waitcnt lgkmcnt(0)")
        for k in range(4):
            a("v_mov_b32 %s, %s" % (v(tmp + 4 + k), v(tmp + k)))
        for k in range(4):
            a("v_permlane32_swap_b32 %s, %s" % (v(tmp + k), v(tmp + 4 + k)))
        for k in range(4):
            a("v_cndmask_b32 %s, %s, %s, %s" % (v(dst0 + k), v(tmp + k), v(tmp + 4 + k), s(mask, 2)))
            if dst1 is not None:
                a("v_cndmask_b32 %s, %s, %s, %s" % (v(dst1 + k), v(tmp + 4 + k), v(tmp + k), s(mask, 2)))

    def uk_slice(self):
        a = self.a
        S, quad = UKS, UKQ
        a("s_bitcmp1_b32 %s, 3" % s(sUS))
        a("s_cselect_b64 %s, -1, 0" % s(sMS2, 2))
        self.x1_select(0, 242, sMS2, QU)
        for j in range(4):
            for t in range(4):
                a("v_dot2_f32_bf16 %s, %s, %s, %s" % (v(S + t), v(UKW + 4 * t + j), v(QU + j), "0" if j == 0 else v(S + t)))
        for m in ("row_ror:8", "quad_perm:[1,0,3,2]", "quad_perm:[2,3,0,1]", "row_half_mirror"):
            for t in range(4):
                a("v_add_f32_dpp %s, %s, %s %s row_mask:0xf bank_mask:0xf" % (v(S + t), v(S + t), v(S + t), m))
        a("v_cvt_pk_bf16_f32 %s, %s, %s" % (v(quad), v(S), v(S + 1)))
        a("v_cvt_pk_bf16_f32 %s, %s, %s" % (v(quad + 2), v(S + 2), v(S + 3)))
        a("v_mov_b32 %s, %s" % (v(quad + 1), s(sTAG)))
        a("v_mov_b32 %s, %s" % (v(quad + 3), s(sTAG)))
        a("s_lshl_b32 %s, %s, 8" % (s(sT1), s(sUS)))
        a("s_lshl_b32 %s, %s, 6" % (s(sT2), s(sW)))
        a("s_add_u32 %s, %s, %s" % (s(sT1), s(sT1), s(sT2)))
        a("s_add_u32 %s, %s, 0x%x" % (s(sT1), s(sT1), WS_X2))
        self.mask64(sMS2, 0x00010001)
        a("s_mov_b64 exec, %s" % s(sMS2, 2))
        a("buffer_store_dwordx4 %s, %s, %s, %s offen sc0 sc1" % (v(quad, 4), v(vL), s(R_WS, 4), s(sT1)))
        a("s_mov_b64 exec, -1")

    def q_gather(self):
        a, c = self.a, self.c
        assert c.nq <= 4
        a("s_lshr_b32 %s, %s, 4" % (s(sT5), s(sUS)))
        a("s_lshl_b32 %s, %s, 12" % (s(sT5), s(sT5)))
        a("s_lshl_b32 %s, %s, 10" % (s(sT1), s(sW)))
        a("s_add_u32 %s, %s, 0x%x" % (s(sT1), s(sT1), WS_X1))
        a("s_add_u32 %s, %s, %s" % (s(sT5), s(sT5), s(sT1)))
        a("s_cmp_lt_u32 s2, %d" % self.NA)
        a("s_cbranch_scc1 L_a_main")
        a("s_lshl_b32 %s, %s, 12" % (s(sX1), s(sX1)))
        a("s_add_u32 %s, %s, %s" % (s(sX1), s(sX1), s(sT1)))
        self.tail_setup()
        ne = 16 - c.td - c.td2
        if c.ttouch:
            a("s_add_u32 %s, %s, %d" % (s(sT2), s(sTW), 9216 * 15))
            a("buffer_load_dword %s, v250, %s, %s offen" % (v(vDUMMY), s(R_TW, 4), s(sTW)))
            a("buffer_load_dword %s, v250, %s, %s offen" % (v(vDUMMY), s(R_TW, 4), s(sT2)))
        self.tail_loads(0, min(c.t0, ne) if ne < 16 else c.t0)
        if not c.dyn:
            a("s_mov_b32 %s, %d" % (s(sT1), (self.QB - 1) * 1024))
            a("buffer_load_dwordx4 %s, %s, %s, %s offen %s" % (v(112, 4), v(vO16), s(R_V, 4), s(sT1), c.nt))
            a("buffer_load_dwordx4 %s, %s, %s, %s offen offset:1024 %s" % (v(116, 4), v(vO16), s(R_V2, 4), s(sT1), c.nt))
        for i in range(c.nq):
            self.kv_load(72 + 4 * i, R_V, i)
        if c.pre2 == 2:
            assert c.td + c.td2 == 16
            a("s_add_u32 %s, %s, %d" % (s(sT2), s(sOFF), c.nq * 1024))
            for i in range(c.nq):
                self.kv_load(140 + 4 * i, R_K, i, sT2)
            for i in range(c.nq):
                self.kv_load(156 + 4 * i, R_V, i, sT2)

        def issue():
            self.x1_issue(X1A, sT5)
            self.x1_issue(X1A + 4, sX1)

        def check():
            self.tagcheck(242, [X1A + 1, X1A + 3, X1A + 5, X1A + 7])
            a("v_cmp_ne_u32 vcc, 0, v242")

        self.poll("x1", issue, check)
        self.stamp(11)
        if c.pre2:
            assert c.dyn and c.g1 and c.td + c.td2 >= 8 and c.nq == 4
            a("s_add_u32 %s, %s, %d" % (s(sT5), s(sOFF), c.pre2 * c.nq * 1024))
            for i in range(c.nq):
                self.kv_load(172 + 4 * i, R_K, i, sT5)
            for i in range(c.nq):
                self.kv_load(188 + 4 * i, R_V, i, sT5)
        self.x1_pack([X1A, X1A + 4])
        self.uk_slice()
        self.stamp(10)
        if ne < 16:
            self.tail_loads(min(c.t0, ne), ne)
            self.tail_loads(16, 20)
        else:
            self.tail_loads(c.t0, 20)
        if c.dyn:
            a("s_mul_i32 %s, %s, %d" % (s(sB2), s(sG), c.cstride))
            a("s_add_u32 %s, %s, 0x%x" % (s(sB2), s(sB2), WS_CNT))
            a("v_mov_b32 v134, 0")
            if c.g1:
                a("s_lshl_b32 %s, %s, 2" % (s(sT1), s(sJM)))
                a("s_add_u32 %s, %s, %s" % (s(sT1), s(sT1), s(sW)))
                a("s_sub_u32 %s, %s, %d" % (s(sT1), s(sT1), 4 * self.NP))
                a("v_mov_b32 %s, %s" % (v(vAT), s(sT1)))
            else:
                self.grab()
        self.x1_select(1, 242, sMSK, 32, 36)
        self.stamp(3)

    def b_block(self, nq, kreg, vreg, kwait, vwait, knext, vnext, masked_last=False):
        a = self.a
        SA, SB, O, M, L = 16, 24, 10, 14, 15
        for i in range(nq):
            a("s_waitcnt vmcnt(%d)" % kwait(i))
            k = kreg + 4 * i
            for j in range(4):
                a("v_dot2_f32_bf16 %s, %s, %s, %s" % (v(SA + i), v(k + j), v(32 + j), "0" if j == 0 else v(SA + i)))
                a("v_dot2_f32_bf16 %s, %s, %s, %s" % (v(SB + i), v(k + j), v(36 + j), "0" if j == 0 else v(SB + i)))
            knext(i)
        for i in range(nq):
            a("v_add_f32_dpp %s, %s, %s row_ror:8 row_mask:0xf bank_mask:0xf" % (v(SA + i), v(SB + i), v(SA + i)))
        for m in ("quad_perm:[1,0,3,2]", "quad_perm:[2,3,0,1]", "row_half_mirror"):
            for i in range(nq):
                a("v_add_f32_dpp %s, %s, %s %s row_mask:0xf bank_mask:0xf" % (v(SA + i), v(SA + i), v(SA + i), m))
        if masked_last:
            a("v_add_f32 %s, %s, %s" % (v(SA + nq - 1), s(sBIAS), v(SA + nq - 1)))
        BM, T, AL = 130, 131, 132
        a("v_max_f32 %s, %s, %s" % (v(BM), v(SA), v(SA + 1)))
        i = 2
        while i < nq:
            if i + 1 < nq:
                a("v_max3_f32 %s, %s, %s, %s" % (v(BM), v(BM), v(SA + i), v(SA + i + 1)))
                i += 2
            else:
                a("v_max_f32 %s, %s, %s" % (v(BM), v(BM), v(SA + i)))
                i += 1
        self.allsum_g(BM, T, "v_max_f32")
        a("v_max_f32 %s, %s, %s" % (v(BM), v(BM), v(M)))
        a("v_sub_f32 %s, %s, %s" % (v(AL), v(M), v(BM)))
        for i in range(nq):
            a("v_sub_f32 %s, %s, %s" % (v(SA + i), v(SA + i), v(BM)))
        a("v_exp_f32 %s, %s" % (v(AL), v(AL)))
        for i in range(nq):
            a("v_exp_f32 %s, %s" % (v(SA + i), v(SA + i)))
        a("v_mov_b32 %s, %s" % (v(M), v(BM)))
        a("v_mul_f32 %s, %s, %s" % (v(L), v(L), v(AL)))
        for r in range(4):
            a("v_mul_f32 %s, %s, %s" % (v(O + r), v(O + r), v(AL)))
        for i in range(nq):
            a("v_cvt_pk_bf16_f32 %s, %s, %s" % (v(SB + i), v(SA + i), v(SA + i)))
        for i in range(nq):
            a("v_add_f32 %s, %s, %s" % (v(L), v(L), v(SA + i)))
        for i in range(nq):
            bt = 122 + 4 * (i & 1)
            for j in range(4):
                a("v_and_b32 %s, %s, %s" % (v(bt + j), v(vM[j]), v(SB + i)))
            a("s_waitcnt vmcnt(%d)" % vwait(i))
            a("v_mfma_f32_16x16x32_bf16 %s, %s, %s, %s" % (v(O, 4), v(vreg + 4 * i, 4), v(bt, 4), v(O, 4)))
            vnext(i)

    def tail_setup(self):
        a, c = self.a, self.c
        a("s_and_b32 %s, %s, 1" % (s(sT1), s(sW)))
        a("s_lshl_b32 %s, %s, 1" % (s(sT2), s(sG)))
        a("s_add_u32 %s, %s, %s" % (s(sT1), s(sT1), s(sT2)))
        a("s_mul_i32 %s, %s, %d" % (s(sT1), s(sT1), 128 * 1152))
        a("s_lshl_b32 %s, %s, 7" % (s(sT2), s(sJM)))
        a("s_add_u32 %s, %s, %s" % (s(sTW), s(sT1), s(sT2)))
        a("s_cmp_ge_u32 %s, 2" % s(sW))
        a("s_cselect_b32 %s, %s, %s" % (s(R_TW), s(P_WOA), s(P_WOB)))
        a("s_cselect_b32 %s, %s, %s" % (s(R_TW + 1), s(P_WOA + 1), s(P_WOB + 1)))
        a("s_cmp_lt_u32 %s, 9" % s(sJM))
        a("s_cselect_b32 %s, 4718592, 0" % s(R_TW + 2))
        a("s_cselect_b32 %s, 1152, 0" % s(sT3))
        a("s_mov_b32 %s, 0x20000" % s(R_TW + 3))
        self.srd(R_G, P_G, s(sT3))
        a("s_mov_b32 %s, %s" % (s(R_X + 2), s(sT3)))
        a("v_lshrrev_b32 v250, 3, %s" % v(vL))
        a("v_mul_u32_u24 v250, 1152, v250")
        a("v_and_b32 %s, 7, %s" % (v(vA1), v(vL)))
        a("v_lshlrev_b32 %s, 4, %s" % (v(vA1), v(vA1)))
        a("v_add_u32 v250, v250, %s" % v(vA1))

    def tail_loads(self, n0, n1):
        a, c = self.a, self.c
        for t in range(n0, n1):
            if t < 16:
                a("buffer_load_dwordx4 %s, v250, %s, %s offen %s" % (v(140 + 4 * t, 4), s(R_TW, 4), s(sTW), c.nt))
                if t < 15:
                    a("s_add_u32 %s, %s, 9216" % (s(sTW), s(sTW)))
            else:
                i = t - 16
                o = " offset:1024" if i & 1 else ""
                a("buffer_load_dwordx4 %s, %s, %s, 0 offen%s" % (v(204 + 4 * i, 4), v(vO16), s(R_X if i < 2 else R_G, 4), o))

    def grab(self):
        a = self.a
        a("v_mov_b32 %s, 1" % v(vAT))
        a("s_mov_b64 exec, 1")
        if self.c.diag == 1:
            for _ in range(2):
                a("buffer_atomic_add v134, v134, %s, %s offen sc1" % (s(R_WS, 4), s(sB2)))
        a("buffer_atomic_add %s, v134, %s, %s offen sc0 sc1" % (v(vAT), s(R_WS, 4), s(sB2)))
        a("s_mov_b64 exec, -1")

    def b_main_dyn(self):
        a, c = self.a, self.c
        nq, S = c.nq, c.sblk
        assert 4096 % nq == 0
        nblk = 4096 // nq
        nstat = S * 4 * self.NP
        for r in range(4):
            a("v_mov_b32 %s, 0" % v(10 + r))
        a("v_mov_b32 v14, 0xff800000")
        a("v_mov_b32 v15, 0")
        self.stamp(4)
        loop = self.lab("b_loop")
        if c.pre2:
            a("s_add_u32 %s, %s, %d" % (s(sT5), s(sOFF), (c.pre2 + 1) * nq * 1024))
            self.b_block(nq, 40, 72, lambda i: 63, lambda i: 63,
                         lambda i: self.kv_load(40 + 4 * i, R_K, i, sT5),
                         lambda i: self.kv_load(72 + 4 * i, R_V, i, sT5))
            if c.pre2 == 2:
                self.b_block(nq, 140, 156, lambda i: 63, lambda i: 63, lambda i: None, lambda i: None)
            ne0 = 16 - c.td - c.td2
            ex = 1 + (ne0 - min(c.t0, ne0)) + 4
            self.b_block(nq, 172, 188, lambda i: 4 * nq - 1 - i + ex, lambda i: 3 * nq - 1 - i + ex,
                         lambda i: None, lambda i: None)
            a("s_mov_b32 %s, %s" % (s(sOFF), s(sT5)))
        a("s_movk_i32 %s, %d" % (s(sIT), S - 1 - (c.pre2 + 1 if c.pre2 else 0)))
        a.label(loop)
        a("s_add_u32 %s, %s, %d" % (s(sT5), s(sOFF), nq * 1024))
        self.b_block(nq, 40, 72, lambda i: 2 * nq - 1, lambda i: 2 * nq - 1,
                     lambda i: self.kv_load(40 + 4 * i, R_K, i, sT5),
                     lambda i: self.kv_load(72 + 4 * i, R_V, i, sT5))
        a("s_mov_b32 %s, %s" % (s(sOFF), s(sT5)))
        if c.bstamp:
            self.stamp_it(0, 1)
        a("s_sub_u32 %s, %s, 1" % (s(sIT), s(sIT)))
        a("s_cmp_lg_u32 %s, 0" % s(sIT))
        a("s_cbranch_scc1 %s" % loop)
        self.stamp(14)
        if c.gearly:
            self.gate()
        dyn, last = self.lab("b_dyn"), self.lab("b_last")
        a.label(dyn)
        a("s_waitcnt vmcnt(%d)" % (2 * nq - 1))
        a("v_readfirstlane_b32 %s, %s" % (s(sT5), v(vAT)))
        if c.g1:
            a("s_add_u32 %s, %s, %d" % (s(sT5), s(sT5), 4 * self.NP))
        a("s_cmp_ge_u32 %s, %d" % (s(sT5), nblk - nstat))
        a("s_cbranch_scc1 %s" % last)
        if c.gk:
            fin = self.lab("b_fin")
            a("s_cmp_ge_u32 %s, %d" % (s(sT5), nblk - nstat - c.gk))
            a("s_cbranch_scc1 %s" % fin)
        self.grab()
        a("s_add_u32 %s, %s, %d" % (s(sT5), s(sT5), nstat))
        a("s_mul_i32 %s, %s, %d" % (s(sT5), s(sT5), nq * 1024))
        xa = 2 if c.diag == 1 else 0
        self.b_block(nq, 40, 72, lambda i: 2 * nq + xa if i == 0 else 2 * nq + xa, lambda i: 2 * nq + xa,
                     lambda i: self.kv_load(40 + 4 * i, R_K, i, sT5),
                     lambda i: self.kv_load(72 + 4 * i, R_V, i, sT5))
        if c.debug:
            a("s_add_u32 %s, %s, 1" % (s(sIT), s(sIT)))
        a("s_branch %s" % dyn)
        if c.gk:
            a.label(fin)
            a("s_add_u32 %s, %s, %d" % (s(sT5), s(sT5), nstat))
            a("s_mul_i32 %s, %s, %d" % (s(sT5), s(sT5), nq * 1024))
            self.b_block(nq, 40, 72, lambda i: 2 * nq - 1, lambda i: 2 * nq - 1,
                         lambda i: self.kv_load(40 + 4 * i, R_K, i, sT5),
                         lambda i: self.kv_load(72 + 4 * i, R_V, i, sT5))
            if c.debug:
                a("s_add_u32 %s, %s, 1" % (s(sIT), s(sIT)))
        a.label(last)
        self.stamp(5)
        if c.debug:
            a("v_writelane_b32 %s, %s, 15" % (v(vSTAMP), s(sIT)))
        ne = 16 - c.td - c.td2
        cnt = [c.td // 8 + (1 if j < c.td % 8 else 0) for j in range(8)]
        if c.tdv:
            cnt = [0] * 4 + [c.td // 4 + (1 if j < c.td % 4 else 0) for j in range(4)]
        assert nq == 4 or c.td == 0
        pos = [ne + sum(cnt[:j]) for j in range(9)]
        self.b_block(nq, 40, 72, lambda i: 2 * nq - 1 - i + sum(cnt[:i]),
                     lambda i: nq - 1 - i + sum(cnt[:nq + i]),
                     lambda i: self.tail_loads(pos[i], pos[i + 1]),
                     lambda i: self.tail_loads(pos[nq + i], pos[nq + i + 1]))
        self.stamp(6)
        if not c.gearly:
            self.gate()
        self.b_epilogue()

    def b_main(self):
        a, c = self.a, self.c
        if c.dyn:
            return self.b_main_dyn()
        nq = c.nq
        assert (self.QB - 1) % nq == 0
        nb = (self.QB - 1) // nq
        for r in range(4):
            a("v_mov_b32 %s, 0" % v(10 + r))
        a("v_mov_b32 v14, 0xff800000")
        a("v_mov_b32 v15, 0")
        self.b_block(2, 104, 112, lambda i: 63, lambda i: 63, lambda i: None, lambda i: None,
                     masked_last=True)
        self.stamp(4)
        loop = self.lab("b_loop")
        a("s_movk_i32 %s, %d" % (s(sIT), nb - 1))
        a.label(loop)
        a("s_add_u32 %s, %s, %d" % (s(sT5), s(sOFF), nq * 1024))
        self.b_block(nq, 40, 72, lambda i: 2 * nq - 1, lambda i: 2 * nq - 1,
                     lambda i: self.kv_load(40 + 4 * i, R_K, i, sT5),
                     lambda i: self.kv_load(72 + 4 * i, R_V, i, sT5))
        a("s_mov_b32 %s, %s" % (s(sOFF), s(sT5)))
        if c.bstamp:
            self.stamp_it(0, 1)
        a("s_sub_u32 %s, %s, 1" % (s(sIT), s(sIT)))
        a("s_cmp_lg_u32 %s, 0" % s(sIT))
        a("s_cbranch_scc1 %s" % loop)
        self.stamp(5)
        self.b_block(nq, 40, 72, lambda i: 2 * nq - 1 - i, lambda i: nq - 1 - i,
                     lambda i: None, lambda i: None)
        self.stamp(6)
        self.gate()
        self.b_epilogue()

    def gate(self):
        a = self.a
        G, X, Wt = 220, 204, 212
        a("v_dot2_f32_bf16 %s, %s, %s, 0" % (v(G), v(X), v(Wt)))
        for j in range(1, 8):
            a("v_dot2_f32_bf16 %s, %s, %s, %s" % (v(G), v(X + j), v(Wt + j), v(G)))
        self.allsum_row(G)
        self.allsum_g(G, 221)
        a("v_mul_f32 %s, %s, %s" % (v(G), f32(-LOG2E), v(G)))
        a("v_exp_f32 %s, %s" % (v(G), v(G)))
        a("v_add_f32 %s, 1.0, %s" % (v(G), v(G)))
        a("v_rcp_f32 %s, %s" % (v(G), v(G)))

    def b_epilogue(self):
        a, c = self.a, self.c
        O, M, L = 10, 14, 15
        self.allsum_g(L, 130)
        a("v_bfe_u32 %s, %s, 3, 1" % (v(vA0), v(vL)))
        a("v_lshlrev_b32 %s, 5, %s" % (v(vA2), v(vA0)))
        a("v_lshlrev_b32 %s, 11, %s" % (v(vA0), v(vA0)))
        a("v_lshrrev_b32 %s, 4, %s" % (v(vA1), v(vL)))
        a("v_lshlrev_b32 %s, 9, %s" % (v(vA1), v(vA1)))
        a("v_add_u32 %s, %s, %s" % (v(vA0), v(vA0), v(vA1)))
        a("v_and_b32 %s, 7, %s" % (v(vA1), v(vL)))
        a("v_lshlrev_b32 %s, 4, %s" % (v(vA1), v(vA1)))
        a("s_lshl_b32 %s, %s, 2" % (s(sT1), s(sW)))
        a("s_add_u32 %s, %s, %d" % (s(sT2), s(sT1), LO))
        a("v_add3_u32 %s, %s, %s, %s" % (v(vA0), v(vA0), v(vA1), s(sT2)))
        a("s_add_u32 %s, %s, %d" % (s(sT2), s(sT1), LML))
        a("v_add_u32 %s, %s, %s" % (v(vA2), s(sT2), v(vA2)))
        for r in range(4):
            a("ds_write_b32 %s, %s offset:%d" % (v(vA0), v(O + r), 128 * r))
        a("ds_write_b32 %s, %s" % (v(vA2), v(M)))
        a("ds_write_b32 %s, %s offset:16" % (v(vA2), v(L)))
        a("s_waitcnt lgkmcnt(0)")
        a("s_barrier")
        skip = self.lab("b_pub")
        a("s_cmp_ge_u32 %s, 2" % s(sW))
        a("s_cbranch_scc1 %s" % skip)
        a("s_lshl_b32 %s, %s, 11" % (s(sT1), s(sW)))
        a("s_add_u32 %s, %s, %d" % (s(sT1), s(sT1), LO))
        a("v_lshlrev_b32 %s, 5, %s" % (v(vA0), v(vL)))
        a("v_add_u32 %s, %s, %s" % (v(vA0), s(sT1), v(vA0)))
        a("s_lshl_b32 %s, %s, 5" % (s(sT1), s(sW)))
        a("s_add_u32 %s, %s, %d" % (s(sT1), s(sT1), LML))
        a("v_mov_b32 %s, %s" % (v(vA1), s(sT1)))
        a("ds_read_b128 v[40:43], %s" % v(vA1))
        a("ds_read_b128 v[44:47], %s offset:16" % v(vA1))
        a("ds_read_b128 v[48:51], %s" % v(vA0))
        a("ds_read_b128 v[52:55], %s offset:16" % v(vA0))
        a("s_lshl_b32 %s, %s, %d" % (s(sT1), s(sB), 11 - c.x4c))
        a("s_lshl_b32 %s, %s, %d" % (s(sT2), s(sW), 10 - c.x4c))
        a("s_add_u32 %s, %s, %s" % (s(sT1), s(sT1), s(sT2)))
        a("s_add_u32 %s, %s, 0x%x" % (s(sT1), s(sT1), WS_X4B))
        a("s_lshl_b32 %s, %s, 1" % (s(sT2), s(sB)))
        a("s_add_u32 %s, %s, %s" % (s(sT2), s(sT2), s(sW)))
        a("s_lshl_b32 %s, %s, 7" % (s(sT2), s(sT2)))
        a("s_add_u32 %s, %s, 0x%x" % (s(sT2), s(sT2), WS_X4L))
        a("s_waitcnt lgkmcnt(2)")
        a("v_max3_f32 v56, v40, v41, v42")
        a("v_max_f32 v56, v56, v43")
        for i in range(4):
            a("v_sub_f32 %s, %s, v56" % (v(40 + i), v(40 + i)))
        for i in range(4):
            a("v_exp_f32 %s, %s" % (v(40 + i), v(40 + i)))
        a("v_mul_f32 v57, v40, v44")
        for i in range(1, 4):
            a("v_fmac_f32 v57, %s, %s" % (v(40 + i), v(44 + i)))
        a("s_waitcnt lgkmcnt(0)")
        a("v_mul_f32 v58, v40, v48")
        a("v_mul_f32 v60, v40, v52")
        for i in range(1, 4):
            a("v_fmac_f32 v58, %s, %s" % (v(40 + i), v(48 + i)))
            a("v_fmac_f32 v60, %s, %s" % (v(40 + i), v(52 + i)))
        a("v_rcp_f32 v62, v57")
        a("v_log_f32 v63, v57")
        a("v_mov_b32 v59, %s" % s(sTAG))
        a("v_mov_b32 v61, %s" % s(sTAG))
        a("v_mul_f32 v58, v58, v62")
        a("v_mul_f32 v60, v60, v62")
        a("v_add_f32 v64, v56, v63")
        a("v_mov_b32 v65, %s" % s(sTAG))
        if c.x4c:
            a("v_cvt_pk_bf16_f32 v58, v58, v60")
            a("v_lshlrev_b32 %s, 3, %s" % (v(vA1), v(vL)))
            a("buffer_store_dwordx2 v[58:59], %s, %s, %s offen sc0 sc1" % (v(vA1), s(R_WS, 4), s(sT1)))
        else:
            a("buffer_store_dwordx4 v[58:61], %s, %s, %s offen sc0 sc1" % (v(vO16), s(R_WS, 4), s(sT1)))
        a("v_mov_b32 %s, 0" % v(vA0))
        a("s_mov_b64 exec, 1")
        a("buffer_store_dwordx2 v[64:65], %s, %s, %s offen sc0 sc1" % (v(vA0), s(R_WS, 4), s(sT2)))
        a("s_mov_b64 exec, -1")
        a.label(skip)
        self.stamp(7)
        a("s_cmp_lt_u32 %s, 9" % s(sJM))
        a("s_cbranch_scc1 L_tail")
        a("s_cmp_lg_u32 %s, 9" % s(sJM))
        a("s_cbranch_scc1 L_done")
        a("s_cmp_ge_u32 %s, 9" % s(sG))
        a("s_cbranch_scc1 L_done")
        a("s_cmp_lg_u32 %s, 0" % s(sW))
        a("s_cbranch_scc1 L_done")
        self.final()
        a.label("L_done")
        self.end()

    def final(self):
        a, c = self.a, self.c
        a("s_lshl_b32 %s, %s, 13" % (s(sT1), s(sG)))
        a("s_add_u32 %s, %s, 0x%x" % (s(sX1), s(sT1), WS_X5))
        a("v_and_b32 %s, 31, %s" % (v(vA0), v(vL)))
        a("v_lshlrev_b32 %s, 4, %s" % (v(vA0), v(vA0)))
        a("v_lshrrev_b32 %s, 5, %s" % (v(vA1), v(vL)))
        a("v_lshlrev_b32 %s, 9, %s" % (v(vA1), v(vA1)))
        a("v_add_u32 %s, %s, %s" % (v(vA0), v(vA0), v(vA1)))
        self.srd(R_OUT, P_OUT, "1152")

        def issue():
            for i in range(8):
                if i == 4:
                    a("s_add_u32 %s, %s, 4096" % (s(sT2), s(sX1)))
                a("buffer_load_dwordx4 %s, %s, %s, %s offen offset:%d sc1" % (
                    v(40 + 4 * i, 4), v(vA0), s(R_WS, 4), s(sX1 if i < 4 else sT2), 1024 * (i % 4)))

        def check():
            self.tagcheck(72, [40 + 4 * i + j for i in range(8) for j in (1, 3)])
            a("v_cmp_ne_u32 vcc, 0, v72")

        self.poll("x5", issue, check)
        self.stamp(12)
        for j in (0, 2):
            for i in (0, 2, 4, 6):
                a("v_add_f32 %s, %s, %s" % (v(40 + 4 * i + j), v(40 + 4 * i + j), v(44 + 4 * i + j)))
        for j in (0, 2):
            a("v_add_f32 %s, %s, %s" % (v(40 + j), v(40 + j), v(48 + j)))
            a("v_add_f32 %s, %s, %s" % (v(56 + j), v(56 + j), v(64 + j)))
        for j in (0, 2):
            a("v_add_f32 %s, %s, %s" % (v(40 + j), v(40 + j), v(56 + j)))
        a("v_mov_b32 v44, v40")
        a("v_mov_b32 v45, v42")
        a("v_permlane32_swap_b32 v40, v44")
        a("v_permlane32_swap_b32 v42, v45")
        a("v_add_f32 v40, v40, v44")
        a("v_add_f32 v42, v42, v45")
        a("v_cvt_pk_bf16_f32 v40, v40, v42")
        a("v_lshlrev_b32 %s, 2, %s" % (v(vA0), v(vL)))
        a("s_lshl_b32 %s, %s, 7" % (s(sT1), s(sG)))
        a("s_mov_b32 exec_hi, 0")
        a("buffer_store_dword v40, %s, %s, %s offen" % (v(vA0), s(R_OUT, 4), s(sT1)))
        done = self.lab("fin")
        a("s_cmp_lg_u32 %s, 0" % s(sG))
        a("s_cbranch_scc1 %s" % done)
        a("v_mov_b32 v41, %s" % s(sTAG))
        a("v_mov_b32 %s, %d" % (v(vA0), WS_EPOCH))
        a("s_mov_b64 exec, 1")
        a("buffer_store_dword v41, %s, %s, 0 offen sc0 sc1" % (v(vA0), s(R_WS, 4)))
        if c.elapsed:
            a("s_memrealtime %s" % s(sST, 2))
            a("s_waitcnt lgkmcnt(0)")
            a("s_sub_u32 %s, %s, s38" % (s(sT1), s(sST)))
            a("v_mov_b32 v41, %s" % s(sT1))
            a("v_mov_b32 %s, 0" % v(vA0))
            self.srd(R_OUT, 34, "256")
            a("buffer_store_dword v41, %s, %s, 0 offen" % (v(vA0), s(R_OUT, 4)))
        a.label(done)
        a("s_mov_b64 exec, -1")
        self.stamp(13)

    def reduce_wu8(self, acc, lds, dst):
        a = self.a
        a("v_lshrrev_b32 %s, 4, %s" % (v(vA0), v(vL)))
        a("v_and_b32 %s, 1, %s" % (v(vA1), v(vA0)))
        a("v_lshlrev_b32 %s, 10, %s" % (v(vA1), v(vA1)))
        a("v_lshrrev_b32 %s, 1, %s" % (v(vA0), v(vA0)))
        a("v_lshlrev_b32 %s, 2, %s" % (v(vA0), v(vA0)))
        a("v_add_u32 %s, %s, %s" % (v(vA0), v(vA0), v(vA1)))
        a("v_and_b32 %s, 7, %s" % (v(vA1), v(vL)))
        a("v_lshlrev_b32 %s, 5, %s" % (v(vA1), v(vA1)))
        a("s_lshl_b32 %s, %s, 3" % (s(sT1), s(sW)))
        a("s_add_u32 %s, %s, %d" % (s(sT1), s(sT1), lds))
        a("v_add3_u32 %s, %s, %s, %s" % (v(vA0), v(vA0), v(vA1), s(sT1)))
        self.mask64(sMS2, 0x00FF00FF, 0xFF00FF00)
        a("s_mov_b64 exec, %s" % s(sMS2, 2))
        for r in range(4):
            a("ds_write_b32 %s, %s offset:%d" % (v(vA0), v(acc + r), 256 * r))
        a("s_mov_b64 exec, -1")
        a("s_waitcnt lgkmcnt(0)")
        a("s_barrier")

    def tail_b_compact(self, G, join2):
        a, c = self.a, self.c
        NP = self.NP
        assert NP % 2 == 0
        NL = NP // 2
        a("s_mul_i32 %s, %s, %d" % (s(sX1), s(sG), NP * 1024))
        a("s_lshl_b32 %s, %s, 9" % (s(sT1), s(sT3)))
        a("s_add_u32 %s, %s, %s" % (s(sX1), s(sX1), s(sT1)))
        a("s_add_u32 %s, %s, 0x%x" % (s(sX1), s(sX1), WS_X4B))
        a("s_mul_i32 %s, %s, %d" % (s(sT5), s(sG), NP * 256))
        a("s_lshl_b32 %s, %s, 7" % (s(sT1), s(sT3)))
        a("s_add_u32 %s, %s, %s" % (s(sT5), s(sT5), s(sT1)))
        a("s_add_u32 %s, %s, 0x%x" % (s(sT5), s(sT5), WS_X4L))
        a("v_and_b32 %s, 15, %s" % (v(vA1), v(vL)))
        a("v_min_u32 %s, %d, %s" % (v(vA1), NL - 1, v(vA1)))
        a("v_lshlrev_b32 %s, 9, %s" % (v(vA1), v(vA1)))
        a("v_lshrrev_b32 %s, 5, %s" % (v(vA0), v(vL)))
        a("v_lshl_add_u32 %s, %s, 8, %s" % (v(vA1), v(vA0), v(vA1)))
        a("v_and_b32 %s, 31, %s" % (v(vA2), v(vL)))
        a("v_lshlrev_b32 %s, 4, %s" % (v(vA2), v(vA2)))
        a("v_lshl_add_u32 %s, %s, 10, %s" % (v(vA0), v(vA0), v(vA2)))

        def issue():
            a("buffer_load_dwordx2 v[96:97], %s, %s, %s offen sc1" % (v(vA1), s(R_WS, 4), s(sT5)))
            a("s_mov_b32 %s, %s" % (s(sT2), s(sX1)))
            for i in range(NL):
                o = " offset:2048" if i & 1 else ""
                a("buffer_load_dwordx4 %s, %s, %s, %s offen%s sc1" % (v(40 + 4 * i, 4), v(vA0), s(R_WS, 4), s(sT2), o))
                if i & 1 and i < NL - 1:
                    a("s_add_u32 %s, %s, 4096" % (s(sT2), s(sT2)))

        def check():
            self.tagcheck(98, [97] + [40 + 4 * i + j for i in range(NL) for j in (1, 3)])
            a("v_cmp_ne_u32 vcc, 0, v98")

        if c.tdp and c.td2:
            self.poll("x4c", issue, check, between=lambda: self.tail_loads(16 - c.td2, 16), first_wait=c.td2)
        else:
            self.poll("x4c", issue, check)
        self.stamp(8)
        a("v_mov_b32 v98, v96")
        self.allsum_row(98, "v_max_f32")
        a("v_mov_b32 v99, v98")
        a("v_permlane32_swap_b32 v98, v99")
        a("v_max_f32 v98, v98, v99")
        a("v_sub_f32 v96, v96, v98")
        a("v_exp_f32 v96, v96")
        self.mask64(sMS2, ((1 << NL) - 1) * 0x10001)
        a("v_cndmask_b32 v96, 0, v96, %s" % s(sMS2, 2))
        a("v_mov_b32 v98, v96")
        self.allsum_row(98)
        a("v_mov_b32 v99, v98")
        a("v_permlane32_swap_b32 v98, v99")
        a("v_add_f32 v98, v98, v99")
        a("v_rcp_f32 v98, v98")
        for i in range(NL):
            for k in range(2):
                q = 40 + 4 * i + 2 * k
                a("v_and_b32 %s, 0xffff0000, %s" % (v(q + 1), v(q)))
                a("v_lshlrev_b32 %s, 16, %s" % (v(q), v(q)))
        a("v_mul_f32 v96, v96, v98")
        for i in range(NL):
            for k in range(4):
                op = "v_mul_f32_dpp" if i == 0 else "v_fmac_f32_dpp"
                a("%s %s, v96, %s row_newbcast:%d row_mask:0xf bank_mask:0xf" % (op, v(100 + k), v(40 + 4 * i + k), i))
        for k in range(4):
            a("v_mov_b32 %s, %s" % (v(104 + k), v(100 + k)))
        for k in range(4):
            a("v_permlane32_swap_b32 %s, %s" % (v(100 + k), v(104 + k)))
        for k in range(4):
            a("v_add_f32 %s, %s, %s" % (v(100 + k), v(100 + k), v(104 + k)))
        for k in range(4):
            a("v_cvt_pk_bf16_f32 %s, %s, %s" % (v(100 + k), v(100 + k), v(100 + k)))
        a("s_lshl_b32 %s, %s, 9" % (s(sT1), s(sW)))
        a("s_add_u32 %s, %s, %d" % (s(sT1), s(sT1), LT))
        a("v_add_u32 %s, %s, %s" % (v(vA0), s(sT1), v(vA2)))
        a("ds_write_b128 %s, v[100:103]" % v(vA0))
        a("s_branch %s" % join2)

    def tail(self):
        a, c = self.a, self.c
        a.label("L_tail")
        if not c.tdp:
            self.tail_loads(16 - c.td2, 16)
        G = 220
        isa, join, join2 = self.lab("t_a"), self.lab("t_j"), self.lab("t_k")
        a("s_and_b32 %s, %s, 1" % (s(sT3), s(sW)))
        a("s_cmp_ge_u32 %s, 2" % s(sW))
        a("s_cbranch_scc1 %s" % isa)
        a("v_sub_f32 %s, 1.0, %s" % (v(G), v(G)))
        NP = self.NP
        if c.x4c:
            self.tail_b_compact(G, join2)
        else:
            self.tail_b_full(G, join)
        a.label(isa)
        self.tail_rest(G, join, join2)

    def tail_b_full(self, G, join):
        a, c = self.a, self.c
        NP = self.NP
        a("s_mul_i32 %s, %s, %d" % (s(sX1), s(sG), NP * 2048))
        a("s_lshl_b32 %s, %s, 10" % (s(sT1), s(sT3)))
        a("s_add_u32 %s, %s, %s" % (s(sX1), s(sX1), s(sT1)))
        a("s_add_u32 %s, %s, 0x%x" % (s(sX1), s(sX1), WS_X4B))
        a("s_mul_i32 %s, %s, %d" % (s(sT5), s(sG), NP * 256))
        a("s_lshl_b32 %s, %s, 7" % (s(sT1), s(sT3)))
        a("s_add_u32 %s, %s, %s" % (s(sT5), s(sT5), s(sT1)))
        a("s_add_u32 %s, %s, 0x%x" % (s(sT5), s(sT5), WS_X4L))
        a("v_and_b32 %s, 15, %s" % (v(vA1), v(vL)))
        a("v_min_u32 %s, %d, %s" % (v(vA1), NP - 1, v(vA1)))
        a("v_lshlrev_b32 %s, 8, %s" % (v(vA1), v(vA1)))

        def issue():
            a("buffer_load_dwordx2 v[96:97], %s, %s, %s offen sc1" % (v(vA1), s(R_WS, 4), s(sT5)))
            a("s_mov_b32 %s, %s" % (s(sT2), s(sX1)))
            for i in range(NP):
                o = " offset:2048" if i & 1 else ""
                a("buffer_load_dwordx4 %s, %s, %s, %s offen%s sc1" % (v(40 + 4 * i, 4), v(vO16), s(R_WS, 4), s(sT2), o))
                if i & 1 and i < NP - 1:
                    a("s_add_u32 %s, %s, 4096" % (s(sT2), s(sT2)))

        def check():
            self.tagcheck(98, [97] + [40 + 4 * i + j for i in range(NP) for j in (1, 3)])
            a("v_cmp_ne_u32 vcc, 0, v98")

        if c.lfirst:
            def issue_l():
                a("buffer_load_dwordx2 v[96:97], %s, %s, %s offen sc1" % (v(vA1), s(R_WS, 4), s(sT5)))

            def check_l():
                self.tagcheck(98, [97])
                a("v_cmp_ne_u32 vcc, 0, v98")

            self.poll("x4l", issue_l, check_l)
        self.poll("x4b", issue, check)
        self.stamp(8)
        a("v_mov_b32 v98, v96")
        self.allsum_row(98, "v_max_f32")
        a("v_sub_f32 v96, v96, v98")
        a("v_exp_f32 v96, v96")
        self.mask64(sMS2, ((1 << NP) - 1) * 0x10001)
        a("v_cndmask_b32 v96, 0, v96, %s" % s(sMS2, 2))
        a("v_mov_b32 v98, v96")
        self.allsum_row(98)
        a("v_rcp_f32 v98, v98")
        a("v_mul_f32 v96, v96, v98")
        for i in range(NP):
            a("v_readlane_b32 %s, v96, %d" % (s(8 + i), i))
        a("v_mul_f32 v100, %s, v40" % s(8))
        a("v_mul_f32 v101, %s, v42" % s(8))
        for i in range(1, NP):
            a("v_fmac_f32 v100, %s, %s" % (s(8 + i), v(40 + 4 * i)))
            a("v_fmac_f32 v101, %s, %s" % (s(8 + i), v(42 + 4 * i)))
        a("s_branch %s" % join)

    def tail_rest(self, G, join, join2):
        a, c = self.a, self.c
        a("s_lshl_b32 %s, %s, 1" % (s(sX1), s(sG)))
        a("s_add_u32 %s, %s, %s" % (s(sX1), s(sX1), s(sT3)))
        NH = self.NH
        a("s_lshl_b32 %s, %s, %d" % (s(sX1), s(sX1), 9 + NH))
        a("s_add_u32 %s, %s, 0x%x" % (s(sX1), s(sX1), WS_X4A))

        def issue_a():
            for h in range(NH):
                o = " offset:1024" if h else ""
                a("buffer_load_dwordx4 %s, %s, %s, %s offen%s sc1" % (v(40 + 4 * h, 4), v(vO16), s(R_WS, 4), s(sX1), o))

        def check_a():
            self.tagcheck(98, [41 + 4 * h + j for h in range(NH) for j in (0, 2)])
            a("v_cmp_ne_u32 vcc, 0, v98")

        if c.tdp and c.td2:
            self.poll("x4a", issue_a, check_a, between=lambda: self.tail_loads(16 - c.td2, 16), first_wait=c.td2)
        else:
            self.poll("x4a", issue_a, check_a)
        self.stamp(8)
        if NH == 1:
            a("v_mov_b32 v100, v40")
            a("v_mov_b32 v101, v42")
        else:
            a("v_add_f32 v100, v40, v44")
            a("v_add_f32 v101, v42, v46")
        a.label(join)
        self.dump(0, 100)
        self.dump(1, 101)
        self.dump(2, G)
        a("v_cvt_pk_bf16_f32 v100, v100, v100")
        a("v_cvt_pk_bf16_f32 v101, v101, v101")
        a("s_lshl_b32 %s, %s, 9" % (s(sT1), s(sW)))
        a("s_add_u32 %s, %s, %d" % (s(sT1), s(sT1), LT))
        a("v_lshlrev_b32 %s, 3, %s" % (v(vA0), v(vL)))
        a("v_add_u32 %s, %s, %s" % (v(vA0), s(sT1), v(vA0)))
        a("ds_write_b64 %s, v[100:101]" % v(vA0))
        a.label(join2)
        a("v_lshrrev_b32 %s, 3, %s" % (v(vA1), v(vL)))
        a("v_lshlrev_b32 %s, 2, %s" % (v(vA1), v(vA1)))
        a("v_add_u32 %s, %s, %s" % (v(vA1), s(sT1), v(vA1)))
        for t in range(0, 16, 2):
            a("ds_read2_b32 %s, %s offset0:%d offset1:%d" % (v(40 + t, 2), v(vA1), 8 * t, 8 * t + 8))
        for t in range(16):
            if t % 2 == 0:
                a("s_waitcnt lgkmcnt(%d)" % (7 - t // 2))
            if c.tdp and t >= 16 - c.td2:
                a("s_waitcnt vmcnt(%d)" % (15 - t))
            self.delta_mfma(10, v(140 + 4 * t, 4), 40 + t, 122 + 4 * (t & 1), t == 0)
        for r in range(4):
            self.dump(3 + r, 10 + r)
        self.dump(7, 140)
        for r in range(4):
            a("v_mul_f32 %s, %s, %s" % (v(10 + r), v(10 + r), v(G)))
        self.reduce_wu8(10, LR, 0)
        a("s_cmp_lg_u32 %s, 0" % s(sW))
        a("s_cbranch_scc1 L_tail_done")
        a("v_lshlrev_b32 %s, 5, %s" % (v(vA0), v(vL)))
        a("v_add_u32 %s, %d, %s" % (v(vA0), LR, v(vA0)))
        a("ds_read_b128 v[40:43], %s" % v(vA0))
        a("ds_read_b128 v[44:47], %s offset:16" % v(vA0))
        a("s_lshl_b32 %s, %s, 4" % (s(sT1), s(sJM)))
        a("s_add_u32 %s, %s, %s" % (s(sT1), s(sT1), s(sG)))
        a("s_lshl_b32 %s, %s, 9" % (s(sT1), s(sT1)))
        a("s_add_u32 %s, %s, 0x%x" % (s(sT1), s(sT1), WS_X5))
        a("v_lshlrev_b32 %s, 3, %s" % (v(vA1), v(vL)))
        a("s_waitcnt lgkmcnt(0)")
        a("v_add_f32 v40, v40, v41")
        a("v_add_f32 v42, v42, v43")
        a("v_add_f32 v44, v44, v45")
        a("v_add_f32 v46, v46, v47")
        a("v_add_f32 v40, v40, v42")
        a("v_add_f32 v44, v44, v46")
        a("v_add_f32 v40, v40, v44")
        a("v_mov_b32 v41, %s" % s(sTAG))
        a("buffer_store_dwordx2 v[40:41], %s, %s, %s offen sc0 sc1" % (v(vA1), s(R_WS, 4), s(sT1)))
        a.label("L_tail_done")
        self.stamp(9)
        self.end()

    def dma_rows(self, rows):
        a, c = self.a, self.c
        sDS, sDB = sT5, sT4
        grp = None
        for i in rows:
            if i // 4 != grp:
                grp = i // 4
                if grp == 0:
                    a("s_mov_b32 m0, %s" % s(sDB))
                    so = sDS
                else:
                    a("s_add_u32 %s, %s, 4096" % (s(sT1), s(sDB)))
                    a("s_add_u32 %s, %s, 4096" % (s(sT2), s(sDS)))
                    a("s_mov_b32 m0, %s" % s(sT1))
                    so = sT2
            o = " offset:%d" % (1024 * (i % 4)) if i % 4 else ""
            a("buffer_load_dwordx4 %s, %s, %s offen%s %s lds" % (v(222 + i), s(R_C, 4), s(so), o, c.nt))

    def dma_next(self):
        a = self.a
        sDS, sDB, sDX = sT5, sT4, sT3
        a("s_add_u32 %s, %s, 0x8000" % (s(sDS), s(sDS)))
        a("s_xor_b32 %s, %s, %s" % (s(sDB), s(sDB), s(sDX)))
        a("s_xor_b32 %s, %s, 0x18000" % (s(sDX), s(sDX)))

    def uv_loads(self, t0, t1):
        a, c = self.a, self.c
        for t in range(t0, t1):
            a("buffer_load_dwordx4 %s, v250, %s, %s offen %s" % (ar(128 + 4 * t, 4), s(R_UV, 4), s(sB), c.nt))
            if t < 32 // self.NH - 1:
                a("s_add_u32 %s, %s, 0x8000" % (s(sB), s(sB)))

    def uv_setup(self):
        a, c = self.a, self.c
        a("v_lshrrev_b32 %s, 4, %s" % (v(vA0), v(vL)))
        a("v_lshlrev_b32 %s, 13, %s" % (v(vA0), v(vA0)))
        a("v_and_b32 %s, 15, %s" % (v(vA1), v(vL)))
        a("v_lshlrev_b32 v250, 4, %s" % v(vA1))
        a("v_add_u32 v250, %s, v250" % v(vA0))
        if self.NH == 1:
            a("s_lshl_b32 %s, %s, 20" % (s(sB), s(sW)))
            a("s_lshl_b32 %s, s2, 8" % s(sT2))
        else:
            a("s_and_b32 %s, s2, 1" % s(sT2))
            a("s_lshl_b32 %s, %s, 2" % (s(sT2), s(sT2)))
            a("s_add_u32 %s, %s, %s" % (s(sB), s(sT2), s(sW)))
            a("s_lshl_b32 %s, %s, 19" % (s(sB), s(sB)))
            a("s_lshr_b32 %s, s2, 1" % s(sT2))
            a("s_lshl_b32 %s, %s, 8" % (s(sT2), s(sT2)))
        a("s_add_u32 %s, %s, %s" % (s(sB), s(sB), s(sT2)))

    def a_main(self):
        a, c = self.a, self.c
        a.label("L_a_main")
        sDS, sDB, sDX = sT5, sT4, sT3
        na, nb_, nc = [int(x) for x in c.dsplit.split(",")]
        assert na + nb_ + nc == 8
        rowsA, rowsB, rowsC = list(range(na)), list(range(na, na + nb_)), list(range(na + nb_, 8))
        a("s_mov_b32 %s, %s" % (s(sX1), s(sT5)))
        for k in range(8):
            a("v_xor_b32 %s, %d, %s" % (v(222 + k), 32 * k, v(vO16)))
        a("s_lshl_b32 %s, %s, 13" % (s(sDB), s(sW)))
        a("s_mov_b32 %s, %s" % (s(sDS), s(sDB)))
        a("s_mov_b32 %s, 0x8000" % s(sDX))
        self.dma_rows(range(8))
        if c.t1e:
            self.dma_next()
            self.dma_rows(range(8))
        if c.uve:
            self.uv_setup()
            self.uv_loads(0, min(c.uv0 - c.uv1, 32 // self.NH))

        def issue_q():
            self.x1_issue(X1A, sX1)

        def check_q():
            self.tagcheck(242, [X1A + 1, X1A + 3])
            a("v_cmp_ne_u32 vcc, 0, v242")

        self.poll("x1a", issue_q, check_q)
        self.stamp(3)
        self.x1_pack([X1A])
        self.uk_slice()
        self.stamp(4)
        if not c.t1e:
            self.dma_next()
            self.dma_rows(range(8))
        if c.uve and c.uv1:
            self.uv_loads(c.uv0 - c.uv1, c.uv0)
        if not c.uve:
            self.uv_setup()
        a("s_lshl_b32 %s, %s, 14" % (s(sX1), s(sW)))
        a("s_add_u32 %s, %s, 0x%x" % (s(sX1), s(sX1), WS_X2))

        def issue():
            a("s_mov_b32 %s, %s" % (s(sOFF), s(sX1)))
            for i in range(16):
                o = " offset:%d" % (1024 * (i % 4)) if i % 4 else ""
                a("buffer_load_dwordx4 %s, %s, %s, %s offen%s sc1" % (v(40 + 4 * i, 4), v(vO16), s(R_WS, 4), s(sOFF), o))
                if i % 4 == 3 and i < 15:
                    a("s_add_u32 %s, %s, 4096" % (s(sOFF), s(sOFF)))

        def check():
            self.tagcheck(104, [40 + 4 * i + j for i in range(16) for j in (1, 3)])
            a("v_cmp_ne_u32 vcc, 0, v104")

        self.poll("x2", issue, check)
        self.stamp(5)
        self.dma_next()
        self.dma_rows(rowsA + rowsB)
        if not c.uve:
            self.uv_loads(0, min(c.uv0, 32 // self.NH))
        a("v_lshrrev_b32 %s, 1, %s" % (v(vA0), v(vL)))
        a("v_lshlrev_b32 %s, 4, %s" % (v(vA0), v(vA0)))
        a("v_and_b32 %s, 1, %s" % (v(vA1), v(vL)))
        a("v_lshlrev_b32 %s, 3, %s" % (v(vA1), v(vA1)))
        a("s_lshl_b32 %s, %s, 13" % (s(sT1), s(sW)))
        a("s_add_u32 %s, %s, %d" % (s(sT1), s(sT1), LQA))
        a("v_add_u32 %s, %s, %s" % (v(vA0), v(vA0), v(vA1)))
        for hq in range(8):
            a("v_xor_b32 %s, %d, %s" % (v(104 + hq), 32 * hq, v(vA0)))
            a("v_add_u32 %s, %s, %s" % (v(104 + hq), s(sT1), v(104 + hq)))
        for i in range(16):
            a("v_mov_b32 %s, %s" % (v(41 + 4 * i), v(42 + 4 * i)))
        for i in range(16):
            hq, half = i >> 1, i & 1
            a("ds_write_b64 %s, %s offset:%d" % (v(104 + hq), v(40 + 4 * i, 2), hq * 1024 + half * 512))
        AQ, AT = 210, 214
        a("v_and_b32 %s, 15, %s" % (v(vA0), v(vL)))
        a("v_lshlrev_b32 %s, 10, %s" % (v(vA1), v(vA0)))
        a("v_and_b32 %s, 7, %s" % (v(vA0), v(vA0)))
        a("v_lshlrev_b32 %s, 5, %s" % (v(vA0), v(vA0)))
        a("v_lshrrev_b32 %s, 4, %s" % (v(vA2), v(vL)))
        a("v_lshlrev_b32 %s, 4, %s" % (v(vA2), v(vA2)))
        for b in range(4):
            a("v_add_u32 %s, %d, %s" % (v(AQ + b), 64 * b, v(vA2)))
            a("v_xor_b32 %s, %s, %s" % (v(AQ + b), v(AQ + b), v(vA0)))
            a("v_add_u32 %s, %s, %s" % (v(AQ + b), v(AQ + b), v(vA1)))
        a("s_waitcnt lgkmcnt(0)")
        a("s_barrier")
        a("s_lshr_b32 %s, %s, 1" % (s(sT1), s(sW)))
        a("s_lshl_b32 %s, %s, 14" % (s(sT1), s(sT1)))
        a("s_add_u32 %s, %s, %d" % (s(sT1), s(sT1), LQA))
        for b in range(4):
            a("v_add_u32 %s, %s, %s" % (v(112 + b), s(sT1), v(AQ + b)))
        for ks in range(16):
            a("ds_read_b128 %s, %s offset:%d" % (ar(4 * ks, 4), v(112 + (ks & 3)), (ks >> 2) * 256))
        a("s_and_b32 %s, %s, 1" % (s(sT1), s(sW)))
        a("s_lshl_b32 %s, %s, 14" % (s(sT1), s(sT1)))
        for b in range(4):
            a("v_add_u32 %s, %s, %s" % (v(AQ + b), s(sT1), v(AQ + b)))
        a("v_lshrrev_b32 %s, 4, %s" % (v(vA0), v(vL)))
        a("v_lshlrev_b32 %s, 2, %s" % (v(vA0), v(vA0)))
        a("v_bfe_u32 %s, %s, 2, 2" % (v(vA1), v(vL)))
        a("v_add_u32 %s, %s, %s" % (v(vA0), v(vA0), v(vA1)))
        a("v_and_b32 %s, 7, %s" % (v(vA1), v(vA0)))
        a("v_lshlrev_b32 %s, 5, %s" % (v(vA1), v(vA1)))
        a("v_lshlrev_b32 %s, 10, %s" % (v(vA0), v(vA0)))
        a("v_and_b32 %s, 3, %s" % (v(vA2), v(vL)))
        a("v_lshlrev_b32 %s, 3, %s" % (v(vA2), v(vA2)))
        a("s_lshl_b32 %s, %s, 8" % (s(sT1), s(sW)))
        a("v_add3_u32 %s, %s, %s, %s" % (v(vA0), v(vA0), v(vA2), s(sT1)))
        for ct in range(8):
            a("v_xor_b32 %s, %d, %s" % (v(AT + ct), 32 * ct, v(vA1)))
            a("v_add_u32 %s, %s, %s" % (v(AT + ct), v(AT + ct), v(vA0)))
        AMW, AMR, APW, APR = 230, 231, 232, 233
        a("v_and_b32 %s, 15, %s" % (v(vA0), v(vL)))
        a("v_lshlrev_b32 %s, 4, %s" % (v(vA0), v(vA0)))
        a("v_add_u32 %s, %d, %s" % (v(AMR), LMX, v(vA0)))
        a("s_lshr_b32 %s, %s, 1" % (s(sT1), s(sW)))
        a("s_and_b32 %s, %s, 1" % (s(sT2), s(sW)))
        a("s_lshl_b32 %s, %s, 3" % (s(sOFF), s(sT1)))
        a("s_lshl_b32 %s, %s, 2" % (s(sX1), s(sT2)))
        a("s_add_u32 %s, %s, %s" % (s(sOFF), s(sOFF), s(sX1)))
        a("v_add_u32 %s, %s, %s" % (v(AMW), s(sOFF), v(AMR)))
        a("v_add_u32 %s, %d, %s" % (v(APR), LP, v(vO16)))
        a("s_lshl_b32 %s, %s, 10" % (s(sOFF), s(sT1)))
        a("s_lshl_b32 %s, %s, 3" % (s(sX1), s(sT2)))
        a("s_add_u32 %s, %s, %s" % (s(sOFF), s(sOFF), s(sX1)))
        a("v_add_u32 %s, %s, %s" % (v(APW), s(sOFF), v(APR)))
        a("s_cmp_ge_u32 %s, 2" % s(sW))
        a("s_cselect_b64 %s, -1, 0" % s(sMSK, 2))
        ACC, OP, S8, M0, L0, AL, PO = 40, 104, 168, 176, 178, 180, 182
        for i in range(64):
            a("v_mov_b32 %s, 0" % v(ACC + i))
        a("v_mov_b32 %s, 0xff800000" % v(M0))
        a("v_mov_b32 %s, 0xff800000" % v(M0 + 1))
        a("v_mov_b32 %s, 0" % v(L0))
        a("s_waitcnt lgkmcnt(0)")
        a("s_barrier")
        self.stamp(6)
        a("s_mov_b32 %s, 0" % s(sIT))
        a("s_mov_b32 %s, 0x8000" % s(sOFF))
        loop = self.lab("a_loop")
        a.label(loop)
        self.stamp_it(0, 3)
        for ks in range(16):
            a("ds_read_b128 %s, %s offset:%d" % (v(OP + 4 * ks, 4), v(AQ + (ks & 3)), (ks >> 2) * 256))
        cpos = {(4 + 4 * i): r for i, r in enumerate(rowsC)}
        for ks in range(16):
            a("s_waitcnt lgkmcnt(%d)" % (15 - ks))
            acc = S8 + 4 * (ks & 1)
            a("v_mfma_f32_16x16x32_bf16 %s, %s, %s, %s" % (
                v(acc, 4), v(OP + 4 * ks, 4), ar(4 * ks, 4), "0" if ks < 2 else v(acc, 4)))
            if ks in cpos:
                self.dma_rows([cpos[ks]])
        T0 = 198
        for r in range(4):
            a("v_add_f32 %s, %s, %s" % (v(S8 + r), v(S8 + r), v(S8 + 4 + r)))
        a("v_max3_f32 %s, %s, %s, %s" % (v(T0), v(S8), v(S8 + 1), v(S8 + 2)))
        a("v_max_f32 %s, %s, %s" % (v(T0), v(T0), v(S8 + 3)))
        self.allsum_g(T0, T0 + 1, "v_max_f32")
        a("ds_write_b32 %s, %s" % (v(AMW), v(T0)))
        a("s_waitcnt lgkmcnt(0)")
        a("s_barrier")
        a("ds_read_b128 %s, %s" % (v(T0, 4), v(AMR)))
        self.dma_next()
        a("s_cmp_ge_u32 %s, %d" % (s(sIT), self.NIT - 3))
        a("s_cselect_b32 %s, 0, %d" % (s(R_C + 2), self.KEYS * 1024))
        self.dma_rows(rowsA)
        a("s_waitcnt lgkmcnt(0)")
        a("v_max3_f32 %s, %s, %s, %s" % (v(T0), v(T0), v(T0 + 1), v(M0)))
        a("v_max3_f32 %s, %s, %s, %s" % (v(T0 + 2), v(T0 + 2), v(T0 + 3), v(M0 + 1)))
        a("v_cndmask_b32 %s, %s, %s, %s" % (v(T0 + 1), v(T0), v(T0 + 2), s(sMSK, 2)))
        a("v_sub_f32 %s, %s, %s" % (v(AL), v(M0), v(T0)))
        a("v_sub_f32 %s, %s, %s" % (v(AL + 1), v(M0 + 1), v(T0 + 2)))
        for r in range(4):
            a("v_sub_f32 %s, %s, %s" % (v(S8 + r), v(S8 + r), v(T0 + 1)))
        a("v_exp_f32 %s, %s" % (v(AL), v(AL)))
        a("v_exp_f32 %s, %s" % (v(AL + 1), v(AL + 1)))
        for r in range(4):
            a("v_exp_f32 %s, %s" % (v(S8 + r), v(S8 + r)))
        a("v_mov_b32 %s, %s" % (v(M0), v(T0)))
        a("v_mov_b32 %s, %s" % (v(M0 + 1), v(T0 + 2)))
        a("v_cvt_pk_bf16_f32 %s, %s, %s" % (v(T0), v(S8), v(S8 + 1)))
        a("v_cvt_pk_bf16_f32 %s, %s, %s" % (v(T0 + 1), v(S8 + 2), v(S8 + 3)))
        a("ds_write_b64 %s, %s" % (v(APW), v(T0, 2)))
        a("v_cndmask_b32 %s, %s, %s, %s" % (v(T0 + 2), v(AL), v(AL + 1), s(sMSK, 2)))
        a("v_add_f32 %s, %s, %s" % (v(S8), v(S8), v(S8 + 1)))
        a("v_add_f32 %s, %s, %s" % (v(S8 + 2), v(S8 + 2), v(S8 + 3)))
        a("v_add_f32 %s, %s, %s" % (v(S8), v(S8), v(S8 + 2)))
        a("v_fma_f32 %s, %s, %s, %s" % (v(L0), v(L0), v(T0 + 2), v(S8)))

        def rescale(ct):
            for ht in range(2):
                sel = "op_sel_hi:[1,0]" if ht == 0 else "op_sel:[0,1] op_sel_hi:[1,1]"
                for h in range(2):
                    x = ACC + 8 * ct + 4 * ht + 2 * h
                    a("v_pk_mul_f32 %s, %s, %s %s" % (v(x, 2), v(x, 2), v(AL, 2), sel))
        rescale(0)
        nowait = self.lab("a_nw")
        a("s_cmp_eq_u32 %s, 0" % s(sIT))
        a("s_cbranch_scc1 %s" % nowait)
        a("s_waitcnt vmcnt(%d)" % (na + 8))
        a.label(nowait)
        a("s_waitcnt lgkmcnt(0)")
        a("s_barrier")
        self.stamp_it(1, 3)
        for ht in range(2):
            a("ds_read_b128 %s, %s offset:%d" % (v(PO + 4 * ht, 4), v(APR), ht * 1024))

        def tr_reads(ct):
            for hf in range(2):
                a("ds_read_b64_tr_b16 %s, %s offset:%d" % (v(OP + 4 * ct + 2 * hf, 2), v(AT + ct), 16384 * hf))
        for ct in range(6):
            tr_reads(ct)
        issued = 6
        bpos = {(1 + 2 * i): r for i, r in enumerate(rowsB)}
        for ct in range(8):
            if ct < 7:
                rescale(ct + 1)
            a("s_waitcnt lgkmcnt(%d)" % (2 * (issued - ct - 1)))
            for ht in range(2):
                x = ACC + 8 * ct + 4 * ht
                a("v_mfma_f32_16x16x32_bf16 %s, %s, %s, %s" % (
                    v(x, 4), v(OP + 4 * ct, 4), v(PO + 4 * ht, 4), v(x, 4)))
            if issued < 8:
                tr_reads(issued)
                issued += 1
            if ct in bpos:
                self.dma_rows([bpos[ct]])
        for b in range(4):
            a("v_xor_b32 %s, %s, %s" % (v(AQ + b), s(sOFF), v(AQ + b)))
        for ct in range(8):
            a("v_xor_b32 %s, %s, %s" % (v(AT + ct), s(sOFF), v(AT + ct)))
        a("s_xor_b32 %s, %s, 0x18000" % (s(sOFF), s(sOFF)))
        self.stamp_it(2, 3)
        a("s_add_u32 %s, %s, 1" % (s(sIT), s(sIT)))
        a("s_cmp_lt_u32 %s, %d" % (s(sIT), self.NIT))
        a("s_cbranch_scc1 %s" % loop)
        self.stamp(7)
        self.a_finish(ACC, OP, M0, L0)

    def a_finish_u(self, ACC, OP, M0, L0):
        a, c = self.a, self.c
        assert self.NH == 2
        NT = 16
        a("v_and_b32 %s, 15, %s" % (v(vA1), v(vL)))
        a("v_lshlrev_b32 %s, 16, %s" % (v(vA0), v(vA1)))
        a("v_lshrrev_b32 %s, 4, %s" % (v(vA2), v(vL)))
        a("v_lshlrev_b32 %s, 4, %s" % (v(vA2), v(vA2)))
        a("v_add_u32 %s, %s, %s" % (v(vA0), v(vA0), v(vA2)))
        a("s_lshl_b32 %s, s2, 10" % s(sT1))
        a("s_lshl_b32 %s, %s, 8" % (s(sT2), s(sW)))
        a("s_add_u32 %s, %s, %s" % (s(sT1), s(sT1), s(sT2)))
        a("s_add_u32 %s, %s, 0x%x" % (s(sT1), s(sT1), WS_X3))
        a("s_add_u32 %s, %s, 0x100000" % (s(sT2), s(sT1)))
        n = 0
        for q in range(4):
            for ht in range(2):
                r = OP + 4 * n
                for k in range(2):
                    x = ACC + 8 * (2 * q + k) + 4 * ht
                    a("v_cvt_pk_bf16_f32 %s, %s, %s" % (v(r + 2 * k), v(x), v(x + 1)))
                    a("v_cvt_pk_bf16_f32 %s, %s, %s" % (v(r + 2 * k + 1), v(x + 2), v(x + 3)))
                o = " offset:%d" % (64 * q) if q else ""
                a("buffer_store_dwordx4 %s, %s, %s, %s offen%s sc0 sc1" % (
                    v(r, 4), v(vA0), s(R_WS, 4), s(sT2 if ht else sT1), o))
                n += 1
        self.stamp(12)
        u0 = min(c.uv0, NT)
        self.uv_loads(u0, NT)
        self.allsum_g(L0, 198)
        a("v_cndmask_b32 v204, %s, %s, %s" % (v(M0), v(M0 + 1), s(sMSK, 2)))
        a("v_mov_b32 v205, %s" % s(sTAG))
        a("v_mov_b32 v206, %s" % v(L0))
        a("v_mov_b32 v207, %s" % s(sTAG))
        a("v_lshlrev_b32 %s, 11, %s" % (v(vA1), v(vA1)))
        a("s_lshr_b32 %s, %s, 1" % (s(sT1), s(sW)))
        a("s_lshl_b32 %s, %s, 15" % (s(sT1), s(sT1)))
        a("s_and_b32 %s, %s, 1" % (s(sT2), s(sW)))
        a("s_lshl_b32 %s, %s, 4" % (s(sT2), s(sT2)))
        a("s_add_u32 %s, %s, %s" % (s(sT1), s(sT1), s(sT2)))
        a("s_lshl_b32 %s, s2, 5" % s(sT2))
        a("s_add_u32 %s, %s, %s" % (s(sT1), s(sT1), s(sT2)))
        a("s_add_u32 %s, %s, 0x%x" % (s(sT1), s(sT1), WS_ML))
        a("s_waitcnt vmcnt(%d)" % (NT - u0))
        a("s_barrier")
        a("s_mov_b64 exec, 0xffff")
        a("buffer_store_dwordx4 v[204:207], %s, %s, %s offen sc0 sc1" % (v(vA1), s(R_WS, 4), s(sT1)))
        if c.mlw == 2:
            a("s_mov_b32 %s, 0x%x" % (s(sT2), WS_HINT))
            a("v_lshlrev_b32 v219, 8, %s" % v(vL))
            a("v_mov_b32 v218, 1")
            a("s_mov_b64 exec, 0xff")
            a("buffer_atomic_add v218, v219, %s, %s offen sc1" % (s(R_WS, 4), s(sT2)))
        a("s_mov_b64 exec, -1")
        self.stamp(8)
        a("s_lshr_b32 %s, s2, 1" % s(sB))
        a("s_lshl_b32 %s, %s, 11" % (s(sX1), s(sB)))
        a("s_add_u32 %s, %s, 0x%x" % (s(sX1), s(sX1), WS_ML))
        MR = [200, 210]

        def issue():
            for h in range(2):
                o = " offset:1024" if h else ""
                a("buffer_load_dwordx4 %s, %s, %s, %s offen%s sc1" % (v(MR[h], 4), v(vO16), s(R_WS, 4), s(sX1), o))

        def check():
            self.tagcheck(204, [m + j for m in MR for j in (1, 3)])
            a("v_cmp_ne_u32 vcc, 0, v204")

        a("v_lshrrev_b32 %s, 3, %s" % (v(vA0), v(vL)))
        a("v_lshlrev_b32 %s, 10, %s" % (v(vA1), v(vA0)))
        a("v_and_b32 %s, 7, %s" % (v(vA2), v(vL)))
        a("v_lshlrev_b32 v208, 4, %s" % v(vA2))
        a("v_add_u32 v208, %s, v208" % v(vA1))
        a("v_lshlrev_b32 v209, 3, %s" % v(vA0))
        def x3_loads():
            a("s_lshl_b32 %s, %s, 16" % (s(sT4), s(sB)))
            a("s_lshl_b32 %s, %s, 7" % (s(sT2), s(sW)))
            a("s_add_u32 %s, %s, %s" % (s(sT4), s(sT4), s(sT2)))
            a("s_and_b32 %s, s2, 1" % s(sT2))
            a("s_lshl_b32 %s, %s, 9" % (s(sT2), s(sT2)))
            a("s_add_u32 %s, %s, %s" % (s(sT4), s(sT4), s(sT2)))
            a("s_add_u32 %s, %s, 0x%x" % (s(sT4), s(sT4), WS_X3))
            for i in range(8):
                a("buffer_load_dwordx4 %s, v208, %s, %s offen sc1" % (v(40 + 4 * i, 4), s(R_WS, 4), s(sT4)))
                if i < 7:
                    a("s_add_u32 %s, %s, 8192" % (s(sT4), s(sT4)))

        if c.mlw == 2:
            go = self.lab("ml_go")
            a("s_cmp_lg_u32 %s, 0" % s(sW))
            a("s_cbranch_scc1 %s" % go)
            a("s_and_b32 %s, s2, 7" % s(sT2))
            a("s_lshl_b32 %s, %s, 8" % (s(sT2), s(sT2)))
            a("s_add_u32 %s, %s, 0x%x" % (s(sT2), s(sT2), WS_HINT))
            a("s_mov_b64 exec, 1")

            def issue_h():
                a("buffer_load_dword v220, v219, %s, %s offen sc1" % (s(R_WS, 4), s(sT2)))

            def check_h():
                a("v_cmp_ne_u32 vcc, 0x100, v220")

            self.poll("hint", issue_h, check_h)
            a("s_mov_b64 exec, -1")
            a.label(go)
            a("s_barrier")
            self.poll("ml", issue, check, between=x3_loads, first_wait=8)
        elif c.mlw:
            lead, go = self.lab("ml_lead"), self.lab("ml_go")
            a("s_cmp_eq_u32 %s, 0" % s(sW))
            a("s_cbranch_scc1 %s" % lead)
            a("s_barrier")
            self.poll("mlf", issue, check)
            a("s_branch %s" % go)
            a.label(lead)
            self.poll("ml", issue, check)
            a("s_barrier")
            a.label(go)
        else:
            self.poll("ml", issue, check)
        self.stamp(9)
        if c.mlw != 2:
            x3_loads()
        a("v_max_f32 v204, v200, v210")
        self.allsum_row(204, "v_max_f32")
        self.allsum_g(204, 205, "v_max_f32")
        for m in MR:
            a("v_sub_f32 %s, %s, v204" % (v(m), v(m)))
        for m in MR:
            a("v_exp_f32 %s, %s" % (v(m), v(m)))
        a("v_mul_f32 v204, v200, v202")
        a("v_fmac_f32 v204, v210, v212")
        self.allsum_row(204)
        self.allsum_g(204, 205)
        a("v_rcp_f32 v204, v204")
        for m in MR:
            a("v_mul_f32 %s, %s, v204" % (v(m), v(m)))
        for i in range(8):
            a("v_add_u32 %s, %d, v209" % (v(168 + i), (64 * i) & 255))
        for i in range(8):
            a("ds_bpermute_b32 %s, %s, %s" % (v(168 + i), v(168 + i), v(MR[i >> 2])))
        a("s_waitcnt lgkmcnt(0)")
        for i in range(8):
            q, wt = 40 + 4 * i, 168 + i
            tb = 112 + 8 * (i & 1)
            a("s_waitcnt vmcnt(%d)" % (7 - i))
            for d in range(4):
                a("v_lshlrev_b32 %s, 16, %s" % (v(tb + 2 * d), v(q + d)))
                a("v_and_b32 %s, 0xffff0000, %s" % (v(tb + 2 * d + 1), v(q + d)))
            sel = "op_sel_hi:[1,0,1]" if wt % 2 == 0 else "op_sel:[0,1,0] op_sel_hi:[1,1,1]"
            wp = v(wt & ~1, 2)
            for d in range(4):
                if i == 0:
                    a("v_pk_mul_f32 %s, %s, %s op_sel_hi:[1,0]" % (v(104 + 2 * d, 2), v(tb + 2 * d, 2), wp))
                else:
                    a("v_pk_fma_f32 %s, %s, %s, %s %s" % (v(104 + 2 * d, 2), v(tb + 2 * d, 2), wp, v(104 + 2 * d, 2), sel))
        self.stamp(11)
        for r in range(8):
            a("v_add_f32_dpp %s, %s, %s row_ror:8 row_mask:0xf bank_mask:0xf" % (v(104 + r), v(104 + r), v(104 + r)))
        for swap in ("v_permlane16_swap_b32", "v_permlane32_swap_b32"):
            for r in range(8):
                a("v_mov_b32 %s, %s" % (v(112 + r), v(104 + r)))
            for r in range(8):
                a("%s %s, %s" % (swap, v(104 + r), v(112 + r)))
            for r in range(8):
                a("v_add_f32 %s, %s, %s" % (v(104 + r), v(104 + r), v(112 + r)))
        for r in range(8):
            a("v_cvt_pk_bf16_f32 %s, %s, %s" % (v(104 + r), v(104 + r), v(104 + r)))
        a("s_lshl_b32 %s, %s, 9" % (s(sT1), s(sW)))
        a("s_add_u32 %s, %s, %d" % (s(sT1), s(sT1), LT))
        a("v_lshrrev_b32 %s, 2, %s" % (v(vA0), v(vA2)))
        a("v_lshlrev_b32 %s, 7, %s" % (v(vA0), v(vA0)))
        a("v_and_b32 %s, 3, %s" % (v(vA2), v(vA2)))
        a("v_lshlrev_b32 %s, 4, %s" % (v(vA2), v(vA2)))
        a("v_add3_u32 %s, %s, %s, %s" % (v(vA0), v(vA0), v(vA2), s(sT1)))
        a("ds_write_b128 %s, v[104:107]" % v(vA0))
        a("ds_write_b128 %s, v[108:111] offset:64" % v(vA0))
        self.a_gemv()

    def a_finish(self, ACC, OP, M0, L0):
        a, c = self.a, self.c
        if c.x3u:
            return self.a_finish_u(ACC, OP, M0, L0)
        a("v_and_b32 %s, 15, %s" % (v(vA1), v(vL)))
        NH = self.NH
        HS = 15 + NH
        a("v_lshlrev_b32 %s, %d, %s" % (v(vA0), HS, v(vA1)))
        a("v_lshrrev_b32 %s, 4, %s" % (v(vA2), v(vL)))
        a("v_lshlrev_b32 %s, 4, %s" % (v(vA2), v(vA2)))
        a("v_add_u32 %s, %s, %s" % (v(vA0), v(vA0), v(vA2)))
        a("s_lshl_b32 %s, s2, 11" % s(sT1))
        a("s_lshl_b32 %s, %s, 9" % (s(sT2), s(sW)))
        a("s_add_u32 %s, %s, %s" % (s(sT1), s(sT1), s(sT2)))
        a("s_add_u32 %s, %s, 0x%x" % (s(sT1), s(sT1), WS_X3))
        a("s_add_u32 %s, %s, 0x%x" % (s(sT2), s(sT1), 16 << HS))
        for i in range(8):
            a("v_mov_b32 %s, %s" % (v(OP + 2 * i + 1), s(sTAG)))
        n = 0
        for ct in range(8):
            for ht in range(2):
                x, q = ACC + 8 * ct + 4 * ht, OP + 4 * (n & 3)
                a("v_cvt_pk_bf16_f32 %s, %s, %s" % (v(q), v(x), v(x + 1)))
                a("v_cvt_pk_bf16_f32 %s, %s, %s" % (v(q + 2), v(x + 2), v(x + 3)))
                o = " offset:%d" % (64 * ct) if ct else ""
                a("buffer_store_dwordx4 %s, %s, %s, %s offen%s sc0 sc1" % (
                    v(q, 4), v(vA0), s(R_WS, 4), s(sT2 if ht else sT1), o))
                n += 1
        self.stamp(12)
        self.allsum_g(L0, 198)
        a("v_cndmask_b32 v204, %s, %s, %s" % (v(M0), v(M0 + 1), s(sMSK, 2)))
        a("v_mov_b32 v205, %s" % s(sTAG))
        a("v_mov_b32 v206, %s" % v(L0))
        a("v_mov_b32 v207, %s" % s(sTAG))
        a("v_lshlrev_b32 %s, %d, %s" % (v(vA1), 9 + NH, v(vA1)))
        a("s_lshr_b32 %s, %s, 1" % (s(sT1), s(sW)))
        a("s_lshl_b32 %s, %s, %d" % (s(sT1), s(sT1), 13 + NH))
        a("s_and_b32 %s, %s, 1" % (s(sT2), s(sW)))
        a("s_lshl_b32 %s, %s, 4" % (s(sT2), s(sT2)))
        a("s_add_u32 %s, %s, %s" % (s(sT1), s(sT1), s(sT2)))
        a("s_lshl_b32 %s, s2, 5" % s(sT2))
        a("s_add_u32 %s, %s, %s" % (s(sT1), s(sT1), s(sT2)))
        a("s_add_u32 %s, %s, 0x%x" % (s(sT1), s(sT1), WS_ML))
        a("s_mov_b64 exec, 0xffff")
        a("buffer_store_dwordx4 v[204:207], %s, %s, %s offen sc0 sc1" % (v(vA1), s(R_WS, 4), s(sT1)))
        a("s_mov_b64 exec, -1")
        NT = 32 // NH
        self.uv_loads(min(c.uv0, NT), NT)
        self.stamp(8)
        a("s_lshr_b32 %s, s2, %d" % (s(sB), NH - 1))
        a("s_lshl_b32 %s, %s, %d" % (s(sX1), s(sB), 9 + NH))
        a("s_add_u32 %s, %s, 0x%x" % (s(sX1), s(sX1), WS_ML))
        MR = [200, 210][:NH]

        def issue():
            for h in range(NH):
                o = " offset:1024" if h else ""
                a("buffer_load_dwordx4 %s, %s, %s, %s offen%s sc1" % (v(MR[h], 4), v(vO16), s(R_WS, 4), s(sX1), o))

        def check():
            self.tagcheck(204, [m + j for m in MR for j in (1, 3)])
            a("v_cmp_ne_u32 vcc, 0, v204")

        self.poll("ml", issue, check)
        self.stamp(9)
        SP = 2 * NH
        LS = 6 - NH
        a("v_lshrrev_b32 %s, %d, %s" % (v(vA0), LS, v(vL)))
        a("v_lshlrev_b32 %s, 11, %s" % (v(vA1), v(vA0)))
        a("v_and_b32 %s, %d, %s" % (v(vA2), (1 << LS) - 1, v(vL)))
        a("v_lshlrev_b32 %s, 4, %s" % (v(vA2), v(vA2)))
        a("v_add_u32 v208, %s, %s" % (v(vA1), v(vA2)))
        a("v_lshlrev_b32 v209, 3, %s" % v(vA0))
        a("s_lshl_b32 %s, %s, %d" % (s(sX1), s(sB), HS))
        a("s_lshl_b32 %s, %s, %d" % (s(sT2), s(sW), 10 - NH))
        a("s_add_u32 %s, %s, %s" % (s(sX1), s(sX1), s(sT2)))
        if NH == 2:
            a("s_and_b32 %s, s2, 1" % s(sT2))
            a("s_lshl_b32 %s, %s, 10" % (s(sT2), s(sT2)))
            a("s_add_u32 %s, %s, %s" % (s(sX1), s(sX1), s(sT2)))
        a("s_add_u32 %s, %s, 0x%x" % (s(sX1), s(sX1), WS_X3))

        def issue3():
            a("s_mov_b32 %s, %s" % (s(sT1), s(sX1)))
            for i in range(16):
                a("buffer_load_dwordx4 %s, v208, %s, %s offen sc1" % (v(40 + 4 * i, 4), s(R_WS, 4), s(sT1)))
                if i < 15:
                    a("s_add_u32 %s, %s, %d" % (s(sT1), s(sT1), 2048 * SP))

        def check3():
            self.tagcheck(204, [40 + 4 * i + j for i in range(16) for j in (1, 3)])
            a("v_cmp_ne_u32 vcc, 0, v204")

        def weights():
            if NH == 1:
                a("v_mov_b32 v204, v200")
            else:
                a("v_max_f32 v204, v200, v210")
            self.allsum_row(204, "v_max_f32")
            self.allsum_g(204, 205, "v_max_f32")
            for m in MR:
                a("v_sub_f32 %s, %s, v204" % (v(m), v(m)))
            for m in MR:
                a("v_exp_f32 %s, %s" % (v(m), v(m)))
            a("v_mul_f32 v204, v200, v202")
            if NH == 2:
                a("v_fmac_f32 v204, v210, v212")
            self.allsum_row(204)
            self.allsum_g(204, 205)
            a("v_rcp_f32 v204, v204")
            for m in MR:
                a("v_mul_f32 %s, %s, v204" % (v(m), v(m)))
            for i in range(16):
                a("v_add_u32 %s, %d, v209" % (v(168 + i), (8 * SP * i) & 255))
            for i in range(16):
                a("ds_bpermute_b32 %s, %s, %s" % (v(168 + i), v(168 + i), v(MR[(SP * i) >> 5])))

        self.poll("x3", issue3, check3, between=weights, first_wait=0)
        self.stamp(11)
        a("s_waitcnt lgkmcnt(0)")
        for i in range(16):
            q, wt = 40 + 4 * i, 168 + i
            for h in range(2):
                lo, hi = 112 + 4 * (i & 1) + 2 * h, 113 + 4 * (i & 1) + 2 * h
                a("v_lshlrev_b32 %s, 16, %s" % (v(lo), v(q + 2 * h)))
                a("v_and_b32 %s, 0xffff0000, %s" % (v(hi), v(q + 2 * h)))
            for h in range(2):
                lo = 112 + 4 * (i & 1) + 2 * h
                sel = "op_sel_hi:[1,0,1]" if wt % 2 == 0 else "op_sel:[0,1,0] op_sel_hi:[1,1,1]"
                wp = v(wt & ~1, 2)
                if i == 0:
                    a("v_pk_mul_f32 %s, %s, %s op_sel_hi:[1,0]" % (v(104 + 2 * h, 2), v(lo, 2), wp))
                else:
                    a("v_pk_fma_f32 %s, %s, %s, %s %s" % (v(104 + 2 * h, 2), v(lo, 2), wp, v(104 + 2 * h, 2), sel))
        for swap in ["v_permlane32_swap_b32"] + (["v_permlane16_swap_b32"] if NH == 2 else []):
            for r in range(4):
                a("v_mov_b32 %s, %s" % (v(108 + r), v(104 + r)))
            for r in range(4):
                a("%s %s, %s" % (swap, v(104 + r), v(108 + r)))
            for r in range(4):
                a("v_add_f32 %s, %s, %s" % (v(104 + r), v(104 + r), v(108 + r)))
        for r in range(4):
            a("v_cvt_pk_bf16_f32 %s, %s, %s" % (v(104 + r), v(104 + r), v(104 + r)))
        a("s_lshl_b32 %s, %s, 9" % (s(sT1), s(sW)))
        a("s_add_u32 %s, %s, %d" % (s(sT1), s(sT1), LT))
        a("v_add_u32 %s, %s, %s" % (v(vA0), s(sT1), v(vA2)))
        a("ds_write_b128 %s, v[104:107]" % v(vA0))
        self.a_gemv()

    def a_gemv(self):
        a, c = self.a, self.c
        NT = 32 // self.NH
        a("v_lshrrev_b32 %s, 4, %s" % (v(vA1), v(vL)))
        a("v_lshlrev_b32 %s, 2, %s" % (v(vA1), v(vA1)))
        a("v_add_u32 %s, %s, %s" % (v(vA1), s(sT1), v(vA1)))
        for t in range(0, NT, 2):
            a("ds_read2_b32 %s, %s offset0:%d offset1:%d" % (v(40 + t, 2), v(vA1), 4 * t, 4 * t + 4))
        for t in range(NT):
            if t % 2 == 0:
                a("s_waitcnt lgkmcnt(%d)" % (NT // 2 - 1 - t // 2))
            self.delta_mfma(108, ar(128 + 4 * t, 4), 40 + t, 112 + 4 * (t & 1), t == 0)
        a("v_lshrrev_b32 %s, 4, %s" % (v(vA0), v(vL)))
        a("v_lshlrev_b32 %s, 9, %s" % (v(vA0), v(vA0)))
        a("v_and_b32 %s, 7, %s" % (v(vA1), v(vL)))
        a("v_lshlrev_b32 %s, 4, %s" % (v(vA1), v(vA1)))
        a("s_lshl_b32 %s, %s, 2" % (s(sT1), s(sW)))
        a("s_add_u32 %s, %s, %d" % (s(sT1), s(sT1), LR))
        a("v_add3_u32 %s, %s, %s, %s" % (v(vA0), v(vA0), v(vA1), s(sT1)))
        for r in range(4):
            a("ds_write_b32 %s, %s offset:%d" % (v(vA0), v(108 + r), 128 * r))
        a("s_waitcnt lgkmcnt(0)")
        a("s_barrier")
        a("s_cmp_ge_u32 %s, 2" % s(sW))
        a("s_cbranch_scc1 L_a_done")
        a("s_lshl_b32 %s, %s, 10" % (s(sT1), s(sW)))
        a("s_add_u32 %s, %s, %d" % (s(sT1), s(sT1), LR))
        a("v_add_u32 %s, %s, %s" % (v(vA0), s(sT1), v(vO16)))
        a("ds_read_b128 v[40:43], %s" % v(vA0))
        a("s_lshl_b32 %s, s2, 10" % s(sT1))
        a("s_lshl_b32 %s, %s, 9" % (s(sT2), s(sW)))
        a("s_add_u32 %s, %s, %s" % (s(sT1), s(sT1), s(sT2)))
        a("s_add_u32 %s, %s, 0x%x" % (s(sT1), s(sT1), WS_X4A))
        a("v_lshlrev_b32 %s, 3, %s" % (v(vA1), v(vL)))
        a("s_waitcnt lgkmcnt(0)")
        a("v_add_f32 v40, v40, v41")
        a("v_add_f32 v42, v42, v43")
        a("v_add_f32 v40, v40, v42")
        a("v_mov_b32 v41, %s" % s(sTAG))
        a("buffer_store_dwordx2 v[40:41], %s, %s, %s offen sc0 sc1" % (v(vA1), s(R_WS, 4), s(sT1)))
        a.label("L_a_done")
        self.stamp(10)
        self.end()

    def build(self):
        a = self.a
        self.prologue()
        self.q_phase()
        self.q_gather()
        self.b_main()
        self.tail()
        self.a_main()
        a.label("L_exit")
        a("s_endpgm")
        a.label("L_codeend")
        body = a.finalize()
        head = open(os.path.join(os.path.dirname(os.path.abspath(__file__)), "header.txt")).read()
        head = head.replace("@LDS@", str(LDS_BYTES))
        if self.c.xnt & 1:
            body = body.replace(" sc0 sc1\n", " sc0 sc1 nt\n")
        if self.c.xnt & 2:
            body = body.replace(" sc1\n", " sc1 nt\n").replace(" sc0 sc1 nt\n", " sc0 sc1\n" if not self.c.xnt & 1 else " sc0 sc1 nt\n")
        return head + body + FOOTER


FOOTER = """.section .rodata,"a"
.p2align 6
.amdhsa_kernel %s_kernel
  .amdhsa_next_free_vgpr 512
  .amdhsa_next_free_sgpr 102
  .amdhsa_accum_offset 256
  .amdhsa_group_segment_fixed_size 0
  .amdhsa_kernarg_size 120
  .amdhsa_user_sgpr_count 2
  .amdhsa_user_sgpr_kernarg_segment_ptr 1
  .amdhsa_system_sgpr_workgroup_id_x 1
.end_amdhsa_kernel
""" % NAME


def main():
    p = argparse.ArgumentParser()
    p.add_argument("-o", default="cdna_kernels/%s.s" % NAME)
    p.add_argument("--nq", type=int, default=8)
    p.add_argument("--nt", default="nt")
    p.add_argument("--debug", action="store_true")
    p.add_argument("--na", type=int, default=64)
    p.add_argument("--uv0", type=int, default=16)
    p.add_argument("--t0", type=int, default=20)
    p.add_argument("--bstamp", action="store_true")
    p.add_argument("--xnt", type=int, default=0)
    p.add_argument("--lfirst", type=int, default=1)
    p.add_argument("--local", type=int, default=1)
    p.add_argument("--dyn", type=int, default=1)
    p.add_argument("--diag", type=int, default=0)
    p.add_argument("--g1", type=int, default=0)
    p.add_argument("--gk", type=int, default=0)
    p.add_argument("--cstride", type=lambda x: int(x, 0), default=256)
    p.add_argument("--td", type=int, default=0)
    p.add_argument("--td2", type=int, default=0)
    p.add_argument("--gearly", type=int, default=0)
    p.add_argument("--tdv", type=int, default=0)
    p.add_argument("--x4c", type=int, default=0)
    p.add_argument("--pre2", type=int, default=0)
    p.add_argument("--uve", type=int, default=0)
    p.add_argument("--t1e", type=int, default=0)
    p.add_argument("--uv1", type=int, default=0)
    p.add_argument("--tdp", type=int, default=0)
    p.add_argument("--ttouch", type=int, default=0)
    p.add_argument("--mlw", type=int, default=0)
    p.add_argument("--x3u", type=int, default=1)
    p.add_argument("--sblk", type=int, default=16)
    p.add_argument("--dsplit", default="2,3,3")
    p.add_argument("--elapsed", action="store_true")
    p.add_argument("--no-prefetch", dest="prefetch", action="store_false")
    p.add_argument("--spin", type=lambda x: int(x, 0), default=0x2000)
    cfg = p.parse_args()
    text = Gen(cfg).build()
    open(cfg.o, "w").write(text)
    print("wrote", cfg.o, len(text), "bytes")


if __name__ == "__main__":
    main()
```

```python
import argparse
import math
import struct
import sys
import os

sys.path.insert(0, os.path.dirname(os.path.abspath(__file__)))
from asmlib import Asm

NAME = "gated_mix__compressed_kv_cla__gqa_block_cached__decode"


def f32(x):
    return "0x%08x" % struct.unpack("<I", struct.pack("<f", x))[0]


LOG2E = math.log2(math.e)
C_SCALE = LOG2E / math.sqrt(128.0)

WS_EPOCH = 0
WS_CNT = 0x8000
WS_HINT = 0x9000
WS_X1 = 0x10000
WS_X2 = 0x30000
WS_ML = 0x40000
WS_X4A = 0x50000
WS_X4B = 0x60000
WS_X4L = 0xD0000
WS_X5 = 0xE0000
WS_X3 = 0x100000
WS_DBG = 0x500000
WS_SIZE = 0x800000
EPOCH_STEP = 0x9E3779B1

LU = 131072
LQ = LU
LQA = LU
LMX = LU
LP = LU + 1024
LL = LU + 8192
LT = LU + 9216
LR = LU + 12288
LO = LU + 16384
LML = LU + 20480
LX = LU + 4096
LDS_BYTES = 163840

sID, sT, sW, sTAG, sT1, sT2 = 2, 3, 4, 5, 6, 7
P_X, P_C, P_WQA, P_UK, P_UV, P_WOA = 8, 10, 12, 14, 16, 18
P_K, P_V, P_WQB, P_WOB, P_G, P_OUT, P_WS = 22, 24, 26, 28, 30, 32, 36
R_CODE, R_X, R_QW, R_WS = 40, 44, 48, 52
R_K, R_V, R_K2, R_V2, R_TW, R_G, R_OUT = 56, 60, 64, 68, 72, 76, 80
R_C, R_UV = 60, 64
R_UK = 40
sG, sJM, sB, sHH = 84, 85, 86, 84
sOFF, sCNT, sIT, sBIAS = 87, 88, 89, 90
sX1, sT3, sTW = 91, 92, 93
sMSK = 94
sMS2 = 96
sT4, sT5 = 98, 99
sST = 100
sB2 = 20
sQT, sUS = 3, 21

vL, vO16 = 1, 6
vM = [2, 3, 4, 5]
vA0, vA1, vA2 = 7, 8, 9
vSTAMP, vDUMMY = 254, 255
vAT = 133
UKW, X1A, QU, UKS, UKQ = 56, 88, 16, 20, 24


def v(a, n=1):
    return "v%d" % a if n == 1 else "v[%d:%d]" % (a, a + n - 1)


def ar(a, n=1):
    return "a%d" % a if n == 1 else "a[%d:%d]" % (a, a + n - 1)


def s(a, n=1):
    return "s%d" % a if n == 1 else "s[%d:%d]" % (a, a + n - 1)


class Gen:
    def __init__(self, cfg):
        self.c = cfg
        self.a = Asm()
        self.uid = 0
        self.nstamp = 0
        self.NA = cfg.na
        self.NP = (256 - self.NA) // 16
        self.QB = 4096 // (4 * self.NP)
        self.QX = 4096 - self.QB * 4 * self.NP
        self.MAGIC = {14: 4682, 12: 5462}[self.NP]
        self.KEYS = 16384 // self.NA
        self.NIT = self.KEYS // 32
        self.NH = self.NA // 32

    def lab(self, base):
        self.uid += 1
        return "L_%s_%d" % (base, self.uid)

    def srd(self, r, ptr, size, off=None):
        a = self.a
        if off is None:
            a("s_mov_b32 %s, %s" % (s(r), s(ptr)))
            a("s_mov_b32 %s, %s" % (s(r + 1), s(ptr + 1)))
        else:
            a("s_add_u32 %s, %s, %s" % (s(r), s(ptr), off))
            a("s_addc_u32 %s, %s, 0" % (s(r + 1), s(ptr + 1)))
        a("s_mov_b32 %s, %s" % (s(r + 2), size))
        a("s_mov_b32 %s, 0x20000" % s(r + 3))

    def stamp(self, idx):
        if not self.c.debug:
            return
        a = self.a
        a("s_memrealtime %s" % s(sST, 2))
        a("s_waitcnt lgkmcnt(0)")
        a("v_writelane_b32 %s, %s, %d" % (v(vSTAMP), s(sST), idx))

    def stamp_it(self, phase, nph=5):
        if not self.c.debug:
            return
        a = self.a
        a("s_memrealtime %s" % s(sST, 2))
        a("s_mul_i32 s38, %s, %d" % (s(sIT), nph))
        a("s_add_u32 s38, s38, %d" % (16 + phase))
        a("s_waitcnt lgkmcnt(0)")
        a("s_mov_b32 m0, s38")
        a("v_writelane_b32 %s, %s, m0" % (v(vSTAMP), s(sST)))

    def dump_stamps(self):
        if not self.c.debug:
            return
        a = self.a
        a("s_lshl_b32 %s, %s, 2" % (s(sT1), s(sID)))
        a("s_add_u32 %s, %s, %s" % (s(sT1), s(sT1), s(sW)))
        a("s_lshl_b32 %s, %s, 8" % (s(sT1), s(sT1)))
        a("s_add_u32 %s, %s, 0x%x" % (s(sT1), s(sT1), WS_DBG))
        a("v_lshlrev_b32 %s, 2, %s" % (v(vA0), v(vL)))
        a("buffer_store_dword %s, %s, %s, %s offen" % (v(vSTAMP), v(vA0), s(R_WS, 4), s(sT1)))

    def dump(self, slot, reg):
        if not self.c.debug:
            return
        a = self.a
        a("s_lshl_b32 %s, %s, 2" % (s(sST), s(sID)))
        a("s_add_u32 %s, %s, %s" % (s(sST), s(sST), s(sW)))
        a("s_lshl_b32 %s, %s, 11" % (s(sST), s(sST)))
        a("s_add_u32 %s, %s, 0x%x" % (s(sST), s(sST), WS_DBG + 0x40000 + slot * 256))
        a("v_lshlrev_b32 v253, 2, %s" % v(vL))
        a("buffer_store_dword %s, v253, %s, %s offen" % (v(reg), s(R_WS, 4), s(sST)))

    def end(self):
        self.dump_stamps()
        self.a("s_endpgm")

    def mask64(self, reg, lo, hi=None):
        hi = lo if hi is None else hi
        self.a("s_mov_b32 %s, 0x%x" % (s(reg), lo))
        self.a("s_mov_b32 %s, 0x%x" % (s(reg + 1), hi))

    def tagcheck(self, acc, tags, first=True):
        a = self.a
        for i, t in enumerate(tags):
            if i == 0 and first:
                a("v_xor_b32 %s, %s, %s" % (v(acc), s(sTAG), v(t)))
            else:
                a("v_bitop3_b32 %s, %s, %s, %s bitop3:0xf6" % (v(acc), v(acc), v(t), s(sTAG)))

    def poll(self, name, issue, check, nwait="0", between=None, first_wait=None):
        a = self.a
        retry, ok = self.lab(name + "_retry"), self.lab(name + "_ok")
        a("s_movk_i32 %s, 0x%x" % (s(sCNT), self.c.spin))
        if between is not None:
            issue()
            between()
            a("s_waitcnt vmcnt(%d)" % first_wait)
            check()
            a("s_cbranch_vccz %s" % ok)
        a.label(retry)
        issue()
        a("s_waitcnt vmcnt(0)")
        check()
        a("s_cbranch_vccz %s" % ok)
        a("s_sub_u32 %s, %s, 1" % (s(sCNT), s(sCNT)))
        a("s_cbranch_scc0 %s" % retry)
        a.label(ok)

    def allsum_g(self, x, t, op="v_add_f32"):
        a = self.a
        a("v_mov_b32 %s, %s" % (v(t), v(x)))
        a("v_permlane16_swap_b32 %s, %s" % (v(x), v(t)))
        a("%s %s, %s, %s" % (op, v(x), v(x), v(t)))
        a("v_mov_b32 %s, %s" % (v(t), v(x)))
        a("v_permlane32_swap_b32 %s, %s" % (v(x), v(t)))
        a("%s %s, %s, %s" % (op, v(x), v(x), v(t)))

    def allsum_row(self, x, op="v_add_f32"):
        a = self.a
        o = op + "_dpp"
        for m in ("row_ror:8", "quad_perm:[1,0,3,2]", "quad_perm:[2,3,0,1]", "row_half_mirror"):
            a("%s %s, %s, %s %s row_mask:0xf bank_mask:0xf" % (o, v(x), v(x), v(x), m))

    def delta_mfma(self, acc, adata, dup, btmp, first):
        a = self.a
        for i in range(4):
            a("v_and_b32 %s, %s, %s" % (v(btmp + i), v(vM[i]), v(dup)))
        a("v_mfma_f32_16x16x32_bf16 %s, %s, %s, %s" % (v(acc, 4), adata, v(btmp, 4),
                                                      "0" if first else v(acc, 4)))

    def prologue(self):
        a, c = self.a, self.c
        a("s_cmp_ge_u32 s2, 0x100")
        a("s_cbranch_scc1 L_exit")
        if c.elapsed or c.debug:
            a("s_memrealtime s[38:39]")
        a("s_load_dwordx16 s[8:23], s[0:1], 0x0")
        a("s_load_dwordx8 s[24:31], s[0:1], 0x40")
        a("s_load_dwordx4 s[32:35], s[0:1], 0x60")
        a("s_load_dwordx2 s[36:37], s[0:1], 0x70")
        if c.prefetch:
            a("s_getpc_b64 %s" % s(R_CODE, 2))
            a.label("L_pc")
            a("s_mov_b32 %s, L_codeend-L_pc" % s(R_CODE + 2))
            a("s_mov_b32 %s, 0x20000" % s(R_CODE + 3))
            a("s_lshr_b32 %s, s2, 6" % s(sT))
            a("s_lshl_b32 %s, %s, 14" % (s(sT), s(sT)))
            a("v_lshlrev_b32 %s, 6, v0" % v(vA0))
            a("v_add_u32 %s, %s, %s" % (v(vA0), s(sT), v(vA0)))
            a("buffer_load_dword %s, %s, %s, 0 offen" % (v(vDUMMY), v(vA0), s(R_CODE, 4)))
        a("v_and_b32 %s, 63, v0" % v(vL))
        a("v_lshrrev_b32 %s, 6, v0" % v(vA1))
        a("v_lshlrev_b32 %s, 4, %s" % (v(vO16), v(vL)))
        a("v_readfirstlane_b32 %s, %s" % (s(sW), v(vA1)))
        if c.debug:
            a("v_mov_b32 %s, 0" % v(vSTAMP))
        if c.local:
            a("s_lshr_b32 %s, s2, 3" % s(sT1))
            a("s_and_b32 %s, %s, 16" % (s(sQT), s(sT1)))
            a("s_lshl_b32 %s, %s, 3" % (s(sQT), s(sQT)))
            a("s_and_b32 %s, %s, 15" % (s(sT1), s(sT1)))
            a("s_add_u32 %s, %s, %s" % (s(sQT), s(sQT), s(sT1)))
            a("s_and_b32 %s, s2, 7" % s(sT1))
            a("s_lshl_b32 %s, %s, 4" % (s(sT1), s(sT1)))
            a("s_add_u32 %s, %s, %s" % (s(sQT), s(sQT), s(sT1)))
        else:
            a("s_mov_b32 %s, s2" % s(sQT))
        a("s_and_b32 %s, %s, 1" % (s(sT1), s(sQT)))
        a("s_mul_i32 %s, %s, 288" % (s(sT1), s(sT1)))
        a("s_mul_i32 %s, %s, 72" % (s(sT2), s(sW)))
        a("s_add_u32 %s, %s, %s" % (s(sT1), s(sT1), s(sT2)))
        a("v_lshrrev_b32 %s, 3, %s" % (v(vA1), v(vL)))
        a("v_add_u32 %s, %s, %s" % (v(vA0), s(sT1), v(vA1)))
        a("v_lshlrev_b32 %s, 1, %s" % (v(vA0), v(vA0)))
        a("v_and_b32 %s, 7, %s" % (v(vA2), v(vL)))
        a("v_lshlrev_b32 %s, 4, %s" % (v(vA2), v(vA2)))
        a("v_lshlrev_b32 %s, 13, %s" % (v(vA1), v(vA1)))
        a("v_add_u32 %s, %s, %s" % (v(vA1), v(vA1), v(vA2)))
        a("s_lshl_b32 %s, %s, 13" % (s(sOFF), s(sT1)))
        a("s_lshr_b32 %s, %s, 1" % (s(sT2), s(sQT)))
        a("s_and_b32 %s, %s, 63" % (s(sT2), s(sT2)))
        a("s_lshl_b32 %s, %s, 7" % (s(sT2), s(sT2)))
        a("s_add_u32 %s, %s, %s" % (s(sOFF), s(sOFF), s(sT2)))
        a("s_waitcnt lgkmcnt(0)")
        self.stamp(62)
        a("s_load_dword %s, %s, 0x%x" % (s(sTAG), s(P_WS, 2), WS_EPOCH))
        self.srd(R_X, P_X, "1152")
        if c.dyn:
            self.srd(R_WS, P_WS, "0x%x" % WS_SIZE)
            noinit = self.lab("cnt")
            a("s_and_b32 %s, %s, 0x87" % (s(sT1), s(sQT)))
            a("s_lshl_b32 %s, %s, 8" % (s(sT2), s(sW)))
            a("s_or_b32 %s, %s, %s" % (s(sT1), s(sT1), s(sT2)))
            a("s_cmp_lg_u32 %s, 0x80" % s(sT1))
            a("s_cbranch_scc1 %s" % noinit)
            a("s_bfe_u32 %s, %s, 0x40003" % (s(sT1), s(sQT)))
            a("s_mul_i32 %s, %s, %d" % (s(sT1), s(sT1), c.cstride))
            a("s_add_u32 %s, %s, 0x%x" % (s(sT1), s(sT1), WS_CNT))
            a("v_mov_b32 %s, 0" % v(vA2))
            a("s_mov_b64 exec, 1")
            a("buffer_store_dword %s, %s, %s, %s offen sc0 sc1" % (v(vA2), v(vA2), s(R_WS, 4), s(sT1)))
            a("s_mov_b64 exec, -1")
            a.label(noinit)
            if c.mlw == 2:
                nohint = self.lab("hint")
                a("s_lshl_b32 %s, %s, 8" % (s(sT1), s(sW)))
                a("s_or_b32 %s, %s, %s" % (s(sT1), s(sT1), s(sQT)))
                a("s_cmp_lg_u32 %s, 0" % s(sT1))
                a("s_cbranch_scc1 %s" % nohint)
                a("s_mov_b32 %s, 0x%x" % (s(sT1), WS_HINT))
                a("v_lshlrev_b32 v10, 8, %s" % v(vL))
                a("v_mov_b32 v11, 0")
                a("s_mov_b64 exec, 0xff")
                a("buffer_store_dword v11, v10, %s, %s offen sc0 sc1" % (s(R_WS, 4), s(sT1)))
                a("s_mov_b64 exec, -1")
                a.label(nohint)
        if c.local:
            a("s_and_b32 %s, s2, 7" % s(sT1))
            a("s_lshl_b32 %s, %s, 5" % (s(sT1), s(sT1)))
            a("s_lshr_b32 %s, s2, 3" % s(sUS))
            a("s_add_u32 %s, %s, %s" % (s(sUS), s(sUS), s(sT1)))
        else:
            a("s_mov_b32 %s, s2" % s(sUS))
        a("s_cmp_ge_u32 %s, 0x80" % s(sQT))
        a("s_cselect_b32 %s, %s, %s" % (s(R_QW), s(P_WQB), s(P_WQA)))
        a("s_cselect_b32 %s, %s, %s" % (s(R_QW + 1), s(P_WQB + 1), s(P_WQA + 1)))
        a("s_mov_b32 %s, 4718592" % s(R_QW + 2))
        a("s_mov_b32 %s, 0x20000" % s(R_QW + 3))
        for t in range(9):
            a("buffer_load_ushort %s, %s, %s, 0 offen offset:%d" % (v(204 + t), v(vA0), s(R_X, 4), 16 * t))
        for t in range(9):
            a("buffer_load_dwordx4 %s, %s, %s, %s offen %s" % (v(168 + 4 * t, 4), v(vA1), s(R_QW, 4), s(sOFF), c.nt))
            if t < 8:
                a("s_add_u32 %s, %s, 0x10000" % (s(sOFF), s(sOFF)))
        self.srd(R_UK, P_UK, "4194304")
        a("v_lshrrev_b32 %s, 4, %s" % (v(vA0), v(vL)))
        a("v_lshlrev_b32 %s, 15, %s" % (v(vA0), v(vA0)))
        a("v_and_b32 %s, 15, %s" % (v(vA2), v(vL)))
        a("v_lshlrev_b32 %s, 4, %s" % (v(vA2), v(vA2)))
        a("v_add_u32 %s, %s, %s" % (v(vA0), v(vA0), v(vA2)))
        a("s_and_b32 %s, %s, 7" % (s(sT1), s(sUS)))
        a("s_lshl_b32 %s, %s, 2" % (s(sT1), s(sT1)))
        a("s_add_u32 %s, %s, %s" % (s(sT1), s(sT1), s(sW)))
        a("s_lshl_b32 %s, %s, 17" % (s(sT1), s(sT1)))
        a("s_lshr_b32 %s, %s, 3" % (s(sT2), s(sUS)))
        a("s_lshl_b32 %s, %s, 8" % (s(sT2), s(sT2)))
        a("s_add_u32 %s, %s, %s" % (s(sT1), s(sT1), s(sT2)))
        for t in range(4):
            a("buffer_load_dwordx4 %s, %s, %s, %s offen %s" % (v(UKW + 4 * t, 4), v(vA0), s(R_UK, 4), s(sT1), c.nt))
            if t < 3:
                a("s_add_u32 %s, %s, 0x2000" % (s(sT1), s(sT1)))
        if not c.dyn:
            self.srd(R_WS, P_WS, "0x%x" % WS_SIZE)
        self.stamp(0)
        if c.debug:
            a("v_writelane_b32 %s, s38, 63" % v(vSTAMP))
        a("s_cmp_lt_u32 s2, %d" % self.NA)
        a("s_cbranch_scc1 L_a_pre")
        self.b_pre()
        a("s_branch L_q")
        a.label("L_a_pre")
        self.a_pre()
        a.label("L_q")

    def b_pre(self):
        a, c = self.a, self.c
        a("s_sub_u32 %s, s2, %d" % (s(sB), self.NA))
        if c.local:
            a("s_lshr_b32 %s, %s, 3" % (s(sJM), s(sB)))
            a("s_and_b32 %s, s2, 7" % s(sG))
            a("s_lshl_b32 %s, %s, 1" % (s(sG), s(sG)))
            a("s_cmp_ge_u32 %s, %d" % (s(sJM), self.NP))
            a("s_cselect_b32 %s, %d, 0" % (s(sT1), self.NP))
            a("s_addc_u32 %s, %s, 0" % (s(sG), s(sG)))
            a("s_sub_u32 %s, %s, %s" % (s(sJM), s(sJM), s(sT1)))
            a("s_mul_i32 %s, %s, %d" % (s(sB), s(sG), self.NP))
            a("s_add_u32 %s, %s, %s" % (s(sB), s(sB), s(sJM)))
        else:
            a("s_mul_i32 %s, %s, %d" % (s(sG), s(sB), self.MAGIC))
            a("s_lshr_b32 %s, %s, 16" % (s(sG), s(sG)))
            a("s_mul_i32 %s, %s, %d" % (s(sT1), s(sG), self.NP))
            a("s_sub_u32 %s, %s, %s" % (s(sJM), s(sB), s(sT1)))
        a("s_lshl_b32 %s, %s, 2" % (s(sT1), s(sJM)))
        a("s_add_u32 %s, %s, %s" % (s(sT1), s(sT1), s(sW)))
        if c.dyn:
            a("s_mul_i32 %s, %s, %d" % (s(sOFF), s(sT1), c.sblk * c.nq * 1024))
            a("s_lshl_b32 %s, %s, 22" % (s(sT2), s(sG)))
            self.srd(R_K, P_K, "0x400000", s(sT2))
            self.srd(R_V, P_V, "0x400000", s(sT2))
            self.srd(R_K2, P_K, "0", s(sT2))
            self.srd(R_V2, P_V, "0", s(sT2))
            for i in range(c.nq):
                self.kv_load(40 + 4 * i, R_K, i)
            a("s_add_u32 %s, %s, 16" % (s(sX1), s(sG)))
            self.mask64(sMSK, 0xFF00FF00)
            a("s_waitcnt vmcnt(%d)" % (c.nq + 4))
            return
        a("s_mul_i32 %s, %s, %d" % (s(sT2), s(sT1), self.QB))
        a("s_min_u32 %s, %s, %d" % (s(sT3), s(sT1), self.QX))
        a("s_add_u32 %s, %s, %s" % (s(sT2), s(sT2), s(sT3)))
        a("s_lshl_b32 %s, %s, 10" % (s(sT2), s(sT2)))
        a("s_lshl_b32 %s, %s, 22" % (s(sT3), s(sG)))
        a("s_add_u32 %s, %s, %s" % (s(sT2), s(sT2), s(sT3)))
        ksz = (self.QB + 1) * 1024
        self.srd(R_K, P_K, str(ksz), s(sT2))
        self.srd(R_V, P_V, str(ksz), s(sT2))
        a("s_cmp_lt_u32 %s, %d" % (s(sT1), self.QX))
        a("s_cselect_b32 %s, %d, 0" % (s(sT3), ksz))
        a("s_cselect_b32 %s, 0, 0xff800000" % s(sBIAS))
        self.srd(R_K2, P_K, s(sT3), s(sT2))
        self.srd(R_V2, P_V, s(sT3), s(sT2))
        a("s_mov_b32 %s, %d" % (s(sT1), (self.QB - 1) * 1024))
        a("buffer_load_dwordx4 %s, %s, %s, %s offen %s" % (v(104, 4), v(vO16), s(R_K, 4), s(sT1), c.nt))
        a("buffer_load_dwordx4 %s, %s, %s, %s offen offset:1024 %s" % (v(108, 4), v(vO16), s(R_K2, 4), s(sT1), c.nt))
        a("s_mov_b32 %s, 0" % s(sOFF))
        for i in range(c.nq):
            self.kv_load(40 + 4 * i, R_K, i)
        a("s_add_u32 %s, %s, 16" % (s(sX1), s(sG)))
        self.mask64(sMSK, 0xFF00FF00)
        a("s_waitcnt vmcnt(%d)" % (c.nq + 6))

    def kv_load(self, reg, srd, i, off=None):
        a, c = self.a, self.c
        off = sOFF if off is None else off
        if i < 4:
            so = s(off)
        else:
            if i % 4 == 0:
                a("s_add_u32 %s, %s, %d" % (s(sT4), s(off), 4096 * (i // 4)))
            so = s(sT4)
        o = " offset:%d" % (1024 * (i % 4)) if i % 4 else ""
        a("buffer_load_dwordx4 %s, %s, %s, %s offen%s %s" % (v(reg, 4), v(vO16), s(srd, 4), so, o, c.nt))

    def a_pre(self):
        a, c = self.a, self.c
        self.srd(R_K, P_V, "0")
        self.srd(R_UV, P_UV, "4194304")
        self.srd(R_V2, P_V, "0")
        a("s_mul_i32 %s, s2, %d" % (s(sT2), self.KEYS * 1024))
        self.srd(R_C, P_C, str(self.KEYS * 1024), s(sT2))
        a("s_waitcnt vmcnt(4)")

    def q_phase(self):
        a, c = self.a, self.c
        self.stamp(1)
        a("v_and_b32 %s, 1, %s" % (v(vA0), v(vL)))
        a("v_lshlrev_b32 %s, 4, %s" % (v(vA0), v(vA0)))
        a("v_mov_b32 %s, 0xffff" % v(vA1))
        a("v_lshlrev_b32 %s, %s, %s" % (v(vA1), v(vA0), v(vA1)))
        for i in range(4):
            self.mask64(sMS2, 0x03030303 << (2 * i))
            a("v_cndmask_b32 %s, 0, %s, %s" % (v(vM[i]), v(vA1), s(sMS2, 2)))
        for t in range(9):
            a("v_lshl_or_b32 %s, %s, 16, %s" % (v(204 + t), v(204 + t), v(204 + t)))
        for t in range(9):
            self.delta_mfma(222, v(168 + 4 * t, 4), 204 + t, 214 + 4 * (t & 1), t == 0)
        a("v_lshrrev_b32 %s, 4, %s" % (v(vA0), v(vL)))
        a("v_and_b32 %s, 1, %s" % (v(vA1), v(vA0)))
        a("v_lshlrev_b32 %s, 10, %s" % (v(vA1), v(vA1)))
        a("v_lshrrev_b32 %s, 1, %s" % (v(vA0), v(vA0)))
        a("v_lshlrev_b32 %s, 2, %s" % (v(vA0), v(vA0)))
        a("v_add_u32 %s, %s, %s" % (v(vA0), v(vA0), v(vA1)))
        a("v_and_b32 %s, 7, %s" % (v(vA1), v(vL)))
        a("v_lshlrev_b32 %s, 5, %s" % (v(vA1), v(vA1)))
        a("s_lshl_b32 %s, %s, 3" % (s(sT1), s(sW)))
        a("s_add_u32 %s, %s, %d" % (s(sT1), s(sT1), LQ))
        a("v_add3_u32 %s, %s, %s, %s" % (v(vA0), v(vA0), v(vA1), s(sT1)))
        self.mask64(sMS2, 0x00FF00FF, 0xFF00FF00)
        a("s_mov_b64 exec, %s" % s(sMS2, 2))
        for r in range(4):
            a("ds_write_b32 %s, %s offset:%d" % (v(vA0), v(222 + r), 256 * r))
        a("s_mov_b64 exec, -1")
        a("s_waitcnt lgkmcnt(0)")
        a("s_add_u32 %s, %s, 0x%x" % (s(sTAG), s(sTAG), EPOCH_STEP))
        a("s_barrier")
        skip = self.lab("qpub")
        a("s_cmp_lg_u32 %s, 0" % s(sW))
        a("s_cbranch_scc1 %s" % skip)
        a("v_lshlrev_b32 %s, 5, %s" % (v(vA0), v(vL)))
        a("v_add_u32 %s, %d, %s" % (v(vA0), LQ, v(vA0)))
        a("ds_read_b128 %s, %s" % (v(226, 4), v(vA0)))
        a("ds_read_b128 %s, %s offset:16" % (v(230, 4), v(vA0)))
        a("v_bfe_u32 %s, %s, 1, 2" % (v(vA1), v(vL)))
        a("v_lshlrev_b32 %s, 10, %s" % (v(vA1), v(vA1)))
        a("v_lshrrev_b32 %s, 3, %s" % (v(vA2), v(vL)))
        a("v_lshlrev_b32 %s, 4, %s" % (v(vA2), v(vA2)))
        a("v_add_u32 %s, %s, %s" % (v(vA1), v(vA1), v(vA2)))
        a("v_and_b32 %s, 1, %s" % (v(vA2), v(vL)))
        a("v_lshlrev_b32 %s, 3, %s" % (v(vA2), v(vA2)))
        a("v_add_u32 %s, %s, %s" % (v(vA1), v(vA1), v(vA2)))
        a("s_lshr_b32 %s, %s, 3" % (s(sT1), s(sQT)))
        a("s_lshl_b32 %s, %s, 12" % (s(sT1), s(sT1)))
        a("s_bfe_u32 %s, %s, 0x10002" % (s(sT2), s(sQT)))
        a("s_lshl_b32 %s, %s, 9" % (s(sT2), s(sT2)))
        a("s_add_u32 %s, %s, %s" % (s(sT1), s(sT1), s(sT2)))
        a("s_and_b32 %s, %s, 1" % (s(sT2), s(sQT)))
        a("s_lshl_b32 %s, %s, 8" % (s(sT2), s(sT2)))
        a("s_add_u32 %s, %s, %s" % (s(sT1), s(sT1), s(sT2)))
        a("s_bfe_u32 %s, %s, 0x10001" % (s(sT2), s(sQT)))
        a("s_lshl_b32 %s, %s, 7" % (s(sT2), s(sT2)))
        a("s_add_u32 %s, %s, %s" % (s(sT1), s(sT1), s(sT2)))
        a("s_add_u32 %s, %s, 0x%x" % (s(sT1), s(sT1), WS_X1))
        a("s_waitcnt lgkmcnt(0)")
        a("v_add_f32 v226, v226, v227")
        a("v_add_f32 v228, v228, v229")
        a("v_add_f32 v230, v230, v231")
        a("v_add_f32 v232, v232, v233")
        a("v_add_f32 v226, v226, v228")
        a("v_add_f32 v230, v230, v232")
        a("v_add_f32 v226, v226, v230")
        a("v_mul_f32 v226, %s, v226" % f32(C_SCALE))
        a("v_mov_b32 v227, %s" % s(sTAG))
        a("buffer_store_dwordx2 v[226:227], %s, %s, %s offen sc0 sc1" % (v(vA1), s(R_WS, 4), s(sT1)))
        a.label(skip)
        self.stamp(2)

    def x1_issue(self, base, soff):
        self.a("buffer_load_dwordx4 %s, %s, %s, %s offen sc1" % (v(base, 4), v(vO16), s(R_WS, 4), s(soff)))

    def x1_pack(self, bases):
        a = self.a
        a("s_lshl_b32 %s, %s, 2" % (s(sT1), s(sW)))
        a("s_add_u32 %s, %s, %d" % (s(sT1), s(sT1), LX))
        a("v_add_u32 %s, %s, %s" % (v(vA0), s(sT1), v(vO16)))
        for b in bases:
            a("v_mov_b32 %s, %s" % (v(b + 1), v(b)))
            a("v_mov_b32 %s, %s" % (v(b + 3), v(b + 2)))
        for b in bases:
            a("v_permlane16_swap_b32 %s, %s" % (v(b), v(b + 1)))
            a("v_permlane16_swap_b32 %s, %s" % (v(b + 2), v(b + 3)))
        for b in bases:
            a("v_add_f32 %s, %s, %s" % (v(b), v(b), v(b + 1)))
            a("v_add_f32 %s, %s, %s" % (v(b + 2), v(b + 2), v(b + 3)))
        for b in bases:
            a("v_cvt_pk_bf16_f32 %s, %s, %s" % (v(b), v(b), v(b + 2)))
        for i, b in enumerate(bases):
            a("ds_write_b32 %s, %s offset:%d" % (v(vA0), v(b), 1024 * i))
        a("v_add_u32 %s, %d, %s" % (v(vA0), LX, v(vO16)))
        a("s_waitcnt lgkmcnt(0)")
        a("s_barrier")

    def x1_select(self, region, tmp, mask, dst0, dst1=None):
        a = self.a
        a("ds_read_b128 %s, %s offset:%d" % (v(tmp, 4), v(vA0), 1024 * region))
        a("s_waitcnt lgkmcnt(0)")
        for k in range(4):
            a("v_mov_b32 %s, %s" % (v(tmp + 4 + k), v(tmp + k)))
        for k in range(4):
            a("v_permlane32_swap_b32 %s, %s" % (v(tmp + k), v(tmp + 4 + k)))
        for k in range(4):
            a("v_cndmask_b32 %s, %s, %s, %s" % (v(dst0 + k), v(tmp + k), v(tmp + 4 + k), s(mask, 2)))
            if dst1 is not None:
                a("v_cndmask_b32 %s, %s, %s, %s" % (v(dst1 + k), v(tmp + 4 + k), v(tmp + k), s(mask, 2)))

    def uk_slice(self):
        a = self.a
        S, quad = UKS, UKQ
        a("s_bitcmp1_b32 %s, 3" % s(sUS))
        a("s_cselect_b64 %s, -1, 0" % s(sMS2, 2))
        self.x1_select(0, 242, sMS2, QU)
        for j in range(4):
            for t in range(4):
                a("v_dot2_f32_bf16 %s, %s, %s, %s" % (v(S + t), v(UKW + 4 * t + j), v(QU + j), "0" if j == 0 else v(S + t)))
        for m in ("row_ror:8", "quad_perm:[1,0,3,2]", "quad_perm:[2,3,0,1]", "row_half_mirror"):
            for t in range(4):
                a("v_add_f32_dpp %s, %s, %s %s row_mask:0xf bank_mask:0xf" % (v(S + t), v(S + t), v(S + t), m))
        a("v_cvt_pk_bf16_f32 %s, %s, %s" % (v(quad), v(S), v(S + 1)))
        a("v_cvt_pk_bf16_f32 %s, %s, %s" % (v(quad + 2), v(S + 2), v(S + 3)))
        a("v_mov_b32 %s, %s" % (v(quad + 1), s(sTAG)))
        a("v_mov_b32 %s, %s" % (v(quad + 3), s(sTAG)))
        a("s_lshl_b32 %s, %s, 8" % (s(sT1), s(sUS)))
        a("s_lshl_b32 %s, %s, 6" % (s(sT2), s(sW)))
        a("s_add_u32 %s, %s, %s" % (s(sT1), s(sT1), s(sT2)))
        a("s_add_u32 %s, %s, 0x%x" % (s(sT1), s(sT1), WS_X2))
        self.mask64(sMS2, 0x00010001)
        a("s_mov_b64 exec, %s" % s(sMS2, 2))
        a("buffer_store_dwordx4 %s, %s, %s, %s offen sc0 sc1" % (v(quad, 4), v(vL), s(R_WS, 4), s(sT1)))
        a("s_mov_b64 exec, -1")

    def q_gather(self):
        a, c = self.a, self.c
        assert c.nq <= 4
        a("s_lshr_b32 %s, %s, 4" % (s(sT5), s(sUS)))
        a("s_lshl_b32 %s, %s, 12" % (s(sT5), s(sT5)))
        a("s_lshl_b32 %s, %s, 10" % (s(sT1), s(sW)))
        a("s_add_u32 %s, %s, 0x%x" % (s(sT1), s(sT1), WS_X1))
        a("s_add_u32 %s, %s, %s" % (s(sT5), s(sT5), s(sT1)))
        a("s_cmp_lt_u32 s2, %d" % self.NA)
        a("s_cbranch_scc1 L_a_main")
        a("s_lshl_b32 %s, %s, 12" % (s(sX1), s(sX1)))
        a("s_add_u32 %s, %s, %s" % (s(sX1), s(sX1), s(sT1)))
        self.tail_setup()
        ne = 16 - c.td - c.td2
        if c.ttouch:
            a("s_add_u32 %s, %s, %d" % (s(sT2), s(sTW), 9216 * 15))
            a("buffer_load_dword %s, v250, %s, %s offen" % (v(vDUMMY), s(R_TW, 4), s(sTW)))
            a("buffer_load_dword %s, v250, %s, %s offen" % (v(vDUMMY), s(R_TW, 4), s(sT2)))
        self.tail_loads(0, min(c.t0, ne) if ne < 16 else c.t0)
        if not c.dyn:
            a("s_mov_b32 %s, %d" % (s(sT1), (self.QB - 1) * 1024))
            a("buffer_load_dwordx4 %s, %s, %s, %s offen %s" % (v(112, 4), v(vO16), s(R_V, 4), s(sT1), c.nt))
            a("buffer_load_dwordx4 %s, %s, %s, %s offen offset:1024 %s" % (v(116, 4), v(vO16), s(R_V2, 4), s(sT1), c.nt))
        for i in range(c.nq):
            self.kv_load(72 + 4 * i, R_V, i)
        if c.pre2 == 2:
            assert c.td + c.td2 == 16
            a("s_add_u32 %s, %s, %d" % (s(sT2), s(sOFF), c.nq * 1024))
            for i in range(c.nq):
                self.kv_load(140 + 4 * i, R_K, i, sT2)
            for i in range(c.nq):
                self.kv_load(156 + 4 * i, R_V, i, sT2)

        def issue():
            self.x1_issue(X1A, sT5)
            self.x1_issue(X1A + 4, sX1)

        def check():
            self.tagcheck(242, [X1A + 1, X1A + 3, X1A + 5, X1A + 7])
            a("v_cmp_ne_u32 vcc, 0, v242")

        self.poll("x1", issue, check)
        self.stamp(11)
        if c.pre2:
            assert c.dyn and c.g1 and c.td + c.td2 >= 8 and c.nq == 4
            a("s_add_u32 %s, %s, %d" % (s(sT5), s(sOFF), c.pre2 * c.nq * 1024))
            for i in range(c.nq):
                self.kv_load(172 + 4 * i, R_K, i, sT5)
            for i in range(c.nq):
                self.kv_load(188 + 4 * i, R_V, i, sT5)
        self.x1_pack([X1A, X1A + 4])
        self.uk_slice()
        self.stamp(10)
        if ne < 16:
            self.tail_loads(min(c.t0, ne), ne)
            self.tail_loads(16, 20)
        else:
            self.tail_loads(c.t0, 20)
        if c.dyn:
            a("s_mul_i32 %s, %s, %d" % (s(sB2), s(sG), c.cstride))
            a("s_add_u32 %s, %s, 0x%x" % (s(sB2), s(sB2), WS_CNT))
            a("v_mov_b32 v134, 0")
            if c.g1:
                a("s_lshl_b32 %s, %s, 2" % (s(sT1), s(sJM)))
                a("s_add_u32 %s, %s, %s" % (s(sT1), s(sT1), s(sW)))
                a("s_sub_u32 %s, %s, %d" % (s(sT1), s(sT1), 4 * self.NP))
                a("v_mov_b32 %s, %s" % (v(vAT), s(sT1)))
            else:
                self.grab()
        self.x1_select(1, 242, sMSK, 32, 36)
        self.stamp(3)

    def b_block(self, nq, kreg, vreg, kwait, vwait, knext, vnext, masked_last=False):
        a = self.a
        SA, SB, O, M, L = 16, 24, 10, 14, 15
        for i in range(nq):
            a("s_waitcnt vmcnt(%d)" % kwait(i))
            k = kreg + 4 * i
            for j in range(4):
                a("v_dot2_f32_bf16 %s, %s, %s, %s" % (v(SA + i), v(k + j), v(32 + j), "0" if j == 0 else v(SA + i)))
                a("v_dot2_f32_bf16 %s, %s, %s, %s" % (v(SB + i), v(k + j), v(36 + j), "0" if j == 0 else v(SB + i)))
            knext(i)
        for i in range(nq):
            a("v_add_f32_dpp %s, %s, %s row_ror:8 row_mask:0xf bank_mask:0xf" % (v(SA + i), v(SB + i), v(SA + i)))
        for m in ("quad_perm:[1,0,3,2]", "quad_perm:[2,3,0,1]", "row_half_mirror"):
            for i in range(nq):
                a("v_add_f32_dpp %s, %s, %s %s row_mask:0xf bank_mask:0xf" % (v(SA + i), v(SA + i), v(SA + i), m))
        if masked_last:
            a("v_add_f32 %s, %s, %s" % (v(SA + nq - 1), s(sBIAS), v(SA + nq - 1)))
        BM, T, AL = 130, 131, 132
        a("v_max_f32 %s, %s, %s" % (v(BM), v(SA), v(SA + 1)))
        i = 2
        while i < nq:
            if i + 1 < nq:
                a("v_max3_f32 %s, %s, %s, %s" % (v(BM), v(BM), v(SA + i), v(SA + i + 1)))
                i += 2
            else:
                a("v_max_f32 %s, %s, %s" % (v(BM), v(BM), v(SA + i)))
                i += 1
        self.allsum_g(BM, T, "v_max_f32")
        a("v_max_f32 %s, %s, %s" % (v(BM), v(BM), v(M)))
        a("v_sub_f32 %s, %s, %s" % (v(AL), v(M), v(BM)))
        for i in range(nq):
            a("v_sub_f32 %s, %s, %s" % (v(SA + i), v(SA + i), v(BM)))
        a("v_exp_f32 %s, %s" % (v(AL), v(AL)))
        for i in range(nq):
            a("v_exp_f32 %s, %s" % (v(SA + i), v(SA + i)))
        a("v_mov_b32 %s, %s" % (v(M), v(BM)))
        a("v_mul_f32 %s, %s, %s" % (v(L), v(L), v(AL)))
        for r in range(4):
            a("v_mul_f32 %s, %s, %s" % (v(O + r), v(O + r), v(AL)))
        for i in range(nq):
            a("v_cvt_pk_bf16_f32 %s, %s, %s" % (v(SB + i), v(SA + i), v(SA + i)))
        for i in range(nq):
            a("v_add_f32 %s, %s, %s" % (v(L), v(L), v(SA + i)))
        for i in range(nq):
            bt = 122 + 4 * (i & 1)
            for j in range(4):
                a("v_and_b32 %s, %s, %s" % (v(bt + j), v(vM[j]), v(SB + i)))
            a("s_waitcnt vmcnt(%d)" % vwait(i))
            a("v_mfma_f32_16x16x32_bf16 %s, %s, %s, %s" % (v(O, 4), v(vreg + 4 * i, 4), v(bt, 4), v(O, 4)))
            vnext(i)

    def tail_setup(self):
        a, c = self.a, self.c
        a("s_and_b32 %s, %s, 1" % (s(sT1), s(sW)))
        a("s_lshl_b32 %s, %s, 1" % (s(sT2), s(sG)))
        a("s_add_u32 %s, %s, %s" % (s(sT1), s(sT1), s(sT2)))
        a("s_mul_i32 %s, %s, %d" % (s(sT1), s(sT1), 128 * 1152))
        a("s_lshl_b32 %s, %s, 7" % (s(sT2), s(sJM)))
        a("s_add_u32 %s, %s, %s" % (s(sTW), s(sT1), s(sT2)))
        a("s_cmp_ge_u32 %s, 2" % s(sW))
        a("s_cselect_b32 %s, %s, %s" % (s(R_TW), s(P_WOA), s(P_WOB)))
        a("s_cselect_b32 %s, %s, %s" % (s(R_TW + 1), s(P_WOA + 1), s(P_WOB + 1)))
        a("s_cmp_lt_u32 %s, 9" % s(sJM))
        a("s_cselect_b32 %s, 4718592, 0" % s(R_TW + 2))
        a("s_cselect_b32 %s, 1152, 0" % s(sT3))
        a("s_mov_b32 %s, 0x20000" % s(R_TW + 3))
        self.srd(R_G, P_G, s(sT3))
        a("s_mov_b32 %s, %s" % (s(R_X + 2), s(sT3)))
        a("v_lshrrev_b32 v250, 3, %s" % v(vL))
        a("v_mul_u32_u24 v250, 1152, v250")
        a("v_and_b32 %s, 7, %s" % (v(vA1), v(vL)))
        a("v_lshlrev_b32 %s, 4, %s" % (v(vA1), v(vA1)))
        a("v_add_u32 v250, v250, %s" % v(vA1))

    def tail_loads(self, n0, n1):
        a, c = self.a, self.c
        for t in range(n0, n1):
            if t < 16:
                a("buffer_load_dwordx4 %s, v250, %s, %s offen %s" % (v(140 + 4 * t, 4), s(R_TW, 4), s(sTW), c.nt))
                if t < 15:
                    a("s_add_u32 %s, %s, 9216" % (s(sTW), s(sTW)))
            else:
                i = t - 16
                o = " offset:1024" if i & 1 else ""
                a("buffer_load_dwordx4 %s, %s, %s, 0 offen%s" % (v(204 + 4 * i, 4), v(vO16), s(R_X if i < 2 else R_G, 4), o))

    def grab(self):
        a = self.a
        a("v_mov_b32 %s, 1" % v(vAT))
        a("s_mov_b64 exec, 1")
        if self.c.diag == 1:
            for _ in range(2):
                a("buffer_atomic_add v134, v134, %s, %s offen sc1" % (s(R_WS, 4), s(sB2)))
        a("buffer_atomic_add %s, v134, %s, %s offen sc0 sc1" % (v(vAT), s(R_WS, 4), s(sB2)))
        a("s_mov_b64 exec, -1")

    def b_main_dyn(self):
        a, c = self.a, self.c
        nq, S = c.nq, c.sblk
        assert 4096 % nq == 0
        nblk = 4096 // nq
        nstat = S * 4 * self.NP
        for r in range(4):
            a("v_mov_b32 %s, 0" % v(10 + r))
        a("v_mov_b32 v14, 0xff800000")
        a("v_mov_b32 v15, 0")
        self.stamp(4)
        loop = self.lab("b_loop")
        if c.pre2:
            a("s_add_u32 %s, %s, %d" % (s(sT5), s(sOFF), (c.pre2 + 1) * nq * 1024))
            self.b_block(nq, 40, 72, lambda i: 63, lambda i: 63,
                         lambda i: self.kv_load(40 + 4 * i, R_K, i, sT5),
                         lambda i: self.kv_load(72 + 4 * i, R_V, i, sT5))
            if c.pre2 == 2:
                self.b_block(nq, 140, 156, lambda i: 63, lambda i: 63, lambda i: None, lambda i: None)
            ne0 = 16 - c.td - c.td2
            ex = 1 + (ne0 - min(c.t0, ne0)) + 4
            self.b_block(nq, 172, 188, lambda i: 4 * nq - 1 - i + ex, lambda i: 3 * nq - 1 - i + ex,
                         lambda i: None, lambda i: None)
            a("s_mov_b32 %s, %s" % (s(sOFF), s(sT5)))
        a("s_movk_i32 %s, %d" % (s(sIT), S - 1 - (c.pre2 + 1 if c.pre2 else 0)))
        a.label(loop)
        a("s_add_u32 %s, %s, %d" % (s(sT5), s(sOFF), nq * 1024))
        self.b_block(nq, 40, 72, lambda i: 2 * nq - 1, lambda i: 2 * nq - 1,
                     lambda i: self.kv_load(40 + 4 * i, R_K, i, sT5),
                     lambda i: self.kv_load(72 + 4 * i, R_V, i, sT5))
        a("s_mov_b32 %s, %s" % (s(sOFF), s(sT5)))
        if c.bstamp:
            self.stamp_it(0, 1)
        a("s_sub_u32 %s, %s, 1" % (s(sIT), s(sIT)))
        a("s_cmp_lg_u32 %s, 0" % s(sIT))
        a("s_cbranch_scc1 %s" % loop)
        self.stamp(14)
        if c.gearly:
            self.gate()
        dyn, last = self.lab("b_dyn"), self.lab("b_last")
        a.label(dyn)
        a("s_waitcnt vmcnt(%d)" % (2 * nq - 1))
        a("v_readfirstlane_b32 %s, %s" % (s(sT5), v(vAT)))
        if c.g1:
            a("s_add_u32 %s, %s, %d" % (s(sT5), s(sT5), 4 * self.NP))
        a("s_cmp_ge_u32 %s, %d" % (s(sT5), nblk - nstat))
        a("s_cbranch_scc1 %s" % last)
        if c.gk:
            fin = self.lab("b_fin")
            a("s_cmp_ge_u32 %s, %d" % (s(sT5), nblk - nstat - c.gk))
            a("s_cbranch_scc1 %s" % fin)
        self.grab()
        a("s_add_u32 %s, %s, %d" % (s(sT5), s(sT5), nstat))
        a("s_mul_i32 %s, %s, %d" % (s(sT5), s(sT5), nq * 1024))
        xa = 2 if c.diag == 1 else 0
        self.b_block(nq, 40, 72, lambda i: 2 * nq + xa if i == 0 else 2 * nq + xa, lambda i: 2 * nq + xa,
                     lambda i: self.kv_load(40 + 4 * i, R_K, i, sT5),
                     lambda i: self.kv_load(72 + 4 * i, R_V, i, sT5))
        if c.debug:
            a("s_add_u32 %s, %s, 1" % (s(sIT), s(sIT)))
        a("s_branch %s" % dyn)
        if c.gk:
            a.label(fin)
            a("s_add_u32 %s, %s, %d" % (s(sT5), s(sT5), nstat))
            a("s_mul_i32 %s, %s, %d" % (s(sT5), s(sT5), nq * 1024))
            self.b_block(nq, 40, 72, lambda i: 2 * nq - 1, lambda i: 2 * nq - 1,
                         lambda i: self.kv_load(40 + 4 * i, R_K, i, sT5),
                         lambda i: self.kv_load(72 + 4 * i, R_V, i, sT5))
            if c.debug:
                a("s_add_u32 %s, %s, 1" % (s(sIT), s(sIT)))
        a.label(last)
        self.stamp(5)
        if c.debug:
            a("v_writelane_b32 %s, %s, 15" % (v(vSTAMP), s(sIT)))
        ne = 16 - c.td - c.td2
        cnt = [c.td // 8 + (1 if j < c.td % 8 else 0) for j in range(8)]
        if c.tdv:
            cnt = [0] * 4 + [c.td // 4 + (1 if j < c.td % 4 else 0) for j in range(4)]
        assert nq == 4 or c.td == 0
        pos = [ne + sum(cnt[:j]) for j in range(9)]
        self.b_block(nq, 40, 72, lambda i: 2 * nq - 1 - i + sum(cnt[:i]),
                     lambda i: nq - 1 - i + sum(cnt[:nq + i]),
                     lambda i: self.tail_loads(pos[i], pos[i + 1]),
                     lambda i: self.tail_loads(pos[nq + i], pos[nq + i + 1]))
        self.stamp(6)
        if c.tde == 1:
            self.tail_loads(16 - c.td2, 16)
        elif c.tde == 2:
            skip = self.lab("tde")
            a("s_cmp_lt_u32 %s, 2" % s(sW))
            a("s_cbranch_scc1 %s" % skip)
            self.tail_loads(16 - c.td2, 16)
            a.label(skip)
        if not c.gearly:
            self.gate()
        self.b_epilogue()

    def b_main(self):
        a, c = self.a, self.c
        if c.dyn:
            return self.b_main_dyn()
        nq = c.nq
        assert (self.QB - 1) % nq == 0
        nb = (self.QB - 1) // nq
        for r in range(4):
            a("v_mov_b32 %s, 0" % v(10 + r))
        a("v_mov_b32 v14, 0xff800000")
        a("v_mov_b32 v15, 0")
        self.b_block(2, 104, 112, lambda i: 63, lambda i: 63, lambda i: None, lambda i: None,
                     masked_last=True)
        self.stamp(4)
        loop = self.lab("b_loop")
        a("s_movk_i32 %s, %d" % (s(sIT), nb - 1))
        a.label(loop)
        a("s_add_u32 %s, %s, %d" % (s(sT5), s(sOFF), nq * 1024))
        self.b_block(nq, 40, 72, lambda i: 2 * nq - 1, lambda i: 2 * nq - 1,
                     lambda i: self.kv_load(40 + 4 * i, R_K, i, sT5),
                     lambda i: self.kv_load(72 + 4 * i, R_V, i, sT5))
        a("s_mov_b32 %s, %s" % (s(sOFF), s(sT5)))
        if c.bstamp:
            self.stamp_it(0, 1)
        a("s_sub_u32 %s, %s, 1" % (s(sIT), s(sIT)))
        a("s_cmp_lg_u32 %s, 0" % s(sIT))
        a("s_cbranch_scc1 %s" % loop)
        self.stamp(5)
        self.b_block(nq, 40, 72, lambda i: 2 * nq - 1 - i, lambda i: nq - 1 - i,
                     lambda i: None, lambda i: None)
        self.stamp(6)
        self.gate()
        self.b_epilogue()

    def gate(self):
        a = self.a
        G, X, Wt = 220, 204, 212
        a("v_dot2_f32_bf16 %s, %s, %s, 0" % (v(G), v(X), v(Wt)))
        for j in range(1, 8):
            a("v_dot2_f32_bf16 %s, %s, %s, %s" % (v(G), v(X + j), v(Wt + j), v(G)))
        self.allsum_row(G)
        self.allsum_g(G, 221)
        a("v_mul_f32 %s, %s, %s" % (v(G), f32(-LOG2E), v(G)))
        a("v_exp_f32 %s, %s" % (v(G), v(G)))
        a("v_add_f32 %s, 1.0, %s" % (v(G), v(G)))
        a("v_rcp_f32 %s, %s" % (v(G), v(G)))

    def b_epilogue(self):
        a, c = self.a, self.c
        O, M, L = 10, 14, 15
        self.allsum_g(L, 130)
        a("v_bfe_u32 %s, %s, 3, 1" % (v(vA0), v(vL)))
        a("v_lshlrev_b32 %s, 5, %s" % (v(vA2), v(vA0)))
        a("v_lshlrev_b32 %s, 11, %s" % (v(vA0), v(vA0)))
        a("v_lshrrev_b32 %s, 4, %s" % (v(vA1), v(vL)))
        a("v_lshlrev_b32 %s, 9, %s" % (v(vA1), v(vA1)))
        a("v_add_u32 %s, %s, %s" % (v(vA0), v(vA0), v(vA1)))
        a("v_and_b32 %s, 7, %s" % (v(vA1), v(vL)))
        a("v_lshlrev_b32 %s, 4, %s" % (v(vA1), v(vA1)))
        a("s_lshl_b32 %s, %s, 2" % (s(sT1), s(sW)))
        a("s_add_u32 %s, %s, %d" % (s(sT2), s(sT1), LO))
        a("v_add3_u32 %s, %s, %s, %s" % (v(vA0), v(vA0), v(vA1), s(sT2)))
        a("s_add_u32 %s, %s, %d" % (s(sT2), s(sT1), LML))
        a("v_add_u32 %s, %s, %s" % (v(vA2), s(sT2), v(vA2)))
        for r in range(4):
            a("ds_write_b32 %s, %s offset:%d" % (v(vA0), v(O + r), 128 * r))
        a("ds_write_b32 %s, %s" % (v(vA2), v(M)))
        a("ds_write_b32 %s, %s offset:16" % (v(vA2), v(L)))
        a("s_waitcnt lgkmcnt(0)")
        a("s_barrier")
        skip = self.lab("b_pub")
        a("s_cmp_ge_u32 %s, 2" % s(sW))
        a("s_cbranch_scc1 %s" % skip)
        a("s_lshl_b32 %s, %s, 11" % (s(sT1), s(sW)))
        a("s_add_u32 %s, %s, %d" % (s(sT1), s(sT1), LO))
        a("v_lshlrev_b32 %s, 5, %s" % (v(vA0), v(vL)))
        a("v_add_u32 %s, %s, %s" % (v(vA0), s(sT1), v(vA0)))
        a("s_lshl_b32 %s, %s, 5" % (s(sT1), s(sW)))
        a("s_add_u32 %s, %s, %d" % (s(sT1), s(sT1), LML))
        a("v_mov_b32 %s, %s" % (v(vA1), s(sT1)))
        a("ds_read_b128 v[40:43], %s" % v(vA1))
        a("ds_read_b128 v[44:47], %s offset:16" % v(vA1))
        a("ds_read_b128 v[48:51], %s" % v(vA0))
        a("ds_read_b128 v[52:55], %s offset:16" % v(vA0))
        a("s_lshl_b32 %s, %s, %d" % (s(sT1), s(sB), 11 - c.x4c))
        a("s_lshl_b32 %s, %s, %d" % (s(sT2), s(sW), 10 - c.x4c))
        a("s_add_u32 %s, %s, %s" % (s(sT1), s(sT1), s(sT2)))
        a("s_add_u32 %s, %s, 0x%x" % (s(sT1), s(sT1), WS_X4B))
        a("s_lshl_b32 %s, %s, 1" % (s(sT2), s(sB)))
        a("s_add_u32 %s, %s, %s" % (s(sT2), s(sT2), s(sW)))
        a("s_lshl_b32 %s, %s, 7" % (s(sT2), s(sT2)))
        a("s_add_u32 %s, %s, 0x%x" % (s(sT2), s(sT2), WS_X4L))
        a("s_waitcnt lgkmcnt(2)")
        a("v_max3_f32 v56, v40, v41, v42")
        a("v_max_f32 v56, v56, v43")
        for i in range(4):
            a("v_sub_f32 %s, %s, v56" % (v(40 + i), v(40 + i)))
        for i in range(4):
            a("v_exp_f32 %s, %s" % (v(40 + i), v(40 + i)))
        a("v_mul_f32 v57, v40, v44")
        for i in range(1, 4):
            a("v_fmac_f32 v57, %s, %s" % (v(40 + i), v(44 + i)))
        a("s_waitcnt lgkmcnt(0)")
        a("v_mul_f32 v58, v40, v48")
        a("v_mul_f32 v60, v40, v52")
        for i in range(1, 4):
            a("v_fmac_f32 v58, %s, %s" % (v(40 + i), v(48 + i)))
            a("v_fmac_f32 v60, %s, %s" % (v(40 + i), v(52 + i)))
        a("v_rcp_f32 v62, v57")
        a("v_log_f32 v63, v57")
        a("v_mov_b32 v59, %s" % s(sTAG))
        a("v_mov_b32 v61, %s" % s(sTAG))
        a("v_mul_f32 v58, v58, v62")
        a("v_mul_f32 v60, v60, v62")
        a("v_add_f32 v64, v56, v63")
        a("v_mov_b32 v65, %s" % s(sTAG))
        if c.x4c:
            a("v_cvt_pk_bf16_f32 v58, v58, v60")
            a("v_lshlrev_b32 %s, 3, %s" % (v(vA1), v(vL)))
            a("buffer_store_dwordx2 v[58:59], %s, %s, %s offen sc0 sc1" % (v(vA1), s(R_WS, 4), s(sT1)))
        else:
            a("buffer_store_dwordx4 v[58:61], %s, %s, %s offen sc0 sc1" % (v(vO16), s(R_WS, 4), s(sT1)))
        a("v_mov_b32 %s, 0" % v(vA0))
        a("s_mov_b64 exec, 1")
        a("buffer_store_dwordx2 v[64:65], %s, %s, %s offen sc0 sc1" % (v(vA0), s(R_WS, 4), s(sT2)))
        a("s_mov_b64 exec, -1")
        a.label(skip)
        self.stamp(7)
        a("s_cmp_lt_u32 %s, 9" % s(sJM))
        a("s_cbranch_scc1 L_tail")
        a("s_cmp_lg_u32 %s, 9" % s(sJM))
        a("s_cbranch_scc1 L_done")
        a("s_cmp_ge_u32 %s, 9" % s(sG))
        a("s_cbranch_scc1 L_done")
        a("s_cmp_lg_u32 %s, 0" % s(sW))
        a("s_cbranch_scc1 L_done")
        self.final()
        a.label("L_done")
        self.end()

    def final(self):
        a, c = self.a, self.c
        a("s_lshl_b32 %s, %s, 13" % (s(sT1), s(sG)))
        a("s_add_u32 %s, %s, 0x%x" % (s(sX1), s(sT1), WS_X5))
        a("v_and_b32 %s, 31, %s" % (v(vA0), v(vL)))
        a("v_lshlrev_b32 %s, 4, %s" % (v(vA0), v(vA0)))
        a("v_lshrrev_b32 %s, 5, %s" % (v(vA1), v(vL)))
        a("v_lshlrev_b32 %s, 9, %s" % (v(vA1), v(vA1)))
        a("v_add_u32 %s, %s, %s" % (v(vA0), v(vA0), v(vA1)))
        self.srd(R_OUT, P_OUT, "1152")

        def issue():
            for i in range(8):
                if i == 4:
                    a("s_add_u32 %s, %s, 4096" % (s(sT2), s(sX1)))
                a("buffer_load_dwordx4 %s, %s, %s, %s offen offset:%d sc1" % (
                    v(40 + 4 * i, 4), v(vA0), s(R_WS, 4), s(sX1 if i < 4 else sT2), 1024 * (i % 4)))

        def check():
            self.tagcheck(72, [40 + 4 * i + j for i in range(8) for j in (1, 3)])
            a("v_cmp_ne_u32 vcc, 0, v72")

        self.poll("x5", issue, check)
        self.stamp(12)
        for j in (0, 2):
            for i in (0, 2, 4, 6):
                a("v_add_f32 %s, %s, %s" % (v(40 + 4 * i + j), v(40 + 4 * i + j), v(44 + 4 * i + j)))
        for j in (0, 2):
            a("v_add_f32 %s, %s, %s" % (v(40 + j), v(40 + j), v(48 + j)))
            a("v_add_f32 %s, %s, %s" % (v(56 + j), v(56 + j), v(64 + j)))
        for j in (0, 2):
            a("v_add_f32 %s, %s, %s" % (v(40 + j), v(40 + j), v(56 + j)))
        a("v_mov_b32 v44, v40")
        a("v_mov_b32 v45, v42")
        a("v_permlane32_swap_b32 v40, v44")
        a("v_permlane32_swap_b32 v42, v45")
        a("v_add_f32 v40, v40, v44")
        a("v_add_f32 v42, v42, v45")
        a("v_cvt_pk_bf16_f32 v40, v40, v42")
        a("v_lshlrev_b32 %s, 2, %s" % (v(vA0), v(vL)))
        a("s_lshl_b32 %s, %s, 7" % (s(sT1), s(sG)))
        a("s_mov_b32 exec_hi, 0")
        a("buffer_store_dword v40, %s, %s, %s offen" % (v(vA0), s(R_OUT, 4), s(sT1)))
        done = self.lab("fin")
        a("s_cmp_lg_u32 %s, 0" % s(sG))
        a("s_cbranch_scc1 %s" % done)
        a("v_mov_b32 v41, %s" % s(sTAG))
        a("v_mov_b32 %s, %d" % (v(vA0), WS_EPOCH))
        a("s_mov_b64 exec, 1")
        a("buffer_store_dword v41, %s, %s, 0 offen sc0 sc1" % (v(vA0), s(R_WS, 4)))
        if c.elapsed:
            a("s_memrealtime %s" % s(sST, 2))
            a("s_waitcnt lgkmcnt(0)")
            a("s_sub_u32 %s, %s, s38" % (s(sT1), s(sST)))
            a("v_mov_b32 v41, %s" % s(sT1))
            a("v_mov_b32 %s, 0" % v(vA0))
            self.srd(R_OUT, 34, "256")
            a("buffer_store_dword v41, %s, %s, 0 offen" % (v(vA0), s(R_OUT, 4)))
        a.label(done)
        a("s_mov_b64 exec, -1")
        self.stamp(13)

    def reduce_wu8(self, acc, lds, dst):
        a = self.a
        a("v_lshrrev_b32 %s, 4, %s" % (v(vA0), v(vL)))
        a("v_and_b32 %s, 1, %s" % (v(vA1), v(vA0)))
        a("v_lshlrev_b32 %s, 10, %s" % (v(vA1), v(vA1)))
        a("v_lshrrev_b32 %s, 1, %s" % (v(vA0), v(vA0)))
        a("v_lshlrev_b32 %s, 2, %s" % (v(vA0), v(vA0)))
        a("v_add_u32 %s, %s, %s" % (v(vA0), v(vA0), v(vA1)))
        a("v_and_b32 %s, 7, %s" % (v(vA1), v(vL)))
        a("v_lshlrev_b32 %s, 5, %s" % (v(vA1), v(vA1)))
        a("s_lshl_b32 %s, %s, 3" % (s(sT1), s(sW)))
        a("s_add_u32 %s, %s, %d" % (s(sT1), s(sT1), lds))
        a("v_add3_u32 %s, %s, %s, %s" % (v(vA0), v(vA0), v(vA1), s(sT1)))
        self.mask64(sMS2, 0x00FF00FF, 0xFF00FF00)
        a("s_mov_b64 exec, %s" % s(sMS2, 2))
        for r in range(4):
            a("ds_write_b32 %s, %s offset:%d" % (v(vA0), v(acc + r), 256 * r))
        a("s_mov_b64 exec, -1")
        a("s_waitcnt lgkmcnt(0)")
        a("s_barrier")

    def tail_b_compact(self, G, join2):
        a, c = self.a, self.c
        NP = self.NP
        assert NP % 2 == 0
        NL = NP // 2
        a("s_mul_i32 %s, %s, %d" % (s(sX1), s(sG), NP * 1024))
        a("s_lshl_b32 %s, %s, 9" % (s(sT1), s(sT3)))
        a("s_add_u32 %s, %s, %s" % (s(sX1), s(sX1), s(sT1)))
        a("s_add_u32 %s, %s, 0x%x" % (s(sX1), s(sX1), WS_X4B))
        a("s_mul_i32 %s, %s, %d" % (s(sT5), s(sG), NP * 256))
        a("s_lshl_b32 %s, %s, 7" % (s(sT1), s(sT3)))
        a("s_add_u32 %s, %s, %s" % (s(sT5), s(sT5), s(sT1)))
        a("s_add_u32 %s, %s, 0x%x" % (s(sT5), s(sT5), WS_X4L))
        a("v_and_b32 %s, 15, %s" % (v(vA1), v(vL)))
        a("v_min_u32 %s, %d, %s" % (v(vA1), NL - 1, v(vA1)))
        a("v_lshlrev_b32 %s, 9, %s" % (v(vA1), v(vA1)))
        a("v_lshrrev_b32 %s, 5, %s" % (v(vA0), v(vL)))
        a("v_lshl_add_u32 %s, %s, 8, %s" % (v(vA1), v(vA0), v(vA1)))
        a("v_and_b32 %s, 31, %s" % (v(vA2), v(vL)))
        a("v_lshlrev_b32 %s, 4, %s" % (v(vA2), v(vA2)))
        a("v_lshl_add_u32 %s, %s, 10, %s" % (v(vA0), v(vA0), v(vA2)))

        def issue():
            a("buffer_load_dwordx2 v[96:97], %s, %s, %s offen sc1" % (v(vA1), s(R_WS, 4), s(sT5)))
            a("s_mov_b32 %s, %s" % (s(sT2), s(sX1)))
            for i in range(NL):
                o = " offset:2048" if i & 1 else ""
                a("buffer_load_dwordx4 %s, %s, %s, %s offen%s sc1" % (v(40 + 4 * i, 4), v(vA0), s(R_WS, 4), s(sT2), o))
                if i & 1 and i < NL - 1:
                    a("s_add_u32 %s, %s, 4096" % (s(sT2), s(sT2)))

        def check():
            self.tagcheck(98, [97] + [40 + 4 * i + j for i in range(NL) for j in (1, 3)])
            a("v_cmp_ne_u32 vcc, 0, v98")

        if c.tdp and c.td2:
            self.poll("x4c", issue, check, between=lambda: self.tail_loads(16 - c.td2, 16), first_wait=c.td2)
        else:
            self.poll("x4c", issue, check)
        self.stamp(8)
        a("v_mov_b32 v98, v96")
        self.allsum_row(98, "v_max_f32")
        a("v_mov_b32 v99, v98")
        a("v_permlane32_swap_b32 v98, v99")
        a("v_max_f32 v98, v98, v99")
        a("v_sub_f32 v96, v96, v98")
        a("v_exp_f32 v96, v96")
        self.mask64(sMS2, ((1 << NL) - 1) * 0x10001)
        a("v_cndmask_b32 v96, 0, v96, %s" % s(sMS2, 2))
        a("v_mov_b32 v98, v96")
        self.allsum_row(98)
        a("v_mov_b32 v99, v98")
        a("v_permlane32_swap_b32 v98, v99")
        a("v_add_f32 v98, v98, v99")
        a("v_rcp_f32 v98, v98")
        for i in range(NL):
            for k in range(2):
                q = 40 + 4 * i + 2 * k
                a("v_and_b32 %s, 0xffff0000, %s" % (v(q + 1), v(q)))
                a("v_lshlrev_b32 %s, 16, %s" % (v(q), v(q)))
        a("v_mul_f32 v96, v96, v98")
        for i in range(NL):
            for k in range(4):
                op = "v_mul_f32_dpp" if i == 0 else "v_fmac_f32_dpp"
                a("%s %s, v96, %s row_newbcast:%d row_mask:0xf bank_mask:0xf" % (op, v(100 + k), v(40 + 4 * i + k), i))
        for k in range(4):
            a("v_mov_b32 %s, %s" % (v(104 + k), v(100 + k)))
        for k in range(4):
            a("v_permlane32_swap_b32 %s, %s" % (v(100 + k), v(104 + k)))
        for k in range(4):
            a("v_add_f32 %s, %s, %s" % (v(100 + k), v(100 + k), v(104 + k)))
        for k in range(4):
            a("v_cvt_pk_bf16_f32 %s, %s, %s" % (v(100 + k), v(100 + k), v(100 + k)))
        a("s_lshl_b32 %s, %s, 9" % (s(sT1), s(sW)))
        a("s_add_u32 %s, %s, %d" % (s(sT1), s(sT1), LT))
        a("v_add_u32 %s, %s, %s" % (v(vA0), s(sT1), v(vA2)))
        a("ds_write_b128 %s, v[100:103]" % v(vA0))
        a("s_branch %s" % join2)

    def tail(self):
        a, c = self.a, self.c
        a.label("L_tail")
        if c.tde == 2:
            skip = self.lab("tdl")
            a("s_cmp_ge_u32 %s, 2" % s(sW))
            a("s_cbranch_scc1 %s" % skip)
            self.tail_loads(16 - c.td2, 16)
            a.label(skip)
        elif not c.tdp and not c.tde:
            self.tail_loads(16 - c.td2, 16)
        G = 220
        isa, join, join2 = self.lab("t_a"), self.lab("t_j"), self.lab("t_k")
        a("s_and_b32 %s, %s, 1" % (s(sT3), s(sW)))
        a("s_cmp_ge_u32 %s, 2" % s(sW))
        a("s_cbranch_scc1 %s" % isa)
        a("v_sub_f32 %s, 1.0, %s" % (v(G), v(G)))
        NP = self.NP
        if c.x4c:
            self.tail_b_compact(G, join2)
        else:
            self.tail_b_full(G, join)
        a.label(isa)
        self.tail_rest(G, join, join2)

    def tail_b_full(self, G, join):
        a, c = self.a, self.c
        NP = self.NP
        a("s_mul_i32 %s, %s, %d" % (s(sX1), s(sG), NP * 2048))
        a("s_lshl_b32 %s, %s, 10" % (s(sT1), s(sT3)))
        a("s_add_u32 %s, %s, %s" % (s(sX1), s(sX1), s(sT1)))
        a("s_add_u32 %s, %s, 0x%x" % (s(sX1), s(sX1), WS_X4B))
        a("s_mul_i32 %s, %s, %d" % (s(sT5), s(sG), NP * 256))
        a("s_lshl_b32 %s, %s, 7" % (s(sT1), s(sT3)))
        a("s_add_u32 %s, %s, %s" % (s(sT5), s(sT5), s(sT1)))
        a("s_add_u32 %s, %s, 0x%x" % (s(sT5), s(sT5), WS_X4L))
        a("v_and_b32 %s, 15, %s" % (v(vA1), v(vL)))
        a("v_min_u32 %s, %d, %s" % (v(vA1), NP - 1, v(vA1)))
        a("v_lshlrev_b32 %s, 8, %s" % (v(vA1), v(vA1)))

        def issue():
            a("buffer_load_dwordx2 v[96:97], %s, %s, %s offen sc1" % (v(vA1), s(R_WS, 4), s(sT5)))
            a("s_mov_b32 %s, %s" % (s(sT2), s(sX1)))
            for i in range(NP):
                o = " offset:2048" if i & 1 else ""
                a("buffer_load_dwordx4 %s, %s, %s, %s offen%s sc1" % (v(40 + 4 * i, 4), v(vO16), s(R_WS, 4), s(sT2), o))
                if i & 1 and i < NP - 1:
                    a("s_add_u32 %s, %s, 4096" % (s(sT2), s(sT2)))

        def check():
            self.tagcheck(98, [97] + [40 + 4 * i + j for i in range(NP) for j in (1, 3)])
            a("v_cmp_ne_u32 vcc, 0, v98")

        if c.lfirst:
            def issue_l():
                a("buffer_load_dwordx2 v[96:97], %s, %s, %s offen sc1" % (v(vA1), s(R_WS, 4), s(sT5)))

            def check_l():
                self.tagcheck(98, [97])
                a("v_cmp_ne_u32 vcc, 0, v98")

            self.poll("x4l", issue_l, check_l)
        self.poll("x4b", issue, check)
        self.stamp(8)
        a("v_mov_b32 v98, v96")
        self.allsum_row(98, "v_max_f32")
        a("v_sub_f32 v96, v96, v98")
        a("v_exp_f32 v96, v96")
        self.mask64(sMS2, ((1 << NP) - 1) * 0x10001)
        a("v_cndmask_b32 v96, 0, v96, %s" % s(sMS2, 2))
        a("v_mov_b32 v98, v96")
        self.allsum_row(98)
        a("v_rcp_f32 v98, v98")
        a("v_mul_f32 v96, v96, v98")
        for i in range(NP):
            a("v_readlane_b32 %s, v96, %d" % (s(8 + i), i))
        a("v_mul_f32 v100, %s, v40" % s(8))
        a("v_mul_f32 v101, %s, v42" % s(8))
        for i in range(1, NP):
            a("v_fmac_f32 v100, %s, %s" % (s(8 + i), v(40 + 4 * i)))
            a("v_fmac_f32 v101, %s, %s" % (s(8 + i), v(42 + 4 * i)))
        a("s_branch %s" % join)

    def tail_rest(self, G, join, join2):
        a, c = self.a, self.c
        a("s_lshl_b32 %s, %s, 1" % (s(sX1), s(sG)))
        a("s_add_u32 %s, %s, %s" % (s(sX1), s(sX1), s(sT3)))
        NH = self.NH
        a("s_lshl_b32 %s, %s, %d" % (s(sX1), s(sX1), 9 + NH))
        a("s_add_u32 %s, %s, 0x%x" % (s(sX1), s(sX1), WS_X4A))

        def issue_a():
            for h in range(NH):
                o = " offset:1024" if h else ""
                a("buffer_load_dwordx4 %s, %s, %s, %s offen%s sc1" % (v(40 + 4 * h, 4), v(vO16), s(R_WS, 4), s(sX1), o))

        def check_a():
            self.tagcheck(98, [41 + 4 * h + j for h in range(NH) for j in (0, 2)])
            a("v_cmp_ne_u32 vcc, 0, v98")

        if c.tdp and c.td2:
            self.poll("x4a", issue_a, check_a, between=lambda: self.tail_loads(16 - c.td2, 16), first_wait=c.td2)
        else:
            self.poll("x4a", issue_a, check_a)
        self.stamp(8)
        if NH == 1:
            a("v_mov_b32 v100, v40")
            a("v_mov_b32 v101, v42")
        else:
            a("v_add_f32 v100, v40, v44")
            a("v_add_f32 v101, v42, v46")
        a.label(join)
        self.dump(0, 100)
        self.dump(1, 101)
        self.dump(2, G)
        a("v_cvt_pk_bf16_f32 v100, v100, v100")
        a("v_cvt_pk_bf16_f32 v101, v101, v101")
        a("s_lshl_b32 %s, %s, 9" % (s(sT1), s(sW)))
        a("s_add_u32 %s, %s, %d" % (s(sT1), s(sT1), LT))
        a("v_lshlrev_b32 %s, 3, %s" % (v(vA0), v(vL)))
        a("v_add_u32 %s, %s, %s" % (v(vA0), s(sT1), v(vA0)))
        a("ds_write_b64 %s, v[100:101]" % v(vA0))
        a.label(join2)
        a("v_lshrrev_b32 %s, 3, %s" % (v(vA1), v(vL)))
        a("v_lshlrev_b32 %s, 2, %s" % (v(vA1), v(vA1)))
        a("v_add_u32 %s, %s, %s" % (v(vA1), s(sT1), v(vA1)))
        for t in range(0, 16, 2):
            a("ds_read2_b32 %s, %s offset0:%d offset1:%d" % (v(40 + t, 2), v(vA1), 8 * t, 8 * t + 8))
        for t in range(16):
            if t % 2 == 0:
                a("s_waitcnt lgkmcnt(%d)" % (7 - t // 2))
            if c.tdp and t >= 16 - c.td2:
                a("s_waitcnt vmcnt(%d)" % (15 - t))
            self.delta_mfma(10, v(140 + 4 * t, 4), 40 + t, 122 + 4 * (t & 1), t == 0)
        for r in range(4):
            self.dump(3 + r, 10 + r)
        self.dump(7, 140)
        for r in range(4):
            a("v_mul_f32 %s, %s, %s" % (v(10 + r), v(10 + r), v(G)))
        self.reduce_wu8(10, LR, 0)
        a("s_cmp_lg_u32 %s, 0" % s(sW))
        a("s_cbranch_scc1 L_tail_done")
        a("v_lshlrev_b32 %s, 5, %s" % (v(vA0), v(vL)))
        a("v_add_u32 %s, %d, %s" % (v(vA0), LR, v(vA0)))
        a("ds_read_b128 v[40:43], %s" % v(vA0))
        a("ds_read_b128 v[44:47], %s offset:16" % v(vA0))
        a("s_lshl_b32 %s, %s, 4" % (s(sT1), s(sJM)))
        a("s_add_u32 %s, %s, %s" % (s(sT1), s(sT1), s(sG)))
        a("s_lshl_b32 %s, %s, 9" % (s(sT1), s(sT1)))
        a("s_add_u32 %s, %s, 0x%x" % (s(sT1), s(sT1), WS_X5))
        a("v_lshlrev_b32 %s, 3, %s" % (v(vA1), v(vL)))
        a("s_waitcnt lgkmcnt(0)")
        a("v_add_f32 v40, v40, v41")
        a("v_add_f32 v42, v42, v43")
        a("v_add_f32 v44, v44, v45")
        a("v_add_f32 v46, v46, v47")
        a("v_add_f32 v40, v40, v42")
        a("v_add_f32 v44, v44, v46")
        a("v_add_f32 v40, v40, v44")
        a("v_mov_b32 v41, %s" % s(sTAG))
        a("buffer_store_dwordx2 v[40:41], %s, %s, %s offen sc0 sc1" % (v(vA1), s(R_WS, 4), s(sT1)))
        a.label("L_tail_done")
        self.stamp(9)
        self.end()

    def dma_rows(self, rows):
        a, c = self.a, self.c
        sDS, sDB = sT5, sT4
        grp = None
        for i in rows:
            if i // 4 != grp:
                grp = i // 4
                if grp == 0:
                    a("s_mov_b32 m0, %s" % s(sDB))
                    so = sDS
                else:
                    a("s_add_u32 %s, %s, 4096" % (s(sT1), s(sDB)))
                    a("s_add_u32 %s, %s, 4096" % (s(sT2), s(sDS)))
                    a("s_mov_b32 m0, %s" % s(sT1))
                    so = sT2
            o = " offset:%d" % (1024 * (i % 4)) if i % 4 else ""
            a("buffer_load_dwordx4 %s, %s, %s offen%s %s lds" % (v(222 + i), s(R_C, 4), s(so), o, c.nt))

    def dma_next(self):
        a = self.a
        sDS, sDB, sDX = sT5, sT4, sT3
        a("s_add_u32 %s, %s, 0x8000" % (s(sDS), s(sDS)))
        a("s_xor_b32 %s, %s, %s" % (s(sDB), s(sDB), s(sDX)))
        a("s_xor_b32 %s, %s, 0x18000" % (s(sDX), s(sDX)))

    def uv_loads(self, t0, t1):
        a, c = self.a, self.c
        for t in range(t0, t1):
            a("buffer_load_dwordx4 %s, v250, %s, %s offen %s" % (ar(128 + 4 * t, 4), s(R_UV, 4), s(sB), c.nt))
            if t < 32 // self.NH - 1:
                a("s_add_u32 %s, %s, 0x8000" % (s(sB), s(sB)))

    def uv_setup(self):
        a, c = self.a, self.c
        a("v_lshrrev_b32 %s, 4, %s" % (v(vA0), v(vL)))
        a("v_lshlrev_b32 %s, 13, %s" % (v(vA0), v(vA0)))
        a("v_and_b32 %s, 15, %s" % (v(vA1), v(vL)))
        a("v_lshlrev_b32 v250, 4, %s" % v(vA1))
        a("v_add_u32 v250, %s, v250" % v(vA0))
        if self.NH == 1:
            a("s_lshl_b32 %s, %s, 20" % (s(sB), s(sW)))
            a("s_lshl_b32 %s, s2, 8" % s(sT2))
        else:
            a("s_and_b32 %s, s2, 1" % s(sT2))
            a("s_lshl_b32 %s, %s, 2" % (s(sT2), s(sT2)))
            a("s_add_u32 %s, %s, %s" % (s(sB), s(sT2), s(sW)))
            a("s_lshl_b32 %s, %s, 19" % (s(sB), s(sB)))
            a("s_lshr_b32 %s, s2, 1" % s(sT2))
            a("s_lshl_b32 %s, %s, 8" % (s(sT2), s(sT2)))
        a("s_add_u32 %s, %s, %s" % (s(sB), s(sB), s(sT2)))

    def a_main(self):
        a, c = self.a, self.c
        a.label("L_a_main")
        sDS, sDB, sDX = sT5, sT4, sT3
        na, nb_, nc = [int(x) for x in c.dsplit.split(",")]
        assert na + nb_ + nc == 8
        rowsA, rowsB, rowsC = list(range(na)), list(range(na, na + nb_)), list(range(na + nb_, 8))
        a("s_mov_b32 %s, %s" % (s(sX1), s(sT5)))
        for k in range(8):
            a("v_xor_b32 %s, %d, %s" % (v(222 + k), 32 * k, v(vO16)))
        a("s_lshl_b32 %s, %s, 13" % (s(sDB), s(sW)))
        a("s_mov_b32 %s, %s" % (s(sDS), s(sDB)))
        a("s_mov_b32 %s, 0x8000" % s(sDX))
        self.dma_rows(range(8))
        if c.t1e:
            self.dma_next()
            self.dma_rows(range(8))
        if c.uve:
            self.uv_setup()
            self.uv_loads(0, min(c.uv0 - c.uv1, 32 // self.NH))

        def issue_q():
            self.x1_issue(X1A, sX1)

        def check_q():
            self.tagcheck(242, [X1A + 1, X1A + 3])
            a("v_cmp_ne_u32 vcc, 0, v242")

        self.poll("x1a", issue_q, check_q)
        self.stamp(3)
        self.x1_pack([X1A])
        self.uk_slice()
        self.stamp(4)
        if not c.t1e:
            self.dma_next()
            self.dma_rows(range(8))
        if c.uve and c.uv1:
            self.uv_loads(c.uv0 - c.uv1, c.uv0)
        if not c.uve:
            self.uv_setup()
        a("s_lshl_b32 %s, %s, 14" % (s(sX1), s(sW)))
        a("s_add_u32 %s, %s, 0x%x" % (s(sX1), s(sX1), WS_X2))

        def issue():
            a("s_mov_b32 %s, %s" % (s(sOFF), s(sX1)))
            for i in range(16):
                o = " offset:%d" % (1024 * (i % 4)) if i % 4 else ""
                a("buffer_load_dwordx4 %s, %s, %s, %s offen%s sc1" % (v(40 + 4 * i, 4), v(vO16), s(R_WS, 4), s(sOFF), o))
                if i % 4 == 3 and i < 15:
                    a("s_add_u32 %s, %s, 4096" % (s(sOFF), s(sOFF)))

        def check():
            self.tagcheck(104, [40 + 4 * i + j for i in range(16) for j in (1, 3)])
            a("v_cmp_ne_u32 vcc, 0, v104")

        self.poll("x2", issue, check)
        self.stamp(5)
        self.dma_next()
        self.dma_rows(rowsA + rowsB)
        if not c.uve:
            self.uv_loads(0, min(c.uv0, 32 // self.NH))
        a("v_lshrrev_b32 %s, 1, %s" % (v(vA0), v(vL)))
        a("v_lshlrev_b32 %s, 4, %s" % (v(vA0), v(vA0)))
        a("v_and_b32 %s, 1, %s" % (v(vA1), v(vL)))
        a("v_lshlrev_b32 %s, 3, %s" % (v(vA1), v(vA1)))
        a("s_lshl_b32 %s, %s, 13" % (s(sT1), s(sW)))
        a("s_add_u32 %s, %s, %d" % (s(sT1), s(sT1), LQA))
        a("v_add_u32 %s, %s, %s" % (v(vA0), v(vA0), v(vA1)))
        for hq in range(8):
            a("v_xor_b32 %s, %d, %s" % (v(104 + hq), 32 * hq, v(vA0)))
            a("v_add_u32 %s, %s, %s" % (v(104 + hq), s(sT1), v(104 + hq)))
        for i in range(16):
            a("v_mov_b32 %s, %s" % (v(41 + 4 * i), v(42 + 4 * i)))
        for i in range(16):
            hq, half = i >> 1, i & 1
            a("ds_write_b64 %s, %s offset:%d" % (v(104 + hq), v(40 + 4 * i, 2), hq * 1024 + half * 512))
        AQ, AT = 210, 214
        a("v_and_b32 %s, 15, %s" % (v(vA0), v(vL)))
        a("v_lshlrev_b32 %s, 10, %s" % (v(vA1), v(vA0)))
        a("v_and_b32 %s, 7, %s" % (v(vA0), v(vA0)))
        a("v_lshlrev_b32 %s, 5, %s" % (v(vA0), v(vA0)))
        a("v_lshrrev_b32 %s, 4, %s" % (v(vA2), v(vL)))
        a("v_lshlrev_b32 %s, 4, %s" % (v(vA2), v(vA2)))
        for b in range(4):
            a("v_add_u32 %s, %d, %s" % (v(AQ + b), 64 * b, v(vA2)))
            a("v_xor_b32 %s, %s, %s" % (v(AQ + b), v(AQ + b), v(vA0)))
            a("v_add_u32 %s, %s, %s" % (v(AQ + b), v(AQ + b), v(vA1)))
        a("s_waitcnt lgkmcnt(0)")
        a("s_barrier")
        a("s_lshr_b32 %s, %s, 1" % (s(sT1), s(sW)))
        a("s_lshl_b32 %s, %s, 14" % (s(sT1), s(sT1)))
        a("s_add_u32 %s, %s, %d" % (s(sT1), s(sT1), LQA))
        for b in range(4):
            a("v_add_u32 %s, %s, %s" % (v(112 + b), s(sT1), v(AQ + b)))
        for ks in range(16):
            a("ds_read_b128 %s, %s offset:%d" % (ar(4 * ks, 4), v(112 + (ks & 3)), (ks >> 2) * 256))
        a("s_and_b32 %s, %s, 1" % (s(sT1), s(sW)))
        a("s_lshl_b32 %s, %s, 14" % (s(sT1), s(sT1)))
        for b in range(4):
            a("v_add_u32 %s, %s, %s" % (v(AQ + b), s(sT1), v(AQ + b)))
        a("v_lshrrev_b32 %s, 4, %s" % (v(vA0), v(vL)))
        a("v_lshlrev_b32 %s, 2, %s" % (v(vA0), v(vA0)))
        a("v_bfe_u32 %s, %s, 2, 2" % (v(vA1), v(vL)))
        a("v_add_u32 %s, %s, %s" % (v(vA0), v(vA0), v(vA1)))
        a("v_and_b32 %s, 7, %s" % (v(vA1), v(vA0)))
        a("v_lshlrev_b32 %s, 5, %s" % (v(vA1), v(vA1)))
        a("v_lshlrev_b32 %s, 10, %s" % (v(vA0), v(vA0)))
        a("v_and_b32 %s, 3, %s" % (v(vA2), v(vL)))
        a("v_lshlrev_b32 %s, 3, %s" % (v(vA2), v(vA2)))
        a("s_lshl_b32 %s, %s, 8" % (s(sT1), s(sW)))
        a("v_add3_u32 %s, %s, %s, %s" % (v(vA0), v(vA0), v(vA2), s(sT1)))
        for ct in range(8):
            a("v_xor_b32 %s, %d, %s" % (v(AT + ct), 32 * ct, v(vA1)))
            a("v_add_u32 %s, %s, %s" % (v(AT + ct), v(AT + ct), v(vA0)))
        AMW, AMR, APW, APR = 230, 231, 232, 233
        a("v_and_b32 %s, 15, %s" % (v(vA0), v(vL)))
        a("v_lshlrev_b32 %s, 4, %s" % (v(vA0), v(vA0)))
        a("v_add_u32 %s, %d, %s" % (v(AMR), LMX, v(vA0)))
        a("s_lshr_b32 %s, %s, 1" % (s(sT1), s(sW)))
        a("s_and_b32 %s, %s, 1" % (s(sT2), s(sW)))
        a("s_lshl_b32 %s, %s, 3" % (s(sOFF), s(sT1)))
        a("s_lshl_b32 %s, %s, 2" % (s(sX1), s(sT2)))
        a("s_add_u32 %s, %s, %s" % (s(sOFF), s(sOFF), s(sX1)))
        a("v_add_u32 %s, %s, %s" % (v(AMW), s(sOFF), v(AMR)))
        a("v_add_u32 %s, %d, %s" % (v(APR), LP, v(vO16)))
        a("s_lshl_b32 %s, %s, 10" % (s(sOFF), s(sT1)))
        a("s_lshl_b32 %s, %s, 3" % (s(sX1), s(sT2)))
        a("s_add_u32 %s, %s, %s" % (s(sOFF), s(sOFF), s(sX1)))
        a("v_add_u32 %s, %s, %s" % (v(APW), s(sOFF), v(APR)))
        a("s_cmp_ge_u32 %s, 2" % s(sW))
        a("s_cselect_b64 %s, -1, 0" % s(sMSK, 2))
        ACC, OP, S8, M0, L0, AL, PO = 40, 104, 168, 176, 178, 180, 182
        for i in range(64):
            a("v_mov_b32 %s, 0" % v(ACC + i))
        a("v_mov_b32 %s, 0xff800000" % v(M0))
        a("v_mov_b32 %s, 0xff800000" % v(M0 + 1))
        a("v_mov_b32 %s, 0" % v(L0))
        a("s_waitcnt lgkmcnt(0)")
        a("s_barrier")
        self.stamp(6)
        a("s_mov_b32 %s, 0" % s(sIT))
        a("s_mov_b32 %s, 0x8000" % s(sOFF))
        loop = self.lab("a_loop")
        a.label(loop)
        self.stamp_it(0, 3)
        for ks in range(16):
            a("ds_read_b128 %s, %s offset:%d" % (v(OP + 4 * ks, 4), v(AQ + (ks & 3)), (ks >> 2) * 256))
        cpos = {(4 + 4 * i): r for i, r in enumerate(rowsC)}
        for ks in range(16):
            a("s_waitcnt lgkmcnt(%d)" % (15 - ks))
            acc = S8 + 4 * (ks & 1)
            a("v_mfma_f32_16x16x32_bf16 %s, %s, %s, %s" % (
                v(acc, 4), v(OP + 4 * ks, 4), ar(4 * ks, 4), "0" if ks < 2 else v(acc, 4)))
            if ks in cpos:
                self.dma_rows([cpos[ks]])
        T0 = 198
        for r in range(4):
            a("v_add_f32 %s, %s, %s" % (v(S8 + r), v(S8 + r), v(S8 + 4 + r)))
        a("v_max3_f32 %s, %s, %s, %s" % (v(T0), v(S8), v(S8 + 1), v(S8 + 2)))
        a("v_max_f32 %s, %s, %s" % (v(T0), v(T0), v(S8 + 3)))
        self.allsum_g(T0, T0 + 1, "v_max_f32")
        a("ds_write_b32 %s, %s" % (v(AMW), v(T0)))
        a("s_waitcnt lgkmcnt(0)")
        a("s_barrier")
        a("ds_read_b128 %s, %s" % (v(T0, 4), v(AMR)))
        self.dma_next()
        a("s_cmp_ge_u32 %s, %d" % (s(sIT), self.NIT - 3))
        a("s_cselect_b32 %s, 0, %d" % (s(R_C + 2), self.KEYS * 1024))
        self.dma_rows(rowsA)
        a("s_waitcnt lgkmcnt(0)")
        a("v_max3_f32 %s, %s, %s, %s" % (v(T0), v(T0), v(T0 + 1), v(M0)))
        a("v_max3_f32 %s, %s, %s, %s" % (v(T0 + 2), v(T0 + 2), v(T0 + 3), v(M0 + 1)))
        a("v_cndmask_b32 %s, %s, %s, %s" % (v(T0 + 1), v(T0), v(T0 + 2), s(sMSK, 2)))
        a("v_sub_f32 %s, %s, %s" % (v(AL), v(M0), v(T0)))
        a("v_sub_f32 %s, %s, %s" % (v(AL + 1), v(M0 + 1), v(T0 + 2)))
        for r in range(4):
            a("v_sub_f32 %s, %s, %s" % (v(S8 + r), v(S8 + r), v(T0 + 1)))
        a("v_exp_f32 %s, %s" % (v(AL), v(AL)))
        a("v_exp_f32 %s, %s" % (v(AL + 1), v(AL + 1)))
        for r in range(4):
            a("v_exp_f32 %s, %s" % (v(S8 + r), v(S8 + r)))
        a("v_mov_b32 %s, %s" % (v(M0), v(T0)))
        a("v_mov_b32 %s, %s" % (v(M0 + 1), v(T0 + 2)))
        a("v_cvt_pk_bf16_f32 %s, %s, %s" % (v(T0), v(S8), v(S8 + 1)))
        a("v_cvt_pk_bf16_f32 %s, %s, %s" % (v(T0 + 1), v(S8 + 2), v(S8 + 3)))
        a("ds_write_b64 %s, %s" % (v(APW), v(T0, 2)))
        a("v_cndmask_b32 %s, %s, %s, %s" % (v(T0 + 2), v(AL), v(AL + 1), s(sMSK, 2)))
        a("v_add_f32 %s, %s, %s" % (v(S8), v(S8), v(S8 + 1)))
        a("v_add_f32 %s, %s, %s" % (v(S8 + 2), v(S8 + 2), v(S8 + 3)))
        a("v_add_f32 %s, %s, %s" % (v(S8), v(S8), v(S8 + 2)))
        a("v_fma_f32 %s, %s, %s, %s" % (v(L0), v(L0), v(T0 + 2), v(S8)))

        def rescale(ct):
            for ht in range(2):
                sel = "op_sel_hi:[1,0]" if ht == 0 else "op_sel:[0,1] op_sel_hi:[1,1]"
                for h in range(2):
                    x = ACC + 8 * ct + 4 * ht + 2 * h
                    a("v_pk_mul_f32 %s, %s, %s %s" % (v(x, 2), v(x, 2), v(AL, 2), sel))
        rescale(0)
        nowait = self.lab("a_nw")
        a("s_cmp_eq_u32 %s, 0" % s(sIT))
        a("s_cbranch_scc1 %s" % nowait)
        a("s_waitcnt vmcnt(%d)" % (na + 8))
        a.label(nowait)
        a("s_waitcnt lgkmcnt(0)")
        a("s_barrier")
        self.stamp_it(1, 3)
        for ht in range(2):
            a("ds_read_b128 %s, %s offset:%d" % (v(PO + 4 * ht, 4), v(APR), ht * 1024))

        def tr_reads(ct):
            for hf in range(2):
                a("ds_read_b64_tr_b16 %s, %s offset:%d" % (v(OP + 4 * ct + 2 * hf, 2), v(AT + ct), 16384 * hf))
        for ct in range(6):
            tr_reads(ct)
        issued = 6
        bpos = {(1 + 2 * i): r for i, r in enumerate(rowsB)}
        for ct in range(8):
            if ct < 7:
                rescale(ct + 1)
            a("s_waitcnt lgkmcnt(%d)" % (2 * (issued - ct - 1)))
            for ht in range(2):
                x = ACC + 8 * ct + 4 * ht
                a("v_mfma_f32_16x16x32_bf16 %s, %s, %s, %s" % (
                    v(x, 4), v(OP + 4 * ct, 4), v(PO + 4 * ht, 4), v(x, 4)))
            if issued < 8:
                tr_reads(issued)
                issued += 1
            if ct in bpos:
                self.dma_rows([bpos[ct]])
        for b in range(4):
            a("v_xor_b32 %s, %s, %s" % (v(AQ + b), s(sOFF), v(AQ + b)))
        for ct in range(8):
            a("v_xor_b32 %s, %s, %s" % (v(AT + ct), s(sOFF), v(AT + ct)))
        a("s_xor_b32 %s, %s, 0x18000" % (s(sOFF), s(sOFF)))
        self.stamp_it(2, 3)
        a("s_add_u32 %s, %s, 1" % (s(sIT), s(sIT)))
        a("s_cmp_lt_u32 %s, %d" % (s(sIT), self.NIT))
        a("s_cbranch_scc1 %s" % loop)
        self.stamp(7)
        self.a_finish(ACC, OP, M0, L0)

    def a_finish_u(self, ACC, OP, M0, L0):
        a, c = self.a, self.c
        assert self.NH == 2
        NT = 16
        a("v_and_b32 %s, 15, %s" % (v(vA1), v(vL)))
        a("v_lshlrev_b32 %s, 16, %s" % (v(vA0), v(vA1)))
        a("v_lshrrev_b32 %s, 4, %s" % (v(vA2), v(vL)))
        a("v_lshlrev_b32 %s, 4, %s" % (v(vA2), v(vA2)))
        a("v_add_u32 %s, %s, %s" % (v(vA0), v(vA0), v(vA2)))
        a("s_lshl_b32 %s, s2, 10" % s(sT1))
        a("s_lshl_b32 %s, %s, 8" % (s(sT2), s(sW)))
        a("s_add_u32 %s, %s, %s" % (s(sT1), s(sT1), s(sT2)))
        a("s_add_u32 %s, %s, 0x%x" % (s(sT1), s(sT1), WS_X3))
        a("s_add_u32 %s, %s, 0x100000" % (s(sT2), s(sT1)))
        n = 0
        for q in range(4):
            for ht in range(2):
                r = OP + 4 * n
                for k in range(2):
                    x = ACC + 8 * (2 * q + k) + 4 * ht
                    a("v_cvt_pk_bf16_f32 %s, %s, %s" % (v(r + 2 * k), v(x), v(x + 1)))
                    a("v_cvt_pk_bf16_f32 %s, %s, %s" % (v(r + 2 * k + 1), v(x + 2), v(x + 3)))
                o = " offset:%d" % (64 * q) if q else ""
                a("buffer_store_dwordx4 %s, %s, %s, %s offen%s sc0 sc1" % (
                    v(r, 4), v(vA0), s(R_WS, 4), s(sT2 if ht else sT1), o))
                n += 1
        self.stamp(12)
        u0 = min(c.uv0, NT)
        self.uv_loads(u0, NT)
        self.allsum_g(L0, 198)
        a("v_cndmask_b32 v204, %s, %s, %s" % (v(M0), v(M0 + 1), s(sMSK, 2)))
        a("v_mov_b32 v205, %s" % s(sTAG))
        a("v_mov_b32 v206, %s" % v(L0))
        a("v_mov_b32 v207, %s" % s(sTAG))
        a("v_lshlrev_b32 %s, 11, %s" % (v(vA1), v(vA1)))
        a("s_lshr_b32 %s, %s, 1" % (s(sT1), s(sW)))
        a("s_lshl_b32 %s, %s, 15" % (s(sT1), s(sT1)))
        a("s_and_b32 %s, %s, 1" % (s(sT2), s(sW)))
        a("s_lshl_b32 %s, %s, 4" % (s(sT2), s(sT2)))
        a("s_add_u32 %s, %s, %s" % (s(sT1), s(sT1), s(sT2)))
        a("s_lshl_b32 %s, s2, 5" % s(sT2))
        a("s_add_u32 %s, %s, %s" % (s(sT1), s(sT1), s(sT2)))
        a("s_add_u32 %s, %s, 0x%x" % (s(sT1), s(sT1), WS_ML))
        a("s_waitcnt vmcnt(%d)" % (NT - u0))
        a("s_barrier")
        a("s_mov_b64 exec, 0xffff")
        a("buffer_store_dwordx4 v[204:207], %s, %s, %s offen sc0 sc1" % (v(vA1), s(R_WS, 4), s(sT1)))
        if c.mlw == 2:
            a("s_mov_b32 %s, 0x%x" % (s(sT2), WS_HINT))
            a("v_lshlrev_b32 v219, 8, %s" % v(vL))
            a("v_mov_b32 v218, 1")
            a("s_mov_b64 exec, 0xff")
            a("buffer_atomic_add v218, v219, %s, %s offen sc1" % (s(R_WS, 4), s(sT2)))
        a("s_mov_b64 exec, -1")
        self.stamp(8)
        a("s_lshr_b32 %s, s2, 1" % s(sB))
        a("s_lshl_b32 %s, %s, 11" % (s(sX1), s(sB)))
        a("s_add_u32 %s, %s, 0x%x" % (s(sX1), s(sX1), WS_ML))
        MR = [200, 210]

        def issue():
            for h in range(2):
                o = " offset:1024" if h else ""
                a("buffer_load_dwordx4 %s, %s, %s, %s offen%s sc1" % (v(MR[h], 4), v(vO16), s(R_WS, 4), s(sX1), o))

        def check():
            self.tagcheck(204, [m + j for m in MR for j in (1, 3)])
            a("v_cmp_ne_u32 vcc, 0, v204")

        a("v_lshrrev_b32 %s, 3, %s" % (v(vA0), v(vL)))
        a("v_lshlrev_b32 %s, 10, %s" % (v(vA1), v(vA0)))
        a("v_and_b32 %s, 7, %s" % (v(vA2), v(vL)))
        a("v_lshlrev_b32 v208, 4, %s" % v(vA2))
        a("v_add_u32 v208, %s, v208" % v(vA1))
        a("v_lshlrev_b32 v209, 3, %s" % v(vA0))
        def x3_loads():
            a("s_lshl_b32 %s, %s, 16" % (s(sT4), s(sB)))
            a("s_lshl_b32 %s, %s, 7" % (s(sT2), s(sW)))
            a("s_add_u32 %s, %s, %s" % (s(sT4), s(sT4), s(sT2)))
            a("s_and_b32 %s, s2, 1" % s(sT2))
            a("s_lshl_b32 %s, %s, 9" % (s(sT2), s(sT2)))
            a("s_add_u32 %s, %s, %s" % (s(sT4), s(sT4), s(sT2)))
            a("s_add_u32 %s, %s, 0x%x" % (s(sT4), s(sT4), WS_X3))
            for i in range(8):
                a("buffer_load_dwordx4 %s, v208, %s, %s offen sc1" % (v(40 + 4 * i, 4), s(R_WS, 4), s(sT4)))
                if i < 7:
                    a("s_add_u32 %s, %s, 8192" % (s(sT4), s(sT4)))

        if c.mlw == 2:
            go = self.lab("ml_go")
            a("s_cmp_lg_u32 %s, 0" % s(sW))
            a("s_cbranch_scc1 %s" % go)
            a("s_and_b32 %s, s2, 7" % s(sT2))
            a("s_lshl_b32 %s, %s, 8" % (s(sT2), s(sT2)))
            a("s_add_u32 %s, %s, 0x%x" % (s(sT2), s(sT2), WS_HINT))
            a("s_mov_b64 exec, 1")

            def issue_h():
                a("buffer_load_dword v220, v219, %s, %s offen sc1" % (s(R_WS, 4), s(sT2)))

            def check_h():
                a("v_cmp_ne_u32 vcc, 0x100, v220")

            self.poll("hint", issue_h, check_h)
            a("s_mov_b64 exec, -1")
            a.label(go)
            a("s_barrier")
            self.poll("ml", issue, check, between=x3_loads, first_wait=8)
        elif c.mlw:
            lead, go = self.lab("ml_lead"), self.lab("ml_go")
            a("s_cmp_eq_u32 %s, 0" % s(sW))
            a("s_cbranch_scc1 %s" % lead)
            a("s_barrier")
            self.poll("mlf", issue, check)
            a("s_branch %s" % go)
            a.label(lead)
            self.poll("ml", issue, check)
            a("s_barrier")
            a.label(go)
        else:
            self.poll("ml", issue, check)
        self.stamp(9)
        if c.mlw != 2:
            x3_loads()
        a("v_max_f32 v204, v200, v210")
        self.allsum_row(204, "v_max_f32")
        self.allsum_g(204, 205, "v_max_f32")
        for m in MR:
            a("v_sub_f32 %s, %s, v204" % (v(m), v(m)))
        for m in MR:
            a("v_exp_f32 %s, %s" % (v(m), v(m)))
        a("v_mul_f32 v204, v200, v202")
        a("v_fmac_f32 v204, v210, v212")
        self.allsum_row(204)
        self.allsum_g(204, 205)
        a("v_rcp_f32 v204, v204")
        for m in MR:
            a("v_mul_f32 %s, %s, v204" % (v(m), v(m)))
        for i in range(8):
            a("v_add_u32 %s, %d, v209" % (v(168 + i), (64 * i) & 255))
        for i in range(8):
            a("ds_bpermute_b32 %s, %s, %s" % (v(168 + i), v(168 + i), v(MR[i >> 2])))
        a("s_waitcnt lgkmcnt(0)")
        for i in range(8):
            q, wt = 40 + 4 * i, 168 + i
            tb = 112 + 8 * (i & 1)
            a("s_waitcnt vmcnt(%d)" % (7 - i))
            for d in range(4):
                a("v_lshlrev_b32 %s, 16, %s" % (v(tb + 2 * d), v(q + d)))
                a("v_and_b32 %s, 0xffff0000, %s" % (v(tb + 2 * d + 1), v(q + d)))
            sel = "op_sel_hi:[1,0,1]" if wt % 2 == 0 else "op_sel:[0,1,0] op_sel_hi:[1,1,1]"
            wp = v(wt & ~1, 2)
            for d in range(4):
                if i == 0:
                    a("v_pk_mul_f32 %s, %s, %s op_sel_hi:[1,0]" % (v(104 + 2 * d, 2), v(tb + 2 * d, 2), wp))
                else:
                    a("v_pk_fma_f32 %s, %s, %s, %s %s" % (v(104 + 2 * d, 2), v(tb + 2 * d, 2), wp, v(104 + 2 * d, 2), sel))
        self.stamp(11)
        for r in range(8):
            a("v_add_f32_dpp %s, %s, %s row_ror:8 row_mask:0xf bank_mask:0xf" % (v(104 + r), v(104 + r), v(104 + r)))
        for swap in ("v_permlane16_swap_b32", "v_permlane32_swap_b32"):
            for r in range(8):
                a("v_mov_b32 %s, %s" % (v(112 + r), v(104 + r)))
            for r in range(8):
                a("%s %s, %s" % (swap, v(104 + r), v(112 + r)))
            for r in range(8):
                a("v_add_f32 %s, %s, %s" % (v(104 + r), v(104 + r), v(112 + r)))
        for r in range(8):
            a("v_cvt_pk_bf16_f32 %s, %s, %s" % (v(104 + r), v(104 + r), v(104 + r)))
        a("s_lshl_b32 %s, %s, 9" % (s(sT1), s(sW)))
        a("s_add_u32 %s, %s, %d" % (s(sT1), s(sT1), LT))
        a("v_lshrrev_b32 %s, 2, %s" % (v(vA0), v(vA2)))
        a("v_lshlrev_b32 %s, 7, %s" % (v(vA0), v(vA0)))
        a("v_and_b32 %s, 3, %s" % (v(vA2), v(vA2)))
        a("v_lshlrev_b32 %s, 4, %s" % (v(vA2), v(vA2)))
        a("v_add3_u32 %s, %s, %s, %s" % (v(vA0), v(vA0), v(vA2), s(sT1)))
        a("ds_write_b128 %s, v[104:107]" % v(vA0))
        a("ds_write_b128 %s, v[108:111] offset:64" % v(vA0))
        self.a_gemv()

    def a_finish(self, ACC, OP, M0, L0):
        a, c = self.a, self.c
        if c.x3u:
            return self.a_finish_u(ACC, OP, M0, L0)
        a("v_and_b32 %s, 15, %s" % (v(vA1), v(vL)))
        NH = self.NH
        HS = 15 + NH
        a("v_lshlrev_b32 %s, %d, %s" % (v(vA0), HS, v(vA1)))
        a("v_lshrrev_b32 %s, 4, %s" % (v(vA2), v(vL)))
        a("v_lshlrev_b32 %s, 4, %s" % (v(vA2), v(vA2)))
        a("v_add_u32 %s, %s, %s" % (v(vA0), v(vA0), v(vA2)))
        a("s_lshl_b32 %s, s2, 11" % s(sT1))
        a("s_lshl_b32 %s, %s, 9" % (s(sT2), s(sW)))
        a("s_add_u32 %s, %s, %s" % (s(sT1), s(sT1), s(sT2)))
        a("s_add_u32 %s, %s, 0x%x" % (s(sT1), s(sT1), WS_X3))
        a("s_add_u32 %s, %s, 0x%x" % (s(sT2), s(sT1), 16 << HS))
        for i in range(8):
            a("v_mov_b32 %s, %s" % (v(OP + 2 * i + 1), s(sTAG)))
        n = 0
        for ct in range(8):
            for ht in range(2):
                x, q = ACC + 8 * ct + 4 * ht, OP + 4 * (n & 3)
                a("v_cvt_pk_bf16_f32 %s, %s, %s" % (v(q), v(x), v(x + 1)))
                a("v_cvt_pk_bf16_f32 %s, %s, %s" % (v(q + 2), v(x + 2), v(x + 3)))
                o = " offset:%d" % (64 * ct) if ct else ""
                a("buffer_store_dwordx4 %s, %s, %s, %s offen%s sc0 sc1" % (
                    v(q, 4), v(vA0), s(R_WS, 4), s(sT2 if ht else sT1), o))
                n += 1
        self.stamp(12)
        self.allsum_g(L0, 198)
        a("v_cndmask_b32 v204, %s, %s, %s" % (v(M0), v(M0 + 1), s(sMSK, 2)))
        a("v_mov_b32 v205, %s" % s(sTAG))
        a("v_mov_b32 v206, %s" % v(L0))
        a("v_mov_b32 v207, %s" % s(sTAG))
        a("v_lshlrev_b32 %s, %d, %s" % (v(vA1), 9 + NH, v(vA1)))
        a("s_lshr_b32 %s, %s, 1" % (s(sT1), s(sW)))
        a("s_lshl_b32 %s, %s, %d" % (s(sT1), s(sT1), 13 + NH))
        a("s_and_b32 %s, %s, 1" % (s(sT2), s(sW)))
        a("s_lshl_b32 %s, %s, 4" % (s(sT2), s(sT2)))
        a("s_add_u32 %s, %s, %s" % (s(sT1), s(sT1), s(sT2)))
        a("s_lshl_b32 %s, s2, 5" % s(sT2))
        a("s_add_u32 %s, %s, %s" % (s(sT1), s(sT1), s(sT2)))
        a("s_add_u32 %s, %s, 0x%x" % (s(sT1), s(sT1), WS_ML))
        a("s_mov_b64 exec, 0xffff")
        a("buffer_store_dwordx4 v[204:207], %s, %s, %s offen sc0 sc1" % (v(vA1), s(R_WS, 4), s(sT1)))
        a("s_mov_b64 exec, -1")
        NT = 32 // NH
        self.uv_loads(min(c.uv0, NT), NT)
        self.stamp(8)
        a("s_lshr_b32 %s, s2, %d" % (s(sB), NH - 1))
        a("s_lshl_b32 %s, %s, %d" % (s(sX1), s(sB), 9 + NH))
        a("s_add_u32 %s, %s, 0x%x" % (s(sX1), s(sX1), WS_ML))
        MR = [200, 210][:NH]

        def issue():
            for h in range(NH):
                o = " offset:1024" if h else ""
                a("buffer_load_dwordx4 %s, %s, %s, %s offen%s sc1" % (v(MR[h], 4), v(vO16), s(R_WS, 4), s(sX1), o))

        def check():
            self.tagcheck(204, [m + j for m in MR for j in (1, 3)])
            a("v_cmp_ne_u32 vcc, 0, v204")

        self.poll("ml", issue, check)
        self.stamp(9)
        SP = 2 * NH
        LS = 6 - NH
        a("v_lshrrev_b32 %s, %d, %s" % (v(vA0), LS, v(vL)))
        a("v_lshlrev_b32 %s, 11, %s" % (v(vA1), v(vA0)))
        a("v_and_b32 %s, %d, %s" % (v(vA2), (1 << LS) - 1, v(vL)))
        a("v_lshlrev_b32 %s, 4, %s" % (v(vA2), v(vA2)))
        a("v_add_u32 v208, %s, %s" % (v(vA1), v(vA2)))
        a("v_lshlrev_b32 v209, 3, %s" % v(vA0))
        a("s_lshl_b32 %s, %s, %d" % (s(sX1), s(sB), HS))
        a("s_lshl_b32 %s, %s, %d" % (s(sT2), s(sW), 10 - NH))
        a("s_add_u32 %s, %s, %s" % (s(sX1), s(sX1), s(sT2)))
        if NH == 2:
            a("s_and_b32 %s, s2, 1" % s(sT2))
            a("s_lshl_b32 %s, %s, 10" % (s(sT2), s(sT2)))
            a("s_add_u32 %s, %s, %s" % (s(sX1), s(sX1), s(sT2)))
        a("s_add_u32 %s, %s, 0x%x" % (s(sX1), s(sX1), WS_X3))

        def issue3():
            a("s_mov_b32 %s, %s" % (s(sT1), s(sX1)))
            for i in range(16):
                a("buffer_load_dwordx4 %s, v208, %s, %s offen sc1" % (v(40 + 4 * i, 4), s(R_WS, 4), s(sT1)))
                if i < 15:
                    a("s_add_u32 %s, %s, %d" % (s(sT1), s(sT1), 2048 * SP))

        def check3():
            self.tagcheck(204, [40 + 4 * i + j for i in range(16) for j in (1, 3)])
            a("v_cmp_ne_u32 vcc, 0, v204")

        def weights():
            if NH == 1:
                a("v_mov_b32 v204, v200")
            else:
                a("v_max_f32 v204, v200, v210")
            self.allsum_row(204, "v_max_f32")
            self.allsum_g(204, 205, "v_max_f32")
            for m in MR:
                a("v_sub_f32 %s, %s, v204" % (v(m), v(m)))
            for m in MR:
                a("v_exp_f32 %s, %s" % (v(m), v(m)))
            a("v_mul_f32 v204, v200, v202")
            if NH == 2:
                a("v_fmac_f32 v204, v210, v212")
            self.allsum_row(204)
            self.allsum_g(204, 205)
            a("v_rcp_f32 v204, v204")
            for m in MR:
                a("v_mul_f32 %s, %s, v204" % (v(m), v(m)))
            for i in range(16):
                a("v_add_u32 %s, %d, v209" % (v(168 + i), (8 * SP * i) & 255))
            for i in range(16):
                a("ds_bpermute_b32 %s, %s, %s" % (v(168 + i), v(168 + i), v(MR[(SP * i) >> 5])))

        self.poll("x3", issue3, check3, between=weights, first_wait=0)
        self.stamp(11)
        a("s_waitcnt lgkmcnt(0)")
        for i in range(16):
            q, wt = 40 + 4 * i, 168 + i
            for h in range(2):
                lo, hi = 112 + 4 * (i & 1) + 2 * h, 113 + 4 * (i & 1) + 2 * h
                a("v_lshlrev_b32 %s, 16, %s" % (v(lo), v(q + 2 * h)))
                a("v_and_b32 %s, 0xffff0000, %s" % (v(hi), v(q + 2 * h)))
            for h in range(2):
                lo = 112 + 4 * (i & 1) + 2 * h
                sel = "op_sel_hi:[1,0,1]" if wt % 2 == 0 else "op_sel:[0,1,0] op_sel_hi:[1,1,1]"
                wp = v(wt & ~1, 2)
                if i == 0:
                    a("v_pk_mul_f32 %s, %s, %s op_sel_hi:[1,0]" % (v(104 + 2 * h, 2), v(lo, 2), wp))
                else:
                    a("v_pk_fma_f32 %s, %s, %s, %s %s" % (v(104 + 2 * h, 2), v(lo, 2), wp, v(104 + 2 * h, 2), sel))
        for swap in ["v_permlane32_swap_b32"] + (["v_permlane16_swap_b32"] if NH == 2 else []):
            for r in range(4):
                a("v_mov_b32 %s, %s" % (v(108 + r), v(104 + r)))
            for r in range(4):
                a("%s %s, %s" % (swap, v(104 + r), v(108 + r)))
            for r in range(4):
                a("v_add_f32 %s, %s, %s" % (v(104 + r), v(104 + r), v(108 + r)))
        for r in range(4):
            a("v_cvt_pk_bf16_f32 %s, %s, %s" % (v(104 + r), v(104 + r), v(104 + r)))
        a("s_lshl_b32 %s, %s, 9" % (s(sT1), s(sW)))
        a("s_add_u32 %s, %s, %d" % (s(sT1), s(sT1), LT))
        a("v_add_u32 %s, %s, %s" % (v(vA0), s(sT1), v(vA2)))
        a("ds_write_b128 %s, v[104:107]" % v(vA0))
        self.a_gemv()

    def a_gemv(self):
        a, c = self.a, self.c
        NT = 32 // self.NH
        a("v_lshrrev_b32 %s, 4, %s" % (v(vA1), v(vL)))
        a("v_lshlrev_b32 %s, 2, %s" % (v(vA1), v(vA1)))
        a("v_add_u32 %s, %s, %s" % (v(vA1), s(sT1), v(vA1)))
        for t in range(0, NT, 2):
            a("ds_read2_b32 %s, %s offset0:%d offset1:%d" % (v(40 + t, 2), v(vA1), 4 * t, 4 * t + 4))
        for t in range(NT):
            if t % 2 == 0:
                a("s_waitcnt lgkmcnt(%d)" % (NT // 2 - 1 - t // 2))
            self.delta_mfma(108, ar(128 + 4 * t, 4), 40 + t, 112 + 4 * (t & 1), t == 0)
        a("v_lshrrev_b32 %s, 4, %s" % (v(vA0), v(vL)))
        a("v_lshlrev_b32 %s, 9, %s" % (v(vA0), v(vA0)))
        a("v_and_b32 %s, 7, %s" % (v(vA1), v(vL)))
        a("v_lshlrev_b32 %s, 4, %s" % (v(vA1), v(vA1)))
        a("s_lshl_b32 %s, %s, 2" % (s(sT1), s(sW)))
        a("s_add_u32 %s, %s, %d" % (s(sT1), s(sT1), LR))
        a("v_add3_u32 %s, %s, %s, %s" % (v(vA0), v(vA0), v(vA1), s(sT1)))
        for r in range(4):
            a("ds_write_b32 %s, %s offset:%d" % (v(vA0), v(108 + r), 128 * r))
        a("s_waitcnt lgkmcnt(0)")
        a("s_barrier")
        a("s_cmp_ge_u32 %s, 2" % s(sW))
        a("s_cbranch_scc1 L_a_done")
        a("s_lshl_b32 %s, %s, 10" % (s(sT1), s(sW)))
        a("s_add_u32 %s, %s, %d" % (s(sT1), s(sT1), LR))
        a("v_add_u32 %s, %s, %s" % (v(vA0), s(sT1), v(vO16)))
        a("ds_read_b128 v[40:43], %s" % v(vA0))
        a("s_lshl_b32 %s, s2, 10" % s(sT1))
        a("s_lshl_b32 %s, %s, 9" % (s(sT2), s(sW)))
        a("s_add_u32 %s, %s, %s" % (s(sT1), s(sT1), s(sT2)))
        a("s_add_u32 %s, %s, 0x%x" % (s(sT1), s(sT1), WS_X4A))
        a("v_lshlrev_b32 %s, 3, %s" % (v(vA1), v(vL)))
        a("s_waitcnt lgkmcnt(0)")
        a("v_add_f32 v40, v40, v41")
        a("v_add_f32 v42, v42, v43")
        a("v_add_f32 v40, v40, v42")
        a("v_mov_b32 v41, %s" % s(sTAG))
        a("buffer_store_dwordx2 v[40:41], %s, %s, %s offen sc0 sc1" % (v(vA1), s(R_WS, 4), s(sT1)))
        a.label("L_a_done")
        self.stamp(10)
        self.end()

    def build(self):
        a = self.a
        self.prologue()
        self.q_phase()
        self.q_gather()
        self.b_main()
        self.tail()
        self.a_main()
        a.label("L_exit")
        a("s_endpgm")
        a.label("L_codeend")
        body = a.finalize()
        head = open(os.path.join(os.path.dirname(os.path.abspath(__file__)), "header.txt")).read()
        head = head.replace("@LDS@", str(LDS_BYTES))
        if self.c.xnt & 1:
            body = body.replace(" sc0 sc1\n", " sc0 sc1 nt\n")
        if self.c.xnt & 2:
            body = body.replace(" sc1\n", " sc1 nt\n").replace(" sc0 sc1 nt\n", " sc0 sc1\n" if not self.c.xnt & 1 else " sc0 sc1 nt\n")
        return head + body + FOOTER


FOOTER = """.section .rodata,"a"
.p2align 6
.amdhsa_kernel %s_kernel
  .amdhsa_next_free_vgpr 512
  .amdhsa_next_free_sgpr 102
  .amdhsa_accum_offset 256
  .amdhsa_group_segment_fixed_size 0
  .amdhsa_kernarg_size 120
  .amdhsa_user_sgpr_count 2
  .amdhsa_user_sgpr_kernarg_segment_ptr 1
  .amdhsa_system_sgpr_workgroup_id_x 1
.end_amdhsa_kernel
""" % NAME


def main():
    p = argparse.ArgumentParser()
    p.add_argument("-o", default="cdna_kernels/%s.s" % NAME)
    p.add_argument("--nq", type=int, default=8)
    p.add_argument("--nt", default="nt")
    p.add_argument("--debug", action="store_true")
    p.add_argument("--na", type=int, default=64)
    p.add_argument("--uv0", type=int, default=16)
    p.add_argument("--t0", type=int, default=20)
    p.add_argument("--bstamp", action="store_true")
    p.add_argument("--xnt", type=int, default=0)
    p.add_argument("--lfirst", type=int, default=1)
    p.add_argument("--local", type=int, default=1)
    p.add_argument("--dyn", type=int, default=1)
    p.add_argument("--diag", type=int, default=0)
    p.add_argument("--g1", type=int, default=0)
    p.add_argument("--gk", type=int, default=0)
    p.add_argument("--cstride", type=lambda x: int(x, 0), default=256)
    p.add_argument("--td", type=int, default=0)
    p.add_argument("--td2", type=int, default=0)
    p.add_argument("--gearly", type=int, default=0)
    p.add_argument("--tdv", type=int, default=0)
    p.add_argument("--x4c", type=int, default=0)
    p.add_argument("--pre2", type=int, default=0)
    p.add_argument("--uve", type=int, default=0)
    p.add_argument("--t1e", type=int, default=0)
    p.add_argument("--uv1", type=int, default=0)
    p.add_argument("--tdp", type=int, default=0)
    p.add_argument("--ttouch", type=int, default=0)
    p.add_argument("--tde", type=int, default=0)
    p.add_argument("--mlw", type=int, default=0)
    p.add_argument("--x3u", type=int, default=1)
    p.add_argument("--sblk", type=int, default=16)
    p.add_argument("--dsplit", default="2,3,3")
    p.add_argument("--elapsed", action="store_true")
    p.add_argument("--no-prefetch", dest="prefetch", action="store_false")
    p.add_argument("--spin", type=lambda x: int(x, 0), default=0x2000)
    cfg = p.parse_args()
    text = Gen(cfg).build()
    open(cfg.o, "w").write(text)
    print("wrote", cfg.o, len(text), "bytes")


if __name__ == "__main__":
    main()
```
